```python
import torch

def _softmax(x, axis=-1):
    return torch.softmax(x, dim=axis)
def _gelu(x):
    return torch.nn.functional.gelu(x, approximate="tanh")
def _silu(x):
    return torch.nn.functional.silu(x)
def _sigmoid(x):
    return torch.sigmoid(x)
def _layernorm(x, axis=-1, eps=1e-5):
    m = x.mean(dim=axis, keepdim=True)
    v = x.var(dim=axis, keepdim=True, unbiased=False)
    return (x - m) / torch.sqrt(v + eps)
def _scatter_add(tgt, idx, src, axis=0):
    return tgt.clone().index_add_(axis, idx, src)
def _segment_sum(src, seg, n):
    out = torch.zeros((n,) + src.shape[1:], dtype=src.dtype)
    return out.index_add_(0, seg, src)
def _pad(x, pw):
    flat = tuple(v for pair in reversed(pw) for v in pair)
    return torch.nn.functional.pad(x, flat)

kernel_name = 'sequential_preLN__sliding_local_dilated__mixer_token_mlp__prompt'

def setup_inputs():

    _w = (lambda a: (lambda t: t.to(torch.bfloat16) if t.is_floating_point() else t)(torch.as_tensor(a)))
    def _A_setup():
        B, S, D = 1, 2048, 512
        return {
            "x": _w((lambda *s: torch.randn(*s, dtype=torch.bfloat16) * 0.05)(B, S, D)),
            "wqkv": _w((lambda *s: torch.randn(*s, dtype=torch.bfloat16) * 0.05)(D, 3 * D)),
            "wo": _w((lambda *s: torch.randn(*s, dtype=torch.bfloat16) * 0.05)(D, D)),
        }
    _A_in = _A_setup()

    def _B_setup():
        B, S, D, F = 1, 2048, 512, 1792
        return {
            "x": _w((lambda *s: torch.randn(*s, dtype=torch.bfloat16) * 0.05)(B, S, D)),
            "w1": _w((lambda *s: torch.randn(*s, dtype=torch.bfloat16) * 1.6)(S, F) * (S ** -0.5)),
            "b1": _w((lambda *s: torch.randn(*s, dtype=torch.bfloat16) * 12.8)(F) * 0.02),
            "w2": _w((lambda *s: torch.randn(*s, dtype=torch.bfloat16) * 0.8)(F, S) * (F ** -0.5)),
            "b2": _w((lambda *s: torch.randn(*s, dtype=torch.bfloat16) * 12.8)(S) * 0.02),
        }
    _B_in = _B_setup()

    return {
        "A_x": _A_in["x"],
        "A_wqkv": _A_in["wqkv"],
        "A_wo": _A_in["wo"],
        "B_x": _B_in["x"],
        "B_w1": _B_in["w1"],
        "B_b1": _B_in["b1"],
        "B_w2": _B_in["w2"],
        "B_b2": _B_in["b2"],
    }

def reference(A_x, A_wqkv, A_wo, B_x, B_w1, B_b1, B_w2, B_b2):
    def _A_ref(x, wqkv, wo):
        B, S, D = x.shape
        H = 32; Dh = D // H
        W, dil = 8, 2
        qkv = (lambda x, *d: x.permute(*d))((x @ wqkv).reshape(B, S, 3, H, Dh), 2, 0, 3, 1, 4)
        q, k, v = qkv[0], qkv[1], qkv[2]
        scale = Dh ** -0.5
        pos = torch.arange(S)
        off = torch.arange(W) * dil
        idx = pos[:, None] - off[None, :]
        mask = idx >= 0
        idx_c = torch.where(mask, idx, 0).reshape(-1)
        kg = k[:, :, idx_c, :].reshape(B, H, S, W, Dh)
        vg = v[:, :, idx_c, :].reshape(B, H, S, W, Dh)
        logits = torch.einsum("bhsd,bhswd->bhsw", q, kg) * scale
        logits = torch.where(mask[None, None, :, :], logits, -1e9)
        attn = _softmax(logits, axis=-1)
        o = torch.einsum("bhsw,bhswd->bhsd", attn, vg)
        return (lambda x, *d: x.permute(*d))(o, 0, 2, 1, 3).reshape(B, S, D) @ wo

    def _B_ref(x, w1, b1, w2, b2):
        B, S, D = x.shape
        h = _layernorm(x, axis=-1)
        u = torch.einsum("bsd,sf->bdf", h, w1) + b1
        u = _gelu(u)
        y = torch.einsum("bdf,fs->bds", u, w2) + b2
        return (lambda x, *d: x.permute(*d))(y, 0, 2, 1)

    x = A_x
    h = x + _A_ref(_layernorm(x, axis=-1), A_wqkv, A_wo)
    h2 = h + _B_ref(_layernorm(h, axis=-1), B_w1, B_b1, B_w2, B_b2)
    return h2
```

```python
import re

REG_RE = re.compile(r'^(-|\|)?(abs\()?([vas])(\d+|\[(\d+):(\d+)\])\)?\|?$')
TRANS = ('v_exp_', 'v_log_', 'v_rcp_', 'v_rsq_', 'v_sqrt_', 'v_sin_', 'v_cos_')

def parse_reg(tok):
    tok = tok.strip()
    if tok in ('vcc',): return {('s', 'vcc_lo'), ('s', 'vcc_hi')}
    if tok in ('vcc_lo', 'vcc_hi'): return {('s', tok)}
    if tok == 'exec': return {('s', 'exec_lo'), ('s', 'exec_hi')}
    if tok in ('exec_lo', 'exec_hi'): return {('s', tok)}
    if tok == 'm0': return {('s', 'm0')}
    m = REG_RE.match(tok)
    if not m: return set()
    kind = m.group(3)
    if m.group(5) is not None:
        lo, hi = int(m.group(5)), int(m.group(6))
    else:
        lo = hi = int(m.group(4))
    return {(kind, n) for n in range(lo, hi + 1)}

def split_ops(s):
    out, depth, cur = [], 0, ''
    for ch in s:
        if ch in '[(': depth += 1
        if ch in '])': depth -= 1
        if ch == ',' and depth == 0:
            out.append(cur.strip()); cur = ''
        else:
            cur += ch
    if cur.strip(): out.append(cur.strip())
    return out

class Ins:
    __slots__ = ('text', 'op', 'dst', 'src', 'kind', 'passes', 'srcA', 'srcB', 'srcC', 'dpp', 'trans', 'states',
                 'target', 'storedata', 'lds_dma', 'opsel', 'lanesel', 'comment')
    def __init__(self, text):
        self.text = text
        code = text.split(';')[0].strip()
        parts = code.split(None, 1)
        self.op = op = parts[0]
        rest = parts[1] if len(parts) > 1 else ''
        ops = split_ops(rest)
        mods = []
        if ops:
            toks = []
            depth = 0; cur = ''
            for ch in ops[-1]:
                if ch in '[(': depth += 1
                if ch in '])': depth -= 1
                if ch == ' ' and depth == 0:
                    if cur: toks.append(cur)
                    cur = ''
                else: cur += ch
            if cur: toks.append(cur)
            ops[-1] = toks[0]; mods = toks[1:]
        self.dst = set(); self.src = set(); self.kind = 'other'; self.passes = 0
        self.srcA = self.srcB = self.srcC = set(); self.dpp = False; self.trans = False
        self.states = 1; self.target = None; self.storedata = set(); self.lds_dma = False; self.opsel = False
        self.lanesel = set()
        R = [parse_reg(o) for o in ops]
        U = lambda l: set().union(*l) if l else set()
        if op.startswith('v_mfma'):
            self.kind = 'mfma'
            self.dst = R[0]; self.srcA, self.srcB, self.srcC = R[1], R[2], R[3]
            self.src = R[1] | R[2] | R[3]
            self.passes = 8 if '32x32' in op else 4
            assert 'bf16' in op or 'f16' in op
        elif op.startswith('v_'):
            self.kind = 'valu'
            self.dpp = '_dpp' in op or any(m.startswith(('quad_perm', 'row_', 'wave_')) for m in mods)
            self.trans = op.startswith(TRANS)
            self.opsel = '_sdwa' in op and any(m.startswith('dst_sel') and 'DWORD' not in m for m in mods) or \
                (not op.startswith('v_pk_') and any(m.startswith('op_sel:') for m in mods))
            if op.startswith('v_cmp'):
                self.dst = R[0]; self.src = U(R[1:])
                if op.startswith('v_cmpx'): self.dst |= parse_reg('exec')
            elif op.startswith(('v_add_co', 'v_sub_co', 'v_subrev_co', 'v_addc_co', 'v_subb_co', 'v_div_scale', 'v_mad_u64_u32', 'v_mad_i64')):
                self.dst = R[0] | R[1]; self.src = U(R[2:])
            elif op.startswith(('v_permlane16_swap', 'v_permlane32_swap', 'v_swap')):
                self.dst = R[0] | R[1]; self.src = R[0] | R[1]
            elif op.startswith(('v_fmac', 'v_dot2c', 'v_pk_fmac', 'v_dot4c', 'v_writelane')):
                self.dst = R[0]; self.src = U(R)
            elif op.startswith('v_nop'):
                pass
            else:
                self.dst = R[0]; self.src = U(R[1:])
                if self.dpp: self.src |= R[0]
            if op.startswith(('v_readlane', 'v_writelane')): self.lanesel = R[2]
            if op.startswith('v_dot'): self.kind = 'dot'
        elif op.startswith('ds_'):
            self.kind = 'ds'
            if op.startswith(('ds_read', 'ds_bpermute', 'ds_permute', 'ds_swizzle')) or '_rtn' in op:
                self.dst = R[0]; self.src = U(R[1:])
            else:
                self.src = U(R)
        elif op.startswith('buffer_'):
            self.kind = 'vmem'
            if op.startswith(('buffer_inv', 'buffer_wbl2')):
                pass
            elif op.startswith('buffer_load'):
                if 'lds' in mods:
                    self.lds_dma = True; self.src = U(R) | parse_reg('m0')
                else:
                    self.dst = R[0]; self.src = U(R[1:])
            elif op.startswith('buffer_store'):
                self.src = U(R)
                if len(R[0]) >= 3: self.storedata = R[0]
            else:
                self.src = U(R)
                if 'sc0' in mods: self.dst = R[0]
        elif op.startswith('global_'):
            self.kind = 'vmem'
            if op.startswith('global_load_lds'):
                self.lds_dma = True; self.src = U(R) | parse_reg('m0')
            elif op.startswith('global_load'):
                self.dst = R[0]; self.src = U(R[1:])
            elif op.startswith('global_store'):
                self.src = U(R)
                if len(R[1]) >= 3: self.storedata = R[1]
            else:
                if 'sc0' in mods: self.dst = R[0]; self.src = U(R[1:])
                else: self.src = U(R)
        elif op.startswith('s_'):
            self.kind = 'salu'
            if op == 's_nop':
                self.states = int(ops[0], 0) + 1
            elif op.startswith(('s_cbranch', 's_branch')):
                self.target = ops[0]
            elif op.startswith(('s_cmp', 's_bitcmp', 's_waitcnt', 's_barrier', 's_endpgm', 's_sleep', 's_setprio', 's_setreg', 's_sendmsg')):
                self.src = U(R)
            else:
                self.dst = R[0]; self.src = U(R[1:])
                if 'saveexec' in op: self.dst |= parse_reg('exec')
                if op.startswith(('s_load', 's_buffer_load', 's_mem')): self.kind = 'smem'
        else:
            raise ValueError('unknown op ' + text)

def isv(regs): return {r for r in regs if r[0] in 'va'}
def iss(regs): return {r for r in regs if r[0] == 's'}
EXEC = {('s', 'exec_lo'), ('s', 'exec_hi')}

def need(p, c):
    n = 0
    pv = p.kind in ('valu', 'dot')
    cv = c.kind in ('valu', 'dot')
    if p.storedata and (c.dst & p.storedata):
        n = max(n, 2)
    if pv:
        ps = iss(p.dst)
        if ps:
            if c.kind == 'vmem' and (c.src & ps): n = max(n, 5)
            if cv and (c.src & ps): n = max(n, 2)
            if cv and (c.lanesel & ps): n = max(n, 4)
            if ps & EXEC:
                if c.dpp: n = max(n, 5)
                if c.kind == 'mfma': n = max(n, 4)
                if c.op.startswith(('v_readlane', 'v_readfirstlane', 'v_writelane', 'v_permlane')): n = max(n, 4)
        pd = isv(p.dst)
        if pd:
            if c.dpp and (c.src & pd): n = max(n, 2)
            if c.op.startswith(('v_readlane', 'v_readfirstlane')) and (c.src & pd): n = max(n, 1)
            if c.op.startswith('v_permlane') and (c.src & pd): n = max(n, 2)
            if p.trans and cv and not c.trans and (c.src & pd): n = max(n, 1)
            if p.trans and c.kind in ('mfma',) and (c.src & pd): n = max(n, 2)
            if p.opsel and cv and ((c.src | c.dst) & pd): n = max(n, 1)
            if c.kind == 'mfma' and (c.src & pd): n = max(n, 2 if p.kind == 'valu' else 3)
            if p.kind == 'dot':
                if c.kind == 'dot' and c.op == p.op:
                    ab = set()
                    code = c.text.split(';')[0].split(None, 1)[1]
                    o = split_ops(code)
                    for t in o[1:3]: ab |= parse_reg(t.split()[0])
                    if ab & pd: n = max(n, 3)
                elif ((c.src | c.dst) & pd): n = max(n, 3)
    if p.kind == 'salu' and ('s', 'm0') in p.dst and (c.lds_dma or c.op.startswith('s_sendmsg')):
        n = max(n, 1)
    if p.kind == 'mfma':
        D = p.dst
        big = {4: 8, 8: 12}[p.passes]
        if c.kind == 'mfma':
            if c.srcC & D:
                if not (c.srcC == D and c.op == p.op): n = max(n, {4: 6, 8: 10}[p.passes])
            if (c.srcA | c.srcB) & D: n = max(n, big)
            if (c.dst & D) and not (c.srcC & D): n = max(n, big)
        elif cv or c.kind in ('ds', 'vmem'):
            if (c.src | c.dst) & D: n = max(n, big)
        if cv and (c.dst & p.srcC): n = max(n, {4: 3, 8: 7}[p.passes])
        if c.kind in ('ds', 'vmem') and (c.dst & p.srcC): n = max(n, {4: 3, 8: 7}[p.passes])
    return n

class Asm:
    def __init__(self):
        self.items = []
        self.uid = 0
    def __call__(self, text):
        for line in text.strip().split('\n'):
            line = line.strip()
            if not line or line.startswith(';'):
                continue
            if line.endswith(':'):
                self.items.append(('label', line[:-1]))
            else:
                self.items.append(Ins(line))
    def label(self, name): self.items.append(('label', name))
    def raw(self, text): self.items.append(('raw', text))
    def newlabel(self, base='L'):
        self.uid += 1
        return f'{base}_{self.uid}'
    def finalize(self):
        items = self.items
        MAXD = 20
        def build():
            jumps = {}
            for k, it in enumerate(items):
                if isinstance(it, Ins) and it.target is not None:
                    jumps.setdefault(it.target, []).append(k)
            return jumps
        nins = 0
        for _round in range(3):
            jumps = build()
            k = 0
            changed = False
            while k < len(items):
                it = items[k]
                if isinstance(it, Ins) and it.op != 's_nop':
                    deficit = 0
                    stack = [(k - 1, 0, False)]
                    seen = {}
                    while stack:
                        j, d, via = stack.pop()
                        while j >= 0 and d < MAXD:
                            if seen.get(j, 99) <= d: break
                            seen[j] = d
                            pj = items[j]
                            if isinstance(pj, tuple):
                                if pj[0] == 'label':
                                    for src in jumps.get(pj[1], []):
                                        stack.append((src, d, True))
                                j -= 1; via = False
                                continue
                            if pj.op in ('s_branch', 's_endpgm') and not via:
                                break
                            via = False
                            n = need(pj, it)
                            if n > d: deficit = max(deficit, n - d)
                            d += pj.states
                            j -= 1
                    if deficit > 0:
                        changed = True
                        while deficit > 0:
                            q = min(deficit, 16)
                            items.insert(k, Ins(f's_nop {q - 1}'))
                            k += 1; nins += 1
                            deficit -= q
                        jumps = build()
                k += 1
            if not changed: break
        self.nops_inserted = nins
        lines = []
        for it in items:
            if isinstance(it, Ins): lines.append('    ' + it.text)
            elif it[0] == 'label': lines.append(it[1] + ':')
            else: lines.append(it[1])
        return '\n'.join(lines) + '\n'
```

```python
import sys
from asmgen import Asm

NAME = "sequential_preLN__sliding_local_dilated__mixer_token_mlp__prompt"
PROF = '--prof' in sys.argv
NSTAMP = 20
MB = 1 << 20
WS_OF, WS_HPF, WS_HF, WS_UF, WS_ST = 0, 2 * MB, 4 * MB, 6 * MB, 8 * MB
TAG = 0x5A5A1234
NEGBIG = 0xF149F2CA

def vr(b, n=1): return f'v{b}' if n == 1 else f'v[{b}:{b+n-1}]'
def ar(b, n=1): return f'a{b}' if n == 1 else f'a[{b}:{b+n-1}]'
def sr(b, n=1): return f's{b}' if n == 1 else f's[{b}:{b+n-1}]'

def kstart(a, name):
    a.raw(f'.globl {name}\n.p2align 8\n.type {name},@function')
    a.label(name)

def kdesc(name, vgpr, agpr, sgpr=102):
    acc = (vgpr + 3) // 4 * 4
    return f""".amdhsa_kernel {name}
  .amdhsa_next_free_vgpr {acc + agpr if agpr else acc}
  .amdhsa_next_free_sgpr {sgpr}
  .amdhsa_accum_offset {acc}
  .amdhsa_group_segment_fixed_size 0
  .amdhsa_kernarg_size 88
  .amdhsa_user_sgpr_count 2
  .amdhsa_user_sgpr_kernarg_segment_ptr 1
  .amdhsa_system_sgpr_workgroup_id_x 1
.end_amdhsa_kernel
"""

def mk_srd(a, s, ptr, nbytes, off=0):
    if off:
        a(f's_add_u32 s{s}, s{ptr}, {off:#x}')
        a(f's_addc_u32 s{s+1}, s{ptr+1}, 0')
    else:
        a(f's_mov_b32 s{s}, s{ptr}')
        a(f's_mov_b32 s{s+1}, s{ptr+1}')
    a(f's_mov_b32 s{s+2}, {nbytes:#x}')
    a(f's_mov_b32 s{s+3}, 0x20000')

class Prof:
    def __init__(self, a, base_slot):
        self.a = a; self.base = base_slot; self.n = 0
    def stamp(self):
        if not PROF: return
        self.a(f's_memrealtime s[{70 + 2*self.n}:{71 + 2*self.n}]')
        self.n += 1
    def flush(self, wsptr, wave_sgpr, vtmp):
        if not PROF: return
        a = self.a
        L = a.newlabel('Lprof')
        a('s_waitcnt lgkmcnt(0)')
        a(f's_cmp_lg_u32 s{wave_sgpr}, 0')
        a(f's_cbranch_scc1 {L}')
        a(f's_mul_i32 s68, s2, {NSTAMP * 8}')
        a(f's_add_u32 s68, s68, {128 * MB + self.base * 8:#x}')
        a(f's_add_u32 s66, s{wsptr}, s68')
        a(f's_addc_u32 s67, s{wsptr+1}, 0')
        a(f'v_mov_b32 v{vtmp}, 0')
        for i in range(self.n):
            a(f'v_mov_b32 v{vtmp+2}, s{70+2*i}')
            a(f'v_mov_b32 v{vtmp+3}, s{71+2*i}')
            a(f'global_store_dwordx2 v{vtmp}, v[{vtmp+2}:{vtmp+3}], s[66:67] offset:{8*i}')
            a('s_waitcnt vmcnt(0)')
        a.label(L)

def lane_decomp(a, vl, vg, vc, swave):
    a(f'v_lshrrev_b32 v{vg}, 6, v0')
    a(f'v_and_b32 v{vl}, 63, v0')
    a(f'v_readfirstlane_b32 s{swave}, v{vg}')
    a(f'v_lshrrev_b32 v{vg}, 4, v{vl}')
    a(f'v_and_b32 v{vc}, 15, v{vl}')

def gen_k1(a):
    name = 'p1_kernel'
    kstart(a, name)
    P = Prof(a, 0)
    P.stamp()
    L_W = 0
    L_XT = 98304
    L_EX = L_XT + 16384
    L_NM = L_EX + 5 * 6144
    L_RS = L_NM + 576
    L_HP = L_RS + 576
    LDS = L_HP + 512
    sX, sW, sO, sST = 4, 8, 12, 28
    sWAVE, sRT, sHP, sP, sT = 16, 17, 18, 19, 20
    sB0, sB1, sBH, sWB, sLB, sTMP = 21, 22, 23, 24, 25, 26
    sPX, sPW, sPWS = 32, 34, 36
    sONES = 38
    vL, vG, vC = 1, 2, 3
    vXO, vWO, vXW, vXR = 4, 5, 6, 7
    vTR = 8
    vT0, vT1 = 12, 13
    vS = 14
    WF = 16
    XS = 64
    ACC = 208
    XF = 0
    HACC = 144
    SUM = [XS + 4, XS + 6]
    a(f's_load_dwordx4 s[{sPX}:{sPX+3}], s[0:1], 0')
    a(f's_load_dwordx2 s[{sPWS}:{sPWS+1}], s[0:1], 80')
    a('s_cmp_ge_u32 s2, 256')
    a('s_cbranch_scc1 L_k1_end')
    lane_decomp(a, vL, vG, vC, sWAVE)
    a(f's_and_b32 s{sTMP}, s2, 7')
    a(f's_lshr_b32 s{sHP}, s2, 3')
    a(f's_lshr_b32 s{sRT}, s{sHP}, 4')
    a(f's_lshl_b32 s{sTMP}, s{sTMP}, 1')
    a(f's_add_u32 s{sRT}, s{sRT}, s{sTMP}')
    a(f's_and_b32 s{sHP}, s{sHP}, 15')
    a(f's_lshr_b32 s{sP}, s{sRT}, 3')
    a(f's_and_b32 s{sT}, s{sRT}, 7')
    a(f's_lshl_b32 s{sB0}, s{sT}, 3')
    a(f's_sub_u32 s{sBH}, s{sB0}, 1')
    a(f's_max_i32 s{sBH}, s{sBH}, 0')
    a(f's_lshl_b32 s{sTMP}, s{sWAVE}, 1')
    a(f's_add_u32 s{sB0}, s{sB0}, s{sTMP}')
    a(f's_lshl_b32 s{sB0}, s{sB0}, 15')
    a(f's_lshl_b32 s{sTMP}, s{sP}, 10')
    a(f's_add_u32 s{sB0}, s{sB0}, s{sTMP}')
    a(f's_add_u32 s{sB1}, s{sB0}, 32768')
    a(f's_lshl_b32 s{sBH}, s{sBH}, 15')
    a(f's_add_u32 s{sBH}, s{sBH}, s{sTMP}')
    a(f's_lshl_b32 s{sTMP}, s{sWAVE}, 8')
    a(f's_add_u32 s{sBH}, s{sBH}, s{sTMP}')
    a(f's_mul_i32 s{sWB}, s{sWAVE}, {32*3072}')
    a(f's_lshl_b32 s{sTMP}, s{sHP}, 6')
    a(f's_add_u32 s{sWB}, s{sWB}, s{sTMP}')
    a(f's_mul_i32 s{sLB}, s{sWAVE}, 6144')
    a(f's_mov_b32 s{sONES}, 0x3f803f80')
    a(f'v_lshrrev_b32 v{vT0}, 2, v{vL}')
    a(f'v_and_b32 v{vT1}, 3, v{vL}')
    a(f'v_lshlrev_b32 v{vXO}, 11, v{vT0}')
    a(f'v_lshl_add_u32 v{vXO}, v{vT1}, 4, v{vXO}')
    a(f'v_lshlrev_b32 v{vXW}, 1, v{vT1}')
    a(f'v_xor_b32 v{vXW}, v{vXW}, v{vT0}')
    a(f'v_lshlrev_b32 v{vXW}, 4, v{vXW}')
    a(f'v_lshl_add_u32 v{vXW}, v{vT1}, 8, v{vXW}')
    a(f's_lshl_b32 s{sTMP}, s{sWAVE}, 12')
    a(f's_add_u32 s{sTMP}, s{sTMP}, {L_XT}')
    a(f'v_add_u32 v{vXW}, s{sTMP}, v{vXW}')
    a(f'v_lshlrev_b32 v{vXR}, 1, v{vG}')
    a(f'v_xor_b32 v{vXR}, v{vXR}, v{vC}')
    a(f'v_lshlrev_b32 v{vXR}, 4, v{vXR}')
    a(f'v_lshl_add_u32 v{vXR}, v{vG}, 8, v{vXR}')
    a(f'v_add_u32 v{vXR}, s{sTMP}, v{vXR}')
    a(f'v_and_b32 v{vT0}, 3, v{vT0}')
    a(f'v_lshl_add_u32 v{vT0}, v{vG}, 3, v{vT0}')
    a(f'v_mul_u32_u24 v{vWO}, 3072, v{vT0}')
    a(f'v_lshrrev_b32 v{vT0}, 1, v{vL}')
    a(f'v_xor_b32 v{vT0}, v{vT0}, v{vG}')
    a(f'v_and_b32 v{vT0}, 1, v{vT0}')
    a(f'v_lshl_add_u32 v{vWO}, v{vT0}, 5, v{vWO}')
    a(f'v_and_b32 v{vT0}, 1, v{vL}')
    a(f'v_lshl_add_u32 v{vWO}, v{vT0}, 4, v{vWO}')
    a(f'v_lshrrev_b32 v{vT0}, 2, v{vL}')
    a(f'v_lshlrev_b32 v{vTR}, 6, v{vT0}')
    a(f'v_lshl_add_u32 v{vTR}, v{vT1}, 3, v{vTR}')
    a(f'v_and_b32 v{vT0}, 1, v{vG}')
    a(f'v_lshl_add_u32 v{vTR}, v{vT0}, 5, v{vTR}')
    a(f'v_xor_b32 v{vTR+1}, 32, v{vTR}')
    a(f'v_add_u32 v{vTR+2}, 49152, v{vTR}')
    a(f'v_add_u32 v{vTR+3}, 49152, v{vTR+1}')
    a('s_waitcnt lgkmcnt(0)')
    mk_srd(a, sX, sPX, 2048 * 1024)
    mk_srd(a, sW, sPW, 512 * 3072)
    mk_srd(a, sO, sPWS, 2 * MB, WS_OF)
    mk_srd(a, sST, sPWS, 256 * 1024, WS_ST)
    def xs(f): return XS + 4 * f
    for i in range(4):
        a(f'buffer_load_dwordx4 {vr(xs(i),4)}, v{vXO}, s[{sX}:{sX+3}], s{sBH} offen offset:{64*i}')
    for c in range(4):
        for blk in range(2):
            for i in range(4 * c, 4 * c + 4):
                a(f'buffer_load_dwordx4 {vr(xs(4+16*blk+i),4)}, v{vXO}, s[{sX}:{sX+3}], s{[sB0,sB1][blk]} offen offset:{64*i}')
        for h in range(2):
            a(f's_add_u32 s{sTMP}, s{sWB}, {(128*c + 4*h) * 3072}')
            a(f's_add_u32 m0, s{sLB}, {L_W + (8*c + h) * 3072}')
            for R in range(3):
                a(f'buffer_load_dwordx4 v{vWO}, s[{sW}:{sW+3}], s{sTMP} offen offset:{1024*R} lds')
    a(f'v_mov_b32 v{vT0}, 0')
    a(f'v_lshlrev_b32 v{vT1}, 2, v0')
    a(f's_lshl_b32 s{sTMP}, s2, 10')
    a(f'buffer_store_dword v{vT0}, v{vT1}, s[{sST}:{sST+3}], s{sTMP} offen')
    TOT = 61
    def xproc(f, sumreg, slot, first):
        b = xs(f)
        for d in range(4):
            if first and d == 0:
                a(f'v_mov_b32 v{sumreg}, 0')
                a(f'v_mov_b32 v{sumreg+1}, 0')
            a(f'v_dot2c_f32_bf16 v{sumreg}, s{sONES}, v{b+d}')
            a(f'v_dot2c_f32_bf16 v{sumreg+1}, v{b+d}, v{b+d}')
        a(f'ds_write_b128 v{vXW}, {vr(b,4)} offset:{1024*slot}')
        a(f'ds_read_b128 {ar(XF+4*f,4)}, v{vXR} offset:{1024*slot}')
    a(f's_waitcnt vmcnt({TOT-4})')
    P.stamp()
    a('s_mov_b64 exec, 15')
    for r in range(16):
        a(f'v_mov_b32 v{XS+r}, s{sONES}')
    a('s_mov_b64 exec, -1')
    for i in range(4):
        xproc(i, vS, i, i == 0)
    def quadred(r):
        a(f'v_add_f32_dpp v{r}, v{r}, v{r} quad_perm:[1,0,3,2] row_mask:0xf bank_mask:0xf')
    def quadred2(r):
        a(f'v_add_f32_dpp v{r}, v{r}, v{r} quad_perm:[2,3,0,1] row_mask:0xf bank_mask:0xf')
    quadred(vS); quadred(vS + 1); quadred2(vS); quadred2(vS + 1)
    a(f'v_lshrrev_b32 v{vT0}, 2, v{vL}')
    a(f'v_lshlrev_b32 v{vT0}, 3, v{vT0}')
    a(f's_lshl_b32 s{sTMP}, s{sWAVE}, 7')
    a(f's_add_u32 s{sTMP}, s{sTMP}, {L_HP}')
    a(f'v_add_u32 v{vT0}, s{sTMP}, v{vT0}')
    a(f'ds_write_b64 v{vT0}, v[{vS}:{vS+1}]')
    a('s_waitcnt lgkmcnt(0)')
    def stat_finalize(s, q, tmp):
        a(f'v_mul_f32 v{s}, {-1.0/512!r}, v{s}'.replace(repr(-1.0/512), '0xbb000000'))
        a(f'v_mul_f32 v{tmp}, v{s}, v{s}')
        a(f'v_fma_f32 v{q}, v{q}, v{vF512}, -v{tmp}')
        a(f'v_max_f32 v{q}, 0, v{q}')
        a(f'v_add_f32 v{q}, 0x3727c5ac, v{q}')
        a(f'v_rsq_f32 v{q}, v{q}')
    vF512 = XS + 8
    a(f'v_mov_b32 v{vF512}, 0x3b000000')
    def wf(buf, tile): return WF + 24 * buf + 4 * tile
    def trreads(i, buf):
        for R in range(3):
            for t in range(2):
                for h in range(2):
                    hk = 2 * i + h
                    base = vTR + t + (2 if hk >= 16 else 0)
                    off = L_W + (hk % 16) * 3072 + R * 1024
                    a(f'ds_read_b64_tr_b16 {vr(wf(buf, 2*R+t) + 2*h, 2)}, v{base} offset:{off}')
    def acc(blk, tile): return ACC + 24 * blk + 4 * tile
    vEX = vS
    a(f'v_lshlrev_b32 v{vEX}, 4, v{vL}')
    a(f'v_add_u32 v{vEX}, {L_EX}, v{vEX}')
    for c in range(4):
        a(f's_waitcnt vmcnt({TOT - (12 + 14*c)})')
        for blk in range(2):
            for i in range(4 * c, 4 * c + 4):
                xproc(4 + 16 * blk + i, SUM[blk], i % 4, i == 0)
        if c == 3:
            for blk in range(2):
                quadred(SUM[blk]); quadred(SUM[blk] + 1)
            for blk in range(2):
                quadred2(SUM[blk]); quadred2(SUM[blk] + 1)
            a(f'v_lshrrev_b32 v{vT0}, 2, v{vL}')
            a(f'v_lshlrev_b32 v{vT0}, 2, v{vT0}')
            a(f's_lshl_b32 s{sTMP}, s{sWAVE}, 7')
            a(f'v_add_u32 v{vT0}, s{sTMP}, v{vT0}')
            a(f'v_add_u32 v{vT0}, {L_NM}, v{vT0}')
            for blk in range(2):
                stat_finalize(SUM[blk], SUM[blk] + 1, vT1)
                a(f'ds_write_b32 v{vT0}, v{SUM[blk]} offset:{64*(1+blk)}')
                a(f'ds_write_b32 v{vT0}, v{SUM[blk]+1} offset:{576 + 64*(1+blk)}')
        a(f's_waitcnt vmcnt({TOT - (18 + 14*c)}) lgkmcnt(0)')
        a('s_barrier')
        if c == 0: P.stamp()
        trreads(4 * c, 0)
        if c == 1:
            HT = XS + 10
            a(f'v_lshlrev_b32 v{vT0}, 3, v{vC}')
            a(f'v_add_u32 v{vT0}, {L_HP}, v{vT0}')
            a(f'ds_read2_b64 v[{XS+12}:{XS+15}], v{vT0} offset0:0 offset1:16')
            a(f'ds_read2_b64 v[{XS+0}:{XS+3}], v{vT0} offset0:32 offset1:48')
            a('s_waitcnt lgkmcnt(0)')
            a(f'v_pk_add_f32 v[{XS+12}:{XS+13}], v[{XS+12}:{XS+13}], v[{XS+14}:{XS+15}]')
            a(f'v_pk_add_f32 v[{XS+0}:{XS+1}], v[{XS+0}:{XS+1}], v[{XS+2}:{XS+3}]')
            a(f'v_pk_add_f32 v[{XS+12}:{XS+13}], v[{XS+12}:{XS+13}], v[{XS+0}:{XS+1}]')
            stat_finalize(XS + 12, XS + 13, vT1)
            a(f'v_lshlrev_b32 v{vT0}, 2, v{vC}')
            a(f'v_add_u32 v{vT0}, {L_NM}, v{vT0}')
            a(f'ds_write_b32 v{vT0}, v{XS+12}')
            a(f'ds_write_b32 v{vT0}, v{XS+13} offset:576')
        if c > 0:
            Ls = a.newlabel('Lh')
            a(f's_cmp_lg_u32 s{sWAVE}, {c}')
            a(f's_cbranch_scc1 {Ls}')
            for tile in range(6):
                a(f'ds_read_b128 {ar(HACC+4*tile,4)}, v{vEX} offset:{1024*tile}')
            a('s_waitcnt lgkmcnt(0)')
            a.label(Ls)
        for i in range(4 * c, 4 * c + 4):
            buf = i % 2
            if i % 4 != 3:
                trreads(i + 1, 1 - buf)
                a('s_waitcnt lgkmcnt(12)')
            else:
                a('s_waitcnt lgkmcnt(0)')
            for blk in range(2):
                xf = ar(XF + 4 * (4 + 16 * blk + i), 4)
                for tile in range(6):
                    d = vr(acc(blk, tile), 4)
                    cin = '0' if i == 0 else d
                    w = vr(wf(buf, tile), 4)
                    if tile < 4: a(f'v_mfma_f32_16x16x32_bf16 {d}, {w}, {xf}, {cin}')
                    else: a(f'v_mfma_f32_16x16x32_bf16 {d}, {xf}, {w}, {cin}')
            Ls = a.newlabel('Lh')
            a(f's_cmp_lg_u32 s{sWAVE}, {c}')
            a(f's_cbranch_scc1 {Ls}')
            xf = ar(XF + 4 * (i % 4), 4)
            for tile in range(6):
                d = ar(HACC + 4 * tile, 4)
                cin = '0' if i == 0 else d
                w = vr(wf(buf, tile), 4)
                if tile < 4: a(f'v_mfma_f32_16x16x32_bf16 {d}, {w}, {xf}, {cin}')
                else: a(f'v_mfma_f32_16x16x32_bf16 {d}, {xf}, {w}, {cin}')
            if i % 4 == 3:
                for tile in range(6):
                    a(f'ds_write_b128 v{vEX}, {ar(HACC+4*tile,4)} offset:{1024*tile}')
            a.label(Ls)
    P.stamp()
    a(f's_mul_i32 s{sTMP}, s{sWAVE}, 6144')
    a(f'v_add_u32 v{vT0}, s{sTMP}, v{vEX}')
    for tile in range(2, 6):
        a(f'ds_write_b128 v{vT0}, {vr(acc(1, tile), 4)} offset:{6144 + 1024*tile}')
    Z = XS
    PREV = Z
    CW = Z + 16
    CWV = Z + 32
    STC = Z + 34
    NM4 = Z + 40
    RS4 = Z + 52
    QP = Z + 64
    KP = Z + 72
    VP = Z + 84
    BC = Z + 96
    BP = Z + 100
    BP0 = Z + 104
    MC = Z + 108
    MP = Z + 110
    ONE = Z + 112
    vNB = Z + 114
    vJ = Z + 115
    a(f'v_mov_b32 v{vNB}, {NEGBIG:#x}')
    a(f'v_mov_b32 v{ONE}, s{sONES}')
    a(f'v_mov_b32 v{ONE+1}, s{sONES}')
    a(f's_or_b32 s{sTMP}, s{sT}, s{sWAVE}')
    a(f's_cmp_eq_u32 s{sTMP}, 0')
    a(f's_cselect_b32 s40, {NEGBIG:#x}, 0')
    for r in range(4):
        a(f'v_lshl_add_u32 v{vJ}, v{vG}, 2, {r}')
        a(f'v_sub_u32 v{vJ}, v{vC}, v{vJ}')
        a(f'v_cmp_gt_u32 vcc, 8, v{vJ}')
        a(f'v_cndmask_b32 v{BC+r}, v{vNB}, 0, vcc'.replace(f'v{vNB}, 0, vcc', f'v{vNB}, v{vZERO}, vcc') if False else f'v_cndmask_b32_e64 v{BC+r}, v{vNB}, 0, vcc')
        a(f'v_cmp_gt_i32 vcc, -8, v{vJ}')
        a(f'v_cndmask_b32_e64 v{BP+r}, v{vNB}, 0, vcc')
        a(f'v_min_f32 v{BP0+r}, s40, v{BP+r}')
        a(f'v_cmp_le_i32 vcc, 0, v{vJ}')
        if r % 2 == 0:
            a(f'v_cndmask_b32_e64 v{MC+r//2}, 0, -1, vcc')
            a(f'v_and_b32 v{MC+r//2}, 0xffff, v{MC+r//2}')
        else:
            a(f'v_cndmask_b32_e64 v{vJ}, 0, -1, vcc')
            a(f'v_and_b32 v{vJ}, 0xffff0000, v{vJ}')
            a(f'v_or_b32 v{MC+r//2}, v{MC+r//2}, v{vJ}')
            a(f'v_not_b32 v{MP+r//2}, v{MC+r//2}')
    a('s_waitcnt lgkmcnt(0)')
    a('s_barrier')
    for k, tile in enumerate(range(2, 6)):
        a(f'ds_read_b128 {vr(PREV+4*k,4)}, v{vT0} offset:{1024*tile}')
    a(f'v_lshlrev_b32 v{vT1}, 8, v{vG}')
    a(f'v_add_u32 v{vT1}, {L_EX}, v{vT1}')
    for tile in range(4):
        a(f'ds_read_b128 {vr(CW+4*tile,4)}, v{vT1} offset:{1024*tile}')
    a(f'v_lshlrev_b32 v{vT1}, 4, v{vC}')
    a(f'v_add_u32 v{vT1}, {L_EX}, v{vT1}')
    a(f'ds_read2st64_b32 {vr(CWV,2)}, v{vT1} offset0:16 offset1:20')
    a(f's_lshl_b32 s{sTMP}, s{sWAVE}, 7')
    a(f's_add_u32 s{sTMP}, s{sTMP}, {L_NM}')
    a(f'v_lshl_add_u32 v{vT1}, v{vC}, 2, s{sTMP}')
    a(f'v_lshl_add_u32 v{vJ}, v{vG}, 4, s{sTMP}')
    for s in range(3):
        a(f'ds_read2_b32 {vr(STC+2*s,2)}, v{vT1} offset0:{16*s} offset1:{144+16*s}')
    a('s_waitcnt lgkmcnt(0)')
    for s in range(3):
        a(f'ds_read_b128 {vr(NM4+4*s,4)}, v{vJ} offset:{64*s}')
        a(f'ds_read_b128 {vr(RS4+4*s,4)}, v{vJ} offset:{576+64*s}')
    def epi_qk(src, cw, st, dst):
        for h in range(2):
            a(f'v_pk_fma_f32 {vr(src+2*h,2)}, {vr(cw+2*h,2)}, {vr(st,2)}, {vr(src+2*h,2)} op_sel_hi:[1,0,1]')
        for h in range(2):
            a(f'v_pk_mul_f32 {vr(src+2*h,2)}, {vr(src+2*h,2)}, {vr(st,2)} op_sel:[0,1] op_sel_hi:[1,1]')
        for h in range(2):
            a(f'v_cvt_pk_bf16_f32 v{dst+h}, v{src+2*h}, v{src+2*h+1}')
    def epi_v(src, head, s, dst):
        sel = 'op_sel_hi:[1,0,1]' if head == 0 else 'op_sel:[0,1,0] op_sel_hi:[1,1,1]'
        for h in range(2):
            a(f'v_pk_fma_f32 {vr(src+2*h,2)}, {vr(NM4+4*s+2*h,2)}, {vr(CWV,2)}, {vr(src+2*h,2)} {sel}')
        for h in range(2):
            a(f'v_pk_mul_f32 {vr(src+2*h,2)}, {vr(src+2*h,2)}, {vr(RS4+4*s+2*h,2)}')
        for h in range(2):
            a(f'v_cvt_pk_bf16_f32 v{dst+h}, v{src+2*h}, v{src+2*h+1}')
    for head in range(2):
        epi_qk(PREV + 4 * head, CW + 8 + 4 * head, STC, KP + 2 * head)
        for blk in range(2):
            epi_qk(acc(blk, head), CW + 4 * head, STC + 2 * (1 + blk), QP + 4 * blk + 2 * head)
            epi_qk(acc(blk, 2 + head), CW + 8 + 4 * head, STC + 2 * (1 + blk), KP + 4 * (1 + blk) + 2 * head)
    units = [(blk, head) for blk in range(2) for head in range(2)]
    SC = WF
    SP = WF + 16
    MX = WF + 32
    MT = WF + 36
    PB = Z + 116
    PM = Z + 132
    for u, (blk, head) in enumerate(units):
        q = vr(QP + 4 * blk + 2 * head, 2)
        a(f'v_mfma_f32_16x16x16_bf16 {vr(SC+4*u,4)}, {vr(KP+4*(1+blk)+2*head,2)}, {q}, {vr(BC,4)}')
        a(f'v_mfma_f32_16x16x16_bf16 {vr(SP+4*u,4)}, {vr(KP+4*blk+2*head,2)}, {q}, {vr(BP0 if blk == 0 else BP,4)}')
    a('s_waitcnt lgkmcnt(0)')
    for head in range(2):
        epi_v(PREV + 8 + 4 * head, head, 0, VP + 6 * head)
        for blk in range(2):
            epi_v(acc(blk, 4 + head), head, 1 + blk, VP + 6 * head + 2 * (1 + blk))
    CSC = 0.25 * 1.4426950408889634
    import struct
    csc_hex = struct.unpack('<I', struct.pack('<f', CSC))[0]
    a(f's_mov_b32 s41, {csc_hex:#x}')
    for u in range(4):
        for r in range(4):
            a(f'v_max_f32 v{SC+4*u+r}, v{SC+4*u+r}, v{SP+4*u+r}')
    for u in range(4):
        a(f'v_max3_f32 v{MX+u}, v{SC+4*u}, v{SC+4*u+1}, v{SC+4*u+2}')
    for u in range(4):
        a(f'v_max_f32 v{MX+u}, v{MX+u}, v{SC+4*u+3}')
    for sw in ('v_permlane16_swap_b32', 'v_permlane32_swap_b32'):
        for u in range(4):
            a(f'v_mov_b32 v{MT+u}, v{MX+u}')
        for u in range(4):
            a(f'{sw} v{MX+u}, v{MT+u}')
        for u in range(4):
            a(f'v_max_f32 v{MX+u}, v{MX+u}, v{MT+u}')
    for u in range(4):
        a(f'v_mul_f32 v{MX+u}, s41, v{MX+u}')
    for u in range(4):
        for r in range(4):
            a(f'v_fma_f32 v{SC+4*u+r}, v{SC+4*u+r}, s41, -v{MX+u}')
    for u in range(4):
        for r in range(4):
            a(f'v_exp_f32 v{SC+4*u+r}, v{SC+4*u+r}')
    for u in range(4):
        for h in range(2):
            a(f'v_cvt_pk_bf16_f32 v{PM+2*u+h}, v{SC+4*u+2*h}, v{SC+4*u+2*h+1}')
        for h in range(2):
            a(f'v_and_b32 v{PB+4*u+h}, v{PM+2*u+h}, v{MP+h}')
            a(f'v_and_b32 v{PB+4*u+2+h}, v{PM+2*u+h}, v{MC+h}')
    for u, (blk, head) in enumerate(units):
        a(f'v_mfma_f32_16x16x16_bf16 {vr(SP+4*u,4)}, {vr(ONE,2)}, {vr(PM+2*u,2)}, 0')
        a(f'v_mfma_f32_16x16x32_bf16 {vr(SC+4*u,4)}, {vr(VP+6*head+2*blk,4)}, {vr(PB+4*u,4)}, 0')
    a(f'v_lshlrev_b32 v{vT0}, 4, v{vL}')
    a(f's_lshl_b32 s{sTMP}, s{sRT}, 3')
    a(f's_lshl_b32 s42, s{sWAVE}, 1')
    a(f's_add_u32 s{sTMP}, s{sTMP}, s42')
    a(f's_lshl_b32 s{sTMP}, s{sTMP}, 4')
    a(f's_add_u32 s{sTMP}, s{sTMP}, s{sHP}')
    a(f's_lshl_b32 s{sTMP}, s{sTMP}, 10')
    a(f's_add_u32 s42, s{sTMP}, 16384')
    OUT = Z
    for u in range(4):
        a(f'v_rcp_f32 v{SP+4*u}, v{SP+4*u}')
    for u, (blk, head) in enumerate(units):
        for h in range(2):
            a(f'v_pk_mul_f32 {vr(SC+4*u+2*h,2)}, {vr(SC+4*u+2*h,2)}, {vr(SP+4*u,2)} op_sel_hi:[1,0]')
        for h in range(2):
            a(f'v_cvt_pk_bf16_f32 v{OUT+4*blk+2*head+h}, v{SC+4*u+2*h}, v{SC+4*u+2*h+1}')
        if head == 1:
            a(f'buffer_store_dwordx4 {vr(OUT+4*blk,4)}, v{vT0}, s[{sO}:{sO+3}], s{[sTMP,42][blk]} offen')
    P.stamp()
    P.flush(sPWS, sWAVE, WF)
    a.label('L_k1_end')
    a('s_endpgm')
    return name, kdesc(name, 256, 168), LDS, 256


import struct
def f2h(x): return '%#x' % struct.unpack('<I', struct.pack('<f', x))[0]

def gen_k2(a):
    name = 'p2_kernel'
    kstart(a, name)
    P = Prof(a, 5)
    P.stamp()
    LDS = 65536
    sX, sWO, sO, sH, sST = 4, 8, 12, 16, 20
    sWAVE, sDT, sBLK, sTMP, sT2, sXB, sOB, sWB, sLB = 24, 25, 26, 27, 28, 29, 30, 31, 40
    sPX, sPWO, sPWS = 32, 34, 36
    vL, vG, vC, vT0, vT1, vT2 = 1, 2, 3, 4, 5, 6
    vXO, vWO, vOO, vHO, vSO = 7, 8, 9, 10, 11
    vTR = 12
    XR = 16
    ID = 24
    WF = 32
    O = 64
    ACC = 128
    S = 144
    PK = 152
    a(f's_load_dwordx2 s[{sPX}:{sPX+1}], s[0:1], 0')
    a(f's_load_dwordx2 s[{sPWO}:{sPWO+1}], s[0:1], 16')
    a(f's_load_dwordx2 s[{sPWS}:{sPWS+1}], s[0:1], 80')
    a('s_cmp_ge_u32 s2, 256')
    a('s_cbranch_scc1 L_k2_end')
    lane_decomp(a, vL, vG, vC, sWAVE)
    a(f's_and_b32 s{sTMP}, s2, 7')
    a(f's_lshr_b32 s{sDT}, s2, 3')
    a(f's_lshr_b32 s{sBLK}, s{sDT}, 3')
    a(f's_lshl_b32 s{sTMP}, s{sTMP}, 2')
    a(f's_add_u32 s{sBLK}, s{sBLK}, s{sTMP}')
    a(f's_and_b32 s{sDT}, s{sDT}, 7')
    a(f's_lshl_b32 s{sBLK}, s{sBLK}, 2')
    a(f's_add_u32 s{sBLK}, s{sBLK}, s{sWAVE}')
    a(f's_and_b32 s{sXB}, s{sBLK}, 63')
    a(f's_lshl_b32 s{sXB}, s{sXB}, 15')
    a(f's_lshr_b32 s{sTMP}, s{sBLK}, 6')
    a(f's_lshl_b32 s{sTMP}, s{sTMP}, 10')
    a(f's_add_u32 s{sXB}, s{sXB}, s{sTMP}')
    a(f's_lshl_b32 s{sTMP}, s{sDT}, 7')
    a(f's_add_u32 s{sXB}, s{sXB}, s{sTMP}')
    a(f's_lshl_b32 s{sOB}, s{sBLK}, 14')
    a(f's_lshl_b32 s{sWB}, s{sWAVE}, 13')
    a(f's_add_u32 s{sWB}, s{sWB}, s{sTMP}')
    a(f's_lshl_b32 s{sLB}, s{sWAVE}, 10')
    a(f'v_lshlrev_b32 v{vXO}, 11, v{vC}')
    a(f'v_lshl_add_u32 v{vXO}, v{vG}, 4, v{vXO}')
    a(f'v_lshlrev_b32 v{vOO}, 4, v{vL}')
    a(f'v_lshrrev_b32 v{vT0}, 1, v{vL}')
    a(f'v_xor_b32 v{vT0}, v{vT0}, v{vG}')
    a(f'v_and_b32 v{vT0}, 3, v{vT0}')
    a(f'v_lshrrev_b32 v{vT1}, 3, v{vL}')
    a(f'v_lshlrev_b32 v{vWO}, 10, v{vT1}')
    a(f'v_lshl_add_u32 v{vWO}, v{vT0}, 5, v{vWO}')
    a(f'v_and_b32 v{vT0}, 1, v{vL}')
    a(f'v_lshl_add_u32 v{vWO}, v{vT0}, 4, v{vWO}')
    a('s_waitcnt lgkmcnt(0)')
    mk_srd(a, sX, sPX, 2048 * 1024)
    mk_srd(a, sWO, sPWO, 512 * 1024)
    mk_srd(a, sO, sPWS, 2 * MB, WS_OF)
    for e in range(2):
        a(f'buffer_load_dwordx4 {vr(XR+4*e,4)}, v{vXO}, s[{sX}:{sX+3}], s{sXB} offen offset:{64*e}')
    for c in range(4):
        for i in range(4 * c, 4 * c + 4):
            a(f's_add_u32 s{sTMP}, s{sWB}, {i * 32768}')
            a(f's_add_u32 m0, s{sLB}, {i * 4096}')
            a(f'buffer_load_dwordx4 v{vWO}, s[{sWO}:{sWO+3}], s{sTMP} offen lds')
        a(f's_add_u32 s{sTMP}, s{sOB}, {c * 4096}')
        for i in range(4):
            a(f'buffer_load_dwordx4 {vr(O+16*c+4*i,4)}, v{vOO}, s[{sO}:{sO+3}], s{sTMP} offen offset:{1024*i}')
    mk_srd(a, sH, sPWS, 2 * MB, WS_HF)
    mk_srd(a, sST, sPWS, 256 * 1024, WS_ST)
    a(f'v_lshrrev_b32 v{vT0}, 2, v{vL}')
    a(f'v_lshlrev_b32 v{vTR}, 7, v{vT0}')
    a(f'v_and_b32 v{vT0}, 3, v{vT1}')
    a(f'v_lshl_add_u32 v{vTR}, v{vT0}, 5, v{vTR}')
    a(f'v_and_b32 v{vT0}, 3, v{vL}')
    a(f'v_lshl_add_u32 v{vTR}, v{vT0}, 3, v{vTR}')
    for t in range(1, 4):
        a(f'v_xor_b32 v{vTR+t}, {32*t}, v{vTR}')
    a(f'v_and_b32 v{vT0}, 1, v{vC}')
    a(f'v_lshlrev_b32 v{vT0}, 4, v{vT0}')
    a(f'v_mov_b32 v{vT1}, 0x3f80')
    a(f'v_lshlrev_b32 v{vT0}, v{vT0}, v{vT1}')
    a(f'v_lshrrev_b32 v{vT1}, 1, v{vC}')
    a(f'v_lshlrev_b32 v{vT2}, 2, v{vG}')
    a(f'v_sub_u32 v{vT1}, v{vT1}, v{vT2}')
    for b in range(2):
        for k in range(4):
            a(f'v_cmp_eq_i32 vcc, {k - 8*b}, v{vT1}')
            a(f'v_cndmask_b32 v{ID+4*b+k}, 0, v{vT0}, vcc')
    a(f'v_and_b32 v{vT0}, 1, v{vG}')
    a(f'v_lshlrev_b32 v{vHO}, 10, v{vT0}')
    a(f'v_lshrrev_b32 v{vT0}, 1, v{vG}')
    a(f'v_lshl_add_u32 v{vHO}, v{vT0}, 8, v{vHO}')
    a(f'v_lshl_add_u32 v{vHO}, v{vC}, 4, v{vHO}')
    a(f'v_lshrrev_b32 v{vT0}, 2, v{vL}')
    a(f'v_lshlrev_b32 v{vSO}, 3, v{vT0}')
    a(f'v_and_b32 v{vT0}, 1, v{vC}')
    a(f'v_lshl_add_u32 v{vSO}, v{vT0}, 2, v{vSO}')
    a('s_waitcnt vmcnt(32)')
    for t in range(4):
        a(f'v_mfma_f32_16x16x32_bf16 {vr(ACC+4*t,4)}, {vr(XR+4*(t>>1),4)}, {vr(ID+4*(t&1),4)}, 0')
    def trreads(i):
        for t in range(4):
            for h in range(2):
                a(f'ds_read_b64_tr_b16 {vr(WF+16*(i&1)+4*t+2*h,2)}, v{vTR+t} offset:{4096*i+2048*h}')
    for c in range(4):
        a(f's_waitcnt vmcnt({32 - 8*(c+1)})')
        a('s_barrier')
        if c == 0: P.stamp()
        trreads(4 * c)
        for i in range(4 * c, 4 * c + 4):
            if i % 4 != 3:
                trreads(i + 1)
                a('s_waitcnt lgkmcnt(8)')
            else:
                a('s_waitcnt lgkmcnt(0)')
            for t in range(4):
                a(f'v_mfma_f32_16x16x32_bf16 {vr(ACC+4*t,4)}, {vr(O+4*i,4)}, {vr(WF+16*(i&1)+4*t,4)}, {vr(ACC+4*t,4)}')
    P.stamp()
    a(f's_lshl_b32 s{sTMP}, s{sDT}, 18')
    a(f's_lshr_b32 s{sT2}, s{sBLK}, 1')
    a(f's_lshl_b32 s{sT2}, s{sT2}, 12')
    a(f's_add_u32 s{sTMP}, s{sTMP}, s{sT2}')
    a(f's_and_b32 s{sT2}, s{sBLK}, 1')
    a(f's_lshl_b32 s{sT2}, s{sT2}, 9')
    a(f's_add_u32 s{sTMP}, s{sTMP}, s{sT2}')
    a(f's_lshl_b32 s{sT2}, s{sBLK}, 7')
    for t in range(4):
        for h in range(2):
            a(f'v_cvt_pk_bf16_f32 v{PK+2*t+h}, v{ACC+4*t+2*h}, v{ACC+4*t+2*h+1}')
    for e in range(2):
        for h in range(2):
            a(f'v_permlane16_swap_b32 v{PK+4*e+h}, v{PK+4*e+2+h}')
    for e in range(2):
        a(f'buffer_store_dwordx4 {vr(PK+4*e,4)}, v{vHO}, s[{sH}:{sH+3}], s{sTMP} offen offset:{2048*e}')
    for r in range(4):
        a(f'v_add_f32 v{S+r}, v{ACC+r}, v{ACC+4+r}')
        a(f'v_mul_f32 v{S+4+r}, v{ACC+r}, v{ACC+r}')
    for t in range(1, 4):
        for r in range(4):
            if t > 1: a(f'v_add_f32 v{S+r}, v{S+r}, v{ACC+4*t+r}')
            a(f'v_fmac_f32 v{S+4+r}, v{ACC+4*t+r}, v{ACC+4*t+r}')
    for base in (S, S + 4):
        for i in range(2):
            a(f'v_add_f32_dpp v{base+i}, v{base+i}, v{base+i} row_ror:8 row_mask:0xf bank_mask:0x3')
    for base in (S, S + 4):
        for i in range(2):
            a(f'v_add_f32_dpp v{base+i}, v{base+i+2}, v{base+i+2} row_ror:8 row_mask:0xf bank_mask:0xc')
    for base in (S, S + 4):
        a(f'v_add_f32_dpp v{base}, v{base}, v{base} row_half_mirror row_mask:0xf bank_mask:0x5')
    for base in (S, S + 4):
        a(f'v_add_f32_dpp v{base}, v{base+1}, v{base+1} row_half_mirror row_mask:0xf bank_mask:0xa')
    for qp in ('[1,0,3,2]', '[2,3,0,1]'):
        for base in (S, S + 4):
            a(f'v_add_f32_dpp v{base}, v{base}, v{base} quad_perm:{qp} row_mask:0xf bank_mask:0xf')
    a('s_mov_b32 vcc_lo, 0xaaaaaaaa')
    a('s_mov_b32 vcc_hi, 0xaaaaaaaa')
    a(f'v_cndmask_b32 v{S}, v{S}, v{S+4}, vcc')
    a('s_mov_b32 exec_lo, 0x33333333')
    a('s_mov_b32 exec_hi, 0x33333333')
    a(f'buffer_atomic_add_f32 v{S}, v{vSO}, s[{sST}:{sST+3}], s{sT2} offen sc1')
    a('s_mov_b64 exec, -1')
    P.stamp()
    P.flush(sPWS, sWAVE, WF)
    a.label('L_k2_end')
    a('s_endpgm')
    return name, kdesc(name, 160, 0), LDS, 256

def gen_k34(a, which):
    K3 = which == 3
    name = 'p3_kernel' if K3 else 'p4_kernel'
    NWG = 224 if K3 else 256
    NK = 16 if K3 else 14
    kstart(a, name)
    P = Prof(a, 9 if K3 else 13)
    P.stamp()
    L_ST = 131072
    LDS = L_ST + (16384 if K3 else 0)
    sW, sA, sB, sOUT, sST = 4, 8, 12, 16, 20
    sWAVE, sDT, sCT, sTMP, sT2, sWB, sAB, sLB = 24, 25, 26, 27, 28, 29, 30, 31
    sPW, sPB, sPWS, sPO = 32, 34, 36, 38
    vL, vG, vC, vT0, vT1, vT2 = 1, 2, 3, 4, 5, 6
    vW0, vW1, vA0, vA1, vSR, vRW, vRR = 7, 8, 9, 10, 11, 12, 13
    vBI = 14
    vTR = 16
    TM = 20
    BI4 = 28
    WF = 32
    ST = 64
    OWN = 96
    H = 112
    a(f's_load_dwordx4 s[{sPW}:{sPW+3}], s[0:1], {32 if K3 else 48}')
    a(f's_load_dwordx2 s[{sPWS}:{sPWS+1}], s[0:1], 80')
    if not K3: a(f's_load_dwordx2 s[{sPO}:{sPO+1}], s[0:1], 64')
    a(f's_cmp_ge_u32 s2, {NWG}')
    a(f's_cbranch_scc1 L_k{which}_end')
    lane_decomp(a, vL, vG, vC, sWAVE)
    a(f's_and_b32 s{sTMP}, s2, 1')
    a(f's_lshl_b32 s{sDT}, s{sTMP}, 2')
    a(f's_bfe_u32 s{sTMP}, s2, {3 | (2 << 16)}')
    a(f's_add_u32 s{sDT}, s{sDT}, s{sTMP}')
    a(f's_bfe_u32 s{sCT}, s2, {1 | (2 << 16)}')
    a(f's_mul_i32 s{sCT}, s{sCT}, {7 if K3 else 8}')
    a(f's_lshr_b32 s{sTMP}, s2, 5')
    a(f's_add_u32 s{sCT}, s{sCT}, s{sTMP}')
    RP = 7168 if K3 else 4096
    KSTEP = 64 * 3584 if K3 else 32 * 4096
    if K3:
        a(f's_and_b32 s{sTMP}, s{sWAVE}, 1')
        a(f's_lshl_b32 s{sTMP}, s{sTMP}, 10')
        a(f's_lshr_b32 s{sT2}, s{sWAVE}, 1')
        a(f's_add_u32 s{sTMP}, s{sTMP}, s{sT2}')
        a(f's_mul_i32 s{sWB}, s{sTMP}, 3584')
        a(f's_lshl_b32 s{sAB}, s{sDT}, 18')
        a(f's_lshl_b32 s{sTMP}, s{sWAVE}, 16')
        a(f's_add_u32 s{sAB}, s{sAB}, s{sTMP}')
    else:
        a(f's_mul_i32 s{sWB}, s{sWAVE}, {14 * KSTEP}')
        a(f's_mul_i32 s{sAB}, s{sDT}, {56 * 4096}')
        a(f's_mul_i32 s{sTMP}, s{sWAVE}, {14 * 4096}')
        a(f's_add_u32 s{sAB}, s{sAB}, s{sTMP}')
    a(f's_lshl_b32 s{sTMP}, s{sCT}, 7')
    a(f's_add_u32 s{sWB}, s{sWB}, s{sTMP}')
    a(f's_lshl_b32 s{sLB}, s{sWAVE}, 15')
    a(f'v_lshrrev_b32 v{vT1}, 3, v{vL}')
    a(f'v_mul_u32_u24 v{vW0}, {RP}, v{vT1}')
    a(f'v_lshrrev_b32 v{vT0}, 1, v{vL}')
    if K3:
        a(f'v_and_b32 v{vT2}, 1, v{vG}')
        a(f'v_xor_b32 v{vT0}, v{vT0}, v{vT2}')
    else:
        a(f'v_xor_b32 v{vT0}, v{vT0}, v{vG}')
    a(f'v_and_b32 v{vT0}, 3, v{vT0}')
    a(f'v_lshl_add_u32 v{vW0}, v{vT0}, 5, v{vW0}')
    a(f'v_and_b32 v{vT0}, 1, v{vL}')
    a(f'v_lshl_add_u32 v{vW0}, v{vT0}, 4, v{vW0}')
    if K3: a(f'v_xor_b32 v{vW1}, 64, v{vW0}')
    a(f'v_lshlrev_b32 v{vA0}, 4, v{vL}')
    if K3:
        a(f'v_mov_b32 v{vSR}, v{vA0}')
        a(f's_lshl_b32 s{sTMP}, s{sT2}, 11')
        a(f'v_or_b32 v{vA0}, s{sTMP}, v{vA0}')
        a(f'v_xor_b32 v{vA1}, 2048, v{vA0}')
    a('s_waitcnt lgkmcnt(0)')
    mk_srd(a, sW, sPW, 2048 * 3584)
    mk_srd(a, sA, sPWS, 2 * MB, WS_HF if K3 else WS_UF)
    mk_srd(a, sB, sPB, 3584 if K3 else 4096)
    if K3:
        mk_srd(a, sST, sPWS, 256 * 1024, WS_ST)
        a(f's_lshl_b32 s{sTMP}, s{sWAVE}, 12')
        for q in range(4):
            a(f'buffer_load_dwordx4 {vr(ST+4*q,4)}, v{vSR}, s[{sST}:{sST+3}], s{sTMP} offen offset:{1024*q}')
        a(f's_lshl_b32 s{sTMP}, s{sCT}, 7')
        a(f's_and_b32 s{sT2}, s{sWAVE}, 1')
        a(f's_lshl_b32 s{sT2}, s{sT2}, 6')
        a(f's_add_u32 s{sTMP}, s{sTMP}, s{sT2}')
        a(f'v_lshlrev_b32 v{vT0}, 3, v{vG}')
        for i in range(2):
            a(f'buffer_load_dwordx2 {vr(BI4+2*i,2)}, v{vT0}, s[{sB}:{sB+3}], s{sTMP} offen offset:{32*i}')
    else:
        mk_srd(a, sST, sPWS, 2 * MB, WS_HF)
        a(f'v_lshrrev_b32 v{vT0}, 1, v{vG}')
        a(f'v_lshlrev_b32 v{vT0}, 17, v{vT0}')
        a(f'v_lshl_add_u32 v{vT0}, v{vC}, 4, v{vT0}')
        a(f'v_and_b32 v{vT1}, 1, v{vG}')
        a(f'v_lshl_add_u32 v{vT0}, v{vT1}, 3, v{vT0}')
        a(f's_lshl_b32 s{sTMP}, s{sDT}, 18')
        a(f's_lshl_b32 s{sT2}, s{sCT}, 12')
        a(f's_add_u32 s{sTMP}, s{sTMP}, s{sT2}')
        a(f's_lshl_b32 s{sT2}, s{sWAVE}, 8')
        a(f's_add_u32 s{sTMP}, s{sTMP}, s{sT2}')
        for t in range(4):
            a(f'buffer_load_dwordx2 {vr(ST+2*t,2)}, v{vT0}, s[{sST}:{sST+3}], s{sTMP} offen offset:{1024*t}')
        a(f's_lshl_b32 s{sTMP}, s{sCT}, 7')
        a(f's_lshl_b32 s{sT2}, s{sWAVE}, 5')
        a(f's_add_u32 s{sTMP}, s{sTMP}, s{sT2}')
        a(f'v_lshlrev_b32 v{vT0}, 1, v{vC}')
        a(f'buffer_load_ushort v{vBI}, v{vT0}, s[{sB}:{sB+3}], s{sTMP} offen')
    def hreg(i, t): return H + 16 * (i % 8) + 4 * t
    def issue(i):
        a(f's_add_u32 m0, s{sLB}, {(i % 8) * 4096}')
        for q in range(4):
            a(f's_add_u32 s{sTMP}, s{sWB}, {i * KSTEP + q * (8 * RP - 1024)}')
            a(f'buffer_load_dwordx4 v{vW1 if (K3 and q & 1) else vW0}, s[{sW}:{sW+3}], s{sTMP} offen offset:{1024*q} lds')
        a(f's_add_u32 s{sTMP}, s{sAB}, {i * 4096}')
        for t in range(4):
            if K3: a(f'buffer_load_dwordx4 {vr(hreg(i,t),4)}, v{vA1 if t >> 1 else vA0}, s[{sA}:{sA+3}], s{sTMP} offen offset:{1024*(t&1)}')
            else: a(f'buffer_load_dwordx4 {vr(hreg(i,t),4)}, v{vA0}, s[{sA}:{sA+3}], s{sTMP} offen offset:{1024*t}')
    D = 7
    for i in range(D): issue(i)
    if K3: mk_srd(a, sOUT, sPWS, 2 * MB, WS_UF)
    else: mk_srd(a, sOUT, sPO, 2048 * 1024)
    if K3:
        a(f'v_bfe_u32 v{vT0}, v{vL}, 2, 2')
        a(f'v_lshl_add_u32 v{vT0}, v{vG}, 3, v{vT0}')
        a(f's_and_b32 s{sT2}, s{sWAVE}, 1')
        a(f's_lshl_b32 s{sT2}, s{sT2}, 1')
    else:
        a(f'v_lshrrev_b32 v{vT0}, 2, v{vL}')
        a(f's_mov_b32 s{sT2}, s{sWAVE}')
    a(f'v_lshlrev_b32 v{vTR}, 7, v{vT0}')
    a(f'v_bfe_u32 v{vT0}, v{vL}, 3, 2')
    a(f'v_xor_b32 v{vT0}, s{sT2}, v{vT0}')
    a(f'v_lshl_add_u32 v{vTR}, v{vT0}, 5, v{vTR}')
    a(f'v_and_b32 v{vT0}, 3, v{vL}')
    a(f'v_lshl_add_u32 v{vTR}, v{vT0}, 3, v{vTR}')
    a(f'v_add_u32 v{vTR}, s{sLB}, v{vTR}')
    for t in range(1, 4):
        a(f'v_xor_b32 v{vTR+t}, {32*t}, v{vTR}')
    HOFF = 512 if K3 else 2048
    def trreads(i):
        for t in range(4):
            for h in range(2):
                a(f'ds_read_b64_tr_b16 {vr(WF+16*(i&1)+4*t+2*h,2)}, v{vTR+t} offset:{4096*(i%8)+HOFF*h}')
    def streads(i):
        for q in range(4):
            a(f'ds_read_b128 {vr(ST+16*(i&1)+4*q,4)}, v{vSR} offset:{256*i+16*q}')
    def quad(tw, ta): return ((tw >> 1) + 2 * (ta >> 1), (tw & 1) + 2 * (ta & 1)) if K3 else (tw, ta)
    def acc(tw, ta):
        q, k = quad(tw, ta)
        return vr(OWN + 4 * k, 4) if q == 0 else ar(16 * (q - 1) + 4 * k, 4)
    def norm_ops(i):
        ops = []
        for t in range(4):
            for d in range(4):
                x = hreg(i, t) + d
                t0, t1 = TM + 2 * (d & 3), TM + 2 * (d & 3) + 1
                st = ST + 16 * (i & 1) + 4 * d
                ops.append([f'v_lshlrev_b32 v{t0}, 16, v{x}',
                            f'v_and_b32 v{t1}, 0xffff0000, v{x}',
                            f'v_fma_f32 v{t0}, v{t0}, v{st}, v{st+1}',
                            f'v_fma_f32 v{t1}, v{t1}, v{st+2}, v{st+3}',
                            f'v_cvt_pk_bf16_f32 v{x}, v{t0}, v{t1}'])
        return ops
    if K3:
        a(f's_waitcnt vmcnt({8*D})')
        a(f's_lshl_b32 s{sTMP}, s{sWAVE}, 12')
        a(f's_add_u32 s{sTMP}, s{sTMP}, {L_ST}')
        a(f'v_add_u32 v{vT0}, s{sTMP}, v{vSR}')
        a(f'v_lshl_add_u32 v{vSR}, v{vG}, 6, s{sTMP}')
        a(f's_mov_b32 s{sT2}, 0x3b000000')
        for k in range(8):
            s_, q_ = ST + 2 * k, ST + 2 * k + 1
            a(f'v_mul_f32 v{s_}, 0xbb000000, v{s_}')
            a(f'v_mul_f32 v{TM+k}, v{s_}, v{s_}')
            a(f'v_fma_f32 v{q_}, v{q_}, s{sT2}, -v{TM+k}')
            a(f'v_max_f32 v{q_}, 0, v{q_}')
            a(f'v_add_f32 v{TM+k}, 0x3727c5ac, v{q_}')
        for k in range(8):
            a(f'v_rsq_f32 v{TM+k}, v{TM+k}')
        a(f's_mov_b32 s{sT2}, 0x3727c5ac')
        for k in range(8):
            s_, q_ = ST + 2 * k, ST + 2 * k + 1
            a(f'v_mul_f32 v{q_}, v{q_}, v{TM+k}')
            a(f'v_fma_f32 v{q_}, v{q_}, v{TM+k}, s{sT2}')
        for k in range(8):
            a(f'v_rsq_f32 v{ST+2*k+1}, v{ST+2*k+1}')
        for k in range(8):
            s_, q_ = ST + 2 * k, ST + 2 * k + 1
            a(f'v_mul_f32 v{TM+k}, v{TM+k}, v{q_}')
            a(f'v_mul_f32 v{q_}, v{s_}, v{TM+k}')
            a(f'v_mov_b32 v{s_}, v{TM+k}')
        for q in range(4):
            a(f'ds_write_b128 v{vT0}, {vr(ST+4*q,4)} offset:{1024*q}')
        streads(0)
        streads(1)
    else:
        a(f'v_lshrrev_b32 v{vT0}, 3, v{vC}')
        a(f'v_and_b32 v{vT1}, 1, v{vC}')
        a(f'v_lshl_add_u32 v{vT0}, v{vT1}, 1, v{vT0}')
        a(f'v_bfe_u32 v{vT1}, v{vC}, 1, 1')
        a(f'v_lshlrev_b32 v{vT1}, 4, v{vT1}')
        a(f'v_mov_b32 v{vT2}, 0x3f80')
        a(f'v_lshlrev_b32 v{vT1}, v{vT1}, v{vT2}')
        a(f'v_cmp_eq_u32 vcc, v{vT0}, v{vG}')
        a(f'v_cndmask_b32 v{vT1}, 0, v{vT1}, vcc')
        a(f'v_and_b32 v{vT0}, 4, v{vC}')
        a(f'v_cmp_eq_u32 vcc, 0, v{vT0}')
        a(f'v_cndmask_b32 v{BI4}, 0, v{vT1}, vcc')
        a(f'v_cndmask_b32 v{BI4+1}, v{vT1}, 0, vcc'.replace('v_cndmask_b32 ', 'v_cndmask_b32_e64 '))
        a(f's_waitcnt vmcnt({8*D})')
        for t in range(4):
            a(f'v_mfma_f32_16x16x16_bf16 {acc(0,t)}, {vr(ST+2*t,2)}, {vr(BI4,2)}, 0')
    a(f's_waitcnt vmcnt({8*(D-1)})')
    P.stamp()
    trreads(0)
    if K3:
        a('s_waitcnt lgkmcnt(12)')
        for ops in norm_ops(0):
            for o in ops: a(o)
    issued = D
    for i in range(NK):
        if issued < NK:
            issue(issued); issued += 1
        nds = 0
        if i + 1 < NK:
            a(f's_waitcnt vmcnt({8*(issued - (i+2))})')
            trreads(i + 1); nds += 8
        if K3 and i + 2 < NK:
            streads(i + 2); nds += 4
        a(f's_waitcnt lgkmcnt({nds})')
        nops = norm_ops(i + 1) if (K3 and i + 1 < NK) else []
        k = 0
        for ta in range(4):
            for tw in range(4):
                d = acc(tw, ta)
                cin = '0' if (i == 0 and (K3 or tw != 0)) else d
                w = vr(WF + 16 * (i & 1) + 4 * tw, 4)
                x = vr(hreg(i, ta), 4)
                if K3: a(f'v_mfma_f32_16x16x32_bf16 {d}, {w}, {x}, {cin}')
                else: a(f'v_mfma_f32_16x16x32_bf16 {d}, {x}, {w}, {cin}')
                if nops:
                    for o in nops[k]: a(o)
                k += 1
    P.stamp()
    a(f'v_lshlrev_b32 v{vRR}, 4, v{vL}')
    a(f's_mul_i32 s{sTMP}, s{sWAVE}, 12288')
    a('s_barrier')
    for q in range(1, 4):
        a(f's_xor_b32 s{sT2}, s{sWAVE}, {q}')
        a(f's_mul_i32 s{sT2}, s{sT2}, 12288')
        a(f'v_add_u32 v{vT0+q-1}, s{sT2}, v{vRR}')
    a(f'v_add_u32 v{vRR}, s{sTMP}, v{vRR}')
    for q in range(1, 4):
        for k in range(4):
            a(f'ds_write_b128 v{vT0+q-1}, {ar(16*(q-1)+4*k,4)} offset:{4096*(q-1)+1024*k}')
    a('s_waitcnt lgkmcnt(0)')
    a('s_barrier')
    for k in range(4):
        for q in range(3):
            a(f'ds_read_b128 {vr(H+16*q+4*k,4)}, v{vRR} offset:{4096*q+1024*k}')
    PK = WF
    if K3:
        BF = ST
        for i in range(4):
            a(f'v_lshlrev_b32 v{BF+2*i}, 16, v{BI4+i}')
            a(f'v_and_b32 v{BF+2*i+1}, 0xffff0000, v{BI4+i}')
        a(f's_mul_i32 s{sTMP}, s{sDT}, {56*4096}')
        a(f's_lshl_b32 s{sT2}, s{sCT}, 13')
        a(f's_add_u32 s{sTMP}, s{sTMP}, s{sT2}')
        a(f's_and_b32 s{sT2}, s{sWAVE}, 1')
        a(f's_lshl_b32 s{sT2}, s{sT2}, 12')
        a(f's_add_u32 s{sTMP}, s{sTMP}, s{sT2}')
        C1 = -2.0 * 0.7978845608028654 * 1.4426950408889634
        a(f's_mov_b32 s40, {f2h(C1)}')
        a(f's_mov_b32 s41, {f2h(C1 * 0.044715)}')
        a(f'v_mov_b32 v{vT2}, s40')
        for k in range(4):
            a(f's_waitcnt lgkmcnt({3*(3-k)})')
            o = OWN + 4 * k
            for h in range(2):
                a(f'v_pk_add_f32 {vr(o+2*h,2)}, {vr(o+2*h,2)}, {vr(BF+4*(k&1)+2*h,2)}')
                a(f'v_pk_add_f32 {vr(H+4*k+2*h,2)}, {vr(H+4*k+2*h,2)}, {vr(H+16+4*k+2*h,2)}')
            for h in range(2):
                a(f'v_pk_add_f32 {vr(o+2*h,2)}, {vr(o+2*h,2)}, {vr(H+32+4*k+2*h,2)}')
            for h in range(2):
                a(f'v_pk_add_f32 {vr(o+2*h,2)}, {vr(o+2*h,2)}, {vr(H+4*k+2*h,2)}')
        T = H + 48
        for j in range(16):
            a(f'v_mul_f32 v{T+j}, v{OWN+j}, v{OWN+j}')
        for j in range(16):
            a(f'v_fma_f32 v{T+j}, v{T+j}, s41, v{vT2}')
        for j in range(16):
            a(f'v_mul_f32 v{T+j}, v{T+j}, v{OWN+j}')
        for j in range(16):
            a(f'v_exp_f32 v{T+j}, v{T+j}')
        for j in range(16):
            a(f'v_add_f32 v{T+j}, 1.0, v{T+j}')
        for j in range(16):
            a(f'v_rcp_f32 v{T+j}, v{T+j}')
        for j in range(16):
            a(f'v_mul_f32 v{OWN+j}, v{T+j}, v{OWN+j}')
        for j in range(8):
            a(f'v_cvt_pk_bf16_f32 v{PK+j}, v{OWN+2*j}, v{OWN+2*j+1}')
        for b in range(2):
            a(f'buffer_store_dwordx4 {vr(PK+4*b,4)}, v{vA0}, s[{sOUT}:{sOUT+3}], s{sTMP} offen offset:{1024*b}')
    else:
        a(f'v_lshlrev_b32 v{vBI}, 16, v{vBI}')
        a(f'v_mov_b32 v{vBI+1}, v{vBI}')
        a(f'v_lshlrev_b32 v{vT0}, 10, v{vC}')
        a(f'v_and_b32 v{vT1}, 1, v{vG}')
        a(f'v_lshl_add_u32 v{vT0}, v{vT1}, 5, v{vT0}')
        a(f'v_lshrrev_b32 v{vT1}, 1, v{vG}')
        a(f'v_lshl_add_u32 v{vT0}, v{vT1}, 4, v{vT0}')
        a(f's_lshl_b32 s{sTMP}, s{sCT}, 16')
        a(f's_lshl_b32 s{sT2}, s{sWAVE}, 14')
        a(f's_add_u32 s{sTMP}, s{sTMP}, s{sT2}')
        a(f's_lshl_b32 s{sT2}, s{sDT}, 7')
        a(f's_add_u32 s{sTMP}, s{sTMP}, s{sT2}')
        for k in range(4):
            a(f's_waitcnt lgkmcnt({3*(3-k)})')
            o = OWN + 4 * k
            for h in range(2):
                a(f'v_pk_add_f32 {vr(o+2*h,2)}, {vr(o+2*h,2)}, {vr(vBI,2)}')
                a(f'v_pk_add_f32 {vr(H+4*k+2*h,2)}, {vr(H+4*k+2*h,2)}, {vr(H+16+4*k+2*h,2)}')
            for h in range(2):
                a(f'v_pk_add_f32 {vr(o+2*h,2)}, {vr(o+2*h,2)}, {vr(H+32+4*k+2*h,2)}')
            for h in range(2):
                a(f'v_pk_add_f32 {vr(o+2*h,2)}, {vr(o+2*h,2)}, {vr(H+4*k+2*h,2)}')
        for j in range(8):
            a(f'v_cvt_pk_bf16_f32 v{PK+j}, v{OWN+2*j}, v{OWN+2*j+1}')
        for e in range(2):
            for h in range(2):
                a(f'v_permlane16_swap_b32 v{PK+4*e+h}, v{PK+4*e+2+h}')
        for e in range(2):
            a(f'buffer_store_dwordx4 {vr(PK+4*e,4)}, v{vT0}, s[{sOUT}:{sOUT+3}], s{sTMP} offen offset:{64*e}')
    if K3: P.stamp()
    else: P.stamp()
    P.flush(sPWS, sWAVE, H)
    a.label(f'L_k{which}_end')
    a('s_endpgm')
    return name, kdesc(name, 240, 48), LDS, NWG

HEADER = open('cdna_kernels/' + NAME + '.s.ref').read().split('; Override launch')[0]

def main():
    a = Asm()
    ks = [gen_k1(a)]
    for g in EXTRA: ks.append(g(a))
    body = a.finalize()
    out = HEADER
    for name, desc, lds, grid in ks:
        out += f'; @launch kernel={name} grid=({grid},1,1) block=(256,1,1) lds={lds}\n'
    out += '.amdgcn_target "amdgcn-amd-amdhsa--gfx950"\n.text\n' + body
    out += '.section .rodata,"a"\n'
    for name, desc, lds, grid in ks:
        out += '.p2align 6\n' + desc
    open(sys.argv[1], 'w').write(out)
    print('nops inserted', a.nops_inserted, 'lines', out.count('\n'))

EXTRA = [gen_k2, lambda a: gen_k34(a, 3), lambda a: gen_k34(a, 4)]
if __name__ == '__main__':
    main()
```

```python
import sys, struct
from asmgen import Asm

NAME = "sequential_preLN__sliding_local_dilated__mixer_token_mlp__prompt"
PROF = '--prof' in sys.argv
OPT = dict(UA=2, UB=4, UC=4, UD=3, W2PRE=0, PG=0, LT=0, TW=1, TWO=1, T1=1, QM=1, SK=1)
for a_ in sys.argv[2:]:
    if '=' in a_:
        k_, v_ = a_.split('='); assert k_ in OPT, k_; OPT[k_] = int(v_)
NSTAMP = 20
MB = 1 << 20
KB = 1024
WS_OF, WS_HN, WS_HF, WS_UF, WS_SX = 0, 2 * MB, 4 * MB, 6 * MB, 8 * MB
WS_F1, WS_F2, WS_F3 = 8 * MB + 256 * KB, 8 * MB + 320 * KB, 8 * MB + 384 * KB
NEGBIG = 0xF149F2CA
SPIN = 1 << 17

def vr(b, n=1): return f'v{b}' if n == 1 else f'v[{b}:{b+n-1}]'
def ar(b, n=1): return f'a{b}' if n == 1 else f'a[{b}:{b+n-1}]'
def srd(b): return f's[{b}:{b+3}]'
def f2h(x): return '%#x' % struct.unpack('<I', struct.pack('<f', x))[0]

class Em(Asm):
    def __init__(self):
        super().__init__()
        self.vmq = []; self.dsq = []; self.nst = 0
    def vm(self, tag, text):
        self(text); self.vmq.append(tag)
        assert len(self.vmq) <= 63, ('vm overflow', tag)
    def ds(self, tag, text):
        self(text); self.dsq.append(tag)
    @staticmethod
    def _n(q, tags):
        idx = -1
        for k, t in enumerate(q):
            if t in tags: idx = k
        return idx
    def wait(self, vm=(), ds=()):
        s = []
        i = self._n(self.vmq, list(vm))
        if i >= 0:
            s.append(f'vmcnt({len(self.vmq) - 1 - i})'); self.vmq = self.vmq[i + 1:]
        i = self._n(self.dsq, list(ds))
        if i >= 0:
            n = len(self.dsq) - 1 - i
            if n > 15: n = 15
            s.append(f'lgkmcnt({n})'); self.dsq = self.dsq[len(self.dsq) - n:] if n else []
        if s: self('s_waitcnt ' + ' '.join(s))
    def wait_all(self, vm=True, ds=True):
        s = []
        if vm: s.append('vmcnt(0)'); self.vmq = []
        if ds: s.append('lgkmcnt(0)'); self.dsq = []
        self('s_waitcnt ' + ' '.join(s))
    def run(self, ops):
        for op in ops:
            if isinstance(op, str): self(op)
            elif op[0] == 'vm': self.vm(op[1], op[2])
            elif op[0] == 'ds': self.ds(op[1], op[2])
            elif op[0] == 'wvm': self.wait(vm=[op[1]])
            elif op[0] == 'wds': self.wait(ds=[op[1]])
            elif op[0] == 'grp': self.run(op[1])
            elif op[0] == 'label': self.label(op[1])
            else: raise ValueError(op)
    def stamp(self, *grps):
        if not PROF: return
        if not grps: grps = (0,)
        if OPT['PG'] not in grps and -1 not in grps: return
        assert self.nst < 16
        self(f's_memrealtime s[{70 + 2*self.nst}:{71 + 2*self.nst}]')
        self.nst += 1

def flat(ops):
    out = []
    for op in ops:
        if not isinstance(op, str) and op[0] == 'grp': out += flat(op[1])
        else: out.append(op)
    return out

def weave(prim, fill, lead=0):
    out = []
    n, m = len(prim), len(fill)
    k = 0
    for i, p in enumerate(prim):
        out.append(p)
        tgt = min(m, (m * (i + 1) + n - 1) // n + lead) if n else m
        while k < tgt:
            out.append(fill[k]); k += 1
    out += fill[k:]
    return out

sX, sWQ, sWO, sW1, sB1, sW2, sB2, sOUT, sDBG, sWS = 4, 8, 12, 16, 20, 24, 28, 32, 36, 40
sWAVE, sNON, sT0, sT1, sT2, sCNT = 44, 45, 46, 47, 48, 49
sXB, sWB, sWOB, sLW, sRT, sDT = 50, 51, 52, 53, 54, 55
sCT3, sCT4, sROT3, sROT4 = 56, 57, 58, 59
sW1A, sW1B, sW2A, sW2B, sPR, sONES = 60, 61, 62, 63, 64, 65
sST1, sZ = 66, 67
sM1 = 68
vL, vG, vC, vT0, vT1, vT2, vT3, vL16 = 1, 2, 3, 4, 5, 6, 7, 8
vDUM = 252

def gen():
    a = Em()
    name = NAME + '_kernel'
    a.raw(f'.globl {name}\n.p2align 8\n.type {name},@function')
    a.label(name)
    a.stamp(-1)
    NW = 6
    L_X = NW * 12288
    HS = 4 * 8320 + 4160
    L_MI = L_X + 2 * HS
    L_NM = L_MI
    L_HP = L_NM + 2560
    L_PR = 64 * KB
    NSL = 6
    LDS = 160 * KB
    assert L_HP + 2048 <= LDS
    for s, off in ((sX, 0), (sWQ, 8), (sWS, 80), (sDBG, 72), (sWO, 16), (sW1, 32), (sB1, 40), (sW2, 48), (sB2, 56), (sOUT, 64)):
        a(f's_load_dwordx2 s[{s}:{s+1}], s[0:1], {off}')
    a('s_cmp_ge_u32 s2, 256')
    a('s_cbranch_scc1 L_end')
    a(f'v_lshrrev_b32 v{vG}, 6, v0')
    a(f'v_and_b32 v{vL}, 63, v0')
    a(f'v_readfirstlane_b32 s{sWAVE}, v{vG}')
    a(f'v_lshrrev_b32 v{vG}, 4, v{vL}')
    a(f'v_and_b32 v{vC}, 15, v{vL}')
    a(f'v_lshlrev_b32 v{vL16}, 4, v{vL}')
    for s, n in ((sX, 2048 * 1024), (sWQ, 512 * 3072), (sWS, 16 * MB), (sDBG, 256), (sWO, 512 * 1024), (sW1, 2048 * 3584),
                 (sB1, 3584), (sW2, 1792 * 4096), (sB2, 4096), (sOUT, 2048 * 1024)):
        a(f's_mov_b32 s{s+2}, {n:#x}')
        a(f's_mov_b32 s{s+3}, 0x20000')
    vXD, vWD, vWOD, vXR, vHR, vTR, vSR, vHS = 9, 10, 11, 12, 13, 14, 16, 17
    vNCE, vE0 = 18, 19
    WB, XB, ACC, SB, GS, GO, GH, CST, STC = 20, 44, 104, 164, 180, 184, 188, 192, 212
    QP, KP, VP = 222, 230, 20
    vQ1, vR1 = 244, 248
    a(f's_lshr_b32 s{sZ}, s2, 5')
    a(f's_bfe_u32 s{sT0}, s2, {1 | (2 << 16)}')
    a(f's_lshr_b32 s{sT1}, s2, 6')
    a(f's_lshl2_add_u32 s{sT0}, s{sT0}, s{sT1}')
    a(f's_and_b32 s{sT1}, s{sZ}, 1')
    a(f's_lshl4_add_u32 s{sRT}, s{sT1}, s{sT0}')
    a(f's_lshl_b32 s{sT1}, s{sT1}, 10')
    a(f's_lshl2_add_u32 s{sXB}, s{sT0}, s{sWAVE}')
    a(f's_lshl_b32 s{sXB}, s{sXB}, 15')
    a(f's_add_u32 s{sXB}, s{sXB}, s{sT1}')
    a(f's_lshl_b32 s{sT0}, s{sT0}, 2')
    a(f's_sub_u32 s{sT0}, s{sT0}, 1')
    a(f's_max_i32 s{sT0}, s{sT0}, 0')
    a(f's_lshl3_add_u32 s{sT0}, s{sT0}, s{sWAVE}')
    a(f's_lshl_b32 s{sT0}, s{sT0}, 12')
    a(f's_add_u32 s{sT0}, s{sT0}, s{sT1}')
    a(f's_add_u32 s{sT2}, s{sT0}, 16384')
    a(f's_and_b32 s{sDT}, s2, 1')
    a(f's_bfe_u32 s{sT1}, s2, {3 | (2 << 16)}')
    a(f's_lshl2_add_u32 s{sDT}, s{sDT}, s{sT1}')
    a(f's_mul_i32 s{sWB}, s{sWAVE}, {128 * 3072}')
    a(f's_lshl_b32 s{sT0}, s{sDT}, 7')
    a(f's_add_u32 s{sWB}, s{sWB}, s{sT0}')
    a(f's_mul_i32 s{sLW}, s{sWAVE}, 3072')
    a(f's_mul_i32 s{sT0}, s{sWAVE}, 8320')
    a(f's_mul_i32 s{sT1}, s{sWAVE}, 1040')
    a(f'v_bfe_u32 v{vT0}, v{vL}, 3, 1')
    a(f'v_lshlrev_b32 v{vXD}, 11, v{vT0}')
    a(f'v_lshl_add_u32 v{vXD}, v{vG}, 8, v{vXD}')
    a(f'v_and_b32 v{vT0}, 7, v{vL}')
    a(f'v_lshl_add_u32 v{vXD}, v{vT0}, 4, v{vXD}')
    a(f'v_lshrrev_b32 v{vT0}, 3, v{vL}')
    a(f'v_mul_u32_u24 v{vWD}, 3072, v{vT0}')
    a(f'v_lshrrev_b32 v{vT0}, 1, v{vL}')
    a(f'v_and_b32 v{vT1}, 1, v{vG}')
    a(f's_lshl_b32 s3, s{sWAVE}, 1')
    a(f'v_xor_b32 v{vT0}, v{vT0}, v{vT1}')
    a(f'v_xor_b32 v{vT0}, s3, v{vT0}')
    a(f'v_and_b32 v{vT0}, 3, v{vT0}')
    a(f'v_lshl_add_u32 v{vWD}, v{vT0}, 5, v{vWD}')
    a(f'v_and_b32 v{vT0}, 1, v{vL}')
    a(f'v_lshl_add_u32 v{vWD}, v{vT0}, 4, v{vWD}')
    a(f's_mov_b32 s{sM1}, 0xff00ff00')
    a(f's_cmp_eq_u32 s{sWAVE}, 0')
    a(f's_cselect_b32 s{sM1}, s{sM1}, -1')
    a(f's_mov_b32 s{sM1+1}, s{sM1}')
    sXL, sHL, sHB = sT0, sT1, sT2
    a(f's_add_u32 s{sW2A}, s{sT0}, {L_X}')
    a(f's_add_u32 s{sW2B}, s{sT1}, {L_X + 4 * 8320}')
    a(f's_mov_b32 s{sROT4}, s{sT2}')
    sXL, sHL, sHB = sW2A, sW2B, sROT4
    a('s_waitcnt lgkmcnt(0)')
    a.stamp(1, 2)
    def xloads(half):
        ops = []
        for q in range(8):
            ops.append(('grp', [f's_add_u32 m0, s{sXL}, {half * HS + q * 1040}', f's_add_u32 s3, s{sXB}, {q * 4096 + half * 128}',
                                ('vm', ('x', half), f'buffer_load_dwordx4 v{vXD}, {srd(sX)}, s3 offen lds')]))
        ops.append(('grp', [f's_add_u32 m0, s{sHL}, {half * HS}', f's_add_u32 s3, s{sHB}, {half * 128}', f's_mov_b64 exec, s[{sM1}:{sM1+1}]',
                            ('vm', ('x', half), f'buffer_load_dwordx4 v{vXD}, {srd(sX)}, s3 offen lds'), 's_mov_b64 exec, -1']))
        return ops
    def wloads(k):
        slot = k % NW
        if k < 16:
            return [('grp', [f's_add_u32 m0, s{sLW}, {slot * 12288}', f's_add_u32 s3, s{sWB}, {k * 8 * 3072}',
                             ('vm', ('w', k), f'buffer_load_dwordx4 v{vWD}, {srd(sWQ)}, s3 offen lds')])] + \
                   [('vm', ('w', k), f'buffer_load_dwordx4 v{vWD}, {srd(sWQ)}, s3 offen offset:{1024*R} lds') for R in (1, 2)]
        ops = []
        for j in range(3 if slot < 5 else 1):
            i = 3 * slot + j
            ops.append(('grp', [f's_add_u32 m0, s{sLW}, {i * 4096}', f's_add_u32 s3, s{sWOB}, {i * 32768}',
                                ('vm', 'wo', f'buffer_load_dwordx4 v{vWOD}, {srd(sWO)}, s3 offen lds')]))
        return ops
    a.run(xloads(0) + wloads(0) + wloads(1))
    a.stamp(1, 2)
    a(f's_or_b32 s{sT0}, s2, s{sWAVE}')
    a(f's_cmp_lg_u32 s{sT0}, 0')
    a('s_cbranch_scc1 L_nononce')
    a(f's_memrealtime s[{sT0}:{sT1}]')
    a(f'v_mov_b32 v{vT1}, 0')
    a('s_waitcnt lgkmcnt(0)')
    a(f's_or_b32 s{sT0}, s{sT0}, 1')
    a(f'v_mov_b32 v{vT0}, s{sT0}')
    a('s_mov_b64 exec, 1')
    a(f'buffer_store_dword v{vT0}, v{vT1}, {srd(sDBG)}, 0 offen sc1')
    a('s_mov_b64 exec, -1')
    a.label('L_nononce')
    a(f's_mov_b32 s{sONES}, 0x3f803f80')
    BC, BP, BP0, MC, MP, ONE = CST, CST + 4, CST + 8, CST + 12, CST + 14, CST + 16
    for k in range(4): a(f'v_mov_b32 v{ONE+k}, s{sONES}')
    a(f'v_and_b32 v{vT0}, 7, v{vC}')
    a(f'v_lshlrev_b32 v{vT0}, 4, v{vT0}')
    a(f'v_lshl_add_u32 v{vT0}, v{vG}, 8, v{vT0}')
    a(f'v_lshrrev_b32 v{vT1}, 3, v{vC}')
    a(f'v_mul_u32_u24 v{vT1}, {HS}, v{vT1}')
    a(f'v_add3_u32 v{vT0}, v{vT0}, v{vT1}, s{sHL}')
    a(f's_cmp_lg_u32 s{sWAVE}, 0')
    a('s_cbranch_scc1 L_noones')
    a(f'ds_write_b128 v{vT0}, {vr(ONE,4)}')
    a.label('L_noones')
    a(f'v_lshrrev_b32 v{vT0}, 1, v{vC}')
    a(f'v_and_b32 v{vT1}, 1, v{vC}')
    a(f'v_lshlrev_b32 v{vT1}, 7, v{vT1}')
    a(f'v_lshl_add_u32 v{vT1}, v{vG}, 8, v{vT1}')
    a(f'v_mov_b32 v{vT2}, 1040')
    a(f'v_mad_u32_u24 v{vXR}, v{vT0}, v{vT2}, v{vT1}')
    a(f'v_add_u32 v{vSR}, s{sXL}, v{vXR}')
    a(f'v_add_u32 v{vXR}, {L_X}, v{vXR}')
    a(f'v_and_b32 v{vT0}, 3, v{vT0}')
    a(f'v_mad_u32_u24 v{vHR}, v{vT0}, v{vT2}, v{vT1}')
    a(f'v_add_u32 v{vHR}, {L_X + 4 * 8320}, v{vHR}')
    a(f's_lshl_b32 s3, s{sWAVE}, 5')
    a(f'v_add_u32 v{vHS}, s3, v{vHR}')
    a(f'v_mul_u32_u24 v{vTR}, 3072, v{vG}')
    a(f'v_bfe_u32 v{vT0}, v{vL}, 2, 2')
    a(f'v_lshl_add_u32 v{vTR}, v{vT0}, 7, v{vTR}')
    a(f'v_bfe_u32 v{vT0}, v{vL}, 3, 2')
    a(f'v_xor_b32 v{vT0}, s{sWAVE}, v{vT0}')
    a(f'v_lshl_add_u32 v{vTR}, v{vT0}, 5, v{vTR}')
    a(f'v_and_b32 v{vT0}, 3, v{vL}')
    a(f'v_lshl_add_u32 v{vTR}, v{vT0}, 3, v{vTR}')
    a(f'v_add_u32 v{vTR+1}, {3 * 12288}, v{vTR}')
    a.run(wloads(2) + wloads(3))
    if OPT['TW']:
        a(f'v_mul_u32_u24 v{vT0}, 3072, v{vC}')
        a(f'v_min_u32 v{vT1}, 2, v{vG}')
        a(f'v_lshl_add_u32 v{vT0}, v{vT1}, 10, v{vT0}')
        a(f's_mul_i32 s3, s{sZ}, {16 * 3072}')
        a(f's_add_u32 s3, s3, s{sWB}')
        a.vm('tw', f'buffer_load_dword v{vDUM}, v{vT0}, {srd(sWQ)}, s3 offen')
    a.run(wloads(4) + wloads(5) + xloads(1))
    a.stamp(1, 2)
    if OPT['LT']:
        for tg in [('x', 0), ('w', 0), ('w', 1), ('w', 3), ('w', 5), ('x', 1)]:
            a.wait(vm=[tg]); a.stamp(2)
        for k in range(6, 16): a.run(wloads(k))
        a.stamp(2)
        a.wait_all(); a.stamp(2)
        a('s_branch L_prof')
    a(f's_bfe_u32 s{sT0}, s2, {1 | (2 << 16)}')
    a(f's_lshl3_add_u32 s{sCT4}, s{sT0}, s{sZ}')
    a(f's_sub_u32 s{sCT3}, s{sCT4}, s{sT0}')
    a(f's_min_u32 s{sCT3}, s{sCT3}, 27')
    a(f's_and_b32 s{sT1}, s{sDT}, 3')
    a(f's_lshl_b32 s{sROT3}, s{sT1}, 2')
    a(f's_lshr_b32 s{sT2}, s{sZ}, 1')
    a(f's_add_u32 s{sROT3}, s{sROT3}, s{sT2}')
    a(f's_min_u32 s{sROT4}, s{sROT3}, 13')
    a(f's_and_b32 s{sT0}, s{sWAVE}, 1')
    a(f's_lshl_b32 s{sT0}, s{sT0}, 4')
    a(f's_add_u32 s{sT0}, s{sT0}, s{sROT3}')
    a(f's_lshl_b32 s{sT0}, s{sT0}, 6')
    a(f's_lshr_b32 s{sT1}, s{sWAVE}, 1')
    a(f's_add_u32 s{sT0}, s{sT0}, s{sT1}')
    a(f's_mul_i32 s{sW1A}, s{sT0}, 3584')
    a(f's_lshl_b32 s{sT0}, s{sCT3}, 7')
    a(f's_add_u32 s{sW1A}, s{sW1A}, s{sT0}')
    a(f's_sub_u32 s{sW1B}, s{sW1A}, {16 * 64 * 3584}')
    a(f's_mul_i32 s{sT0}, s{sROT3}, {64 * 3584}')
    a(f's_sub_u32 s{sST1}, s{sW1A}, s{sT0}')
    a(f's_mul_i32 s{sT0}, s{sWAVE}, 14')
    a(f's_add_u32 s{sT0}, s{sT0}, s{sROT4}')
    a(f's_lshl_b32 s{sW2A}, s{sT0}, 17')
    a(f's_lshl_b32 s{sT0}, s{sCT4}, 7')
    a(f's_add_u32 s{sW2A}, s{sW2A}, s{sT0}')
    a(f's_sub_u32 s{sW2B}, s{sW2A}, {14 << 17}')
    a(f's_mul_i32 s{sPR}, s{sWAVE}, {NSL * 4096}')
    a(f's_add_u32 s{sPR}, s{sPR}, {L_PR}')
    a(f's_lshl_b32 s{sWOB}, s{sWAVE}, 13')
    a(f's_lshl_b32 s{sT0}, s{sDT}, 7')
    a(f's_add_u32 s{sWOB}, s{sWOB}, s{sT0}')
    a(f'v_mov_b32 v{vT1}, {NEGBIG:#x}')
    a(f's_and_b32 s{sT0}, s{sRT}, 15')
    a(f's_cmp_eq_u32 s{sT0}, 0')
    a(f's_cselect_b32 s{sT0}, {NEGBIG:#x}, 0')
    for r in range(4):
        a(f'v_lshl_add_u32 v{vT0}, v{vG}, 2, {r}')
        a(f'v_sub_u32 v{vT0}, v{vC}, v{vT0}')
        a(f'v_cmp_gt_u32 vcc, 8, v{vT0}')
        a(f'v_cndmask_b32_e64 v{BC+r}, v{vT1}, 0, vcc')
        a(f'v_cmp_gt_i32 vcc, -8, v{vT0}')
        a(f'v_cndmask_b32_e64 v{BP+r}, v{vT1}, 0, vcc')
        a(f'v_min_f32 v{BP0+r}, s{sT0}, v{BP+r}')
        a(f'v_cmp_le_i32 vcc, 0, v{vT0}')
        if r % 2 == 0:
            a(f'v_cndmask_b32_e64 v{MC+r//2}, 0, -1, vcc')
            a(f'v_and_b32 v{MC+r//2}, 0xffff, v{MC+r//2}')
        else:
            a(f'v_cndmask_b32_e64 v{vT0}, 0, -1, vcc')
            a(f'v_and_b32 v{vT0}, 0xffff0000, v{vT0}')
            a(f'v_or_b32 v{MC+r//2}, v{MC+r//2}, v{vT0}')
            a(f'v_not_b32 v{MP+r//2}, v{MC+r//2}')
    a(f'v_lshrrev_b32 v{vT0}, 1, v{vL}')
    a(f'v_xor_b32 v{vT0}, v{vT0}, v{vG}')
    a(f'v_and_b32 v{vT0}, 3, v{vT0}')
    a(f'v_lshrrev_b32 v{vT1}, 3, v{vL}')
    a(f'v_lshlrev_b32 v{vWOD}, 10, v{vT1}')
    a(f'v_lshl_add_u32 v{vWOD}, v{vT0}, 5, v{vWOD}')
    a(f'v_and_b32 v{vT0}, 1, v{vL}')
    a(f'v_lshl_add_u32 v{vWOD}, v{vT0}, 4, v{vWOD}')
    def mk_q(base, K3):
        RP = 7168 if K3 else 4096
        ops = [f'v_lshrrev_b32 v{base+1}, 3, v{vL}', f'v_mul_u32_u24 v{base}, {RP}, v{base+1}', f'v_lshrrev_b32 v{base+1}, 1, v{vL}']
        if K3: ops += [f'v_and_b32 v{base+2}, 1, v{vG}', f'v_xor_b32 v{base+1}, v{base+1}, v{base+2}']
        else: ops += [f'v_xor_b32 v{base+1}, v{base+1}, v{vG}']
        ops += [f'v_and_b32 v{base+1}, 3, v{base+1}', f'v_lshl_add_u32 v{base}, v{base+1}, 5, v{base}',
                f'v_and_b32 v{base+1}, 1, v{vL}', f'v_lshl_add_u32 v{base}, v{base+1}, 4, v{base}']
        st = 8 * RP - 1024
        if K3:
            ops += [f'v_xor_b32 v{base+1}, 64, v{base}', f'v_add_u32 v{base+2}, {2*st}, v{base}', f'v_add_u32 v{base+3}, {3*st}, v{base+1}', f'v_add_u32 v{base+1}, {st}, v{base+1}']
        else:
            ops += [f'v_add_u32 v{base+q}, {q*st}, v{base}' for q in range(1, 4)]
        return ops
    def mk_r(base, K3):
        if K3:
            ops = [f'v_bfe_u32 v{base+1}, v{vL}, 2, 2', f'v_lshl_add_u32 v{base+1}, v{vG}, 3, v{base+1}',
                   f's_and_b32 s3, s{sWAVE}, 1', 's_lshl_b32 s3, s3, 1']
        else:
            ops = [f'v_lshrrev_b32 v{base+1}, 2, v{vL}', f's_mov_b32 s3, s{sWAVE}']
        ops += [f'v_lshlrev_b32 v{base}, 7, v{base+1}', f'v_bfe_u32 v{base+1}, v{vL}, 3, 2', f'v_xor_b32 v{base+1}, s3, v{base+1}',
                f'v_lshl_add_u32 v{base}, v{base+1}, 5, v{base}', f'v_and_b32 v{base+1}, 3, v{vL}', f'v_lshl_add_u32 v{base}, v{base+1}, 3, v{base}',
                f'v_add_u32 v{base}, s{sPR}, v{base}']
        ops += [f'v_xor_b32 v{base+t}, {32*t}, v{base}' for t in range(1, 4)]
        return ops
    def dma_unit(K3, i, q):
        N = 16 if K3 else 14
        slot = i % NSL
        A, B, rot, S = (sW1A, sW1B, sROT3, sW1) if K3 else (sW2A, sW2B, sROT4, sW2)
        step = 64 * 3584 if K3 else 1 << 17
        tag = ('u', K3, i)
        ops = [('grp', [f's_cmp_lt_u32 s{rot}, {N - i}', f's_cselect_b32 s3, s{A}, s{B}', f's_add_u32 m0, s{sPR}, {slot*4096}', f's_add_u32 s3, s3, {i*step}',
                        ('vm', tag, f'buffer_load_dwordx4 v{q}, {srd(S)}, s3 offen lds')])]
        for k in range(1, 4):
            ops.append(('vm', tag, f'buffer_load_dwordx4 v{q+k}, {srd(S)}, s3 offen offset:{1024*k} lds'))
        return ops
    def tr_unit(K3, i, r):
        hoff = 512 if K3 else 2048
        slot = i % NSL
        return [('ds', ('t', K3, i), f'ds_read_b64_tr_b16 {ar(16*i+4*t+2*h, 2)}, v{r+t} offset:{slot*4096 + hoff*h}') for t in range(4) for h in range(2)]
    a.run(mk_q(vQ1, True))
    a.run(mk_r(vR1, True))
    if OPT['SK']:
        a(f's_cmp_lt_u32 s{sZ}, 7')
        a('s_cbranch_scc1 L_nosk')
        for k in range(3): a(f's_mov_b32 s{sW1+k}, s{sW2+k}')
        a(f's_and_b32 s{sT0}, s{sDT}, 3')
        a(f's_lshl2_add_u32 s{sT0}, s{sT0}, s{sWAVE}')
        a(f's_min_u32 s{sT0}, s{sT0}, 13')
        a(f's_lshl_b32 s{sW1A}, s{sT0}, 14')
        a(f's_and_b32 s{sT0}, s{sCT4}, 24')
        a(f's_lshl_b32 s{sT0}, s{sT0}, 7')
        a(f's_add_u32 s{sW1A}, s{sW1A}, s{sT0}')
        a(f's_mov_b32 s{sW1B}, s{sW1A}')
        for k in range(4): a(f'v_add_u32 v{vQ1+k}, {3072*k}, v{vL16}')
        a.label('L_nosk')
    def xb(i, s): return XB + 20 * (i % 3) + 4 * s
    def wb(i, R): return WB + 12 * (i % 2) + 4 * R
    def acc(R, s): return ACC + 20 * R + 4 * s
    def xoff(i): return (i >> 3) * HS + 16 * (i & 7)
    def xreads(i):
        return [('ds', ('xr', i), f'ds_read_b128 {vr(xb(i,s),4)}, v{vXR} offset:{xoff(i) + 8320*(s-1)}') for s in range(1, 5)] + \
               [('ds', ('xr', i), f'ds_read_b128 {vr(xb(i,0),4)}, v{vHR} offset:{xoff(i)}')]
    def trreads(i):
        slot = i % NW
        return [('ds', ('wr', i), f'ds_read_b64_tr_b16 {vr(wb(i,R)+2*h,2)}, v{vTR + slot//3} offset:{(slot%3)*12288 + R*1024 + 512*h}') for R in range(3) for h in range(2)]
    def mfmas(i):
        ops = []
        for R in range(3):
            for s in (1, 2, 3, 4, 0):
                x = vr(xb(i, s), 4); d = vr(acc(R, s), 4); w = vr(wb(i, R), 4)
                cin = '0' if i == 0 else d
                ops.append(f'v_mfma_f32_16x16x32_bf16 {d}, {w}, {x}, {cin}' if R < 2 else f'v_mfma_f32_16x16x32_bf16 {d}, {x}, {w}, {cin}')
        return ops
    jobs = {0: ('s', 0), 1: ('s', 2), 2: ('s', 4), 3: ('s', 6), 4: ('h', 0), 7: ('h', 8), 8: ('s', 8), 9: ('s', 10), 10: ('s', 12), 11: ('s', 14)}
    def job_reads(b):
        if b not in jobs: return []
        kind, k0 = jobs[b]
        v = vSR if kind == 's' else vHS
        return [('ds', ('jr', b), f'ds_read_b128 {vr(SB+8*(b&1)+4*k,4)}, v{v} offset:{xoff(k0+k)}') for k in range(2)]
    def job_mfmas(b):
        if b not in jobs: return []
        kind, k0 = jobs[b]
        ops = []
        for k in range(2):
            x = vr(SB + 8 * (b & 1) + 4 * k, 4)
            first = k0 == 0 and k == 0
            if kind == 's':
                ops.append(f'v_mfma_f32_16x16x32_bf16 {vr(GS,4)}, {x}, {x}, {"0" if first else vr(GS,4)}')
                ops.append(f'v_mfma_f32_16x16x32_bf16 {vr(GO,4)}, {vr(ONE,4)}, {x}, {"0" if first else vr(GO,4)}')
            else:
                ops.append(f'v_mfma_f32_16x16x32_bf16 {vr(GH,4)}, {x}, {x}, {"0" if first else vr(GH,4)}')
        return ops
    def stat_finalize(s, q, tmp):
        return [f'v_mul_f32 v{s}, 0xbb000000, v{s}',
                f'v_mul_f32 v{tmp}, v{s}, v{s}',
                f'v_mul_f32 v{q}, 0x3b000000, v{q}',
                f'v_sub_f32 v{q}, v{q}, v{tmp}',
                f'v_max_f32 v{q}, 0, v{q}',
                f'v_add_f32 v{q}, 0x3727c5ac, v{q}',
                f'v_rsq_f32 v{q}, v{q}']
    def diag(G, dst):
        ops = []
        for k in range(1, 4):
            m = 0x11111111 << k
            ops.append(('grp', [f's_mov_b32 vcc_lo, {m:#x}', f's_mov_b32 vcc_hi, {m:#x}', f'v_cndmask_b32 v{dst}, v{G if k == 1 else dst}, v{G+k}, vcc']))
        return ops
    NM4, RS4, XR = XB + 20, XB + 40, SB
    HT = STC
    extra = {b: [] for b in range(16)}
    L4 = vE0
    extra[5] += [f'v_lshlrev_b32 v{L4}, 2, v{vL}', f's_lshl_b32 s{sT0}, s{sWAVE}, 9', f's_add_u32 s{sT0}, s{sT0}, {L_HP}', f'v_add_u32 v{vT0}, s{sT0}, v{L4}',
                 f'v_lshrrev_b32 v{vT1}, 2, v{vC}', f'v_lshl_add_u32 v{vT1}, v{vT1}, 4, v{vC}', f'v_lshlrev_b32 v{vT1}, 2, v{vT1}',
                 f'v_add_u32 v{vT1}, {L_NM}, v{vT1}', f'v_lshlrev_b32 v{vT2}, 2, v{vC}', f'v_add_u32 v{vT2}, {L_NM}, v{vT2}']
    extra[8] += diag(GH, GH + 1) + [('ds', 'hp', f'ds_write2st64_b32 v{vT0}, v{GH}, v{GH+1} offset0:0 offset1:1')]
    o0 = (L_HP - L_NM) // 256
    extra[9] += [('ds', 'hq', f'ds_read2st64_b32 {vr(HT+2*k,2)}, v{vT2} offset0:{o0+4*k} offset1:{o0+4*k+2}') for k in range(2)] + \
                [('ds', 'hq', f'ds_read2st64_b32 {vr(HT+4+2*k,2)}, v{vT1} offset0:{o0+4*k+1} offset1:{o0+4*k+3}') for k in range(2)]
    extra[10] += [f'v_add_f32 v{HT}, v{HT}, v{HT+1}', f'v_add_f32 v{HT+2}, v{HT+2}, v{HT+3}', f'v_add_f32 v{HT+4}, v{HT+4}, v{HT+5}', f'v_add_f32 v{HT+6}, v{HT+6}, v{HT+7}',
                  f'v_add_f32 v{HT}, v{HT}, v{HT+2}', f'v_add_f32 v{HT+4}, v{HT+4}, v{HT+6}']
    extra[11] += stat_finalize(HT, HT + 4, HT + 1) + [f'v_add_u32 v{vT0}, {L_NM}, v{L4}', ('ds', 'hw', f'ds_write2st64_b32 v{vT0}, v{HT}, v{HT+4} offset0:0 offset1:5')]
    extra[12] += diag(GS, GS + 1) + stat_finalize(GO, GS + 1, GS) + [f's_lshl_b32 s{sT0}, s{sWAVE}, 8', f'v_add_u32 v{vT0}, s{sT0}, v{vT0}',
                                                                    ('ds', 'hw', f'ds_write2st64_b32 v{vT0}, v{GO}, v{GS+1} offset0:1 offset1:6')]
    extra[13] += [('ds', 'st', f'ds_read2st64_b32 {vr(STC+2*s,2)}, v{vT1} offset0:{s} offset1:{5+s}') for s in range(5)] + \
                 [f'v_mul_u32_u24 v{vT0}, 80, v{vG}', f'v_add_u32 v{vT0}, {L_NM}, v{vT0}',
                  f's_and_b32 s{sT0}, s{sDT}, 1', f's_mul_i32 s{sT0}, s{sT0}, {HS}', f's_lshr_b32 s{sT1}, s{sDT}, 1', f's_lshl_b32 s{sT1}, s{sT1}, 8',
                  f's_add_u32 s{sT0}, s{sT0}, s{sT1}', f'v_mul_u32_u24 v{vT2}, 240, v{vG}', f'v_sub_u32 v{vT2}, v{vSR}, v{vT2}', f'v_add_u32 v{vT2}, s{sT0}, v{vT2}']
    extra[14] += [('ds', 'st', f'ds_read_b128 {vr(NM4+4*s,4)}, v{vT0} offset:{256*s}') for s in range(5)] + \
                 [('ds', 'st', f'ds_read_b128 {vr(XR+4*e,4)}, v{vT2} offset:{64*e}') for e in range(2)]
    extra[15] += [('ds', 'st', f'ds_read_b128 {vr(RS4+4*s,4)}, v{vT0} offset:{1280+256*s}') for s in range(5)]
    vmx = {b: [] for b in range(16)}
    if OPT['TWO']:
        vmx[2] += [('grp', [f'v_lshlrev_b32 v{vT3}, 10, v{vC}', f's_lshl2_add_u32 s3, s{sZ}, s{sWAVE}', f's_lshl_b32 s3, s3, 14', f's_lshl_b32 s{sT0}, s{sDT}, 7', f's_add_u32 s3, s3, s{sT0}',
                            ('vm', 'tw', f'buffer_load_dword v{vDUM}, v{vT3}, {srd(sWO)}, s3 offen')])]
    if OPT['T1']:
        for k in range(2):
            vmx[9 + 2 * k] += [('grp', [f's_lshl_b32 s3, s{sROT3}, 5', f's_add_u32 s3, s3, {64*k}', f'v_add_u32 v{vT3}, s3, v{vL}', f'v_and_b32 v{vT3}, 511, v{vT3}',
                                        f'v_mul_u32_u24 v{vT3}, 7168, v{vT3}', ('vm', 'tw', f'buffer_load_dword v{vDUM}, v{vT3}, {srd(sW1)}, s{sST1} offen')])]
    vmx[13] += [('grp', [f'v_mov_b32 v{vNCE}, 0', ('vm', 'nonce', f'buffer_load_dword v{vNCE}, v{vNCE}, {srd(sDBG)}, 0 offen sc1')])]
    a.stamp(1)
    a.wait(vm=[('w', 1)])
    a('s_waitcnt lgkmcnt(0)')
    a('s_barrier')
    a.stamp(-1)
    a.run(trreads(0) + xreads(0) + job_reads(0) + xreads(1))
    a.wait(ds=[('jr', 0)])
    for i in range(16):
        rd = []
        if i + 1 < 16: rd += trreads(i + 1) + job_reads(i + 1)
        if i + 2 < 16: rd += xreads(i + 2)
        ld = []
        if i == 1: ld += wloads(NW)
        if i == 10: ld += [f's_lshl_b32 s{sLW}, s{sWAVE}, 10']
        if i >= 1: ld += wloads(i + NW)
        ld += vmx[i]
        ex = extra[i]
        dsx = [o for o in ex if not isinstance(o, str) and o[0] == 'ds' and 'read' in o[2]]
        mm = weave(mfmas(i), job_mfmas(i))
        fill = weave(rd, ld) if rd else ld
        fill = weave(fill, ex) if len(fill) >= len(ex) else weave(ex, fill)
        a.run(weave(mm, flat(fill), lead=1))
        if i < 15:
            wv = [('w', i + 2)] if i + 2 < 16 else []
            if i == 5: wv.append(('x', 1))
            a.wait(vm=wv, ds=[('wr', i + 1), ('jr', i + 1), 'hp', 'hq', 'hw'])
            a('s_barrier')
            if i in (1, 3, 5, 8, 11, 13): a.stamp(1)
    a.wait_all(vm=False)
    a('s_barrier')
    a.stamp(-1)
    UA, UB, UC, UD = OPT['UA'], OPT['UB'], OPT['UC'], OPT['UD']
    for u in range(UA): a.run(dma_unit(True, u, vQ1))
    SC, SP, MX, MT, PM, PB, OUT = XB, SB + 8, ACC, ACC + 4, ACC + 8, ACC + 20, ACC + 36
    CW, CWV = 32, 40
    for r in range(4):
        a(f'v_mov_b32_dpp v{CW+4+r}, v{acc(1,0)+r} row_newbcast:0 row_mask:0xf bank_mask:0xf')
    for r in range(4):
        a(f'v_mov_b32_dpp v{CW+r}, v{acc(0,0)+r} row_newbcast:0 row_mask:0xf bank_mask:0xf')
    def epi_k(s):
        src, st, dst = acc(1, s), STC + 2 * s, KP + 2 * s
        return [[f'v_pk_fma_f32 {vr(src+2*h,2)}, {vr(CW+4+2*h,2)}, {vr(st,2)}, {vr(src+2*h,2)} op_sel_hi:[1,0,1]' for h in range(2)],
                [f'v_pk_mul_f32 {vr(src+2*h,2)}, {vr(src+2*h,2)}, {vr(st,2)} op_sel:[0,1] op_sel_hi:[1,1]' for h in range(2)],
                [f'v_cvt_pk_bf16_f32 v{dst+h}, v{src+2*h}, v{src+2*h+1}' for h in range(2)]]
    def epi_q(s):
        src, st, dst = acc(0, s), STC + 2 * s, QP + 2 * (s - 1)
        return [[f'v_pk_fma_f32 {vr(src+2*h,2)}, {vr(CW+2*h,2)}, {vr(st,2)}, {vr(src+2*h,2)} op_sel_hi:[1,0,1]' for h in range(2)],
                [],
                [f'v_cvt_pk_bf16_f32 v{dst+h}, v{src+2*h}, v{src+2*h+1}' for h in range(2)]]
    def epi_v(s):
        src, dst = acc(2, s), VP + 2 * s
        return [[f'v_pk_fma_f32 {vr(src+2*h,2)}, {vr(NM4+4*s+2*h,2)}, {vr(CWV,2)}, {vr(src+2*h,2)} op_sel_hi:[1,0,1]' for h in range(2)],
                [f'v_pk_mul_f32 {vr(src+2*h,2)}, {vr(src+2*h,2)}, {vr(RS4+4*s+2*h,2)}' for h in range(2)],
                [f'v_cvt_pk_bf16_f32 v{dst+h}, v{src+2*h}, v{src+2*h+1}' for h in range(2)]]
    E = [epi_k(s) for s in range(5)] + [epi_q(s) for s in range(1, 5)]
    for ph in range(3):
        for e in E: a.run(e[ph])
    a(f'v_mov_b32 v{CWV}, v{acc(2,0)}')
    a(f'v_mov_b32 v{CWV+1}, v{acc(2,0)}')
    smm = []
    for u in range(4):
        q = vr(QP + 2 * u, 2)
        smm.append(f'v_mfma_f32_16x16x16_bf16 {vr(SC+4*u,4)}, {vr(KP+2*(u+1),2)}, {q}, {vr(BC,4)}')
        smm.append(f'v_mfma_f32_16x16x16_bf16 {vr(SP+4*u,4)}, {vr(KP+2*u,2)}, {q}, {vr(BP0 if u == 0 else BP,4)}')
    vv = [f'v_permlane16_swap_b32 v{CWV}, v{CWV+1}', f's_mov_b32 s{sT0}, {f2h(0.25 * 1.4426950408889634)}']
    vv += [f'v_mul_f32 v{STC+2*s+1}, s{sT0}, v{STC+2*s+1}' for s in range(1, 5)]
    E = [epi_v(s) for s in range(5)]
    for ph in range(3):
        for e in E: vv += e[ph]
    a.run(weave(smm, vv[:16]) + vv[16:])
    a.stamp(1)
    for u in range(4):
        for r in range(4):
            a(f'v_max_f32 v{SC+4*u+r}, v{SC+4*u+r}, v{SP+4*u+r}')
    for u in range(4):
        a(f'v_max3_f32 v{MX+u}, v{SC+4*u}, v{SC+4*u+1}, v{SC+4*u+2}')
    for u in range(4):
        a(f'v_max_f32 v{MX+u}, v{MX+u}, v{SC+4*u+3}')
    for sw in ('v_permlane16_swap_b32', 'v_permlane32_swap_b32'):
        for u in range(4): a(f'v_mov_b32 v{MT+u}, v{MX+u}')
        for u in range(4): a(f'{sw} v{MX+u}, v{MT+u}')
        for u in range(4): a(f'v_max_f32 v{MX+u}, v{MX+u}, v{MT+u}')
    for u in range(4):
        a(f'v_mul_f32 v{MX+u}, v{STC+2*u+3}, v{MX+u}')
    for u in range(4):
        for r in range(4):
            a(f'v_fma_f32 v{SC+4*u+r}, v{SC+4*u+r}, v{STC+2*u+3}, -v{MX+u}')
    for u in range(4):
        for r in range(4):
            a(f'v_exp_f32 v{SC+4*u+r}, v{SC+4*u+r}')
    for u in range(4):
        for h in range(2):
            a(f'v_cvt_pk_bf16_f32 v{PM+2*u+h}, v{SC+4*u+2*h}, v{SC+4*u+2*h+1}')
        for h in range(2):
            a(f'v_and_b32 v{PB+4*u+h}, v{PM+2*u+h}, v{MP+h}')
            a(f'v_and_b32 v{PB+4*u+2+h}, v{PM+2*u+h}, v{MC+h}')
    pm = []
    for u in range(4):
        pm.append(f'v_mfma_f32_16x16x16_bf16 {vr(SP+4*u,4)}, {vr(ONE,2)}, {vr(PM+2*u,2)}, 0')
    for u in range(4):
        pm.append(f'v_mfma_f32_16x16x32_bf16 {vr(SC+4*u,4)}, {vr(VP+2*u,4)}, {vr(PB+4*u,4)}, 0')
    sa = [f's_lshl2_add_u32 s{sT0}, s{sDT}, s{sWAVE}', f's_lshl_b32 s{sT2}, s{sRT}, 5', f's_add_u32 s{sT2}, s{sT2}, s{sT0}', f's_lshl_b32 s{sT2}, s{sT2}, 2',
          f's_add_u32 s{sT2}, s{sT2}, {WS_F1:#x}', f's_lshl_b32 s{sT0}, s{sT0}, 9', f's_lshl_b32 s{sT1}, s{sRT}, 16', f's_add_u32 s{sT0}, s{sT0}, s{sT1}',
          f's_add_u32 s{sT1}, s{sT0}, 32768', f'v_lshrrev_b32 v{vT0}, 5, v{vL}', f'v_mul_u32_u24 v{vT0}, {16384 - 512}, v{vT0}', f'v_add_u32 v{vT0}, v{vT0}, v{vL16}']
    a.run(weave(pm, sa))
    for u in range(4):
        a(f'v_rcp_f32 v{SP+4*u}, v{SP+4*u}')
    for u in range(4):
        for h in range(2):
            a(f'v_pk_mul_f32 {vr(SC+4*u+2*h,2)}, {vr(SC+4*u+2*h,2)}, {vr(SP+4*u,2)} op_sel_hi:[1,0]')
    for u in range(4):
        for h in range(2):
            a(f'v_cvt_pk_bf16_f32 v{OUT+2*u+h}, v{SC+4*u+2*h}, v{SC+4*u+2*h+1}')
    for e in range(2):
        for h in range(2):
            a(f'v_permlane32_swap_b32 v{OUT+4*e+h}, v{OUT+4*e+2+h}')
    for e in range(2):
        a.vm('ost', f'buffer_store_dwordx4 {vr(OUT+4*e,4)}, v{vT0}, {srd(sWS)}, s{[sT0,sT1][e]} offen sc1')
    a.stamp(0, 1)
    ID, O, ACC2, S2, PK2, PL = 20, 64, 128, 144, 152, 172
    WF2 = 32
    vHO, vSO, vTW = 9, 10, 12
    a(f'v_bfe_u32 v{vT0}, v{vL}, 2, 3')
    a(f'v_lshrrev_b32 v{vT1}, 5, v{vL}')
    a(f'v_lshl_add_u32 v{vT0}, v{vT1}, 4, v{vT0}')
    a(f'v_lshlrev_b32 v{vTW}, 7, v{vT0}')
    a(f'v_bfe_u32 v{vT0}, v{vL}, 3, 2')
    a(f'v_lshl_add_u32 v{vTW}, v{vT0}, 5, v{vTW}')
    a(f'v_and_b32 v{vT0}, 3, v{vL}')
    a(f'v_lshl_add_u32 v{vTW}, v{vT0}, 3, v{vTW}')
    for t in range(1, 4): a(f'v_xor_b32 v{vTW+t}, {32*t}, v{vTW}')
    a(f'v_and_b32 v{vT0}, 1, v{vC}')
    a(f'v_lshlrev_b32 v{vT0}, 4, v{vT0}')
    a(f'v_mov_b32 v{vT1}, 0x3f80')
    a(f'v_lshlrev_b32 v{vT0}, v{vT0}, v{vT1}')
    a(f'v_lshrrev_b32 v{vT1}, 1, v{vC}')
    a(f'v_lshlrev_b32 v{vT2}, 2, v{vG}')
    a(f'v_sub_u32 v{vT1}, v{vT1}, v{vT2}')
    for b in range(2):
        for k in range(4):
            a(f'v_cmp_eq_i32 vcc, {k - 8*b}, v{vT1}')
            a(f'v_cndmask_b32 v{ID+4*b+k}, 0, v{vT0}, vcc')
    a(f'v_and_b32 v{vT0}, 1, v{vG}')
    a(f'v_lshlrev_b32 v{vHO}, 10, v{vT0}')
    a(f'v_lshrrev_b32 v{vT0}, 1, v{vG}')
    a(f'v_lshl_add_u32 v{vHO}, v{vT0}, 8, v{vHO}')
    a(f'v_lshl_add_u32 v{vHO}, v{vC}, 4, v{vHO}')
    a(f'v_lshrrev_b32 v{vT0}, 2, v{vC}')
    a(f'v_lshlrev_b32 v{vSO}, 8, v{vT0}')
    a(f'v_lshl_add_u32 v{vSO}, v{vG}, 6, v{vSO}')
    a(f'v_and_b32 v{vT0}, 3, v{vC}')
    a(f'v_lshl_add_u32 v{vSO}, v{vT0}, 4, v{vSO}')
    for t in range(4):
        a(f'v_mfma_f32_16x16x32_bf16 {vr(ACC2+4*t,4)}, {vr(XR+4*(t>>1),4)}, {vr(ID+4*(t&1),4)}, 0')
    a.wait(vm=['nonce'])
    a(f'v_readfirstlane_b32 s{sNON}, v{vNCE}')
    a(f's_mov_b32 s{sCNT}, {SPIN}')
    a(f'v_mov_b32 v{vT1}, 0')
    a.label('L_non')
    a(f's_cmp_lg_u32 s{sNON}, 0')
    a('s_cbranch_scc1 L_nonok')
    a(f'buffer_load_dword v{vNCE}, v{vT1}, {srd(sDBG)}, 0 offen sc1')
    a('s_waitcnt vmcnt(0)')
    a(f'v_readfirstlane_b32 s{sNON}, v{vNCE}')
    a(f's_sub_u32 s{sCNT}, s{sCNT}, 1')
    a('s_cbranch_scc0 L_non')
    a.label('L_nonok')
    def flag(soff):
        a(f'v_mov_b32 v{vT2}, s{sNON}')
        a(f'v_mov_b32 v{vT3}, 0')
        a.wait_all(ds=False)
        a('s_mov_b64 exec, 1')
        a.vm('flag', f'buffer_store_dword v{vT2}, v{vT3}, {srd(sWS)}, s{soff} offen sc1')
        a('s_mov_b64 exec, -1')
    flag(sT2)
    a.stamp(0, 1)
    a('s_barrier')
    n1 = min(UA + UB, NSL)
    for u in range(UA, n1): a.run(dma_unit(True, u, vQ1))
    for u in range(UA): a.run(tr_unit(True, u, vR1))
    def wf2(i): return [32, 48, 176, 192, 208, 224][i % 6]
    def tr2(i):
        return [('ds', ('w2r', i), f'ds_read_b64_tr_b16 {vr(wf2(i)+4*t+2*h,2)}, v{vTW+t} offset:{4096*i+1024*h}') for t in range(4) for h in range(2)]
    for i in range(5): a.run(tr2(i))
    if UA + UB > n1:
        a.wait_all(vm=False)
        for u in range(n1, UA + UB): a.run(dma_unit(True, u, vQ1))
    def poll(lbl, vaddr, soff):
        a(f's_mov_b32 s{sCNT}, {SPIN}')
        a.label(lbl)
        a(f'buffer_load_dword v{PL}, v{vaddr}, {srd(sWS)}, s{soff} offen sc1')
        a.wait_all(ds=False)
        a(f'v_cmp_ne_u32 vcc, s{sNON}, v{PL}')
        a(f's_cbranch_vccz {lbl}_ok')
        a(f's_sub_u32 s{sCNT}, s{sCNT}, 1')
        a(f's_cbranch_scc0 {lbl}')
        a.label(lbl + '_ok')
    a(f's_lshl_b32 s{sT0}, s{sRT}, 7')
    a(f's_add_u32 s{sT0}, s{sT0}, {WS_F1:#x}')
    a(f'v_and_b32 v{vE0}, 31, v{vL}')
    a(f'v_lshlrev_b32 v{vE0}, 2, v{vE0}')
    sBLK = sXB
    a(f's_lshl2_add_u32 s{sBLK}, s{sRT}, s{sWAVE}')
    a(f's_lshl_b32 s{sT1}, s{sBLK}, 14')
    poll('L_p1', vE0, sT0)
    a.stamp()
    for c in range(4):
        if c: a(f's_add_u32 s{sT1}, s{sT1}, 4096')
        for i in range(4):
            a.vm(('o', 4*c+i), f'buffer_load_dwordx4 {vr(O+16*c+4*i,4)}, v{vL16}, {srd(sWS)}, s{sT1} offen offset:{1024*i} sc1')
    for u in range(UA, UA + UB): a.run(tr_unit(True, u, vR1))
    a.wait_all(vm=False)
    U2 = UA + UB
    for u in range(U2, U2 + UC): a.run(dma_unit(True, u, vQ1))
    a(f's_lshl_b32 s{sT0}, s{sDT}, 18')
    a(f's_lshr_b32 s{sT1}, s{sBLK}, 1')
    a(f's_lshl_b32 s{sT1}, s{sT1}, 12')
    a(f's_add_u32 s{sT0}, s{sT0}, s{sT1}')
    a(f's_and_b32 s{sT1}, s{sBLK}, 1')
    a(f's_lshl_b32 s{sT1}, s{sT1}, 9')
    a(f's_add_u32 s{sT0}, s{sT0}, s{sT1}')
    a(f's_add_u32 s{sT0}, s{sT0}, {WS_HF:#x}')
    a(f's_lshl_b32 s{sT1}, s{sBLK}, 11')
    a(f's_add_u32 s{sT1}, s{sT1}, {WS_SX:#x}')
    a(f's_lshl_b32 s{sT2}, s{sDT}, 8')
    a(f's_add_u32 s{sT2}, s{sT2}, s{sT1}')
    a(f'v_lshlrev_b32 v{vT0}, 2, v{vL}')
    for i in range(16):
        a.wait(vm=[('o', i)], ds=[('w2r', i)])
        mm = [f'v_mfma_f32_16x16x32_bf16 {vr(ACC2+4*t,4)}, {vr(O+4*i,4)}, {vr(wf2(i)+4*t,4)}, {vr(ACC2+4*t,4)}' for t in range(4)]
        a.run(weave(mm, tr2(i + 5) if i + 5 < 16 else []))
    a.stamp()
    S = S2
    for r in range(4):
        a(f'v_add_f32 v{S+r}, v{ACC2+r}, v{ACC2+4+r}')
        a(f'v_mul_f32 v{S+4+r}, v{ACC2+r}, v{ACC2+r}')
    for t in range(1, 4):
        for r in range(4):
            if t > 1: a(f'v_add_f32 v{S+r}, v{S+r}, v{ACC2+4*t+r}')
            a(f'v_fmac_f32 v{S+4+r}, v{ACC2+4*t+r}, v{ACC2+4*t+r}')
    for base in (S, S + 4):
        for i in range(2):
            a(f'v_add_f32_dpp v{base+i}, v{base+i}, v{base+i} row_ror:8 row_mask:0xf bank_mask:0x3')
    for base in (S, S + 4):
        for i in range(2):
            a(f'v_add_f32_dpp v{base+i}, v{base+i+2}, v{base+i+2} row_ror:8 row_mask:0xf bank_mask:0xc')
    for base in (S, S + 4):
        a(f'v_add_f32_dpp v{base}, v{base}, v{base} row_half_mirror row_mask:0xf bank_mask:0x5')
    for base in (S, S + 4):
        a(f'v_add_f32_dpp v{base}, v{base+1}, v{base+1} row_half_mirror row_mask:0xf bank_mask:0xa')
    a(f'v_mov_b32 v{S+1}, s{sNON}')
    for qp in ('[1,0,3,2]', '[2,3,0,1]'):
        for base in (S, S + 4):
            a(f'v_add_f32_dpp v{base}, v{base}, v{base} quad_perm:{qp} row_mask:0xf bank_mask:0xf')
    a('s_mov_b32 vcc_lo, 0xaaaaaaaa')
    a('s_mov_b32 vcc_hi, 0xaaaaaaaa')
    a(f'v_cndmask_b32 v{S}, v{S}, v{S+4}, vcc')
    a('s_mov_b32 vcc_lo, 0xcccccccc')
    a('s_mov_b32 vcc_hi, 0xcccccccc')
    a(f'v_cndmask_b32 v{S}, v{S}, v{S+1}, vcc')
    a.vm('sx', f'buffer_store_dword v{S}, v{vT0}, {srd(sWS)}, s{sT2} offen sc1')
    def pack_store(tag, soff):
        for t in range(4):
            for h in range(2):
                a(f'v_cvt_pk_bf16_f32 v{PK2+2*t+h}, v{ACC2+4*t+2*h}, v{ACC2+4*t+2*h+1}')
        for e in range(2):
            for h in range(2):
                a(f'v_permlane16_swap_b32 v{PK2+4*e+h}, v{PK2+4*e+2+h}')
        for e in range(2):
            a.vm(tag, f'buffer_store_dwordx4 {vr(PK2+4*e,4)}, v{vHO}, {srd(sWS)}, s{soff} offen offset:{2048*e} sc1')
    pack_store('hst', sT0)
    PK2 = PK2 + 8
    a(f's_sub_u32 s{sT0}, s{sT0}, {WS_HF - WS_HN:#x}')
    a(f's_lshl_b32 s{sT2}, s{sDT}, 7')
    a(f's_add_u32 s{sT2}, s{sT2}, s{sBLK}')
    a(f's_lshl_b32 s{sT2}, s{sT2}, 2')
    a(f's_add_u32 s{sT2}, s{sT2}, {WS_F2:#x}')
    a.stamp()
    R0 = O
    a(f's_mov_b32 s{sCNT}, {SPIN}')
    a.label('L_sx')
    for e in range(2):
        a(f'buffer_load_dwordx4 {vr(R0+4*e,4)}, v{vSO}, {srd(sWS)}, s{sT1} offen offset:{1024*e} sc1')
    a.wait_all(ds=False)
    a(f'v_xor_b32 v{R0+2}, s{sNON}, v{R0+2}')
    a(f'v_xor_b32 v{R0+6}, s{sNON}, v{R0+6}')
    a(f'v_add_f32 v{R0}, v{R0}, v{R0+4}')
    a(f'v_or_b32 v{R0+2}, v{R0+2}, v{R0+6}')
    a(f'v_add_f32 v{R0+1}, v{R0+1}, v{R0+5}')
    a(f'v_cmp_ne_u32 vcc, 0, v{R0+2}')
    a('s_cbranch_vccz L_sx_ok')
    a(f's_sub_u32 s{sCNT}, s{sCNT}, 1')
    a('s_cbranch_scc0 L_sx')
    a.label('L_sx_ok')
    a.stamp()
    for ror in (4, 8):
        for k in range(2):
            a(f'v_add_f32_dpp v{R0+k}, v{R0+k}, v{R0+k} row_ror:{ror} row_mask:0xf bank_mask:0xf')
    s_, q_, t_ = R0, R0 + 1, R0 + 2
    a(f's_mov_b32 s{sT1}, 0x3727c5ac')
    a(f'v_mul_f32 v{s_}, 0xbb000000, v{s_}')
    a(f'v_mul_f32 v{q_}, 0x3b000000, v{q_}')
    a(f'v_fma_f32 v{q_}, -v{s_}, v{s_}, v{q_}')
    a(f'v_max_f32 v{q_}, 0, v{q_}')
    a(f'v_add_f32 v{t_}, s{sT1}, v{q_}')
    a(f'v_rsq_f32 v{t_}, v{t_}')
    a(f'v_mul_f32 v{q_}, v{q_}, v{t_}')
    a(f'v_fma_f32 v{q_}, v{q_}, v{t_}, s{sT1}')
    a(f'v_rsq_f32 v{q_}, v{q_}')
    a(f'v_mul_f32 v{t_}, v{t_}, v{q_}')
    a(f'v_mul_f32 v{s_}, v{s_}, v{t_}')
    RR, BB = R0 + 4, R0 + 8
    for r in range(4):
        a(f'v_mov_b32_dpp v{RR+r}, v{t_} quad_perm:[{r},{r},{r},{r}] row_mask:0xf bank_mask:0xf')
    for r in range(4):
        a(f'v_mov_b32_dpp v{BB+r}, v{s_} quad_perm:[{r},{r},{r},{r}] row_mask:0xf bank_mask:0xf')
    for t in range(4):
        for h in range(2):
            a(f'v_pk_fma_f32 {vr(ACC2+4*t+2*h,2)}, {vr(ACC2+4*t+2*h,2)}, {vr(RR+2*h,2)}, {vr(BB+2*h,2)}')
    pack_store('hst', sT0)
    U3 = U2 + UC
    for u in range(U2, U3): a.run(tr_unit(True, u, vR1))
    vQ2, vR2 = 9, 13
    vA0, vA1 = 17, 18
    BI4 = 20
    OWN, OTH, ST, H = 32, 48, 96, 128
    a.run(mk_q(vQ2 + 16, False))
    a.run(mk_r(vR2, False))
    flag(sT2)
    for k in range(4): a(f'v_mov_b32 v{vQ2+k}, v{vQ2+16+k}')
    a.stamp()
    u = U3
    while u < 16:
        a.wait_all(vm=False)
        n = min(NSL, 16 - u)
        for k in range(u, u + n): a.run(dma_unit(True, k, vQ1))
        for k in range(u, u + n):
            a.wait(vm=[('u', True, k)])
            a.run(tr_unit(True, k, vR1))
        u += n
    a.wait_all(vm=False)
    a('s_barrier')
    w2_issued = 0
    for k in range(OPT['W2PRE']):
        a.run(dma_unit(False, k, vQ2)); w2_issued += 1
    a(f's_cmp_ge_u32 s{sZ}, 7')
    a('s_cbranch_scc1 L_skip3')
    save_vm = list(a.vmq)
    a(f's_lshr_b32 s{sT0}, s{sWAVE}, 1')
    a(f's_lshl_b32 s{sT0}, s{sT0}, 11')
    a(f'v_or_b32 v{vA0}, s{sT0}, v{vL16}')
    a(f'v_xor_b32 v{vA1}, 2048, v{vA0}')
    a(f's_lshl_b32 s{sT0}, s{sCT3}, 7')
    a(f's_and_b32 s{sT1}, s{sWAVE}, 1')
    a(f's_lshl_b32 s{sT1}, s{sT1}, 6')
    a(f's_add_u32 s{sT0}, s{sT0}, s{sT1}')
    a(f'v_lshlrev_b32 v{vT0}, 3, v{vG}')
    for i in range(2):
        a.vm('b1', f'buffer_load_dwordx2 {vr(BI4+2*i,2)}, v{vT0}, {srd(sB1)}, s{sT0} offen offset:{32*i}')
    sHA, sHB = sXB, sWB
    a(f's_lshl4_add_u32 s{sT0}, s{sWAVE}, s{sROT3}')
    a(f's_lshl_b32 s{sHA}, s{sT0}, 12')
    a(f's_lshl_b32 s{sT0}, s{sDT}, 18')
    a(f's_add_u32 s{sHA}, s{sHA}, s{sT0}')
    a(f's_add_u32 s{sHA}, s{sHA}, {WS_HN:#x}')
    a(f's_sub_u32 s{sHB}, s{sHA}, 65536')
    a(f's_lshl2_add_u32 s{sT0}, s{sDT}, s{sWAVE}')
    a(f's_lshl_b32 s{sT0}, s{sT0}, 7')
    a(f's_add_u32 s{sT0}, s{sT0}, {WS_F2:#x}')
    PL = ST + 16
    poll('L_p2', vE0, sT0)
    a.stamp()
    def hreg(i, t): return H + 16 * (i % 8) + 4 * t
    def aloads(K3, i):
        N = 16 if K3 else 14
        rot = sROT3 if K3 else sROT4
        ops = []
        for t in range(4):
            pre = [f's_cmp_lt_u32 s{rot}, {N - i}', f's_cselect_b32 s{sCNT}, s{sHA}, s{sHB}', f's_add_u32 s{sCNT}, s{sCNT}, {i*4096}'] if t == 0 else []
            if K3: txt = f'buffer_load_dwordx4 {vr(hreg(i,t),4)}, v{vA1 if t >> 1 else vA0}, {srd(sWS)}, s{sCNT} offen offset:{1024*(t&1)} sc1'
            else: txt = f'buffer_load_dwordx4 {vr(hreg(i,t),4)}, v{vL16}, {srd(sWS)}, s{sCNT} offen offset:{1024*t} sc1'
            ops.append(('grp', pre + [('vm', ('a', K3, i), txt)]))
        return ops
    def acc34(K3, tw, ta):
        q, k = ((tw >> 1) + 2 * (ta >> 1), (tw & 1) + 2 * (ta & 1)) if K3 else (tw, ta)
        return q, vr(OWN + 16 * q + 4 * k, 4)
    def mm34(K3, i, quad=None):
        mm = []
        for ta in range(4):
            for tw in range(4):
                q, d = acc34(K3, tw, ta)
                if quad is not None and q != quad: continue
                A, B = (ar(16*i+4*tw, 4), vr(hreg(i, ta), 4)) if K3 else (vr(hreg(i, ta), 4), ar(16*i+4*tw, 4))
                mm.append(f'v_mfma_f32_16x16x32_bf16 {d}, {A}, {B}, {"0" if i == 0 else d}')
        return mm
    red_addr = [f's_mul_i32 s{sT0}, s{sWAVE}, 12288']
    for q in range(1, 4):
        red_addr += [f's_xor_b32 s{sT1}, s{sWAVE}, {q}', f's_mul_i32 s{sT1}, s{sT1}, 12288', f'v_add_u32 v{vT0+q-1}, s{sT1}, v{vL16}']
    red_addr += [f'v_add_u32 v{vT3}, s{sT0}, v{vL16}']
    def red_w(q): return [('ds', 'rw', f'ds_write_b128 v{vT0+q-1}, {vr(OWN+16*q+4*k,4)} offset:{4096*(q-1)+1024*k}') for k in range(4)]
    def gemm34(K3, N, fills):
        NQ = 4 if OPT['QM'] else 0
        for i in range(N - NQ):
            a.wait(vm=[('a', K3, i)])
            ld = aloads(K3, i + 7) if 1 <= i and i + 7 < N else []
            f = fills.get(i, [])
            a.run(weave(mm34(K3, i), weave(ld, f) if len(ld) >= len(f) else weave(f, ld)))
        if NQ:
            a.wait(vm=[('a', K3, N - 1)])
            prev = None
            for j, q in enumerate((1, 2, 3, 0)):
                mm = []
                for i in range(N - NQ, N): mm += mm34(K3, i, q)
                f = fills.get(N - NQ + j, [])
                w = red_w(prev) if prev else []
                a.run(mm[:3] + weave(mm[3:], weave(f, w) if len(f) >= len(w) else weave(w, f)))
                prev = q
        else:
            for q in range(1, 4): a.run(red_w(q))
    def reduce_rd():
        a.wait_all(vm=False)
        a('s_barrier')
        for k in range(4):
            for q in range(3):
                a.ds(('rr', k), f'ds_read_b128 {vr(OTH+16*q+4*k,4)}, v{vT3} offset:{4096*q+1024*k}')
    def reduce_sum(k, bias):
        a.wait(ds=[('rr', k)])
        o = OWN + 4 * k
        for h in range(2):
            a(f'v_pk_add_f32 {vr(o+2*h,2)}, {vr(o+2*h,2)}, {bias(k, h)}')
            a(f'v_pk_add_f32 {vr(OTH+4*k+2*h,2)}, {vr(OTH+4*k+2*h,2)}, {vr(OTH+16+4*k+2*h,2)}')
        for h in range(2):
            a(f'v_pk_add_f32 {vr(o+2*h,2)}, {vr(o+2*h,2)}, {vr(OTH+32+4*k+2*h,2)}')
        for h in range(2):
            a(f'v_pk_add_f32 {vr(o+2*h,2)}, {vr(o+2*h,2)}, {vr(OTH+4*k+2*h,2)}')
    for i in range(8): a.run(aloads(True, i))
    a.run(red_addr)
    BF = ST
    fills = {}
    w2_moved = 0
    for i in range(1, 1 + OPT['W2PRE']):
        fills[i] = tr_unit(False, i - 1, vR2); w2_moved += 1
    fills.setdefault(8, [])
    fills[8] = fills[8] + [x for i in range(4) for x in (f'v_lshlrev_b32 v{BF+2*i}, 16, v{BI4+i}', f'v_and_b32 v{BF+2*i+1}, 0xffff0000, v{BI4+i}')]
    for i in range(9, 16):
        if w2_issued < min(14, w2_moved + NSL):
            fills[i] = fills.get(i, []) + ([('wds', ('t', False, w2_issued - NSL))] if w2_issued >= NSL else []) + dma_unit(False, w2_issued, vQ2); w2_issued += 1
    gemm34(True, 16, fills)
    a.stamp()
    reduce_rd()
    a(f's_mul_i32 s{sT0}, s{sDT}, {56*4096}')
    a(f's_lshl_b32 s{sT1}, s{sCT3}, 13')
    a(f's_add_u32 s{sT0}, s{sT0}, s{sT1}')
    a(f's_and_b32 s{sT1}, s{sWAVE}, 1')
    a(f's_lshl_b32 s{sT1}, s{sT1}, 12')
    a(f's_add_u32 s{sT0}, s{sT0}, s{sT1}')
    a(f's_add_u32 s{sT0}, s{sT0}, {WS_UF:#x}')
    a(f's_mul_i32 s{sT2}, s{sDT}, 28')
    a(f's_add_u32 s{sT2}, s{sT2}, s{sCT3}')
    a(f's_lshl2_add_u32 s{sT2}, s{sT2}, s{sWAVE}')
    a(f's_lshl_b32 s{sT2}, s{sT2}, 2')
    a(f's_add_u32 s{sT2}, s{sT2}, {WS_F3:#x}')
    C1 = -2.0 * 0.7978845608028654 * 1.4426950408889634
    a(f's_mov_b32 s{sT1}, {f2h(C1 * 0.044715)}')
    a(f'v_mov_b32 v{vT2}, {f2h(C1)}')
    for k in range(4): reduce_sum(k, lambda k, h: vr(BF + 4 * (k & 1) + 2 * h, 2))
    T = H
    PK = H + 16
    for j in range(16): a(f'v_mul_f32 v{T+j}, v{OWN+j}, v{OWN+j}')
    for j in range(16): a(f'v_fma_f32 v{T+j}, v{T+j}, s{sT1}, v{vT2}')
    for j in range(16): a(f'v_mul_f32 v{T+j}, v{T+j}, v{OWN+j}')
    for j in range(16): a(f'v_exp_f32 v{T+j}, v{T+j}')
    for j in range(16): a(f'v_add_f32 v{T+j}, 1.0, v{T+j}')
    for j in range(16): a(f'v_rcp_f32 v{T+j}, v{T+j}')
    for j in range(16): a(f'v_mul_f32 v{OWN+j}, v{T+j}, v{OWN+j}')
    for j in range(8): a(f'v_cvt_pk_bf16_f32 v{PK+j}, v{OWN+2*j}, v{OWN+2*j+1}')
    for b in range(2):
        a.vm('ust', f'buffer_store_dwordx4 {vr(PK+4*b,4)}, v{vA0}, {srd(sWS)}, s{sT0} offen offset:{1024*b} sc1')
    flag(sT2)
    a.stamp()
    a('s_branch L_join3')
    a.label('L_skip3')
    vq, dq = a.vmq, a.dsq; a.vmq = save_vm; a.dsq = []
    a.wait_all()
    for k in range(w2_moved): a.run(tr_unit(False, k, vR2))
    a.wait_all()
    for k in range(OPT['W2PRE'], w2_issued): a.run(dma_unit(False, k, vQ2))
    a.wait_all()
    a.vmq = vq; a.dsq = dq
    a.label('L_join3')
    while w2_moved < 14:
        for k in range(w2_moved, w2_issued):
            a.wait(vm=[('u', False, k)])
            a.run(tr_unit(False, k, vR2))
        w2_moved = w2_issued
        if w2_issued < 14:
            a.wait_all(vm=False)
            for k in range(w2_issued, min(14, w2_issued + NSL)):
                a.run(dma_unit(False, k, vQ2)); w2_issued += 1
    RES, PMX, vBI = ST, BI4, BI4 + 2
    a(f's_mul_i32 s{sT0}, s{sWAVE}, 14')
    a(f's_add_u32 s{sT0}, s{sT0}, s{sROT4}')
    a(f's_lshl_b32 s{sHA}, s{sT0}, 12')
    a(f's_mul_i32 s{sT0}, s{sDT}, {56*4096}')
    a(f's_add_u32 s{sHA}, s{sHA}, s{sT0}')
    a(f's_add_u32 s{sHA}, s{sHA}, {WS_UF:#x}')
    a(f's_sub_u32 s{sHB}, s{sHA}, {14*4096}')
    a(f's_lshl_b32 s{sT0}, s{sCT4}, 7')
    a(f's_lshl_b32 s{sT1}, s{sWAVE}, 5')
    a(f's_add_u32 s{sT0}, s{sT0}, s{sT1}')
    a(f'v_lshlrev_b32 v{vT0}, 1, v{vC}')
    a.vm('b2', f'buffer_load_ushort v{vBI}, v{vT0}, {srd(sB2)}, s{sT0} offen')
    a(f'v_lshrrev_b32 v{vT0}, 3, v{vC}')
    a(f'v_and_b32 v{vT1}, 1, v{vC}')
    a(f'v_lshl_add_u32 v{vT0}, v{vT1}, 1, v{vT0}')
    a(f'v_bfe_u32 v{vT1}, v{vC}, 1, 1')
    a(f'v_lshlrev_b32 v{vT1}, 4, v{vT1}')
    a(f'v_mov_b32 v{vT2}, 0x3f80')
    a(f'v_lshlrev_b32 v{vT1}, v{vT1}, v{vT2}')
    a(f'v_cmp_eq_u32 vcc, v{vT0}, v{vG}')
    a(f'v_cndmask_b32 v{vT1}, 0, v{vT1}, vcc')
    a(f'v_and_b32 v{vT0}, 4, v{vC}')
    a(f'v_cmp_eq_u32 vcc, 0, v{vT0}')
    a(f'v_cndmask_b32 v{PMX}, 0, v{vT1}, vcc')
    a(f'v_cndmask_b32_e64 v{PMX+1}, v{vT1}, 0, vcc')
    a(f'v_lshrrev_b32 v{vA0}, 1, v{vG}')
    a(f'v_lshlrev_b32 v{vA0}, 17, v{vA0}')
    a(f'v_lshl_add_u32 v{vA0}, v{vC}, 4, v{vA0}')
    a(f'v_and_b32 v{vT1}, 1, v{vG}')
    a(f'v_lshl_add_u32 v{vA0}, v{vT1}, 3, v{vA0}')
    a(f's_lshl_b32 s{sST1}, s{sDT}, 18')
    a(f's_lshl_b32 s{sT2}, s{sCT4}, 12')
    a(f's_add_u32 s{sST1}, s{sST1}, s{sT2}')
    a(f's_lshl_b32 s{sT2}, s{sWAVE}, 8')
    a(f's_add_u32 s{sST1}, s{sST1}, s{sT2}')
    a(f's_add_u32 s{sST1}, s{sST1}, {WS_HF:#x}')
    a(f'v_lshlrev_b32 v{vA1}, 10, v{vC}')
    a(f'v_lshl_add_u32 v{vA1}, v{vT1}, 5, v{vA1}')
    a(f'v_lshrrev_b32 v{vT1}, 1, v{vG}')
    a(f'v_lshl_add_u32 v{vA1}, v{vT1}, 4, v{vA1}')
    a(f'v_min_u32 v{vE0}, 27, v{vL}')
    a(f'v_lshlrev_b32 v{vE0}, 2, v{vE0}')
    a.run(red_addr)
    a(f's_lshl2_add_u32 s{sT0}, s{sDT}, s{sWAVE}')
    a(f's_mul_i32 s{sT0}, s{sT0}, 112')
    a(f's_add_u32 s{sT0}, s{sT0}, {WS_F3:#x}')
    a.wait_all(vm=False)
    a('s_barrier')
    poll('L_p3', vE0, sT0)
    a.stamp()
    for i in range(8): a.run(aloads(False, i))
    for t in range(4):
        a.vm('res', f'buffer_load_dwordx2 {vr(RES+2*t,2)}, v{vA0}, {srd(sWS)}, s{sST1} offen offset:{1024*t} sc1')
    fills = {9: [f'v_mfma_f32_16x16x16_bf16 {acc34(False,0,t)[1]}, {vr(RES+2*t,2)}, {vr(PMX,2)}, {acc34(False,0,t)[1]}' for t in range(4)],
             3: [f'v_lshlrev_b32 v{vBI}, 16, v{vBI}', f'v_mov_b32 v{vBI+1}, v{vBI}', f's_lshl_b32 s{sT0}, s{sCT4}, 16', f's_lshl_b32 s{sT1}, s{sWAVE}, 14',
                 f's_add_u32 s{sT0}, s{sT0}, s{sT1}', f's_lshl_b32 s{sT1}, s{sDT}, 7', f's_add_u32 s{sT0}, s{sT0}, s{sT1}']}
    gemm34(False, 14, fills)
    a.stamp()
    reduce_rd()
    for k in range(4): reduce_sum(k, lambda k, h: vr(vBI, 2))
    for j in range(8): a(f'v_cvt_pk_bf16_f32 v{PK+j}, v{OWN+2*j}, v{OWN+2*j+1}')
    for e in range(2):
        for h in range(2):
            a(f'v_permlane16_swap_b32 v{PK+4*e+h}, v{PK+4*e+2+h}')
    for e in range(2):
        a(f'buffer_store_dwordx4 {vr(PK+4*e,4)}, v{vA1}, {srd(sOUT)}, s{sT0} offen offset:{64*e}')
    a.stamp()
    if PROF:
        a.label('L_prof')
        a('s_waitcnt lgkmcnt(0)')
        a(f's_cmp_lg_u32 s{sWAVE}, 0')
        a('s_cbranch_scc1 L_end')
        a(f's_mul_i32 s{sT0}, s2, {NSTAMP * 8}')
        a(f's_add_u32 s{sT0}, s{sT0}, {128 * MB:#x}')
        a(f's_add_u32 s{sT0}, s{sWS}, s{sT0}')
        a(f's_addc_u32 s{sT1}, s{sWS+1}, 0')
        a(f'v_mov_b32 v{vT0}, 0')
        for i in range(a.nst):
            a(f'v_mov_b32 v{H+2*i}, s{70+2*i}')
            a(f'v_mov_b32 v{H+2*i+1}, s{71+2*i}')
            a(f'global_store_dwordx2 v{vT0}, v[{H+2*i}:{H+2*i+1}], s[{sT0}:{sT1}] offset:{8*i}')
    a.label('L_end')
    a('s_endpgm')
    return a, name, LDS

HEADER = open('cdna_kernels/' + NAME + '.s.ref').read().split('; Override launch')[0]

def main():
    a, name, lds = gen()
    body = a.finalize()
    out = HEADER + f'; @launch grid=(256,1,1) block=(256,1,1) lds={lds}\n'
    out += '.amdgcn_target "amdgcn-amd-amdhsa--gfx950"\n.text\n' + body
    out += f""".section .rodata,"a"
.p2align 6
.amdhsa_kernel {name}
  .amdhsa_next_free_vgpr 512
  .amdhsa_next_free_sgpr 102
  .amdhsa_accum_offset 256
  .amdhsa_group_segment_fixed_size 0
  .amdhsa_kernarg_size 88
  .amdhsa_user_sgpr_count 2
  .amdhsa_user_sgpr_kernarg_segment_ptr 1
  .amdhsa_system_sgpr_workgroup_id_x 1
.end_amdhsa_kernel
"""
    open(sys.argv[1], 'w').write(out)
    print('nops inserted', a.nops_inserted, 'lines', out.count('\n'), 'stamps', a.nst)

if __name__ == '__main__':
    main()
```

```python
import sys, struct
from asmgen import Asm

NAME = "sequential_preLN__sliding_local_dilated__mixer_token_mlp__prompt"
PROF = '--prof' in sys.argv
OPT = dict(UA=2, UB=4, UC=4, UD=3, W2PRE=0, PG=0, LT=0, TW=1, TWO=1, T1=1, QM=1, SK=1, AMP=-1, AWG=0)
for a_ in sys.argv[2:]:
    if '=' in a_:
        k_, v_ = a_.split('='); assert k_ in OPT, k_; OPT[k_] = int(v_)
NSTAMP = 20
MB = 1 << 20
KB = 1024
WS_OF, WS_HN, WS_HF, WS_UF, WS_SX = 0, 2 * MB, 4 * MB, 6 * MB, 8 * MB
WS_F1, WS_F2, WS_F3 = 8 * MB + 256 * KB, 8 * MB + 320 * KB, 8 * MB + 384 * KB
NEGBIG = 0xF149F2CA
SPIN = 1 << 17

def vr(b, n=1): return f'v{b}' if n == 1 else f'v[{b}:{b+n-1}]'
def ar(b, n=1): return f'a{b}' if n == 1 else f'a[{b}:{b+n-1}]'
def srd(b): return f's[{b}:{b+3}]'
def f2h(x): return '%#x' % struct.unpack('<I', struct.pack('<f', x))[0]

class Em(Asm):
    def __init__(self):
        super().__init__()
        self.vmq = []; self.dsq = []; self.nst = 0
    def vm(self, tag, text):
        self(text); self.vmq.append(tag)
        assert len(self.vmq) <= 63, ('vm overflow', tag)
    def ds(self, tag, text):
        self(text); self.dsq.append(tag)
    @staticmethod
    def _n(q, tags):
        idx = -1
        for k, t in enumerate(q):
            if t in tags: idx = k
        return idx
    def wait(self, vm=(), ds=()):
        s = []
        i = self._n(self.vmq, list(vm))
        if i >= 0:
            s.append(f'vmcnt({len(self.vmq) - 1 - i})'); self.vmq = self.vmq[i + 1:]
        i = self._n(self.dsq, list(ds))
        if i >= 0:
            n = len(self.dsq) - 1 - i
            if n > 15: n = 15
            s.append(f'lgkmcnt({n})'); self.dsq = self.dsq[len(self.dsq) - n:] if n else []
        if s: self('s_waitcnt ' + ' '.join(s))
    def wait_all(self, vm=True, ds=True):
        s = []
        if vm: s.append('vmcnt(0)'); self.vmq = []
        if ds: s.append('lgkmcnt(0)'); self.dsq = []
        self('s_waitcnt ' + ' '.join(s))
    def run(self, ops):
        for op in ops:
            if isinstance(op, str): self(op)
            elif op[0] == 'vm': self.vm(op[1], op[2])
            elif op[0] == 'ds': self.ds(op[1], op[2])
            elif op[0] == 'wvm': self.wait(vm=[op[1]])
            elif op[0] == 'wds': self.wait(ds=[op[1]])
            elif op[0] == 'grp': self.run(op[1])
            elif op[0] == 'label': self.label(op[1])
            else: raise ValueError(op)
    def stamp(self, *grps):
        if not PROF: return
        if not grps: grps = (0,)
        if OPT['PG'] not in grps and -1 not in grps: return
        assert self.nst < 16
        self(f's_memrealtime s[{70 + 2*self.nst}:{71 + 2*self.nst}]')
        self.nst += 1

def flat(ops):
    out = []
    for op in ops:
        if not isinstance(op, str) and op[0] == 'grp': out += flat(op[1])
        else: out.append(op)
    return out

def weave(prim, fill, lead=0):
    out = []
    n, m = len(prim), len(fill)
    k = 0
    for i, p in enumerate(prim):
        out.append(p)
        tgt = min(m, (m * (i + 1) + n - 1) // n + lead) if n else m
        while k < tgt:
            out.append(fill[k]); k += 1
    out += fill[k:]
    return out

sX, sWQ, sWO, sW1, sB1, sW2, sB2, sOUT, sDBG, sWS = 4, 8, 12, 16, 20, 24, 28, 32, 36, 40
sWAVE, sNON, sT0, sT1, sT2, sCNT = 44, 45, 46, 47, 48, 49
sXB, sWB, sWOB, sLW, sRT, sDT = 50, 51, 52, 53, 54, 55
sCT3, sCT4, sROT3, sROT4 = 56, 57, 58, 59
sW1A, sW1B, sW2A, sW2B, sPR, sONES = 60, 61, 62, 63, 64, 65
sST1, sZ = 66, 67
sM1 = 68
vL, vG, vC, vT0, vT1, vT2, vT3, vL16 = 1, 2, 3, 4, 5, 6, 7, 8
vDUM = 252

def gen():
    a = Em()
    name = NAME + '_kernel'
    a.raw(f'.globl {name}\n.p2align 8\n.type {name},@function')
    a.label(name)
    a.stamp(-1)
    NW = 6
    L_X = NW * 12288
    HS = 4 * 8320 + 4160
    L_MI = L_X + 2 * HS
    L_NM = L_MI
    L_HP = L_NM + 2560
    L_PR = 64 * KB
    NSL = 6
    LDS = 160 * KB
    assert L_HP + 2048 <= LDS
    for s, off in ((sX, 0), (sWQ, 8), (sWS, 80), (sDBG, 72), (sWO, 16), (sW1, 32), (sB1, 40), (sW2, 48), (sB2, 56), (sOUT, 64)):
        a(f's_load_dwordx2 s[{s}:{s+1}], s[0:1], {off}')
    a('s_cmp_ge_u32 s2, 256')
    a('s_cbranch_scc1 L_end')
    a(f'v_lshrrev_b32 v{vG}, 6, v0')
    a(f'v_and_b32 v{vL}, 63, v0')
    a(f'v_readfirstlane_b32 s{sWAVE}, v{vG}')
    a(f'v_lshrrev_b32 v{vG}, 4, v{vL}')
    a(f'v_and_b32 v{vC}, 15, v{vL}')
    a(f'v_lshlrev_b32 v{vL16}, 4, v{vL}')
    for s, n in ((sX, 2048 * 1024), (sWQ, 512 * 3072), (sWS, 16 * MB), (sDBG, 256), (sWO, 512 * 1024), (sW1, 2048 * 3584),
                 (sB1, 3584), (sW2, 1792 * 4096), (sB2, 4096), (sOUT, 2048 * 1024)):
        a(f's_mov_b32 s{s+2}, {n:#x}')
        a(f's_mov_b32 s{s+3}, 0x20000')
    vXD, vWD, vWOD, vXR, vHR, vTR, vSR, vHS = 9, 10, 11, 12, 13, 14, 16, 17
    vNCE, vE0 = 18, 19
    WB, XB, ACC, SB, GS, GO, GH, CST, STC = 20, 44, 104, 164, 180, 184, 188, 192, 212
    QP, KP, VP = 222, 230, 20
    vQ1, vR1 = 244, 248
    a(f's_lshr_b32 s{sZ}, s2, 5')
    a(f's_bfe_u32 s{sT0}, s2, {1 | (2 << 16)}')
    a(f's_lshr_b32 s{sT1}, s2, 6')
    a(f's_lshl2_add_u32 s{sT0}, s{sT0}, s{sT1}')
    a(f's_and_b32 s{sT1}, s{sZ}, 1')
    a(f's_lshl4_add_u32 s{sRT}, s{sT1}, s{sT0}')
    a(f's_lshl_b32 s{sT1}, s{sT1}, 10')
    a(f's_lshl2_add_u32 s{sXB}, s{sT0}, s{sWAVE}')
    a(f's_lshl_b32 s{sXB}, s{sXB}, 15')
    a(f's_add_u32 s{sXB}, s{sXB}, s{sT1}')
    a(f's_lshl_b32 s{sT0}, s{sT0}, 2')
    a(f's_sub_u32 s{sT0}, s{sT0}, 1')
    a(f's_max_i32 s{sT0}, s{sT0}, 0')
    a(f's_lshl3_add_u32 s{sT0}, s{sT0}, s{sWAVE}')
    a(f's_lshl_b32 s{sT0}, s{sT0}, 12')
    a(f's_add_u32 s{sT0}, s{sT0}, s{sT1}')
    a(f's_add_u32 s{sT2}, s{sT0}, 16384')
    a(f's_and_b32 s{sDT}, s2, 1')
    a(f's_bfe_u32 s{sT1}, s2, {3 | (2 << 16)}')
    a(f's_lshl2_add_u32 s{sDT}, s{sDT}, s{sT1}')
    a(f's_mul_i32 s{sWB}, s{sWAVE}, {128 * 3072}')
    a(f's_lshl_b32 s{sT0}, s{sDT}, 7')
    a(f's_add_u32 s{sWB}, s{sWB}, s{sT0}')
    a(f's_mul_i32 s{sLW}, s{sWAVE}, 3072')
    a(f's_mul_i32 s{sT0}, s{sWAVE}, 8320')
    a(f's_mul_i32 s{sT1}, s{sWAVE}, 1040')
    a(f'v_bfe_u32 v{vT0}, v{vL}, 3, 1')
    a(f'v_lshlrev_b32 v{vXD}, 11, v{vT0}')
    a(f'v_lshl_add_u32 v{vXD}, v{vG}, 8, v{vXD}')
    a(f'v_and_b32 v{vT0}, 7, v{vL}')
    a(f'v_lshl_add_u32 v{vXD}, v{vT0}, 4, v{vXD}')
    a(f'v_lshrrev_b32 v{vT0}, 3, v{vL}')
    a(f'v_mul_u32_u24 v{vWD}, 3072, v{vT0}')
    a(f'v_lshrrev_b32 v{vT0}, 1, v{vL}')
    a(f'v_and_b32 v{vT1}, 1, v{vG}')
    a(f's_lshl_b32 s3, s{sWAVE}, 1')
    a(f'v_xor_b32 v{vT0}, v{vT0}, v{vT1}')
    a(f'v_xor_b32 v{vT0}, s3, v{vT0}')
    a(f'v_and_b32 v{vT0}, 3, v{vT0}')
    a(f'v_lshl_add_u32 v{vWD}, v{vT0}, 5, v{vWD}')
    a(f'v_and_b32 v{vT0}, 1, v{vL}')
    a(f'v_lshl_add_u32 v{vWD}, v{vT0}, 4, v{vWD}')
    a(f's_mov_b32 s{sM1}, 0xff00ff00')
    a(f's_cmp_eq_u32 s{sWAVE}, 0')
    a(f's_cselect_b32 s{sM1}, s{sM1}, -1')
    a(f's_mov_b32 s{sM1+1}, s{sM1}')
    sXL, sHL, sHB = sT0, sT1, sT2
    a(f's_add_u32 s{sW2A}, s{sT0}, {L_X}')
    a(f's_add_u32 s{sW2B}, s{sT1}, {L_X + 4 * 8320}')
    a(f's_mov_b32 s{sROT4}, s{sT2}')
    sXL, sHL, sHB = sW2A, sW2B, sROT4
    a('s_waitcnt lgkmcnt(0)')
    a.stamp(1, 2)
    def xloads(half):
        ops = []
        for q in range(8):
            ops.append(('grp', [f's_add_u32 m0, s{sXL}, {half * HS + q * 1040}', f's_add_u32 s3, s{sXB}, {q * 4096 + half * 128}',
                                ('vm', ('x', half), f'buffer_load_dwordx4 v{vXD}, {srd(sX)}, s3 offen lds')]))
        ops.append(('grp', [f's_add_u32 m0, s{sHL}, {half * HS}', f's_add_u32 s3, s{sHB}, {half * 128}', f's_mov_b64 exec, s[{sM1}:{sM1+1}]',
                            ('vm', ('x', half), f'buffer_load_dwordx4 v{vXD}, {srd(sX)}, s3 offen lds'), 's_mov_b64 exec, -1']))
        return ops
    def wloads(k):
        slot = k % NW
        if k < 16:
            return [('grp', [f's_add_u32 m0, s{sLW}, {slot * 12288}', f's_add_u32 s3, s{sWB}, {k * 8 * 3072}',
                             ('vm', ('w', k), f'buffer_load_dwordx4 v{vWD}, {srd(sWQ)}, s3 offen lds')])] + \
                   [('vm', ('w', k), f'buffer_load_dwordx4 v{vWD}, {srd(sWQ)}, s3 offen offset:{1024*R} lds') for R in (1, 2)]
        ops = []
        for j in range(3 if slot < 5 else 1):
            i = 3 * slot + j
            ops.append(('grp', [f's_add_u32 m0, s{sLW}, {i * 4096}', f's_add_u32 s3, s{sWOB}, {i * 32768}',
                                ('vm', 'wo', f'buffer_load_dwordx4 v{vWOD}, {srd(sWO)}, s3 offen lds')]))
        return ops
    a.run(xloads(0) + wloads(0) + wloads(1))
    a.stamp(1, 2)
    a(f's_or_b32 s{sT0}, s2, s{sWAVE}')
    a(f's_cmp_lg_u32 s{sT0}, 0')
    a('s_cbranch_scc1 L_nononce')
    a(f's_memrealtime s[{sT0}:{sT1}]')
    a(f'v_mov_b32 v{vT1}, 0')
    a('s_waitcnt lgkmcnt(0)')
    a(f's_or_b32 s{sT0}, s{sT0}, 1')
    a(f'v_mov_b32 v{vT0}, s{sT0}')
    a('s_mov_b64 exec, 1')
    a(f'buffer_store_dword v{vT0}, v{vT1}, {srd(sDBG)}, 0 offen sc1')
    a('s_mov_b64 exec, -1')
    a.label('L_nononce')
    a(f's_mov_b32 s{sONES}, 0x3f803f80')
    BC, BP, BP0, MC, MP, ONE = CST, CST + 4, CST + 8, CST + 12, CST + 14, CST + 16
    for k in range(4): a(f'v_mov_b32 v{ONE+k}, s{sONES}')
    a(f'v_and_b32 v{vT0}, 7, v{vC}')
    a(f'v_lshlrev_b32 v{vT0}, 4, v{vT0}')
    a(f'v_lshl_add_u32 v{vT0}, v{vG}, 8, v{vT0}')
    a(f'v_lshrrev_b32 v{vT1}, 3, v{vC}')
    a(f'v_mul_u32_u24 v{vT1}, {HS}, v{vT1}')
    a(f'v_add3_u32 v{vT0}, v{vT0}, v{vT1}, s{sHL}')
    a(f's_cmp_lg_u32 s{sWAVE}, 0')
    a('s_cbranch_scc1 L_noones')
    a(f'ds_write_b128 v{vT0}, {vr(ONE,4)}')
    a.label('L_noones')
    a(f'v_lshrrev_b32 v{vT0}, 1, v{vC}')
    a(f'v_and_b32 v{vT1}, 1, v{vC}')
    a(f'v_lshlrev_b32 v{vT1}, 7, v{vT1}')
    a(f'v_lshl_add_u32 v{vT1}, v{vG}, 8, v{vT1}')
    a(f'v_mov_b32 v{vT2}, 1040')
    a(f'v_mad_u32_u24 v{vXR}, v{vT0}, v{vT2}, v{vT1}')
    a(f'v_add_u32 v{vSR}, s{sXL}, v{vXR}')
    a(f'v_add_u32 v{vXR}, {L_X}, v{vXR}')
    a(f'v_and_b32 v{vT0}, 3, v{vT0}')
    a(f'v_mad_u32_u24 v{vHR}, v{vT0}, v{vT2}, v{vT1}')
    a(f'v_add_u32 v{vHR}, {L_X + 4 * 8320}, v{vHR}')
    a(f's_lshl_b32 s3, s{sWAVE}, 5')
    a(f'v_add_u32 v{vHS}, s3, v{vHR}')
    a(f'v_mul_u32_u24 v{vTR}, 3072, v{vG}')
    a(f'v_bfe_u32 v{vT0}, v{vL}, 2, 2')
    a(f'v_lshl_add_u32 v{vTR}, v{vT0}, 7, v{vTR}')
    a(f'v_bfe_u32 v{vT0}, v{vL}, 3, 2')
    a(f'v_xor_b32 v{vT0}, s{sWAVE}, v{vT0}')
    a(f'v_lshl_add_u32 v{vTR}, v{vT0}, 5, v{vTR}')
    a(f'v_and_b32 v{vT0}, 3, v{vL}')
    a(f'v_lshl_add_u32 v{vTR}, v{vT0}, 3, v{vTR}')
    a(f'v_add_u32 v{vTR+1}, {3 * 12288}, v{vTR}')
    a.run(wloads(2) + wloads(3))
    if OPT['TW']:
        a(f'v_mul_u32_u24 v{vT0}, 3072, v{vC}')
        a(f'v_min_u32 v{vT1}, 2, v{vG}')
        a(f'v_lshl_add_u32 v{vT0}, v{vT1}, 10, v{vT0}')
        a(f's_mul_i32 s3, s{sZ}, {16 * 3072}')
        a(f's_add_u32 s3, s3, s{sWB}')
        a.vm('tw', f'buffer_load_dword v{vDUM}, v{vT0}, {srd(sWQ)}, s3 offen')
    a.run(wloads(4) + wloads(5) + xloads(1))
    a.stamp(1, 2)
    if OPT['LT']:
        for tg in [('x', 0), ('w', 0), ('w', 1), ('w', 3), ('w', 5), ('x', 1)]:
            a.wait(vm=[tg]); a.stamp(2)
        for k in range(6, 16): a.run(wloads(k))
        a.stamp(2)
        a.wait_all(); a.stamp(2)
        a('s_branch L_prof')
    a(f's_bfe_u32 s{sT0}, s2, {1 | (2 << 16)}')
    a(f's_lshl3_add_u32 s{sCT4}, s{sT0}, s{sZ}')
    a(f's_sub_u32 s{sCT3}, s{sCT4}, s{sT0}')
    a(f's_min_u32 s{sCT3}, s{sCT3}, 27')
    a(f's_and_b32 s{sT1}, s{sDT}, 3')
    a(f's_lshl_b32 s{sROT3}, s{sT1}, 2')
    a(f's_lshr_b32 s{sT2}, s{sZ}, 1')
    a(f's_add_u32 s{sROT3}, s{sROT3}, s{sT2}')
    a(f's_min_u32 s{sROT4}, s{sROT3}, 13')
    a(f's_and_b32 s{sT0}, s{sWAVE}, 1')
    a(f's_lshl_b32 s{sT0}, s{sT0}, 4')
    a(f's_add_u32 s{sT0}, s{sT0}, s{sROT3}')
    a(f's_lshl_b32 s{sT0}, s{sT0}, 6')
    a(f's_lshr_b32 s{sT1}, s{sWAVE}, 1')
    a(f's_add_u32 s{sT0}, s{sT0}, s{sT1}')
    a(f's_mul_i32 s{sW1A}, s{sT0}, 3584')
    a(f's_lshl_b32 s{sT0}, s{sCT3}, 7')
    a(f's_add_u32 s{sW1A}, s{sW1A}, s{sT0}')
    a(f's_sub_u32 s{sW1B}, s{sW1A}, {16 * 64 * 3584}')
    a(f's_mul_i32 s{sT0}, s{sROT3}, {64 * 3584}')
    a(f's_sub_u32 s{sST1}, s{sW1A}, s{sT0}')
    a(f's_mul_i32 s{sT0}, s{sWAVE}, 14')
    a(f's_add_u32 s{sT0}, s{sT0}, s{sROT4}')
    a(f's_lshl_b32 s{sW2A}, s{sT0}, 17')
    a(f's_lshl_b32 s{sT0}, s{sCT4}, 7')
    a(f's_add_u32 s{sW2A}, s{sW2A}, s{sT0}')
    a(f's_sub_u32 s{sW2B}, s{sW2A}, {14 << 17}')
    a(f's_mul_i32 s{sPR}, s{sWAVE}, {NSL * 4096}')
    a(f's_add_u32 s{sPR}, s{sPR}, {L_PR}')
    a(f's_lshl_b32 s{sWOB}, s{sWAVE}, 13')
    a(f's_lshl_b32 s{sT0}, s{sDT}, 7')
    a(f's_add_u32 s{sWOB}, s{sWOB}, s{sT0}')
    a(f'v_mov_b32 v{vT1}, {NEGBIG:#x}')
    a(f's_and_b32 s{sT0}, s{sRT}, 15')
    a(f's_cmp_eq_u32 s{sT0}, 0')
    a(f's_cselect_b32 s{sT0}, {NEGBIG:#x}, 0')
    for r in range(4):
        a(f'v_lshl_add_u32 v{vT0}, v{vG}, 2, {r}')
        a(f'v_sub_u32 v{vT0}, v{vC}, v{vT0}')
        a(f'v_cmp_gt_u32 vcc, 8, v{vT0}')
        a(f'v_cndmask_b32_e64 v{BC+r}, v{vT1}, 0, vcc')
        a(f'v_cmp_gt_i32 vcc, -8, v{vT0}')
        a(f'v_cndmask_b32_e64 v{BP+r}, v{vT1}, 0, vcc')
        a(f'v_min_f32 v{BP0+r}, s{sT0}, v{BP+r}')
        a(f'v_cmp_le_i32 vcc, 0, v{vT0}')
        if r % 2 == 0:
            a(f'v_cndmask_b32_e64 v{MC+r//2}, 0, -1, vcc')
            a(f'v_and_b32 v{MC+r//2}, 0xffff, v{MC+r//2}')
        else:
            a(f'v_cndmask_b32_e64 v{vT0}, 0, -1, vcc')
            a(f'v_and_b32 v{vT0}, 0xffff0000, v{vT0}')
            a(f'v_or_b32 v{MC+r//2}, v{MC+r//2}, v{vT0}')
            a(f'v_not_b32 v{MP+r//2}, v{MC+r//2}')
    a(f'v_lshrrev_b32 v{vT0}, 1, v{vL}')
    a(f'v_xor_b32 v{vT0}, v{vT0}, v{vG}')
    a(f'v_and_b32 v{vT0}, 3, v{vT0}')
    a(f'v_lshrrev_b32 v{vT1}, 3, v{vL}')
    a(f'v_lshlrev_b32 v{vWOD}, 10, v{vT1}')
    a(f'v_lshl_add_u32 v{vWOD}, v{vT0}, 5, v{vWOD}')
    a(f'v_and_b32 v{vT0}, 1, v{vL}')
    a(f'v_lshl_add_u32 v{vWOD}, v{vT0}, 4, v{vWOD}')
    def mk_q(base, K3):
        RP = 7168 if K3 else 4096
        ops = [f'v_lshrrev_b32 v{base+1}, 3, v{vL}', f'v_mul_u32_u24 v{base}, {RP}, v{base+1}', f'v_lshrrev_b32 v{base+1}, 1, v{vL}']
        if K3: ops += [f'v_and_b32 v{base+2}, 1, v{vG}', f'v_xor_b32 v{base+1}, v{base+1}, v{base+2}']
        else: ops += [f'v_xor_b32 v{base+1}, v{base+1}, v{vG}']
        ops += [f'v_and_b32 v{base+1}, 3, v{base+1}', f'v_lshl_add_u32 v{base}, v{base+1}, 5, v{base}',
                f'v_and_b32 v{base+1}, 1, v{vL}', f'v_lshl_add_u32 v{base}, v{base+1}, 4, v{base}']
        st = 8 * RP - 1024
        if K3:
            ops += [f'v_xor_b32 v{base+1}, 64, v{base}', f'v_add_u32 v{base+2}, {2*st}, v{base}', f'v_add_u32 v{base+3}, {3*st}, v{base+1}', f'v_add_u32 v{base+1}, {st}, v{base+1}']
        else:
            ops += [f'v_add_u32 v{base+q}, {q*st}, v{base}' for q in range(1, 4)]
        return ops
    def mk_r(base, K3):
        if K3:
            ops = [f'v_bfe_u32 v{base+1}, v{vL}, 2, 2', f'v_lshl_add_u32 v{base+1}, v{vG}, 3, v{base+1}',
                   f's_and_b32 s3, s{sWAVE}, 1', 's_lshl_b32 s3, s3, 1']
        else:
            ops = [f'v_lshrrev_b32 v{base+1}, 2, v{vL}', f's_mov_b32 s3, s{sWAVE}']
        ops += [f'v_lshlrev_b32 v{base}, 7, v{base+1}', f'v_bfe_u32 v{base+1}, v{vL}, 3, 2', f'v_xor_b32 v{base+1}, s3, v{base+1}',
                f'v_lshl_add_u32 v{base}, v{base+1}, 5, v{base}', f'v_and_b32 v{base+1}, 3, v{vL}', f'v_lshl_add_u32 v{base}, v{base+1}, 3, v{base}',
                f'v_add_u32 v{base}, s{sPR}, v{base}']
        ops += [f'v_xor_b32 v{base+t}, {32*t}, v{base}' for t in range(1, 4)]
        return ops
    def dma_unit(K3, i, q):
        N = 16 if K3 else 14
        slot = i % NSL
        A, B, rot, S = (sW1A, sW1B, sROT3, sW1) if K3 else (sW2A, sW2B, sROT4, sW2)
        step = 64 * 3584 if K3 else 1 << 17
        tag = ('u', K3, i)
        ops = [('grp', [f's_cmp_lt_u32 s{rot}, {N - i}', f's_cselect_b32 s3, s{A}, s{B}', f's_add_u32 m0, s{sPR}, {slot*4096}', f's_add_u32 s3, s3, {i*step}',
                        ('vm', tag, f'buffer_load_dwordx4 v{q}, {srd(S)}, s3 offen lds')])]
        for k in range(1, 4):
            ops.append(('vm', tag, f'buffer_load_dwordx4 v{q+k}, {srd(S)}, s3 offen offset:{1024*k} lds'))
        return ops
    def tr_unit(K3, i, r):
        hoff = 512 if K3 else 2048
        slot = i % NSL
        return [('ds', ('t', K3, i), f'ds_read_b64_tr_b16 {ar(16*i+4*t+2*h, 2)}, v{r+t} offset:{slot*4096 + hoff*h}') for t in range(4) for h in range(2)]
    a.run(mk_q(vQ1, True))
    a.run(mk_r(vR1, True))
    if OPT['SK']:
        a(f's_cmp_lt_u32 s{sZ}, 7')
        a('s_cbranch_scc1 L_nosk')
        for k in range(3): a(f's_mov_b32 s{sW1+k}, s{sW2+k}')
        a(f's_and_b32 s{sT0}, s{sDT}, 3')
        a(f's_lshl2_add_u32 s{sT0}, s{sT0}, s{sWAVE}')
        a(f's_min_u32 s{sT0}, s{sT0}, 13')
        a(f's_lshl_b32 s{sW1A}, s{sT0}, 14')
        a(f's_and_b32 s{sT0}, s{sCT4}, 24')
        a(f's_lshl_b32 s{sT0}, s{sT0}, 7')
        a(f's_add_u32 s{sW1A}, s{sW1A}, s{sT0}')
        a(f's_mov_b32 s{sW1B}, s{sW1A}')
        for k in range(4): a(f'v_add_u32 v{vQ1+k}, {3072*k}, v{vL16}')
        a.label('L_nosk')
    def xb(i, s): return XB + 20 * (i % 3) + 4 * s
    def wb(i, R): return WB + 12 * (i % 2) + 4 * R
    def acc(R, s): return ACC + 20 * R + 4 * s
    def xoff(i): return (i >> 3) * HS + 16 * (i & 7)
    def xreads(i):
        return [('ds', ('xr', i), f'ds_read_b128 {vr(xb(i,s),4)}, v{vXR} offset:{xoff(i) + 8320*(s-1)}') for s in range(1, 5)] + \
               [('ds', ('xr', i), f'ds_read_b128 {vr(xb(i,0),4)}, v{vHR} offset:{xoff(i)}')]
    def trreads(i):
        slot = i % NW
        return [('ds', ('wr', i), f'ds_read_b64_tr_b16 {vr(wb(i,R)+2*h,2)}, v{vTR + slot//3} offset:{(slot%3)*12288 + R*1024 + 512*h}') for R in range(3) for h in range(2)]
    def mfmas(i):
        ops = []
        for R in range(3):
            for s in (1, 2, 3, 4, 0):
                x = vr(xb(i, s), 4); d = vr(acc(R, s), 4); w = vr(wb(i, R), 4)
                cin = '0' if i == 0 else d
                ops.append(f'v_mfma_f32_16x16x32_bf16 {d}, {w}, {x}, {cin}' if R < 2 else f'v_mfma_f32_16x16x32_bf16 {d}, {x}, {w}, {cin}')
        return ops
    jobs = {0: ('s', 0), 1: ('s', 2), 2: ('s', 4), 3: ('s', 6), 4: ('h', 0), 7: ('h', 8), 8: ('s', 8), 9: ('s', 10), 10: ('s', 12), 11: ('s', 14)}
    def job_reads(b):
        if b not in jobs: return []
        kind, k0 = jobs[b]
        v = vSR if kind == 's' else vHS
        return [('ds', ('jr', b), f'ds_read_b128 {vr(SB+8*(b&1)+4*k,4)}, v{v} offset:{xoff(k0+k)}') for k in range(2)]
    def job_mfmas(b):
        if b not in jobs: return []
        kind, k0 = jobs[b]
        ops = []
        for k in range(2):
            x = vr(SB + 8 * (b & 1) + 4 * k, 4)
            first = k0 == 0 and k == 0
            if kind == 's':
                ops.append(f'v_mfma_f32_16x16x32_bf16 {vr(GS,4)}, {x}, {x}, {"0" if first else vr(GS,4)}')
                ops.append(f'v_mfma_f32_16x16x32_bf16 {vr(GO,4)}, {vr(ONE,4)}, {x}, {"0" if first else vr(GO,4)}')
            else:
                ops.append(f'v_mfma_f32_16x16x32_bf16 {vr(GH,4)}, {x}, {x}, {"0" if first else vr(GH,4)}')
        return ops
    def stat_finalize(s, q, tmp):
        return [f'v_mul_f32 v{s}, 0xbb000000, v{s}',
                f'v_mul_f32 v{tmp}, v{s}, v{s}',
                f'v_mul_f32 v{q}, 0x3b000000, v{q}',
                f'v_sub_f32 v{q}, v{q}, v{tmp}',
                f'v_max_f32 v{q}, 0, v{q}',
                f'v_add_f32 v{q}, 0x3727c5ac, v{q}',
                f'v_rsq_f32 v{q}, v{q}']
    def diag(G, dst):
        ops = []
        for k in range(1, 4):
            m = 0x11111111 << k
            ops.append(('grp', [f's_mov_b32 vcc_lo, {m:#x}', f's_mov_b32 vcc_hi, {m:#x}', f'v_cndmask_b32 v{dst}, v{G if k == 1 else dst}, v{G+k}, vcc']))
        return ops
    NM4, RS4, XR = XB + 20, XB + 40, SB
    HT = STC
    extra = {b: [] for b in range(16)}
    L4 = vE0
    extra[5] += [f'v_lshlrev_b32 v{L4}, 2, v{vL}', f's_lshl_b32 s{sT0}, s{sWAVE}, 9', f's_add_u32 s{sT0}, s{sT0}, {L_HP}', f'v_add_u32 v{vT0}, s{sT0}, v{L4}',
                 f'v_lshrrev_b32 v{vT1}, 2, v{vC}', f'v_lshl_add_u32 v{vT1}, v{vT1}, 4, v{vC}', f'v_lshlrev_b32 v{vT1}, 2, v{vT1}',
                 f'v_add_u32 v{vT1}, {L_NM}, v{vT1}', f'v_lshlrev_b32 v{vT2}, 2, v{vC}', f'v_add_u32 v{vT2}, {L_NM}, v{vT2}']
    extra[8] += diag(GH, GH + 1) + [('ds', 'hp', f'ds_write2st64_b32 v{vT0}, v{GH}, v{GH+1} offset0:0 offset1:1')]
    o0 = (L_HP - L_NM) // 256
    extra[9] += [('ds', 'hq', f'ds_read2st64_b32 {vr(HT+2*k,2)}, v{vT2} offset0:{o0+4*k} offset1:{o0+4*k+2}') for k in range(2)] + \
                [('ds', 'hq', f'ds_read2st64_b32 {vr(HT+4+2*k,2)}, v{vT1} offset0:{o0+4*k+1} offset1:{o0+4*k+3}') for k in range(2)]
    extra[10] += [f'v_add_f32 v{HT}, v{HT}, v{HT+1}', f'v_add_f32 v{HT+2}, v{HT+2}, v{HT+3}', f'v_add_f32 v{HT+4}, v{HT+4}, v{HT+5}', f'v_add_f32 v{HT+6}, v{HT+6}, v{HT+7}',
                  f'v_add_f32 v{HT}, v{HT}, v{HT+2}', f'v_add_f32 v{HT+4}, v{HT+4}, v{HT+6}']
    extra[11] += stat_finalize(HT, HT + 4, HT + 1) + [f'v_add_u32 v{vT0}, {L_NM}, v{L4}', ('ds', 'hw', f'ds_write2st64_b32 v{vT0}, v{HT}, v{HT+4} offset0:0 offset1:5')]
    extra[12] += diag(GS, GS + 1) + stat_finalize(GO, GS + 1, GS) + [f's_lshl_b32 s{sT0}, s{sWAVE}, 8', f'v_add_u32 v{vT0}, s{sT0}, v{vT0}',
                                                                    ('ds', 'hw', f'ds_write2st64_b32 v{vT0}, v{GO}, v{GS+1} offset0:1 offset1:6')]
    extra[13] += [('ds', 'st', f'ds_read2st64_b32 {vr(STC+2*s,2)}, v{vT1} offset0:{s} offset1:{5+s}') for s in range(5)] + \
                 [f'v_mul_u32_u24 v{vT0}, 80, v{vG}', f'v_add_u32 v{vT0}, {L_NM}, v{vT0}',
                  f's_and_b32 s{sT0}, s{sDT}, 1', f's_mul_i32 s{sT0}, s{sT0}, {HS}', f's_lshr_b32 s{sT1}, s{sDT}, 1', f's_lshl_b32 s{sT1}, s{sT1}, 8',
                  f's_add_u32 s{sT0}, s{sT0}, s{sT1}', f'v_mul_u32_u24 v{vT2}, 240, v{vG}', f'v_sub_u32 v{vT2}, v{vSR}, v{vT2}', f'v_add_u32 v{vT2}, s{sT0}, v{vT2}']
    extra[14] += [('ds', 'st', f'ds_read_b128 {vr(NM4+4*s,4)}, v{vT0} offset:{256*s}') for s in range(5)] + \
                 [('ds', 'st', f'ds_read_b128 {vr(XR+4*e,4)}, v{vT2} offset:{64*e}') for e in range(2)]
    extra[15] += [('ds', 'st', f'ds_read_b128 {vr(RS4+4*s,4)}, v{vT0} offset:{1280+256*s}') for s in range(5)]
    vmx = {b: [] for b in range(16)}
    if OPT['TWO']:
        vmx[2] += [('grp', [f'v_lshlrev_b32 v{vT3}, 10, v{vC}', f's_lshl2_add_u32 s3, s{sZ}, s{sWAVE}', f's_lshl_b32 s3, s3, 14', f's_lshl_b32 s{sT0}, s{sDT}, 7', f's_add_u32 s3, s3, s{sT0}',
                            ('vm', 'tw', f'buffer_load_dword v{vDUM}, v{vT3}, {srd(sWO)}, s3 offen')])]
    if OPT['T1']:
        for k in range(2):
            vmx[9 + 2 * k] += [('grp', [f's_lshl_b32 s3, s{sROT3}, 5', f's_add_u32 s3, s3, {64*k}', f'v_add_u32 v{vT3}, s3, v{vL}', f'v_and_b32 v{vT3}, 511, v{vT3}',
                                        f'v_mul_u32_u24 v{vT3}, 7168, v{vT3}', ('vm', 'tw', f'buffer_load_dword v{vDUM}, v{vT3}, {srd(sW1)}, s{sST1} offen')])]
    vmx[13] += [('grp', [f'v_mov_b32 v{vNCE}, 0', ('vm', 'nonce', f'buffer_load_dword v{vNCE}, v{vNCE}, {srd(sDBG)}, 0 offen sc1')])]
    a.stamp(1)
    a.wait(vm=[('w', 1)])
    a('s_waitcnt lgkmcnt(0)')
    a('s_barrier')
    a.stamp(-1)
    a.run(trreads(0) + xreads(0) + job_reads(0) + xreads(1))
    a.wait(ds=[('jr', 0)])
    for i in range(16):
        rd = []
        if i + 1 < 16: rd += trreads(i + 1) + job_reads(i + 1)
        if i + 2 < 16: rd += xreads(i + 2)
        ld = []
        if i == 1: ld += wloads(NW)
        if i == 10: ld += [f's_lshl_b32 s{sLW}, s{sWAVE}, 10']
        if i >= 1: ld += wloads(i + NW)
        ld += vmx[i]
        ex = extra[i]
        dsx = [o for o in ex if not isinstance(o, str) and o[0] == 'ds' and 'read' in o[2]]
        mm = weave(mfmas(i), job_mfmas(i))
        fill = weave(rd, ld) if rd else ld
        fill = weave(fill, ex) if len(fill) >= len(ex) else weave(ex, fill)
        a.run(weave(mm, flat(fill), lead=1))
        if i < 15:
            wv = [('w', i + 2)] if i + 2 < 16 else []
            if i == 5: wv.append(('x', 1))
            a.wait(vm=wv, ds=[('wr', i + 1), ('jr', i + 1), 'hp', 'hq', 'hw'])
            a('s_barrier')
            if i in (1, 3, 5, 8, 11, 13): a.stamp(1)
    a.wait_all(vm=False)
    a('s_barrier')
    a.stamp(-1)
    UA, UB, UC, UD = OPT['UA'], OPT['UB'], OPT['UC'], OPT['UD']
    for u in range(UA): a.run(dma_unit(True, u, vQ1))
    SC, SP, MX, MT, PM, PB, OUT = XB, SB + 8, ACC, ACC + 4, ACC + 8, ACC + 20, ACC + 36
    CW, CWV = 32, 40
    for r in range(4):
        a(f'v_mov_b32_dpp v{CW+4+r}, v{acc(1,0)+r} row_newbcast:0 row_mask:0xf bank_mask:0xf')
    for r in range(4):
        a(f'v_mov_b32_dpp v{CW+r}, v{acc(0,0)+r} row_newbcast:0 row_mask:0xf bank_mask:0xf')
    def epi_k(s):
        src, st, dst = acc(1, s), STC + 2 * s, KP + 2 * s
        return [[f'v_pk_fma_f32 {vr(src+2*h,2)}, {vr(CW+4+2*h,2)}, {vr(st,2)}, {vr(src+2*h,2)} op_sel_hi:[1,0,1]' for h in range(2)],
                [f'v_pk_mul_f32 {vr(src+2*h,2)}, {vr(src+2*h,2)}, {vr(st,2)} op_sel:[0,1] op_sel_hi:[1,1]' for h in range(2)],
                [f'v_cvt_pk_bf16_f32 v{dst+h}, v{src+2*h}, v{src+2*h+1}' for h in range(2)]]
    def epi_q(s):
        src, st, dst = acc(0, s), STC + 2 * s, QP + 2 * (s - 1)
        return [[f'v_pk_fma_f32 {vr(src+2*h,2)}, {vr(CW+2*h,2)}, {vr(st,2)}, {vr(src+2*h,2)} op_sel_hi:[1,0,1]' for h in range(2)],
                [],
                [f'v_cvt_pk_bf16_f32 v{dst+h}, v{src+2*h}, v{src+2*h+1}' for h in range(2)]]
    def epi_v(s):
        src, dst = acc(2, s), VP + 2 * s
        return [[f'v_pk_fma_f32 {vr(src+2*h,2)}, {vr(NM4+4*s+2*h,2)}, {vr(CWV,2)}, {vr(src+2*h,2)} op_sel_hi:[1,0,1]' for h in range(2)],
                [f'v_pk_mul_f32 {vr(src+2*h,2)}, {vr(src+2*h,2)}, {vr(RS4+4*s+2*h,2)}' for h in range(2)],
                [f'v_cvt_pk_bf16_f32 v{dst+h}, v{src+2*h}, v{src+2*h+1}' for h in range(2)]]
    E = [epi_k(s) for s in range(5)] + [epi_q(s) for s in range(1, 5)]
    for ph in range(3):
        for e in E: a.run(e[ph])
    a(f'v_mov_b32 v{CWV}, v{acc(2,0)}')
    a(f'v_mov_b32 v{CWV+1}, v{acc(2,0)}')
    smm = []
    for u in range(4):
        q = vr(QP + 2 * u, 2)
        smm.append(f'v_mfma_f32_16x16x16_bf16 {vr(SC+4*u,4)}, {vr(KP+2*(u+1),2)}, {q}, {vr(BC,4)}')
        smm.append(f'v_mfma_f32_16x16x16_bf16 {vr(SP+4*u,4)}, {vr(KP+2*u,2)}, {q}, {vr(BP0 if u == 0 else BP,4)}')
    vv = [f'v_permlane16_swap_b32 v{CWV}, v{CWV+1}', f's_mov_b32 s{sT0}, {f2h(0.25 * 1.4426950408889634)}']
    vv += [f'v_mul_f32 v{STC+2*s+1}, s{sT0}, v{STC+2*s+1}' for s in range(1, 5)]
    E = [epi_v(s) for s in range(5)]
    for ph in range(3):
        for e in E: vv += e[ph]
    a.run(weave(smm, vv[:16]) + vv[16:])
    a.stamp(1)
    for u in range(4):
        for r in range(4):
            a(f'v_max_f32 v{SC+4*u+r}, v{SC+4*u+r}, v{SP+4*u+r}')
    for u in range(4):
        a(f'v_max3_f32 v{MX+u}, v{SC+4*u}, v{SC+4*u+1}, v{SC+4*u+2}')
    for u in range(4):
        a(f'v_max_f32 v{MX+u}, v{MX+u}, v{SC+4*u+3}')
    for sw in ('v_permlane16_swap_b32', 'v_permlane32_swap_b32'):
        for u in range(4): a(f'v_mov_b32 v{MT+u}, v{MX+u}')
        for u in range(4): a(f'{sw} v{MX+u}, v{MT+u}')
        for u in range(4): a(f'v_max_f32 v{MX+u}, v{MX+u}, v{MT+u}')
    for u in range(4):
        a(f'v_mul_f32 v{MX+u}, v{STC+2*u+3}, v{MX+u}')
    for u in range(4):
        for r in range(4):
            a(f'v_fma_f32 v{SC+4*u+r}, v{SC+4*u+r}, v{STC+2*u+3}, -v{MX+u}')
    for u in range(4):
        for r in range(4):
            a(f'v_exp_f32 v{SC+4*u+r}, v{SC+4*u+r}')
    for u in range(4):
        for h in range(2):
            a(f'v_cvt_pk_bf16_f32 v{PM+2*u+h}, v{SC+4*u+2*h}, v{SC+4*u+2*h+1}')
        for h in range(2):
            a(f'v_and_b32 v{PB+4*u+h}, v{PM+2*u+h}, v{MP+h}')
            a(f'v_and_b32 v{PB+4*u+2+h}, v{PM+2*u+h}, v{MC+h}')
    pm = []
    for u in range(4):
        pm.append(f'v_mfma_f32_16x16x16_bf16 {vr(SP+4*u,4)}, {vr(ONE,2)}, {vr(PM+2*u,2)}, 0')
    for u in range(4):
        pm.append(f'v_mfma_f32_16x16x32_bf16 {vr(SC+4*u,4)}, {vr(VP+2*u,4)}, {vr(PB+4*u,4)}, 0')
    sa = [f's_lshl2_add_u32 s{sT0}, s{sDT}, s{sWAVE}', f's_lshl_b32 s{sT2}, s{sRT}, 5', f's_add_u32 s{sT2}, s{sT2}, s{sT0}', f's_lshl_b32 s{sT2}, s{sT2}, 2',
          f's_add_u32 s{sT2}, s{sT2}, {WS_F1:#x}', f's_lshl_b32 s{sT0}, s{sT0}, 9', f's_lshl_b32 s{sT1}, s{sRT}, 16', f's_add_u32 s{sT0}, s{sT0}, s{sT1}',
          f's_add_u32 s{sT1}, s{sT0}, 32768', f'v_lshrrev_b32 v{vT0}, 5, v{vL}', f'v_mul_u32_u24 v{vT0}, {16384 - 512}, v{vT0}', f'v_add_u32 v{vT0}, v{vT0}, v{vL16}']
    a.run(weave(pm, sa))
    for u in range(4):
        a(f'v_rcp_f32 v{SP+4*u}, v{SP+4*u}')
    for u in range(4):
        for h in range(2):
            a(f'v_pk_mul_f32 {vr(SC+4*u+2*h,2)}, {vr(SC+4*u+2*h,2)}, {vr(SP+4*u,2)} op_sel_hi:[1,0]')
    for u in range(4):
        for h in range(2):
            a(f'v_cvt_pk_bf16_f32 v{OUT+2*u+h}, v{SC+4*u+2*h}, v{SC+4*u+2*h+1}')
    for e in range(2):
        for h in range(2):
            a(f'v_permlane32_swap_b32 v{OUT+4*e+h}, v{OUT+4*e+2+h}')
    for e in range(2):
        a.vm('ost', f'buffer_store_dwordx4 {vr(OUT+4*e,4)}, v{vT0}, {srd(sWS)}, s{[sT0,sT1][e]} offen sc1')
    a.stamp(0, 1)
    ID, O, ACC2, S2, PK2, PL = 20, 64, 128, 144, 152, 172
    WF2 = 32
    vHO, vSO, vTW = 9, 10, 12
    a(f'v_bfe_u32 v{vT0}, v{vL}, 2, 3')
    a(f'v_lshrrev_b32 v{vT1}, 5, v{vL}')
    a(f'v_lshl_add_u32 v{vT0}, v{vT1}, 4, v{vT0}')
    a(f'v_lshlrev_b32 v{vTW}, 7, v{vT0}')
    a(f'v_bfe_u32 v{vT0}, v{vL}, 3, 2')
    a(f'v_lshl_add_u32 v{vTW}, v{vT0}, 5, v{vTW}')
    a(f'v_and_b32 v{vT0}, 3, v{vL}')
    a(f'v_lshl_add_u32 v{vTW}, v{vT0}, 3, v{vTW}')
    for t in range(1, 4): a(f'v_xor_b32 v{vTW+t}, {32*t}, v{vTW}')
    a(f'v_and_b32 v{vT0}, 1, v{vC}')
    a(f'v_lshlrev_b32 v{vT0}, 4, v{vT0}')
    a(f'v_mov_b32 v{vT1}, 0x3f80')
    a(f'v_lshlrev_b32 v{vT0}, v{vT0}, v{vT1}')
    a(f'v_lshrrev_b32 v{vT1}, 1, v{vC}')
    a(f'v_lshlrev_b32 v{vT2}, 2, v{vG}')
    a(f'v_sub_u32 v{vT1}, v{vT1}, v{vT2}')
    for b in range(2):
        for k in range(4):
            a(f'v_cmp_eq_i32 vcc, {k - 8*b}, v{vT1}')
            a(f'v_cndmask_b32 v{ID+4*b+k}, 0, v{vT0}, vcc')
    a(f'v_and_b32 v{vT0}, 1, v{vG}')
    a(f'v_lshlrev_b32 v{vHO}, 10, v{vT0}')
    a(f'v_lshrrev_b32 v{vT0}, 1, v{vG}')
    a(f'v_lshl_add_u32 v{vHO}, v{vT0}, 8, v{vHO}')
    a(f'v_lshl_add_u32 v{vHO}, v{vC}, 4, v{vHO}')
    a(f'v_lshrrev_b32 v{vT0}, 2, v{vC}')
    a(f'v_lshlrev_b32 v{vSO}, 8, v{vT0}')
    a(f'v_lshl_add_u32 v{vSO}, v{vG}, 6, v{vSO}')
    a(f'v_and_b32 v{vT0}, 3, v{vC}')
    a(f'v_lshl_add_u32 v{vSO}, v{vT0}, 4, v{vSO}')
    for t in range(4):
        a(f'v_mfma_f32_16x16x32_bf16 {vr(ACC2+4*t,4)}, {vr(XR+4*(t>>1),4)}, {vr(ID+4*(t&1),4)}, 0')
    a.wait(vm=['nonce'])
    a(f'v_readfirstlane_b32 s{sNON}, v{vNCE}')
    a(f's_mov_b32 s{sCNT}, {SPIN}')
    a(f'v_mov_b32 v{vT1}, 0')
    a.label('L_non')
    a(f's_cmp_lg_u32 s{sNON}, 0')
    a('s_cbranch_scc1 L_nonok')
    a(f'buffer_load_dword v{vNCE}, v{vT1}, {srd(sDBG)}, 0 offen sc1')
    a('s_waitcnt vmcnt(0)')
    a(f'v_readfirstlane_b32 s{sNON}, v{vNCE}')
    a(f's_sub_u32 s{sCNT}, s{sCNT}, 1')
    a('s_cbranch_scc0 L_non')
    a.label('L_nonok')
    def flag(soff):
        a(f'v_mov_b32 v{vT2}, s{sNON}')
        a(f'v_mov_b32 v{vT3}, 0')
        a.wait_all(ds=False)
        a('s_mov_b64 exec, 1')
        a.vm('flag', f'buffer_store_dword v{vT2}, v{vT3}, {srd(sWS)}, s{soff} offen sc1')
        a('s_mov_b64 exec, -1')
    flag(sT2)
    a.stamp(0, 1)
    a('s_barrier')
    n1 = min(UA + UB, NSL)
    for u in range(UA, n1): a.run(dma_unit(True, u, vQ1))
    for u in range(UA): a.run(tr_unit(True, u, vR1))
    def wf2(i): return [32, 48, 176, 192, 208, 224][i % 6]
    def tr2(i):
        return [('ds', ('w2r', i), f'ds_read_b64_tr_b16 {vr(wf2(i)+4*t+2*h,2)}, v{vTW+t} offset:{4096*i+1024*h}') for t in range(4) for h in range(2)]
    for i in range(5): a.run(tr2(i))
    if UA + UB > n1:
        a.wait_all(vm=False)
        for u in range(n1, UA + UB): a.run(dma_unit(True, u, vQ1))
    def poll(lbl, vaddr, soff):
        a(f's_mov_b32 s{sCNT}, {SPIN}')
        a.label(lbl)
        a(f'buffer_load_dword v{PL}, v{vaddr}, {srd(sWS)}, s{soff} offen sc1')
        a.wait_all(ds=False)
        a(f'v_cmp_ne_u32 vcc, s{sNON}, v{PL}')
        a(f's_cbranch_vccz {lbl}_ok')
        a(f's_sub_u32 s{sCNT}, s{sCNT}, 1')
        a(f's_cbranch_scc0 {lbl}')
        a.label(lbl + '_ok')
    a(f's_lshl_b32 s{sT0}, s{sRT}, 7')
    a(f's_add_u32 s{sT0}, s{sT0}, {WS_F1:#x}')
    a(f'v_and_b32 v{vE0}, 31, v{vL}')
    a(f'v_lshlrev_b32 v{vE0}, 2, v{vE0}')
    sBLK = sXB
    a(f's_lshl2_add_u32 s{sBLK}, s{sRT}, s{sWAVE}')
    a(f's_lshl_b32 s{sT1}, s{sBLK}, 14')
    poll('L_p1', vE0, sT0)
    a.stamp()
    for c in range(4):
        if c: a(f's_add_u32 s{sT1}, s{sT1}, 4096')
        for i in range(4):
            a.vm(('o', 4*c+i), f'buffer_load_dwordx4 {vr(O+16*c+4*i,4)}, v{vL16}, {srd(sWS)}, s{sT1} offen offset:{1024*i} sc1')
    for u in range(UA, UA + UB): a.run(tr_unit(True, u, vR1))
    a.wait_all(vm=False)
    U2 = UA + UB
    for u in range(U2, U2 + UC): a.run(dma_unit(True, u, vQ1))
    a(f's_lshl_b32 s{sT0}, s{sDT}, 18')
    a(f's_lshr_b32 s{sT1}, s{sBLK}, 1')
    a(f's_lshl_b32 s{sT1}, s{sT1}, 12')
    a(f's_add_u32 s{sT0}, s{sT0}, s{sT1}')
    a(f's_and_b32 s{sT1}, s{sBLK}, 1')
    a(f's_lshl_b32 s{sT1}, s{sT1}, 9')
    a(f's_add_u32 s{sT0}, s{sT0}, s{sT1}')
    a(f's_add_u32 s{sT0}, s{sT0}, {WS_HF:#x}')
    a(f's_lshl_b32 s{sT1}, s{sBLK}, 11')
    a(f's_add_u32 s{sT1}, s{sT1}, {WS_SX:#x}')
    a(f's_lshl_b32 s{sT2}, s{sDT}, 8')
    a(f's_add_u32 s{sT2}, s{sT2}, s{sT1}')
    a(f'v_lshlrev_b32 v{vT0}, 2, v{vL}')
    for i in range(16):
        a.wait(vm=[('o', i)], ds=[('w2r', i)])
        mm = [f'v_mfma_f32_16x16x32_bf16 {vr(ACC2+4*t,4)}, {vr(O+4*i,4)}, {vr(wf2(i)+4*t,4)}, {vr(ACC2+4*t,4)}' for t in range(4)]
        a.run(weave(mm, tr2(i + 5) if i + 5 < 16 else []))
    a.stamp()
    S = S2
    for r in range(4):
        a(f'v_add_f32 v{S+r}, v{ACC2+r}, v{ACC2+4+r}')
        a(f'v_mul_f32 v{S+4+r}, v{ACC2+r}, v{ACC2+r}')
    for t in range(1, 4):
        for r in range(4):
            if t > 1: a(f'v_add_f32 v{S+r}, v{S+r}, v{ACC2+4*t+r}')
            a(f'v_fmac_f32 v{S+4+r}, v{ACC2+4*t+r}, v{ACC2+4*t+r}')
    for base in (S, S + 4):
        for i in range(2):
            a(f'v_add_f32_dpp v{base+i}, v{base+i}, v{base+i} row_ror:8 row_mask:0xf bank_mask:0x3')
    for base in (S, S + 4):
        for i in range(2):
            a(f'v_add_f32_dpp v{base+i}, v{base+i+2}, v{base+i+2} row_ror:8 row_mask:0xf bank_mask:0xc')
    for base in (S, S + 4):
        a(f'v_add_f32_dpp v{base}, v{base}, v{base} row_half_mirror row_mask:0xf bank_mask:0x5')
    for base in (S, S + 4):
        a(f'v_add_f32_dpp v{base}, v{base+1}, v{base+1} row_half_mirror row_mask:0xf bank_mask:0xa')
    a(f'v_mov_b32 v{S+1}, s{sNON}')
    for qp in ('[1,0,3,2]', '[2,3,0,1]'):
        for base in (S, S + 4):
            a(f'v_add_f32_dpp v{base}, v{base}, v{base} quad_perm:{qp} row_mask:0xf bank_mask:0xf')
    a('s_mov_b32 vcc_lo, 0xaaaaaaaa')
    a('s_mov_b32 vcc_hi, 0xaaaaaaaa')
    a(f'v_cndmask_b32 v{S}, v{S}, v{S+4}, vcc')
    a('s_mov_b32 vcc_lo, 0xcccccccc')
    a('s_mov_b32 vcc_hi, 0xcccccccc')
    a(f'v_cndmask_b32 v{S}, v{S}, v{S+1}, vcc')
    a.vm('sx', f'buffer_store_dword v{S}, v{vT0}, {srd(sWS)}, s{sT2} offen sc1')
    def pack_store(tag, soff):
        for t in range(4):
            for h in range(2):
                a(f'v_cvt_pk_bf16_f32 v{PK2+2*t+h}, v{ACC2+4*t+2*h}, v{ACC2+4*t+2*h+1}')
        for e in range(2):
            for h in range(2):
                a(f'v_permlane16_swap_b32 v{PK2+4*e+h}, v{PK2+4*e+2+h}')
        for e in range(2):
            a.vm(tag, f'buffer_store_dwordx4 {vr(PK2+4*e,4)}, v{vHO}, {srd(sWS)}, s{soff} offen offset:{2048*e} sc1')
    pack_store('hst', sT0)
    PK2 = PK2 + 8
    a(f's_sub_u32 s{sT0}, s{sT0}, {WS_HF - WS_HN:#x}')
    a(f's_lshl_b32 s{sT2}, s{sDT}, 7')
    a(f's_add_u32 s{sT2}, s{sT2}, s{sBLK}')
    a(f's_lshl_b32 s{sT2}, s{sT2}, 2')
    a(f's_add_u32 s{sT2}, s{sT2}, {WS_F2:#x}')
    a.stamp()
    R0 = O
    a(f's_mov_b32 s{sCNT}, {SPIN}')
    a.label('L_sx')
    for e in range(2):
        a(f'buffer_load_dwordx4 {vr(R0+4*e,4)}, v{vSO}, {srd(sWS)}, s{sT1} offen offset:{1024*e} sc1')
    a.wait_all(ds=False)
    a(f'v_xor_b32 v{R0+2}, s{sNON}, v{R0+2}')
    a(f'v_xor_b32 v{R0+6}, s{sNON}, v{R0+6}')
    a(f'v_add_f32 v{R0}, v{R0}, v{R0+4}')
    a(f'v_or_b32 v{R0+2}, v{R0+2}, v{R0+6}')
    a(f'v_add_f32 v{R0+1}, v{R0+1}, v{R0+5}')
    a(f'v_cmp_ne_u32 vcc, 0, v{R0+2}')
    a('s_cbranch_vccz L_sx_ok')
    a(f's_sub_u32 s{sCNT}, s{sCNT}, 1')
    a('s_cbranch_scc0 L_sx')
    a.label('L_sx_ok')
    a.stamp()
    for ror in (4, 8):
        for k in range(2):
            a(f'v_add_f32_dpp v{R0+k}, v{R0+k}, v{R0+k} row_ror:{ror} row_mask:0xf bank_mask:0xf')
    s_, q_, t_ = R0, R0 + 1, R0 + 2
    a(f's_mov_b32 s{sT1}, 0x3727c5ac')
    a(f'v_mul_f32 v{s_}, 0xbb000000, v{s_}')
    a(f'v_mul_f32 v{q_}, 0x3b000000, v{q_}')
    a(f'v_fma_f32 v{q_}, -v{s_}, v{s_}, v{q_}')
    a(f'v_max_f32 v{q_}, 0, v{q_}')
    a(f'v_add_f32 v{t_}, s{sT1}, v{q_}')
    a(f'v_rsq_f32 v{t_}, v{t_}')
    a(f'v_mul_f32 v{q_}, v{q_}, v{t_}')
    a(f'v_fma_f32 v{q_}, v{q_}, v{t_}, s{sT1}')
    a(f'v_rsq_f32 v{q_}, v{q_}')
    a(f'v_mul_f32 v{t_}, v{t_}, v{q_}')
    a(f'v_mul_f32 v{s_}, v{s_}, v{t_}')
    RR, BB = R0 + 4, R0 + 8
    for r in range(4):
        a(f'v_mov_b32_dpp v{RR+r}, v{t_} quad_perm:[{r},{r},{r},{r}] row_mask:0xf bank_mask:0xf')
    for r in range(4):
        a(f'v_mov_b32_dpp v{BB+r}, v{s_} quad_perm:[{r},{r},{r},{r}] row_mask:0xf bank_mask:0xf')
    for t in range(4):
        for h in range(2):
            a(f'v_pk_fma_f32 {vr(ACC2+4*t+2*h,2)}, {vr(ACC2+4*t+2*h,2)}, {vr(RR+2*h,2)}, {vr(BB+2*h,2)}')
    pack_store('hst', sT0)
    U3 = U2 + UC
    for u in range(U2, U3): a.run(tr_unit(True, u, vR1))
    vQ2, vR2 = 9, 13
    vA0, vA1 = 17, 18
    BI4 = 20
    OWN, OTH, ST, H = 32, 48, 96, 128
    a.run(mk_q(vQ2 + 16, False))
    a.run(mk_r(vR2, False))
    flag(sT2)
    for k in range(4): a(f'v_mov_b32 v{vQ2+k}, v{vQ2+16+k}')
    a.stamp()
    u = U3
    while u < 16:
        a.wait_all(vm=False)
        n = min(NSL, 16 - u)
        for k in range(u, u + n): a.run(dma_unit(True, k, vQ1))
        for k in range(u, u + n):
            a.wait(vm=[('u', True, k)])
            a.run(tr_unit(True, k, vR1))
        u += n
    a.wait_all(vm=False)
    a('s_barrier')
    w2_issued = 0
    for k in range(OPT['W2PRE']):
        a.run(dma_unit(False, k, vQ2)); w2_issued += 1
    a(f's_cmp_ge_u32 s{sZ}, 7')
    a('s_cbranch_scc1 L_skip3')
    save_vm = list(a.vmq)
    a(f's_lshr_b32 s{sT0}, s{sWAVE}, 1')
    a(f's_lshl_b32 s{sT0}, s{sT0}, 11')
    a(f'v_or_b32 v{vA0}, s{sT0}, v{vL16}')
    a(f'v_xor_b32 v{vA1}, 2048, v{vA0}')
    a(f's_lshl_b32 s{sT0}, s{sCT3}, 7')
    a(f's_and_b32 s{sT1}, s{sWAVE}, 1')
    a(f's_lshl_b32 s{sT1}, s{sT1}, 6')
    a(f's_add_u32 s{sT0}, s{sT0}, s{sT1}')
    a(f'v_lshlrev_b32 v{vT0}, 3, v{vG}')
    for i in range(2):
        a.vm('b1', f'buffer_load_dwordx2 {vr(BI4+2*i,2)}, v{vT0}, {srd(sB1)}, s{sT0} offen offset:{32*i}')
    sHA, sHB = sXB, sWB
    a(f's_lshl4_add_u32 s{sT0}, s{sWAVE}, s{sROT3}')
    a(f's_lshl_b32 s{sHA}, s{sT0}, 12')
    a(f's_lshl_b32 s{sT0}, s{sDT}, 18')
    a(f's_add_u32 s{sHA}, s{sHA}, s{sT0}')
    a(f's_add_u32 s{sHA}, s{sHA}, {WS_HN:#x}')
    a(f's_sub_u32 s{sHB}, s{sHA}, 65536')
    a(f's_lshl2_add_u32 s{sT0}, s{sDT}, s{sWAVE}')
    a(f's_lshl_b32 s{sT0}, s{sT0}, 7')
    a(f's_add_u32 s{sT0}, s{sT0}, {WS_F2:#x}')
    PL = ST + 16
    poll('L_p2', vE0, sT0)
    a.stamp()
    def hreg(i, t): return H + 16 * (i % 8) + 4 * t
    def aloads(K3, i):
        N = 16 if K3 else 14
        rot = sROT3 if K3 else sROT4
        ops = []
        for t in range(4):
            pre = [f's_cmp_lt_u32 s{rot}, {N - i}', f's_cselect_b32 s{sCNT}, s{sHA}, s{sHB}', f's_add_u32 s{sCNT}, s{sCNT}, {i*4096}'] if t == 0 else []
            if K3: txt = f'buffer_load_dwordx4 {vr(hreg(i,t),4)}, v{vA1 if t >> 1 else vA0}, {srd(sWS)}, s{sCNT} offen offset:{1024*(t&1)} sc1'
            else: txt = f'buffer_load_dwordx4 {vr(hreg(i,t),4)}, v{vL16}, {srd(sWS)}, s{sCNT} offen offset:{1024*t} sc1'
            ops.append(('grp', pre + [('vm', ('a', K3, i), txt)]))
        return ops
    def acc34(K3, tw, ta):
        q, k = ((tw >> 1) + 2 * (ta >> 1), (tw & 1) + 2 * (ta & 1)) if K3 else (tw, ta)
        return q, vr(OWN + 16 * q + 4 * k, 4)
    def mm34(K3, i, quad=None):
        mm = []
        for ta in range(4):
            for tw in range(4):
                q, d = acc34(K3, tw, ta)
                if quad is not None and q != quad: continue
                A, B = (ar(16*i+4*tw, 4), vr(hreg(i, ta), 4)) if K3 else (vr(hreg(i, ta), 4), ar(16*i+4*tw, 4))
                mm.append(f'v_mfma_f32_16x16x32_bf16 {d}, {A}, {B}, {"0" if i == 0 else d}')
        return mm
    red_addr = [f's_mul_i32 s{sT0}, s{sWAVE}, 12288']
    for q in range(1, 4):
        red_addr += [f's_xor_b32 s{sT1}, s{sWAVE}, {q}', f's_mul_i32 s{sT1}, s{sT1}, 12288', f'v_add_u32 v{vT0+q-1}, s{sT1}, v{vL16}']
    red_addr += [f'v_add_u32 v{vT3}, s{sT0}, v{vL16}']
    def red_w(q): return [('ds', 'rw', f'ds_write_b128 v{vT0+q-1}, {vr(OWN+16*q+4*k,4)} offset:{4096*(q-1)+1024*k}') for k in range(4)]
    def gemm34(K3, N, fills):
        NQ = 4 if OPT['QM'] else 0
        for i in range(N - NQ):
            a.wait(vm=[('a', K3, i)])
            ld = aloads(K3, i + 7) if 1 <= i and i + 7 < N else []
            f = fills.get(i, [])
            a.run(weave(mm34(K3, i), weave(ld, f) if len(ld) >= len(f) else weave(f, ld)))
        if NQ:
            a.wait(vm=[('a', K3, N - 1)])
            prev = None
            for j, q in enumerate((1, 2, 3, 0)):
                mm = []
                for i in range(N - NQ, N): mm += mm34(K3, i, q)
                f = fills.get(N - NQ + j, [])
                w = red_w(prev) if prev else []
                a.run(mm[:3] + weave(mm[3:], weave(f, w) if len(f) >= len(w) else weave(w, f)))
                prev = q
        else:
            for q in range(1, 4): a.run(red_w(q))
    def reduce_rd():
        a.wait_all(vm=False)
        a('s_barrier')
        for k in range(4):
            for q in range(3):
                a.ds(('rr', k), f'ds_read_b128 {vr(OTH+16*q+4*k,4)}, v{vT3} offset:{4096*q+1024*k}')
    def reduce_sum(k, bias):
        a.wait(ds=[('rr', k)])
        o = OWN + 4 * k
        for h in range(2):
            a(f'v_pk_add_f32 {vr(o+2*h,2)}, {vr(o+2*h,2)}, {bias(k, h)}')
            a(f'v_pk_add_f32 {vr(OTH+4*k+2*h,2)}, {vr(OTH+4*k+2*h,2)}, {vr(OTH+16+4*k+2*h,2)}')
        for h in range(2):
            a(f'v_pk_add_f32 {vr(o+2*h,2)}, {vr(o+2*h,2)}, {vr(OTH+32+4*k+2*h,2)}')
        for h in range(2):
            a(f'v_pk_add_f32 {vr(o+2*h,2)}, {vr(o+2*h,2)}, {vr(OTH+4*k+2*h,2)}')
    for i in range(8): a.run(aloads(True, i))
    a.run(red_addr)
    BF = ST
    fills = {}
    w2_moved = 0
    for i in range(1, 1 + OPT['W2PRE']):
        fills[i] = tr_unit(False, i - 1, vR2); w2_moved += 1
    fills.setdefault(8, [])
    fills[8] = fills[8] + [x for i in range(4) for x in (f'v_lshlrev_b32 v{BF+2*i}, 16, v{BI4+i}', f'v_and_b32 v{BF+2*i+1}, 0xffff0000, v{BI4+i}')]
    for i in range(9, 16):
        if w2_issued < min(14, w2_moved + NSL):
            fills[i] = fills.get(i, []) + ([('wds', ('t', False, w2_issued - NSL))] if w2_issued >= NSL else []) + dma_unit(False, w2_issued, vQ2); w2_issued += 1
    gemm34(True, 16, fills)
    a.stamp()
    reduce_rd()
    a(f's_mul_i32 s{sT0}, s{sDT}, {56*4096}')
    a(f's_lshl_b32 s{sT1}, s{sCT3}, 13')
    a(f's_add_u32 s{sT0}, s{sT0}, s{sT1}')
    a(f's_and_b32 s{sT1}, s{sWAVE}, 1')
    a(f's_lshl_b32 s{sT1}, s{sT1}, 12')
    a(f's_add_u32 s{sT0}, s{sT0}, s{sT1}')
    a(f's_add_u32 s{sT0}, s{sT0}, {WS_UF:#x}')
    a(f's_mul_i32 s{sT2}, s{sDT}, 28')
    a(f's_add_u32 s{sT2}, s{sT2}, s{sCT3}')
    a(f's_lshl2_add_u32 s{sT2}, s{sT2}, s{sWAVE}')
    a(f's_lshl_b32 s{sT2}, s{sT2}, 2')
    a(f's_add_u32 s{sT2}, s{sT2}, {WS_F3:#x}')
    C1 = -2.0 * 0.7978845608028654 * 1.4426950408889634
    a(f's_mov_b32 s{sT1}, {f2h(C1 * 0.044715)}')
    a(f'v_mov_b32 v{vT2}, {f2h(C1)}')
    for k in range(4): reduce_sum(k, lambda k, h: vr(BF + 4 * (k & 1) + 2 * h, 2))
    T = H
    PK = H + 16
    for j in range(16): a(f'v_mul_f32 v{T+j}, v{OWN+j}, v{OWN+j}')
    for j in range(16): a(f'v_fma_f32 v{T+j}, v{T+j}, s{sT1}, v{vT2}')
    for j in range(16): a(f'v_mul_f32 v{T+j}, v{T+j}, v{OWN+j}')
    for j in range(16): a(f'v_exp_f32 v{T+j}, v{T+j}')
    for j in range(16): a(f'v_add_f32 v{T+j}, 1.0, v{T+j}')
    for j in range(16): a(f'v_rcp_f32 v{T+j}, v{T+j}')
    for j in range(16): a(f'v_mul_f32 v{OWN+j}, v{T+j}, v{OWN+j}')
    for j in range(8): a(f'v_cvt_pk_bf16_f32 v{PK+j}, v{OWN+2*j}, v{OWN+2*j+1}')
    for b in range(2):
        a.vm('ust', f'buffer_store_dwordx4 {vr(PK+4*b,4)}, v{vA0}, {srd(sWS)}, s{sT0} offen offset:{1024*b} sc1')
    flag(sT2)
    a.stamp()
    a('s_branch L_join3')
    a.label('L_skip3')
    vq, dq = a.vmq, a.dsq; a.vmq = save_vm; a.dsq = []
    a.wait_all()
    for k in range(w2_moved): a.run(tr_unit(False, k, vR2))
    a.wait_all()
    for k in range(OPT['W2PRE'], w2_issued): a.run(dma_unit(False, k, vQ2))
    a.wait_all()
    a.vmq = vq; a.dsq = dq
    a.label('L_join3')
    while w2_moved < 14:
        for k in range(w2_moved, w2_issued):
            a.wait(vm=[('u', False, k)])
            a.run(tr_unit(False, k, vR2))
        w2_moved = w2_issued
        if w2_issued < 14:
            a.wait_all(vm=False)
            for k in range(w2_issued, min(14, w2_issued + NSL)):
                a.run(dma_unit(False, k, vQ2)); w2_issued += 1
    RES, PMX, vBI = ST, BI4, BI4 + 2
    a(f's_mul_i32 s{sT0}, s{sWAVE}, 14')
    a(f's_add_u32 s{sT0}, s{sT0}, s{sROT4}')
    a(f's_lshl_b32 s{sHA}, s{sT0}, 12')
    a(f's_mul_i32 s{sT0}, s{sDT}, {56*4096}')
    a(f's_add_u32 s{sHA}, s{sHA}, s{sT0}')
    a(f's_add_u32 s{sHA}, s{sHA}, {WS_UF:#x}')
    a(f's_sub_u32 s{sHB}, s{sHA}, {14*4096}')
    a(f's_lshl_b32 s{sT0}, s{sCT4}, 7')
    a(f's_lshl_b32 s{sT1}, s{sWAVE}, 5')
    a(f's_add_u32 s{sT0}, s{sT0}, s{sT1}')
    a(f'v_lshlrev_b32 v{vT0}, 1, v{vC}')
    a.vm('b2', f'buffer_load_ushort v{vBI}, v{vT0}, {srd(sB2)}, s{sT0} offen')
    a(f'v_lshrrev_b32 v{vT0}, 3, v{vC}')
    a(f'v_and_b32 v{vT1}, 1, v{vC}')
    a(f'v_lshl_add_u32 v{vT0}, v{vT1}, 1, v{vT0}')
    a(f'v_bfe_u32 v{vT1}, v{vC}, 1, 1')
    a(f'v_lshlrev_b32 v{vT1}, 4, v{vT1}')
    a(f'v_mov_b32 v{vT2}, 0x3f80')
    a(f'v_lshlrev_b32 v{vT1}, v{vT1}, v{vT2}')
    a(f'v_cmp_eq_u32 vcc, v{vT0}, v{vG}')
    a(f'v_cndmask_b32 v{vT1}, 0, v{vT1}, vcc')
    a(f'v_and_b32 v{vT0}, 4, v{vC}')
    a(f'v_cmp_eq_u32 vcc, 0, v{vT0}')
    a(f'v_cndmask_b32 v{PMX}, 0, v{vT1}, vcc')
    a(f'v_cndmask_b32_e64 v{PMX+1}, v{vT1}, 0, vcc')
    a(f'v_lshrrev_b32 v{vA0}, 1, v{vG}')
    a(f'v_lshlrev_b32 v{vA0}, 17, v{vA0}')
    a(f'v_lshl_add_u32 v{vA0}, v{vC}, 4, v{vA0}')
    a(f'v_and_b32 v{vT1}, 1, v{vG}')
    a(f'v_lshl_add_u32 v{vA0}, v{vT1}, 3, v{vA0}')
    a(f's_lshl_b32 s{sST1}, s{sDT}, 18')
    a(f's_lshl_b32 s{sT2}, s{sCT4}, 12')
    a(f's_add_u32 s{sST1}, s{sST1}, s{sT2}')
    a(f's_lshl_b32 s{sT2}, s{sWAVE}, 8')
    a(f's_add_u32 s{sST1}, s{sST1}, s{sT2}')
    a(f's_add_u32 s{sST1}, s{sST1}, {WS_HF:#x}')
    a(f'v_lshlrev_b32 v{vA1}, 10, v{vC}')
    a(f'v_lshl_add_u32 v{vA1}, v{vT1}, 5, v{vA1}')
    a(f'v_lshrrev_b32 v{vT1}, 1, v{vG}')
    a(f'v_lshl_add_u32 v{vA1}, v{vT1}, 4, v{vA1}')
    a(f'v_min_u32 v{vE0}, 27, v{vL}')
    a(f'v_lshlrev_b32 v{vE0}, 2, v{vE0}')
    a.run(red_addr)
    a(f's_lshl2_add_u32 s{sT0}, s{sDT}, s{sWAVE}')
    a(f's_mul_i32 s{sT0}, s{sT0}, 112')
    a(f's_add_u32 s{sT0}, s{sT0}, {WS_F3:#x}')
    a.wait_all(vm=False)
    a('s_barrier')
    poll('L_p3', vE0, sT0)
    a.stamp()
    for i in range(8): a.run(aloads(False, i))
    for t in range(4):
        a.vm('res', f'buffer_load_dwordx2 {vr(RES+2*t,2)}, v{vA0}, {srd(sWS)}, s{sST1} offen offset:{1024*t} sc1')
    fills = {9: [f'v_mfma_f32_16x16x16_bf16 {acc34(False,0,t)[1]}, {vr(RES+2*t,2)}, {vr(PMX,2)}, {acc34(False,0,t)[1]}' for t in range(4)],
             3: [f'v_lshlrev_b32 v{vBI}, 16, v{vBI}', f'v_mov_b32 v{vBI+1}, v{vBI}', f's_lshl_b32 s{sT0}, s{sCT4}, 16', f's_lshl_b32 s{sT1}, s{sWAVE}, 14',
                 f's_add_u32 s{sT0}, s{sT0}, s{sT1}', f's_lshl_b32 s{sT1}, s{sDT}, 7', f's_add_u32 s{sT0}, s{sT0}, s{sT1}']}
    gemm34(False, 14, fills)
    a.stamp()
    reduce_rd()
    for k in range(4): reduce_sum(k, lambda k, h: vr(vBI, 2))
    for j in range(8): a(f'v_cvt_pk_bf16_f32 v{PK+j}, v{OWN+2*j}, v{OWN+2*j+1}')
    for e in range(2):
        for h in range(2):
            a(f'v_permlane16_swap_b32 v{PK+4*e+h}, v{PK+4*e+2+h}')
    for e in range(2):
        a(f'buffer_store_dwordx4 {vr(PK+4*e,4)}, v{vA1}, {srd(sOUT)}, s{sT0} offen offset:{64*e}')
    a.stamp()
    if PROF:
        a.label('L_prof')
        a('s_waitcnt lgkmcnt(0)')
        a(f's_cmp_lg_u32 s{sWAVE}, 0')
        a('s_cbranch_scc1 L_end')
        if OPT['AMP'] >= 0:
            a(f's_cmp_lg_u32 s2, {OPT["AWG"]}')
            a('s_cbranch_scc1 L_end')
            a(f's_sub_u32 s{sT2}, s{70+2*OPT["AMP"]}, s70')
            a(f's_lshl_b32 s{sT2}, s{sT2}, 3')
            a(f's_min_u32 s{sT2}, s{sT2}, 100000')
            a(f's_memrealtime s[{sT0}:{sT1}]')
            a('s_waitcnt lgkmcnt(0)')
            a(f's_mov_b32 s{sCNT}, s{sT0}')
            a.label('L_amp')
            a(f's_memrealtime s[{sT0}:{sT1}]')
            a('s_waitcnt lgkmcnt(0)')
            a(f's_sub_u32 s{sT0}, s{sT0}, s{sCNT}')
            a(f's_cmp_lt_u32 s{sT0}, s{sT2}')
            a('s_cbranch_scc1 L_amp')
            a('s_branch L_end')
        a(f's_mul_i32 s{sT0}, s2, {NSTAMP * 8}')
        a(f's_add_u32 s{sT0}, s{sT0}, {128 * MB:#x}')
        a(f's_add_u32 s{sT0}, s{sWS}, s{sT0}')
        a(f's_addc_u32 s{sT1}, s{sWS+1}, 0')
        a(f'v_mov_b32 v{vT0}, 0')
        for i in range(a.nst):
            a(f'v_mov_b32 v{H+2*i}, s{70+2*i}')
            a(f'v_mov_b32 v{H+2*i+1}, s{71+2*i}')
            a(f'global_store_dwordx2 v{vT0}, v[{H+2*i}:{H+2*i+1}], s[{sT0}:{sT1}] offset:{8*i}')
    a.label('L_end')
    a('s_endpgm')
    return a, name, LDS

HEADER = open('cdna_kernels/' + NAME + '.s.ref').read().split('; Override launch')[0]

def main():
    a, name, lds = gen()
    body = a.finalize()
    out = HEADER + f'; @launch grid=(256,1,1) block=(256,1,1) lds={lds}\n'
    out += '.amdgcn_target "amdgcn-amd-amdhsa--gfx950"\n.text\n' + body
    out += f""".section .rodata,"a"
.p2align 6
.amdhsa_kernel {name}
  .amdhsa_next_free_vgpr 512
  .amdhsa_next_free_sgpr 102
  .amdhsa_accum_offset 256
  .amdhsa_group_segment_fixed_size 0
  .amdhsa_kernarg_size 88
  .amdhsa_user_sgpr_count 2
  .amdhsa_user_sgpr_kernarg_segment_ptr 1
  .amdhsa_system_sgpr_workgroup_id_x 1
.end_amdhsa_kernel
"""
    open(sys.argv[1], 'w').write(out)
    print('nops inserted', a.nops_inserted, 'lines', out.count('\n'), 'stamps', a.nst)

if __name__ == '__main__':
    main()
```

```python
import sys, struct
from asmgen import Asm

NAME = "sequential_preLN__sliding_local_dilated__mixer_token_mlp__prompt"
PROF = '--prof' in sys.argv
OPT = dict(UA=0, UB=4, UC=6, W2PRE=0, PG=0, TWO=1, T1A=10, T1B=12, NQ=3, D0=4, PRE1=14, PRE2=25, ZS3=1, AMP=-1, AWG=0,
           W2B=9, EPU=3, OSC=0, SKT=1, CLB=3, KPM=7)
for a_ in sys.argv[2:]:
    if '=' in a_:
        k_, v_ = a_.split('='); assert k_ in OPT, k_; OPT[k_] = int(v_)
NSTAMP = 20
MB = 1 << 20
KB = 1024
WS_OF, WS_HN, WS_HF, WS_UF, WS_SX = 0, 2 * MB, 4 * MB, 6 * MB, 8 * MB
WS_F1, WS_DUM = 8 * MB + 256 * KB, 9 * MB
WS_F2, WS_F3 = WS_F1 + 32, WS_F1 + 64
NEGBIG = 0xF149F2CA
SPIN = 1 << 17

def vr(b, n=1): return f'v{b}' if n == 1 else f'v[{b}:{b+n-1}]'
def ar(b, n=1): return f'a{b}' if n == 1 else f'a[{b}:{b+n-1}]'
def srd(b): return f's[{b}:{b+3}]'
def f2h(x): return '%#x' % struct.unpack('<I', struct.pack('<f', x))[0]

class Em(Asm):
    def __init__(self):
        super().__init__()
        self.vmq = []; self.dsq = []; self.nst = 0
    def vm(self, tag, text):
        self(text); self.vmq.append(tag)
        assert len(self.vmq) <= 63, ('vm overflow', tag)
    def ds(self, tag, text):
        self(text); self.dsq.append(tag)
    @staticmethod
    def _n(q, tags):
        idx = -1
        for k, t in enumerate(q):
            if t in tags: idx = k
        return idx
    def wait(self, vm=(), ds=()):
        s = []
        i = self._n(self.vmq, list(vm))
        if i >= 0:
            s.append(f'vmcnt({len(self.vmq) - 1 - i})'); self.vmq = self.vmq[i + 1:]
        i = self._n(self.dsq, list(ds))
        if i >= 0:
            n = len(self.dsq) - 1 - i
            if n > 15: n = 15
            s.append(f'lgkmcnt({n})'); self.dsq = self.dsq[len(self.dsq) - n:] if n else []
        if s: self('s_waitcnt ' + ' '.join(s))
    def wait_all(self, vm=True, ds=True):
        s = []
        if vm: s.append('vmcnt(0)'); self.vmq = []
        if ds: s.append('lgkmcnt(0)'); self.dsq = []
        self('s_waitcnt ' + ' '.join(s))
    def run(self, ops):
        for op in ops:
            if isinstance(op, str): self(op)
            elif op[0] == 'vm': self.vm(op[1], op[2])
            elif op[0] == 'ds': self.ds(op[1], op[2])
            elif op[0] == 'wvm': self.wait(vm=[op[1]])
            elif op[0] == 'wds': self.wait(ds=[op[1]])
            elif op[0] == 'grp': self.run(op[1])
            elif op[0] == 'label': self.label(op[1])
            else: raise ValueError(op)
    def stamp(self, *grps):
        if not PROF: return
        if not grps: grps = (0,)
        if OPT['PG'] not in grps and -1 not in grps: return
        assert self.nst < 16
        self(f's_memrealtime s[{70 + 2*self.nst}:{71 + 2*self.nst}]')
        self.nst += 1

def flat(ops):
    out = []
    for op in ops:
        if not isinstance(op, str) and op[0] == 'grp': out += flat(op[1])
        else: out.append(op)
    return out

def weave(prim, fill, lead=0):
    out = []
    n, m = len(prim), len(fill)
    k = 0
    for i, p in enumerate(prim):
        out.append(p)
        tgt = min(m, (m * (i + 1) + n - 1) // n + lead) if n else m
        while k < tgt:
            out.append(fill[k]); k += 1
    out += fill[k:]
    return out
def mix(a, b): return weave(a, b) if len(a) >= len(b) else weave(b, a)

sX, sWQ, sWO, sW1, sB1, sW2, sB2, sOUT, sDBG, sWS = 4, 8, 12, 16, 20, 24, 28, 32, 36, 40
sPOLL = 4
sWAVE, sBUD, sT0, sT1, sT2, sCNT = 44, 45, 46, 47, 48, 49
sXB, sWB, sWOB, sLW, sRT, sDT = 50, 51, 52, 53, 54, 55
sCT3, sCT4, sROT3, sROT4 = 56, 57, 58, 59
sW1A, sW1B, sW2A, sW2B, sPR, sLIM1 = 60, 61, 62, 63, 64, 65
sSTP1, sZ = 66, 67
sNON = 68
vL, vG, vC, vT0, vT1, vT2, vT3, vL16 = 1, 2, 3, 4, 5, 6, 7, 8
vDUM, vCK = 252, 253

def gen():
    a = Em()
    tail = []
    name = NAME + '_kernel'
    a.raw(f'.globl {name}\n.p2align 8\n.type {name},@function')
    a.label(name)
    a.stamp(-1)
    NW = 6
    L_X = NW * 12288
    L_H = L_X + 64 * KB
    L_NM = L_H + 8 * KB
    L_HP = L_NM + 2560
    L_PR = 64 * KB
    NSL = 6
    LDS = 160 * KB
    assert L_HP + 2048 <= LDS
    for s, off in ((sX, 0), (sWQ, 8), (sWS, 80), (sDBG, 72), (sWO, 16), (sW1, 32), (sB1, 40), (sW2, 48), (sB2, 56), (sOUT, 64)):
        a(f's_load_dwordx2 s[{s}:{s+1}], s[0:1], {off}')
    a('s_cmp_ge_u32 s2, 256')
    a('s_cbranch_scc1 L_end')
    a(f'v_lshrrev_b32 v{vG}, 6, v0')
    a(f'v_and_b32 v{vL}, 63, v0')
    a(f'v_readfirstlane_b32 s{sWAVE}, v{vG}')
    a(f'v_lshrrev_b32 v{vG}, 4, v{vL}')
    a(f'v_and_b32 v{vC}, 15, v{vL}')
    a(f'v_lshlrev_b32 v{vL16}, 4, v{vL}')
    for s, n in ((sX, 2048 * 1024), (sWQ, 512 * 3072), (sWS, 16 * MB), (sDBG, 256), (sWO, 512 * 1024), (sW1, 2048 * 3584),
                 (sB1, 3584), (sW2, 1792 * 4096), (sB2, 4096), (sOUT, 2048 * 1024)):
        a(f's_mov_b32 s{s+2}, {n:#x}')
        a(f's_mov_b32 s{s+3}, 0x20000')
    vXD, vWD, vWOD, vXR, vHR, vTR, vSR, vHS = 9, 10, 11, 12, 13, 14, 16, 17
    vXD1, vE0 = 18, 19
    WB, XB, ACC, SB, GS, GO, GH, CST, STC = 20, 44, 104, 164, 180, 184, 188, 192, 212
    QP, KP, VP = 222, 230, 20
    vXR1, vSR1, vRA = 240, 241, 242
    vQ1, vR1 = 244, 248
    SEN = QP
    sXL, sHL, sHB, sKP = sW2A, sW2B, sROT4, sPR
    a(f's_lshr_b32 s{sZ}, s2, 5')
    a(f's_bfe_u32 s{sT0}, s2, {1 | (2 << 16)}')
    a(f's_lshr_b32 s{sT1}, s2, 6')
    a(f's_lshl2_add_u32 s{sT0}, s{sT0}, s{sT1}')
    a(f's_and_b32 s{sT1}, s{sZ}, 1')
    a(f's_lshl4_add_u32 s{sRT}, s{sT1}, s{sT0}')
    a(f's_lshl_b32 s{sT1}, s{sT1}, 10')
    a(f's_bfe_u32 s{sT2}, s2, {3 | (2 << 16)}')
    a(f's_and_b32 s{sDT}, s2, 1')
    a(f's_lshl2_add_u32 s{sDT}, s{sDT}, s{sT2}')
    a(f's_lshl_b32 s{sT2}, s{sT2}, 1')
    a(f's_xor_b32 s{sKP}, s{sT2}, s{sZ}')
    a(f's_and_b32 s{sKP}, s{sKP}, {OPT["KPM"]}')
    a(f's_lshl_b32 s{sWB}, s{sKP}, 1')
    a(f's_lshl2_add_u32 s{sXB}, s{sT0}, s{sWAVE}')
    a(f's_lshl_b32 s{sXB}, s{sXB}, 15')
    a(f's_add_u32 s{sXB}, s{sXB}, s{sT1}')
    a(f's_lshl_b32 s{sT2}, s{sKP}, 7')
    a(f's_add_u32 s{sXB}, s{sXB}, s{sT2}')
    a(f's_lshl_b32 s{sT0}, s{sT0}, 17')
    a(f's_sub_u32 s{sT0}, s{sT0}, 16384')
    a(f's_max_i32 s{sT0}, s{sT0}, 0')
    a(f's_add_u32 s{sT0}, s{sT0}, s{sT1}')
    a(f's_xor_b32 s{sT2}, s{sKP}, s{sWAVE}')
    a(f's_lshl_b32 s{sT2}, s{sT2}, 7')
    a(f's_add_u32 s{sHB}, s{sT0}, s{sT2}')
    a(f's_lshl_b32 s{sXL}, s{sWAVE}, 14')
    a(f's_add_u32 s{sXL}, s{sXL}, {L_X}')
    a(f's_lshl_b32 s{sHL}, s{sWAVE}, 10')
    a(f's_add_u32 s{sHL}, s{sHL}, {L_H}')
    a(f's_mul_i32 s{sLW}, s{sWAVE}, 3072')
    a(f'v_lshrrev_b32 v{vT0}, 3, v{vL}')
    a(f'v_and_b32 v{vT1}, 7, v{vL}')
    a(f'v_xor_b32 v{vT1}, v{vT1}, v{vG}')
    a(f'v_lshlrev_b32 v{vT1}, 4, v{vT1}')
    a(f'v_lshl_add_u32 v{vXD}, v{vT0}, 11, v{vT1}')
    a(f'v_xor_b32 v{vXD1}, 64, v{vXD}')
    a(f'v_add_u32 v{vXD1}, {16384 - 1024}, v{vXD1}')
    a(f's_lshl_b32 s{sT0}, s{sDT}, 7')
    a(f's_lshl3_add_u32 s{sT0}, s{sLW}, s{sT0}')
    a(f'v_mov_b32 v{vT1}, 3072')
    a(f'v_mad_u32_u24 v{vWD}, v{vT0}, v{vT1}, s{sT0}')
    a(f'v_lshrrev_b32 v{vT0}, 1, v{vL}')
    a(f'v_and_b32 v{vT1}, 1, v{vG}')
    a(f's_lshl_b32 s3, s{sWAVE}, 1')
    a(f'v_xor_b32 v{vT0}, v{vT0}, v{vT1}')
    a(f'v_xor_b32 v{vT0}, s3, v{vT0}')
    a(f'v_and_b32 v{vT0}, 3, v{vT0}')
    a(f'v_lshl_add_u32 v{vWD}, v{vT0}, 5, v{vWD}')
    a(f'v_and_b32 v{vT0}, 1, v{vL}')
    a(f'v_lshl_add_u32 v{vWD}, v{vT0}, 4, v{vWD}')
    a('s_waitcnt lgkmcnt(0)')
    a.stamp(1)
    def xloads(p):
        return [('grp', [f's_add_u32 m0, s{sXL}, {p * 2048}', f's_xor_b32 s3, s{sXB}, {p * 128}',
                         ('vm', ('x', p), f'buffer_load_dwordx4 v{vXD}, {srd(sX)}, s3 offen lds')]),
                ('vm', ('x', p), f'buffer_load_dwordx4 v{vXD1}, {srd(sX)}, s3 offen offset:1024 lds')]
    def hloads(j):
        return [('grp', [f's_add_u32 m0, s{sHL}, {j * 4096}', f's_xor_b32 s3, s{sHB}, {j * 512}', 's_mov_b32 exec_lo, 0xffffff00',
                         ('vm', ('h', j), f'buffer_load_dwordx4 v{vXD}, {srd(sX)}, s3 offen lds'), 's_mov_b32 exec_lo, -1'])]
    def wloads(k):
        slot = k % NW
        if k < 16:
            return [('grp', [f's_add_u32 m0, s{sLW}, {slot * 12288}', f's_xor_b32 s3, s{sWB}, {k}', f's_mul_i32 s3, s3, {32 * 3072}',
                             ('vm', ('w', k), f'buffer_load_dwordx4 v{vWD}, {srd(sWQ)}, s3 offen lds')])] + \
                   [('vm', ('w', k), f'buffer_load_dwordx4 v{vWD}, {srd(sWQ)}, s3 offen offset:{1024*R} lds') for R in (1, 2)]
        ops = []
        for j in range(3 if slot < 5 else 1):
            i = 3 * slot + j
            ops.append(('grp', [f's_add_u32 m0, s{sLW}, {i * 4096}', f's_add_u32 s3, s{sWOB}, {i * 32768}',
                                ('vm', 'wo', f'buffer_load_dwordx4 v{vWOD}, {srd(sWO)}, s3 offen lds')]))
        return ops
    seq = [xloads(0), hloads(0), wloads(0), wloads(1), xloads(1), wloads(2), wloads(3), xloads(2), wloads(4), wloads(5)]
    def take(n):
        while seq and len(a.vmq) + len(seq[0]) <= n: a.run(seq.pop(0))
    take(OPT['PRE1'])
    a.stamp(1)
    a(f's_or_b32 s{sT0}, s2, s{sWAVE}')
    a(f's_cmp_lg_u32 s{sT0}, 0')
    a('s_cbranch_scc1 L_nononce')
    a(f's_memrealtime s[{sT0}:{sT1}]')
    a(f'v_mov_b32 v{vT1}, 0')
    a('s_waitcnt lgkmcnt(0)')
    a(f's_or_b32 s{sT0}, s{sT0}, 1')
    a(f'v_mov_b32 v{vT0}, s{sT0}')
    a('s_mov_b64 exec, 1')
    a(f'buffer_store_dword v{vT0}, v{vT1}, {srd(sDBG)}, 0 offen sc1')
    a('s_mov_b64 exec, -1')
    a.label('L_nononce')
    BC, BP, BP0, MC, MP, ONE = CST, CST + 4, CST + 8, CST + 12, CST + 14, CST + 16
    for k in range(4): a(f'v_mov_b32 v{ONE+k}, 0x3f803f80')
    a(f'v_lshrrev_b32 v{vT0}, 3, v{vL}')
    a(f'v_and_b32 v{vT1}, 7, v{vL}')
    a(f'v_lshlrev_b32 v{vT1}, 4, v{vT1}')
    a(f'v_lshl_add_u32 v{vT0}, v{vT0}, 10, v{vT1}')
    a(f'v_add_u32 v{vT0}, {L_H}, v{vT0}')
    a(f'ds_write_b128 v{vT0}, {vr(ONE,4)}')
    a(f'v_lshrrev_b32 v{vT0}, 1, v{vC}')
    a(f'v_xor_b32 v{vT0}, v{vT0}, v{vG}')
    a(f'v_lshlrev_b32 v{vT0}, 4, v{vT0}')
    a(f'v_lshl_add_u32 v{vT0}, v{vC}, 7, v{vT0}')
    a(f'v_add_u32 v{vSR}, s{sXL}, v{vT0}')
    a(f'v_add_u32 v{vXR}, {L_X}, v{vT0}')
    a(f'v_xor_b32 v{vSR1}, 64, v{vSR}')
    a(f'v_xor_b32 v{vXR1}, 64, v{vXR}')
    a(f'v_and_b32 v{vT0}, {0x3bf}, v{vT0}')
    a(f'v_add_u32 v{vHR}, {L_H}, v{vT0}')
    a(f'v_add_u32 v{vHS}, s{sHL}, v{vT0}')
    a(f's_xor_b32 s{sT0}, s{sDT}, s{sKP}')
    a(f's_lshl_b32 s{sT0}, s{sT0}, 11')
    a(f'v_add_u32 v{vRA}, s{sT0}, v{vSR}')
    a(f'v_add_u32 v{vRA+1}, s{sT0}, v{vSR1}')
    a(f'v_mul_u32_u24 v{vTR}, 3072, v{vG}')
    a(f'v_bfe_u32 v{vT0}, v{vL}, 2, 2')
    a(f'v_lshl_add_u32 v{vTR}, v{vT0}, 7, v{vTR}')
    a(f'v_bfe_u32 v{vT0}, v{vL}, 3, 2')
    a(f'v_xor_b32 v{vT0}, s{sWAVE}, v{vT0}')
    a(f'v_lshl_add_u32 v{vTR}, v{vT0}, 5, v{vTR}')
    a(f'v_and_b32 v{vT0}, 3, v{vL}')
    a(f'v_lshl_add_u32 v{vTR}, v{vT0}, 3, v{vTR}')
    a(f'v_add_u32 v{vTR+1}, {3 * 12288}, v{vTR}')
    for k in range(4): a(f'v_mov_b32 v{SEN+k}, -1')
    a(f's_mov_b32 s{sBUD}, {SPIN}')
    a(f's_bfe_u32 s{sT0}, s2, {1 | (2 << 16)}')
    a(f's_lshl3_add_u32 s{sCT4}, s{sT0}, s{sZ}')
    a(f's_sub_u32 s{sCT3}, s{sCT4}, s{sT0}')
    a(f's_min_u32 s{sCT3}, s{sCT3}, 27')
    a(f's_and_b32 s{sT1}, s{sDT}, 3')
    if OPT['ZS3']:
        a(f's_lshl1_add_u32 s{sROT3}, s{sT1}, s{sZ}')
        a(f's_lshl_b32 s{sROT3}, s{sROT3}, 1')
        a(f's_and_b32 s{sROT3}, s{sROT3}, 15')
    else:
        a(f's_lshl_b32 s{sROT3}, s{sT1}, 2')
    a(f's_mov_b32 s{sSTP1}, {64 * 3584}')
    a(f's_sub_u32 s{sLIM1}, 16, s{sROT3}')
    a(f's_and_b32 s{sT0}, s{sWAVE}, 1')
    a(f's_lshl_b32 s{sT0}, s{sT0}, 4')
    a(f's_add_u32 s{sT0}, s{sT0}, s{sROT3}')
    a(f's_lshl_b32 s{sT0}, s{sT0}, 6')
    a(f's_lshr_b32 s{sT1}, s{sWAVE}, 1')
    a(f's_add_u32 s{sT0}, s{sT0}, s{sT1}')
    a(f's_mul_i32 s{sW1A}, s{sT0}, 3584')
    a(f's_lshl_b32 s{sT0}, s{sCT3}, 7')
    a(f's_add_u32 s{sW1A}, s{sW1A}, s{sT0}')
    a(f's_sub_u32 s{sW1B}, s{sW1A}, {16 * 64 * 3584}')
    a(f's_mul_i32 s{sPR}, s{sWAVE}, {NSL * 4096}')
    a(f's_add_u32 s{sPR}, s{sPR}, {L_PR}')
    a(f's_lshl_b32 s{sWOB}, s{sWAVE}, 13')
    a(f's_lshl_b32 s{sT0}, s{sDT}, 7')
    a(f's_add_u32 s{sWOB}, s{sWOB}, s{sT0}')
    def w2_scalars(A, B, rot):
        return [f's_and_b32 s{sT1}, s{sDT}, 3', f's_mul_i32 s{rot}, s{sT1}, 7', f's_add_u32 s{rot}, s{rot}, 1', f's_lshr_b32 s{rot}, s{rot}, 1',
                f's_mul_i32 s{sT0}, s{sWAVE}, 14', f's_add_u32 s{sT0}, s{sT0}, s{rot}', f's_lshl_b32 s{A}, s{sT0}, 17',
                f's_lshl_b32 s{sT0}, s{sCT4}, 7', f's_add_u32 s{A}, s{A}, s{sT0}', f's_sub_u32 s{B}, s{A}, {14 << 17}']
    a(f'v_mov_b32 v{vT1}, {NEGBIG:#x}')
    a(f's_and_b32 s{sT0}, s{sRT}, 15')
    a(f's_cmp_eq_u32 s{sT0}, 0')
    a(f's_cselect_b32 s{sT0}, {NEGBIG:#x}, 0')
    for r in range(4):
        a(f'v_lshl_add_u32 v{vT0}, v{vG}, 2, {r}')
        a(f'v_sub_u32 v{vT0}, v{vC}, v{vT0}')
        a(f'v_cmp_gt_u32 vcc, 8, v{vT0}')
        a(f'v_cndmask_b32_e64 v{BC+r}, v{vT1}, 0, vcc')
        a(f'v_cmp_gt_i32 vcc, -8, v{vT0}')
        a(f'v_cndmask_b32_e64 v{BP+r}, v{vT1}, 0, vcc')
        a(f'v_min_f32 v{BP0+r}, s{sT0}, v{BP+r}')
        a(f'v_cmp_le_i32 vcc, 0, v{vT0}')
        if r % 2 == 0:
            a(f'v_cndmask_b32_e64 v{MC+r//2}, 0, -1, vcc')
            a(f'v_and_b32 v{MC+r//2}, 0xffff, v{MC+r//2}')
        else:
            a(f'v_cndmask_b32_e64 v{vT0}, 0, -1, vcc')
            a(f'v_and_b32 v{vT0}, 0xffff0000, v{vT0}')
            a(f'v_or_b32 v{MC+r//2}, v{MC+r//2}, v{vT0}')
            a(f'v_not_b32 v{MP+r//2}, v{MC+r//2}')
    a(f'v_lshrrev_b32 v{vT0}, 1, v{vL}')
    a(f'v_xor_b32 v{vT0}, v{vT0}, v{vG}')
    a(f'v_and_b32 v{vT0}, 3, v{vT0}')
    a(f'v_lshrrev_b32 v{vT1}, 3, v{vL}')
    a(f'v_lshlrev_b32 v{vWOD}, 10, v{vT1}')
    a(f'v_lshl_add_u32 v{vWOD}, v{vT0}, 5, v{vWOD}')
    a(f'v_and_b32 v{vT0}, 1, v{vL}')
    a(f'v_lshl_add_u32 v{vWOD}, v{vT0}, 4, v{vWOD}')
    def mk_q(base, K3):
        if K3:
            ops = [f'v_lshrrev_b32 v{base+1}, 3, v{vL}', f'v_mul_u32_u24 v{base}, 7168, v{base+1}']
            st = 8 * 7168 - 1024
        else:
            ops = [f'v_bfe_u32 v{base+1}, v{vL}, 3, 2', f'v_lshrrev_b32 v{base}, 5, v{vL}', f'v_lshl_add_u32 v{base}, v{base}, 4, v{base+1}',
                   f'v_lshlrev_b32 v{base}, 12, v{base}']
            st = 4 * 4096 - 1024
        ops += [f'v_lshrrev_b32 v{base+1}, 1, v{vL}', f'v_and_b32 v{base+2}, 1, v{vG}', f'v_xor_b32 v{base+1}, v{base+1}, v{base+2}',
                f'v_and_b32 v{base+1}, 3, v{base+1}', f'v_lshl_add_u32 v{base}, v{base+1}, 5, v{base}',
                f'v_and_b32 v{base+1}, 1, v{vL}', f'v_lshl_add_u32 v{base}, v{base+1}, 4, v{base}',
                f'v_xor_b32 v{base+1}, 64, v{base}', f'v_add_u32 v{base+2}, {2*st}, v{base}', f'v_add_u32 v{base+3}, {3*st}, v{base+1}', f'v_add_u32 v{base+1}, {st}, v{base+1}']
        return ops
    def mk_r(base, K3):
        ops = [f'v_bfe_u32 v{base+1}, v{vL}, 2, 2', f'v_lshl_add_u32 v{base+1}, v{vG}, 3, v{base+1}']
        ops += [f's_and_b32 s3, s{sWAVE}, 1', 's_lshl_b32 s3, s3, 1'] if K3 else [f's_mov_b32 s3, s{sWAVE}']
        ops += [f'v_lshlrev_b32 v{base}, 7, v{base+1}', f'v_bfe_u32 v{base+1}, v{vL}, 3, 2', f'v_xor_b32 v{base+1}, s3, v{base+1}',
                f'v_lshl_add_u32 v{base}, v{base+1}, 5, v{base}', f'v_and_b32 v{base+1}, 3, v{vL}', f'v_lshl_add_u32 v{base}, v{base+1}, 3, v{base}',
                f'v_add_u32 v{base}, s{sPR}, v{base}']
        ops += [f'v_xor_b32 v{base+t}, {32*t}, v{base}' for t in range(1, 4)]
        return ops
    slot_of = {}
    def dma_unit(K3, i, q, slot):
        slot_of[(K3, i)] = slot
        tag = ('u', K3, i)
        if K3:
            S = sW1
            pre = [f's_mul_i32 s3, s{sSTP1}, {i}', f's_cmp_gt_u32 s{sLIM1}, {i}', f's_cselect_b32 m0, s{sW1A}, s{sW1B}', 's_add_u32 s3, s3, m0', f's_add_u32 m0, s{sPR}, {slot*4096}']
        else:
            S = sW2
            pre = [f's_cmp_lt_u32 s{sROT4}, {14 - i}', f's_cselect_b32 s3, s{sW2A}, s{sW2B}', f's_add_u32 m0, s{sPR}, {slot*4096}', f's_add_u32 s3, s3, {i << 17}']
        ops = [('grp', pre + [('vm', tag, f'buffer_load_dwordx4 v{q}, {srd(S)}, s3 offen lds')])]
        for k in range(1, 4):
            ops.append(('vm', tag, f'buffer_load_dwordx4 v{q+k}, {srd(S)}, s3 offen offset:{1024*k} lds'))
        return ops
    def tr_unit(K3, i, r):
        slot = slot_of[(K3, i)]
        return [('ds', ('t', K3, i), f'ds_read_b64_tr_b16 {ar(16*i+4*t+2*h, 2)}, v{r+t} offset:{slot*4096 + 512*h}') for t in range(4) for h in range(2)]
    a(f's_cmp_lt_u32 s{sZ}, 7')
    a('s_cbranch_scc0 L_sk0')
    a.run(mk_q(vQ1, True))
    a.run(mk_r(vR1, True))
    a('s_branch L_sk1')
    a.label('L_sk0')
    for k in range(3): a(f's_mov_b32 s{sW1+k}, s{sW2+k}')
    a.run(w2_scalars(sW1A, sW1B, sROT3))
    a(f's_mov_b32 s{sSTP1}, {1 << 17}')
    a(f's_sub_u32 s{sLIM1}, 14, s{sROT3}')
    a.run(mk_q(vQ1, False))
    a.run(mk_r(vR1, False))
    a.label('L_sk1')
    a.stamp(1)
    take(OPT['PRE2'])
    def xb(i, s): return XB + 20 * (i % 3) + 4 * s
    def wb(i, R): return WB + 12 * (i % 2) + 4 * R
    def acc(R, s): return ACC + 20 * R + 4 * s
    def xreads(i):
        return [('ds', ('xr', i), f'ds_read_b128 {vr(xb(i,s),4)}, v{vXR1 if i & 1 else vXR} offset:{2048*(i>>1) + 16384*(s-1)}') for s in range(1, 5)] + \
               [('ds', ('xr', i), f'ds_read_b128 {vr(xb(i,0),4)}, v{vHR} offset:{1024*(i>>1) + 64*(i&1)}')]
    def trreads(i):
        slot = i % NW
        return [('ds', ('wr', i), f'ds_read_b64_tr_b16 {vr(wb(i,R)+2*h,2)}, v{vTR + slot//3} offset:{(slot%3)*12288 + R*1024 + 512*h}') for R in range(3) for h in range(2)]
    def mfmas(i):
        ops = []
        for R in range(3):
            for s in (1, 2, 3, 4, 0):
                x = vr(xb(i, s), 4); d = vr(acc(R, s), 4); w = vr(wb(i, R), 4)
                cin = '0' if i == 0 else d
                ops.append(f'v_mfma_f32_16x16x32_bf16 {d}, {w}, {x}, {cin}' if R < 2 else f'v_mfma_f32_16x16x32_bf16 {d}, {x}, {w}, {cin}')
        return ops
    jobs = {1: ('s', 0), 2: ('s', 1), 4: ('h', 0), 5: ('s', 2), 6: ('s', 3), 7: ('h', 1), 8: ('s', 4), 9: ('s', 5), 10: ('s', 6), 11: ('s', 7)}
    def job_reads(b):
        if b not in jobs: return []
        kind, p = jobs[b]
        if kind == 's':
            return [('ds', ('jr', b), f'ds_read_b128 {vr(SB+8*(b&1)+4*k,4)}, v{vSR1 if k else vSR} offset:{2048*p}') for k in range(2)]
        return [('ds', ('jr', b), f'ds_read_b128 {vr(SB+8*(b&1)+4*k,4)}, v{vHS} offset:{4096*p + 64*k}') for k in range(2)]
    def job_mfmas(b):
        if b not in jobs: return []
        kind, p = jobs[b]
        ops = []
        for k in range(2):
            x = vr(SB + 8 * (b & 1) + 4 * k, 4)
            first = p == 0 and k == 0
            if kind == 's':
                ops.append(f'v_mfma_f32_16x16x32_bf16 {vr(GS,4)}, {x}, {x}, {"0" if first else vr(GS,4)}')
                ops.append(f'v_mfma_f32_16x16x32_bf16 {vr(GO,4)}, {vr(ONE,4)}, {x}, {"0" if first else vr(GO,4)}')
            else:
                ops.append(f'v_mfma_f32_16x16x32_bf16 {vr(GH,4)}, {x}, {x}, {"0" if first else vr(GH,4)}')
        return ops
    def stat_finalize(s, q, tmp):
        return [f'v_mul_f32 v{s}, 0xbb000000, v{s}',
                f'v_mul_f32 v{tmp}, v{s}, v{s}',
                f'v_mul_f32 v{q}, 0x3b000000, v{q}',
                f'v_sub_f32 v{q}, v{q}, v{tmp}',
                f'v_max_f32 v{q}, 0, v{q}',
                f'v_add_f32 v{q}, 0x3727c5ac, v{q}',
                f'v_rsq_f32 v{q}, v{q}']
    def diag(G, dst):
        ops = []
        for k in range(1, 4):
            m = 0x11111111 << k
            ops.append(('grp', [f's_mov_b32 vcc_lo, {m:#x}', f's_mov_b32 vcc_hi, {m:#x}', f'v_cndmask_b32 v{dst}, v{G if k == 1 else dst}, v{G+k}, vcc']))
        return ops
    NM4, RS4, XR = XB + 20, XB + 40, SB
    HT = STC
    extra = {b: [] for b in range(16)}
    L4 = vE0
    extra[5] += [f'v_lshlrev_b32 v{L4}, 2, v{vL}', f's_lshl_b32 s{sT0}, s{sWAVE}, 9', f's_add_u32 s{sT0}, s{sT0}, {L_HP}', f'v_add_u32 v{vT0}, s{sT0}, v{L4}',
                 f'v_lshrrev_b32 v{vT1}, 2, v{vC}', f'v_lshl_add_u32 v{vT1}, v{vT1}, 4, v{vC}', f'v_lshlrev_b32 v{vT1}, 2, v{vT1}',
                 f'v_add_u32 v{vT1}, {L_NM}, v{vT1}', f'v_lshlrev_b32 v{vT2}, 2, v{vC}', f'v_add_u32 v{vT2}, {L_NM}, v{vT2}']
    extra[8] += diag(GH, GH + 1) + [('ds', 'hp', f'ds_write2st64_b32 v{vT0}, v{GH}, v{GH+1} offset0:0 offset1:1')]
    o0 = (L_HP - L_NM) // 256
    extra[9] += [('ds', 'hq', f'ds_read2st64_b32 {vr(HT+2*k,2)}, v{vT2} offset0:{o0+4*k} offset1:{o0+4*k+2}') for k in range(2)] + \
                [('ds', 'hq', f'ds_read2st64_b32 {vr(HT+4+2*k,2)}, v{vT1} offset0:{o0+4*k+1} offset1:{o0+4*k+3}') for k in range(2)]
    extra[10] += [f'v_add_f32 v{HT}, v{HT}, v{HT+1}', f'v_add_f32 v{HT+2}, v{HT+2}, v{HT+3}', f'v_add_f32 v{HT+4}, v{HT+4}, v{HT+5}', f'v_add_f32 v{HT+6}, v{HT+6}, v{HT+7}',
                  f'v_add_f32 v{HT}, v{HT}, v{HT+2}', f'v_add_f32 v{HT+4}, v{HT+4}, v{HT+6}']
    extra[11] += stat_finalize(HT, HT + 4, HT + 1) + [f'v_add_u32 v{vT0}, {L_NM}, v{L4}', ('ds', 'hw', f'ds_write2st64_b32 v{vT0}, v{HT}, v{HT+4} offset0:0 offset1:5')]
    extra[12] += diag(GS, GS + 1) + stat_finalize(GO, GS + 1, GS) + [f's_lshl_b32 s{sT0}, s{sWAVE}, 8', f'v_add_u32 v{vT0}, s{sT0}, v{vT0}',
                                                                    ('ds', 'hw', f'ds_write2st64_b32 v{vT0}, v{GO}, v{GS+1} offset0:1 offset1:6')]
    extra[13] += [('ds', 'st', f'ds_read2st64_b32 {vr(STC+2*s,2)}, v{vT1} offset0:{s} offset1:{5+s}') for s in range(5)] + \
                 [f'v_mul_u32_u24 v{vT0}, 80, v{vG}', f'v_add_u32 v{vT0}, {L_NM}, v{vT0}']
    extra[14] += [('ds', 'st', f'ds_read_b128 {vr(NM4+4*s,4)}, v{vT0} offset:{256*s}') for s in range(5)] + \
                 [('ds', 'st', f'ds_read_b128 {vr(XR+4*e,4)}, v{vRA+e}') for e in range(2)]
    extra[15] += [('ds', 'st', f'ds_read_b128 {vr(RS4+4*s,4)}, v{vT0} offset:{1280+256*s}') for s in range(5)]
    vmx = {b: [] for b in range(17)}
    b0 = 0
    for it in seq:
        vmx[b0] += it; b0 = 0
    vmx[0] += xloads(3)
    vmx[2] += hloads(1)
    for p in range(4, 8): vmx[p - 1] += xloads(p)
    if OPT['TWO']:
        vmx[0] += [('grp', [f'v_lshlrev_b32 v{vT3}, 10, v{vC}', f's_lshl2_add_u32 s3, s{sZ}, s{sWAVE}', f's_lshl_b32 s3, s3, 14', f's_lshl_b32 s{sCNT}, s{sDT}, 7', f's_add_u32 s3, s3, s{sCNT}',
                            ('vm', 'tw', f'buffer_load_dword v{vDUM}, v{vT3}, {srd(sWO)}, s3 offen')])]
    clr = [[f's_lshl2_add_u32 s3, s{sRT}, s{sWAVE}', 's_lshl_b32 s3, s3, 3', f's_add_u32 s3, s3, s{sDT}', 's_lshl_b32 s3, s3, 11'],
           [f's_lshl_b32 s3, s{sDT}, 5', f's_add_u32 s3, s3, s{sRT}', f's_lshl2_add_u32 s3, s3, s{sWAVE}', 's_lshl_b32 s3, s3, 11', f's_add_u32 s3, s3, {WS_HN:#x}'],
           [f's_mul_i32 s3, s{sDT}, 28', f's_add_u32 s3, s3, s{sCT3}', f's_lshl2_add_u32 s3, s3, s{sWAVE}', 's_lshl_b32 s3, s3, 11', f's_add_u32 s3, s3, {WS_UF:#x}',
            f's_cmp_lt_u32 s{sZ}, 7', f's_cselect_b32 s{sCNT}, 0, {WS_DUM - WS_UF:#x}', f's_add_u32 s3, s3, s{sCNT}']]
    for k in range(3 if OPT['CLB'] >= 0 else 0):
        vmx[OPT['CLB'] + 2 * k] += [('grp', clr[k] + [('vm', 'clr', f'buffer_store_dwordx4 {vr(SEN,4)}, v{vL16}, {srd(sWS)}, s3 offen sc1')]),
                                    ('vm', 'clr', f'buffer_store_dwordx4 {vr(SEN,4)}, v{vL16}, {srd(sWS)}, s3 offen offset:1024 sc1')]
    for k, b in enumerate((OPT['T1A'], OPT['T1B'])):
        if b < 0: continue
        vmx[b] += [('grp', [f's_lshl_b32 s3, s{sROT3}, 5', f's_add_u32 s3, s3, {64*k}', f'v_add_u32 v{vT3}, s3, v{vL}', f'v_and_b32 v{vT3}, 511, v{vT3}',
                            f's_add_u32 s3, s{sROT3}, s{sLIM1}', 's_lshl_b32 s3, s3, 5', 's_sub_u32 s3, s3, 1', f'v_min_u32 v{vT3}, s3, v{vT3}',
                            f's_lshr_b32 s3, s{sSTP1}, 5', f'v_mul_u32_u24 v{vT3}, s3, v{vT3}', f's_mul_i32 s3, s{sSTP1}, s{sROT3}', f's_sub_u32 s3, s{sW1A}, s3',
                            ('vm', 'tw', f'buffer_load_dword v{vDUM}, v{vT3}, {srd(sW1)}, s3 offen')])]
    need_x = {2: [('x', 2)], 4: [('x', 3)], 6: [('x', 4), ('h', 1)], 8: [('x', 5)], 9: [('x', 6)], 10: [('x', 7)]}
    a.stamp(1)
    a.wait(vm=[('w', 1), ('x', 1)])
    a('s_waitcnt lgkmcnt(0)')
    a('s_barrier')
    a.stamp(-1)
    a.run(trreads(0) + xreads(0) + xreads(1))
    a.wait(ds=[('xr', 0)])
    for i in range(16):
        rd = []
        if i + 1 < 16: rd += trreads(i + 1) + job_reads(i + 1)
        if i + 2 < 16: rd += xreads(i + 2)
        ld = []
        if i == 1: ld += wloads(NW)
        if i == 10: ld += [f's_lshl_b32 s{sLW}, s{sWAVE}, 10']
        if i >= 1: ld += wloads(i + NW)
        ld += vmx[i]
        ex = extra[i]
        mm = weave(mfmas(i), job_mfmas(i))
        fill = weave(rd, ld) if rd else ld
        fill = mix(fill, ex)
        fl = []
        for o in fill:
            if not isinstance(o, str) and o[0] == 'grp' and any(isinstance(x, str) and ('exec' in x or 's_cselect' in x) for x in o[1]): fl.append(o)
            else: fl += flat([o])
        a.run(weave(mm, fl, lead=1))
        if i < 15:
            wv = [('w', i + 2)] if i + 2 < 16 else []
            wv += need_x.get(i + 1, [])
            a.wait(vm=wv, ds=[('wr', i + 1), ('jr', i + 1), ('xr', i + 1), 'hp', 'hq', 'hw'])
            a('s_barrier')
            if i in (1, 3, 5, 7, 9, 11, 13): a.stamp(1)
    a.wait_all(vm=False)
    a('s_barrier')
    a.stamp(-1)
    a(f's_load_dword s{sNON}, s[{sDBG}:{sDBG+1}], 0')
    a.run(vmx[16])
    UA, UB, UC = OPT['UA'], OPT['UB'], OPT['UC']
    assert UA + UB <= NSL and UC <= NSL
    for u in range(UA): a.run(dma_unit(True, u, vQ1, u))
    SC, SP, MX, MT, PM, PB, OUT = XB, SB + 8, ACC, ACC + 4, ACC + 8, ACC + 20, ACC + 36
    CW, CWV = 32, 40
    for r in range(4):
        a(f'v_mov_b32_dpp v{CW+4+r}, v{acc(1,0)+r} row_newbcast:0 row_mask:0xf bank_mask:0xf')
    for r in range(4):
        a(f'v_mov_b32_dpp v{CW+r}, v{acc(0,0)+r} row_newbcast:0 row_mask:0xf bank_mask:0xf')
    def epi_k(s):
        src, st, dst = acc(1, s), STC + 2 * s, KP + 2 * s
        return [[f'v_pk_fma_f32 {vr(src+2*h,2)}, {vr(CW+4+2*h,2)}, {vr(st,2)}, {vr(src+2*h,2)} op_sel_hi:[1,0,1]' for h in range(2)],
                [f'v_pk_mul_f32 {vr(src+2*h,2)}, {vr(src+2*h,2)}, {vr(st,2)} op_sel:[0,1] op_sel_hi:[1,1]' for h in range(2)],
                [f'v_cvt_pk_bf16_f32 v{dst+h}, v{src+2*h}, v{src+2*h+1}' for h in range(2)]]
    def epi_q(s):
        src, st, dst = acc(0, s), STC + 2 * s, QP + 2 * (s - 1)
        return [[f'v_pk_fma_f32 {vr(src+2*h,2)}, {vr(CW+2*h,2)}, {vr(st,2)}, {vr(src+2*h,2)} op_sel_hi:[1,0,1]' for h in range(2)],
                [],
                [f'v_cvt_pk_bf16_f32 v{dst+h}, v{src+2*h}, v{src+2*h+1}' for h in range(2)]]
    def epi_v(s):
        src, dst = acc(2, s), VP + 2 * s
        return [[f'v_pk_fma_f32 {vr(src+2*h,2)}, {vr(NM4+4*s+2*h,2)}, {vr(CWV,2)}, {vr(src+2*h,2)} op_sel_hi:[1,0,1]' for h in range(2)],
                [f'v_pk_mul_f32 {vr(src+2*h,2)}, {vr(src+2*h,2)}, {vr(RS4+4*s+2*h,2)}' for h in range(2)],
                [f'v_cvt_pk_bf16_f32 v{dst+h}, v{src+2*h}, v{src+2*h+1}' for h in range(2)]]
    E = [epi_k(s) for s in range(5)] + [epi_q(s) for s in range(1, 5)]
    a.wait(vm=['clr'])
    for ph in range(3):
        for e in E: a.run(e[ph])
    a(f'v_mov_b32 v{CWV}, v{acc(2,0)}')
    a(f'v_mov_b32 v{CWV+1}, v{acc(2,0)}')
    smm = []
    for u in range(4):
        q = vr(QP + 2 * u, 2)
        smm.append(f'v_mfma_f32_16x16x16_bf16 {vr(SC+4*u,4)}, {vr(KP+2*(u+1),2)}, {q}, {vr(BC,4)}')
        smm.append(f'v_mfma_f32_16x16x16_bf16 {vr(SP+4*u,4)}, {vr(KP+2*u,2)}, {q}, {vr(BP0 if u == 0 else BP,4)}')
    vv = [f'v_permlane16_swap_b32 v{CWV}, v{CWV+1}', f's_mov_b32 s{sT0}, {f2h(0.25 * 1.4426950408889634)}']
    vv += [f'v_mul_f32 v{STC+2*s+1}, s{sT0}, v{STC+2*s+1}' for s in range(1, 5)]
    E = [epi_v(s) for s in range(5)]
    for ph in range(3):
        for e in E: vv += e[ph]
    a.run(weave(smm, vv[:16]) + vv[16:])
    for u in range(4):
        for r in range(4):
            a(f'v_max_f32 v{SC+4*u+r}, v{SC+4*u+r}, v{SP+4*u+r}')
    for u in range(4):
        a(f'v_max3_f32 v{MX+u}, v{SC+4*u}, v{SC+4*u+1}, v{SC+4*u+2}')
    for u in range(4):
        a(f'v_max_f32 v{MX+u}, v{MX+u}, v{SC+4*u+3}')
    for sw in ('v_permlane16_swap_b32', 'v_permlane32_swap_b32'):
        for u in range(4): a(f'v_mov_b32 v{MT+u}, v{MX+u}')
        for u in range(4): a(f'{sw} v{MX+u}, v{MT+u}')
        for u in range(4): a(f'v_max_f32 v{MX+u}, v{MX+u}, v{MT+u}')
    for u in range(4):
        a(f'v_mul_f32 v{MX+u}, v{STC+2*u+3}, v{MX+u}')
    for u in range(4):
        for r in range(4):
            a(f'v_fma_f32 v{SC+4*u+r}, v{SC+4*u+r}, v{STC+2*u+3}, -v{MX+u}')
    for u in range(4):
        for r in range(4):
            a(f'v_exp_f32 v{SC+4*u+r}, v{SC+4*u+r}')
    for u in range(4):
        for h in range(2):
            a(f'v_cvt_pk_bf16_f32 v{PM+2*u+h}, v{SC+4*u+2*h}, v{SC+4*u+2*h+1}')
        for h in range(2):
            a(f'v_and_b32 v{PB+4*u+h}, v{PM+2*u+h}, v{MP+h}')
            a(f'v_and_b32 v{PB+4*u+2+h}, v{PM+2*u+h}, v{MC+h}')
    pm = []
    for u in range(4):
        pm.append(f'v_mfma_f32_16x16x16_bf16 {vr(SP+4*u,4)}, {vr(ONE,2)}, {vr(PM+2*u,2)}, 0')
    for u in range(4):
        pm.append(f'v_mfma_f32_16x16x32_bf16 {vr(SC+4*u,4)}, {vr(VP+2*u,4)}, {vr(PB+4*u,4)}, 0')
    sa = [f's_lshl2_add_u32 s{sT0}, s{sDT}, s{sWAVE}', f's_lshl_b32 s{sT2}, s{sCT4}, 7', f's_add_u32 s{sT2}, s{sT2}, s{sDT}', f's_lshl_b32 s{sT2}, s{sT2}, 2',
          f's_add_u32 s{sT2}, s{sT2}, {WS_F1:#x}', f's_lshl_b32 s{sT0}, s{sT0}, 9', f's_lshl_b32 s{sT1}, s{sRT}, 16', f's_add_u32 s{sT0}, s{sT0}, s{sT1}',
          f's_add_u32 s{sT1}, s{sT0}, 32768', f'v_lshrrev_b32 v{vT0}, 5, v{vL}', f'v_mul_u32_u24 v{vT0}, {16384 - 512}, v{vT0}', f'v_add_u32 v{vT0}, v{vT0}, v{vL16}',
          f'v_lshrrev_b32 v{vT3}, 2, v{vL}', f'v_and_b32 v{vT1}, 3, v{vL}', f'v_lshlrev_b32 v{vT1}, 7, v{vT1}', f'v_lshl_add_u32 v{vT3}, v{vT3}, 14, v{vT1}']
    a.run(weave(pm, sa))
    a('s_waitcnt lgkmcnt(0)')
    a(f's_cmp_lg_u32 s{sNON}, 0')
    a('s_cbranch_scc0 L_non')
    a.label('L_nonok')
    tail.append(['L_non:', f's_load_dword s{sNON}, s[{sDBG}:{sDBG+1}], 0 glc', 's_waitcnt lgkmcnt(0)', f's_cmp_lg_u32 s{sNON}, 0', 's_cbranch_scc1 L_nonok',
                 f's_sub_u32 s{sBUD}, s{sBUD}, 1', 's_cbranch_scc0 L_non', f's_mov_b32 s{sBUD}, 0', 's_branch L_nonok'])
    a(f's_mov_b32 s{sNON+1}, s{sNON}')
    a(f'v_mov_b32 v{vT2}, s{sNON}')
    for u in range(4):
        a(f'v_rcp_f32 v{SP+4*u}, v{SP+4*u}')
    for u in range(4):
        for h in range(2):
            a(f'v_pk_mul_f32 {vr(SC+4*u+2*h,2)}, {vr(SC+4*u+2*h,2)}, {vr(SP+4*u,2)} op_sel_hi:[1,0]')
    for u in range(4):
        for h in range(2):
            a(f'v_cvt_pk_bf16_f32 v{OUT+2*u+h}, v{SC+4*u+2*h}, v{SC+4*u+2*h+1}')
    for e in range(2):
        for h in range(2):
            a(f'v_permlane32_swap_b32 v{OUT+4*e+h}, v{OUT+4*e+2+h}')
    for e in range(2):
        a.vm('ost', f'buffer_store_dwordx4 {vr(OUT+4*e,4)}, v{vT0}, {srd(sWS)}, s{[sT0,sT1][e]} offen sc1')
    nflag = [0]
    def flag(soff, barrier=True):
        nflag[0] += 1
        if barrier: a('s_barrier')
        a(f's_cmp_lg_u32 s{sWAVE}, 0')
        a(f's_cbranch_scc1 L_nf{nflag[0]}')
        a('s_mov_b32 exec_hi, 0')
        a(f'buffer_store_dword v{vT2}, v{vT3}, {srd(sWS)}, s{soff} offen sc1')
        a('s_mov_b32 exec_hi, -1')
        a.label(f'L_nf{nflag[0]}')
    flag(sT2)
    a.stamp(0, 1)
    pre = []
    for u in range(UA, UA + UB): pre += dma_unit(True, u, vQ1, u)
    ID, O, ACC2, S2, PK2 = 20, 64, 128, 144, 152
    vHO, vSO, vTW = 9, 10, 12
    cst = [f'v_bfe_u32 v{vT0}, v{vL}, 2, 3', f'v_lshrrev_b32 v{vT1}, 5, v{vL}', f'v_lshl_add_u32 v{vT0}, v{vT1}, 4, v{vT0}', f'v_lshlrev_b32 v{vTW}, 7, v{vT0}',
           f'v_bfe_u32 v{vT0}, v{vL}, 3, 2', f'v_lshl_add_u32 v{vTW}, v{vT0}, 5, v{vTW}', f'v_and_b32 v{vT0}, 3, v{vL}', f'v_lshl_add_u32 v{vTW}, v{vT0}, 3, v{vTW}']
    cst += [f'v_xor_b32 v{vTW+t}, {32*t}, v{vTW}' for t in range(1, 4)]
    cst += [f'v_and_b32 v{vT0}, 1, v{vC}', f'v_lshlrev_b32 v{vT0}, 4, v{vT0}', f'v_mov_b32 v{vT1}, 0x3f80', f'v_lshlrev_b32 v{vT0}, v{vT0}, v{vT1}',
            f'v_lshrrev_b32 v{vT1}, 1, v{vC}', f'v_lshlrev_b32 v{vE0}, 2, v{vG}', f'v_sub_u32 v{vT1}, v{vT1}, v{vE0}']
    for b in range(2):
        for k in range(4):
            cst += [f'v_cmp_eq_i32 vcc, {k - 8*b}, v{vT1}', f'v_cndmask_b32 v{ID+4*b+k}, 0, v{vT0}, vcc']
    cst += [f'v_and_b32 v{vT0}, 1, v{vG}', f'v_lshlrev_b32 v{vHO}, 10, v{vT0}', f'v_lshrrev_b32 v{vT0}, 1, v{vG}', f'v_lshl_add_u32 v{vHO}, v{vT0}, 8, v{vHO}',
            f'v_lshl_add_u32 v{vHO}, v{vC}, 4, v{vHO}',
            f'v_lshrrev_b32 v{vT0}, 2, v{vC}', f'v_lshlrev_b32 v{vSO}, 8, v{vT0}', f'v_lshl_add_u32 v{vSO}, v{vG}, 6, v{vSO}', f'v_and_b32 v{vT0}, 3, v{vC}',
            f'v_lshl_add_u32 v{vSO}, v{vT0}, 4, v{vSO}']
    cst += [f'v_mfma_f32_16x16x32_bf16 {vr(ACC2+4*t,4)}, {vr(XR+4*(t>>1),4)}, {vr(ID+4*(t&1),4)}, 0' for t in range(4)]
    sBLK = sXB
    sFL = sLW
    cst += [f's_lshl_b32 s{sFL}, s{sDT}, 5', f's_add_u32 s{sFL}, s{sFL}, s{sCT4}', f's_lshl2_add_u32 s{sFL}, s{sFL}, s{sWAVE}', f's_lshl_b32 s{sFL}, s{sFL}, 7',
            f's_add_u32 s{sFL}, s{sFL}, {WS_F1:#x}', f'v_lshlrev_b32 v{vT3}, 9, v{vL}', f's_lshl2_add_u32 s{sBLK}, s{sRT}, s{sWAVE}', f's_lshl_b32 s{sT1}, s{sBLK}, 14']
    a.run(pre[:4] + mix(cst, pre[4:]))
    a.wait(vm=['wo'])
    a('s_barrier')
    def wf2(i): return [32, 48, 176, 192, 208, 224][i % 6]
    def tr2(i):
        return [('ds', ('w2r', i), f'ds_read_b64_tr_b16 {vr(wf2(i)+4*t+2*h,2)}, v{vTW+t} offset:{4096*i+1024*h}') for t in range(4) for h in range(2)]
    for i in range(5): a.run(tr2(i))
    def poll(lbl, soff):
        a.label(lbl)
        a(f's_load_dwordx8 s[{sPOLL}:{sPOLL+7}], s[{sWS}:{sWS+1}], s{soff} glc')
        a.wait_all(vm=False)
        for k in range(4): a(f's_xor_b64 s[{sPOLL+2*k}:{sPOLL+2*k+1}], s[{sPOLL+2*k}:{sPOLL+2*k+1}], s[{sNON}:{sNON+1}]')
        a(f's_or_b64 s[{sPOLL}:{sPOLL+1}], s[{sPOLL}:{sPOLL+1}], s[{sPOLL+2}:{sPOLL+3}]')
        a(f's_or_b64 s[{sPOLL+4}:{sPOLL+5}], s[{sPOLL+4}:{sPOLL+5}], s[{sPOLL+6}:{sPOLL+7}]')
        a(f's_or_b64 s[{sPOLL}:{sPOLL+1}], s[{sPOLL}:{sPOLL+1}], s[{sPOLL+4}:{sPOLL+5}]')
        a(f's_cbranch_scc0 {lbl}_ok')
        a(f's_sub_u32 s{sBUD}, s{sBUD}, 1')
        a(f's_cbranch_scc0 {lbl}')
        a(f's_mov_b32 s{sBUD}, 0')
        a.label(lbl + '_ok')
    def check(lbl, regs, reload):
        ck = [f'v_max3_u32 v{vCK}, v{regs[0]}, v{regs[1]}, v{regs[2]}', f'v_max_u32 v{vCK}, v{vCK}, v{regs[3]}', f'v_cmp_eq_u32 vcc, -1, v{vCK}']
        tail.append([lbl + ':', f's_sub_u32 s{sBUD}, s{sBUD}, 1', f's_cbranch_scc1 {lbl}_x'] + reload + ['s_waitcnt vmcnt(0)'] + ck +
                    [f's_cbranch_vccnz {lbl}', f's_branch {lbl}_b', lbl + '_x:', f's_mov_b32 s{sBUD}, 0', f's_branch {lbl}_b'])
        return ck + [('grp', [f's_cbranch_vccnz {lbl}', ('label', lbl + '_b')])]
    poll('L_p1', sFL)
    a.stamp()
    sOB = sWB
    a(f's_mov_b32 s{sOB}, s{sT1}')
    def oload(i, so): return f'buffer_load_dwordx4 {vr(O+4*i,4)}, v{vL16}, {srd(sWS)}, s{so} offen offset:{1024*(i&3)} sc1'
    for c in range(4):
        if c: a(f's_add_u32 s{sT1}, s{sT1}, 4096')
        for i in range(4): a.vm(('o', 4*c+i), oload(4*c+i, sT1))
    U2 = UA + UB
    if U2: a.wait(vm=[('u', True, U2 - 1)])
    for u in range(U2): a.run(tr_unit(True, u, vR1))
    a(f's_lshl_b32 s{sT0}, s{sDT}, 18')
    a(f's_lshr_b32 s{sT1}, s{sBLK}, 1')
    a(f's_lshl_b32 s{sT1}, s{sT1}, 12')
    a(f's_add_u32 s{sT0}, s{sT0}, s{sT1}')
    a(f's_and_b32 s{sT1}, s{sBLK}, 1')
    a(f's_lshl_b32 s{sT1}, s{sT1}, 9')
    a(f's_add_u32 s{sT0}, s{sT0}, s{sT1}')
    a(f's_add_u32 s{sT0}, s{sT0}, {WS_HF:#x}')
    a(f's_lshl_b32 s{sT1}, s{sBLK}, 11')
    a(f's_add_u32 s{sT1}, s{sT1}, {WS_SX:#x}')
    a(f's_lshl_b32 s{sT2}, s{sDT}, 8')
    a(f's_add_u32 s{sT2}, s{sT2}, s{sT1}')
    a(f'v_lshlrev_b32 v{vT0}, 2, v{vL}')
    def ocheck(c):
        return [('wvm', ('o', 4*c+3))] + check(f'L_ro{c}', [O + 16*c + 4*i for i in range(4)], [f's_add_u32 s{sCNT}, s{sOB}, {4096*c}'] + [oload(4*c+i, sCNT) for i in range(4)])
    ucl = []
    for k, u in enumerate(range(U2, U2 + UC)):
        sl = (U2 + k) % NSL
        ucl += [('grp', dma_unit(True, u, vQ1, sl))]
    a.wait_all(vm=False)
    a.run(ocheck(0))
    upos = {1 + (k * 14) // max(1, len(ucl)): o for k, o in enumerate(ucl)}
    for i in range(16):
        a.wait(ds=[('w2r', i)])
        mm = [f'v_mfma_f32_16x16x32_bf16 {vr(ACC2+4*t,4)}, {vr(O+4*i,4)}, {vr(wf2(i)+4*t,4)}, {vr(ACC2+4*t,4)}' for t in range(4)]
        f = tr2(i + 5) if i + 5 < 16 else []
        if i in upos: f = mix(f, flat([upos[i]]))
        if i % 4 == 3 and i < 12: f = f + ocheck(i // 4 + 1)
        a.run(weave(mm, f))
    a.stamp()
    S = S2
    for r in range(4):
        a(f'v_add_f32 v{S+r}, v{ACC2+r}, v{ACC2+4+r}')
        a(f'v_mul_f32 v{S+4+r}, v{ACC2+r}, v{ACC2+r}')
    for t in range(1, 4):
        for r in range(4):
            if t > 1: a(f'v_add_f32 v{S+r}, v{S+r}, v{ACC2+4*t+r}')
            a(f'v_fmac_f32 v{S+4+r}, v{ACC2+4*t+r}, v{ACC2+4*t+r}')
    for base in (S, S + 4):
        for i in range(2):
            a(f'v_add_f32_dpp v{base+i}, v{base+i}, v{base+i} row_ror:8 row_mask:0xf bank_mask:0x3')
    for base in (S, S + 4):
        for i in range(2):
            a(f'v_add_f32_dpp v{base+i}, v{base+i+2}, v{base+i+2} row_ror:8 row_mask:0xf bank_mask:0xc')
    for base in (S, S + 4):
        a(f'v_add_f32_dpp v{base}, v{base}, v{base} row_half_mirror row_mask:0xf bank_mask:0x5')
    for base in (S, S + 4):
        a(f'v_add_f32_dpp v{base}, v{base+1}, v{base+1} row_half_mirror row_mask:0xf bank_mask:0xa')
    for qp in ('[1,0,3,2]', '[2,3,0,1]'):
        for base in (S, S + 4):
            a(f'v_add_f32_dpp v{base}, v{base}, v{base} quad_perm:{qp} row_mask:0xf bank_mask:0xf')
    a('s_mov_b32 vcc_lo, 0xaaaaaaaa')
    a('s_mov_b32 vcc_hi, 0xaaaaaaaa')
    a(f'v_cndmask_b32 v{S}, v{S}, v{S+4}, vcc')
    a('s_mov_b32 vcc_lo, 0xcccccccc')
    a('s_mov_b32 vcc_hi, 0xcccccccc')
    a(f'v_cndmask_b32 v{S}, v{S}, v{vT2}, vcc')
    a.vm('sx', f'buffer_store_dword v{S}, v{vT0}, {srd(sWS)}, s{sT2} offen sc1')
    def pack_store(tag, soff):
        for t in range(4):
            for h in range(2):
                a(f'v_cvt_pk_bf16_f32 v{PK2+2*t+h}, v{ACC2+4*t+2*h}, v{ACC2+4*t+2*h+1}')
        for e in range(2):
            for h in range(2):
                a(f'v_permlane16_swap_b32 v{PK2+4*e+h}, v{PK2+4*e+2+h}')
        for e in range(2):
            a.vm(tag, f'buffer_store_dwordx4 {vr(PK2+4*e,4)}, v{vHO}, {srd(sWS)}, s{soff} offen offset:{2048*e} sc1')
    pack_store('hst', sT0)
    PK2 = PK2 + 8
    a(f's_sub_u32 s{sT0}, s{sT0}, {WS_HF - WS_HN:#x}')
    a(f's_lshl_b32 s{sT2}, s{sDT}, 7')
    a(f's_lshr_b32 s3, s{sRT}, 3')
    a(f's_add_u32 s{sT2}, s{sT2}, s3')
    a(f's_lshl_b32 s{sT2}, s{sT2}, 5')
    a(f's_and_b32 s3, s{sRT}, 7')
    a(f's_add_u32 s{sT2}, s{sT2}, s3')
    a(f's_lshl_b32 s{sT2}, s{sT2}, 2')
    a(f's_add_u32 s{sT2}, s{sT2}, {WS_F2:#x}')
    U3 = U2 + UC
    if UC: a.wait(vm=[('u', True, U3 - 1)])
    for u in range(U2, U3): a.run(tr_unit(True, u, vR1))
    a.stamp()
    R0 = O
    a.label('L_sx')
    for e in range(2):
        a(f'buffer_load_dwordx4 {vr(R0+4*e,4)}, v{vSO}, {srd(sWS)}, s{sT1} offen offset:{1024*e} sc1')
    a.wait_all(ds=False)
    a(f'v_xor_b32 v{R0+2}, s{sNON}, v{R0+2}')
    a(f'v_xor_b32 v{R0+6}, s{sNON}, v{R0+6}')
    a(f'v_add_f32 v{R0}, v{R0}, v{R0+4}')
    a(f'v_or_b32 v{R0+2}, v{R0+2}, v{R0+6}')
    a(f'v_add_f32 v{R0+1}, v{R0+1}, v{R0+5}')
    a(f'v_cmp_ne_u32 vcc, 0, v{R0+2}')
    a('s_cbranch_vccz L_sx_ok')
    a(f's_sub_u32 s{sBUD}, s{sBUD}, 1')
    a('s_cbranch_scc0 L_sx')
    a(f's_mov_b32 s{sBUD}, 0')
    a.label('L_sx_ok')
    a.stamp()
    for ror in (4, 8):
        for k in range(2):
            a(f'v_add_f32_dpp v{R0+k}, v{R0+k}, v{R0+k} row_ror:{ror} row_mask:0xf bank_mask:0xf')
    s_, q_, t_ = R0, R0 + 1, R0 + 2
    a(f's_mov_b32 s{sT1}, 0x3727c5ac')
    a(f'v_mul_f32 v{s_}, 0xbb000000, v{s_}')
    a(f'v_mul_f32 v{q_}, 0x3b000000, v{q_}')
    a(f'v_fma_f32 v{q_}, -v{s_}, v{s_}, v{q_}')
    a(f'v_max_f32 v{q_}, 0, v{q_}')
    a(f'v_add_f32 v{t_}, s{sT1}, v{q_}')
    a(f'v_rsq_f32 v{t_}, v{t_}')
    a(f'v_mul_f32 v{q_}, v{q_}, v{t_}')
    a(f'v_fma_f32 v{q_}, v{q_}, v{t_}, s{sT1}')
    a(f'v_rsq_f32 v{q_}, v{q_}')
    a(f'v_mul_f32 v{t_}, v{t_}, v{q_}')
    a(f'v_mul_f32 v{s_}, v{s_}, v{t_}')
    RR, BB = R0 + 4, R0 + 8
    for r in range(4):
        a(f'v_mov_b32_dpp v{RR+r}, v{t_} quad_perm:[{r},{r},{r},{r}] row_mask:0xf bank_mask:0xf')
    for r in range(4):
        a(f'v_mov_b32_dpp v{BB+r}, v{s_} quad_perm:[{r},{r},{r},{r}] row_mask:0xf bank_mask:0xf')
    for t in range(4):
        for h in range(2):
            a(f'v_pk_fma_f32 {vr(ACC2+4*t+2*h,2)}, {vr(ACC2+4*t+2*h,2)}, {vr(RR+2*h,2)}, {vr(BB+2*h,2)}')
    pack_store('hst', sT0)
    a.wait_all(vm=False)
    flag(sT2)
    a.stamp()
    vQ2, vR2 = 24, 28
    vA0, vA1 = 17, 18
    BI4 = 20
    OWN, OTH, ST, H = 32, 48, 96, 128
    nrest = 16 - U3
    assert nrest + OPT['W2PRE'] <= NSL
    pre = []
    for k, u in enumerate(range(U3, 16)): pre += dma_unit(True, u, vQ1, k)
    a.run(mix(pre, w2_scalars(sW2A, sW2B, sROT4) + flat(mk_q(vQ2, False))) if False else pre + w2_scalars(sW2A, sW2B, sROT4) + mk_q(vQ2, False) + mk_r(vR2, False))
    a(f's_cmp_ge_u32 s{sZ}, 7')
    a('s_cbranch_scc1 L_skip3')
    save_vm = list(a.vmq)
    w2_issued = 0
    w2slot = lambda k: (nrest + k) % NSL
    for k in range(OPT['W2PRE']):
        a.run(dma_unit(False, k, vQ2, w2slot(k))); w2_issued += 1
    a(f's_lshr_b32 s{sT0}, s{sWAVE}, 1')
    a(f's_lshl_b32 s{sT0}, s{sT0}, 11')
    a(f'v_or_b32 v{vA0}, s{sT0}, v{vL16}')
    a(f'v_xor_b32 v{vA1}, 2048, v{vA0}')
    a(f's_lshl_b32 s{sT0}, s{sCT3}, 7')
    a(f's_and_b32 s{sT1}, s{sWAVE}, 1')
    a(f's_lshl_b32 s{sT1}, s{sT1}, 6')
    a(f's_add_u32 s{sT0}, s{sT0}, s{sT1}')
    a(f'v_lshlrev_b32 v{vT0}, 3, v{vG}')
    for i in range(2):
        a.vm('b1', f'buffer_load_dwordx2 {vr(BI4+2*i,2)}, v{vT0}, {srd(sB1)}, s{sT0} offen offset:{32*i}')
    sHA, sHB = sXB, sWB
    a(f's_lshl4_add_u32 s{sT0}, s{sWAVE}, s{sROT3}')
    a(f's_lshl_b32 s{sHA}, s{sT0}, 12')
    a(f's_lshl_b32 s{sT0}, s{sDT}, 18')
    a(f's_add_u32 s{sHA}, s{sHA}, s{sT0}')
    a(f's_add_u32 s{sHA}, s{sHA}, {WS_HN:#x}')
    a(f's_sub_u32 s{sHB}, s{sHA}, 65536')
    vRD = 9
    red_addr = [f's_mul_i32 s{sT0}, s{sWAVE}, 12288']
    for q in range(1, 4):
        red_addr += [f's_xor_b32 s{sT1}, s{sWAVE}, {q}', f's_mul_i32 s{sT1}, s{sT1}, 12288', f'v_add_u32 v{vRD+q-1}, s{sT1}, v{vL16}']
    red_addr += [f'v_add_u32 v{vRD+3}, s{sT0}, v{vL16}']
    a.run(red_addr)
    a(f's_add_u32 s{sT0}, s{sFL}, 32')
    poll('L_p2', sT0)
    a.stamp()
    def hreg(i, t): return H + 16 * (i % 7) + 4 * t
    def aload_txt(K3, i, t, so):
        if K3: return f'buffer_load_dwordx4 {vr(hreg(i,t),4)}, v{vA1 if t >> 1 else vA0}, {srd(sWS)}, s{so} offen offset:{1024*(t&1)} sc1'
        return f'buffer_load_dwordx4 {vr(hreg(i,t),4)}, v{vL16}, {srd(sWS)}, s{so} offen offset:{1024*t} sc1'
    def aaddr(K3, i, so):
        N = 16 if K3 else 14
        rot = sROT3 if K3 else sROT4
        return [f's_cmp_lt_u32 s{rot}, {N - i}', f's_cselect_b32 s{so}, s{sHA}, s{sHB}', f's_add_u32 s{so}, s{so}, {i*4096}']
    def aloads(K3, i):
        return [('grp', (aaddr(K3, i, sCNT) if t == 0 else []) + [('vm', ('a', K3, i), aload_txt(K3, i, t, sCNT))]) for t in range(4)]
    def acheck(K3, i):
        return [('wvm', ('a', K3, i))] + check(f'L_ra{int(K3)}_{i}', [hreg(i, t) for t in range(4)], aaddr(K3, i, sPOLL) + [aload_txt(K3, i, t, sPOLL) for t in range(4)])
    def acc34(K3, tw, ta):
        q, k = ((tw >> 1) + 2 * (ta >> 1), (tw & 1) + 2 * (ta & 1)) if K3 else (tw, ta)
        return q, vr(OWN + 16 * q + 4 * k, 4)
    def mm34(K3, i, quad=None):
        mm = []
        for ta in range(4):
            for tw in range(4):
                q, d = acc34(K3, tw, ta)
                if quad is not None and q != quad: continue
                A, B = (ar(16*i+4*tw, 4), vr(hreg(i, ta), 4)) if K3 else (vr(hreg(i, ta), 4), ar(16*i+4*tw, 4))
                mm.append(f'v_mfma_f32_16x16x32_bf16 {d}, {A}, {B}, {"0" if i == 0 else d}')
        return mm
    def red_w(q): return [('ds', 'rw', f'ds_write_b128 v{vRD+q-1}, {vr(OWN+16*q+4*k,4)} offset:{4096*(q-1)+1024*k}') for k in range(4)]
    def gemm34(K3, N, fills, first):
        NQ, D0 = OPT['NQ'], OPT['D0']
        for i in range(D0): a.run(aloads(K3, i))
        a.run(first)
        rest = [o for i in range(D0, N) for o in aloads(K3, i)]
        nb = N - NQ - 1
        a.run(acheck(K3, 0))
        done = 0
        for i in range(N - NQ):
            tgt = min(len(rest), ((i + 1) * len(rest) + nb - 1) // nb, 4 * (i + 6 - D0 + 1))
            ld = rest[done:tgt]; done = tgt
            f = mix(ld, fills.get(i, []))
            mm = mm34(K3, i)
            a.run(weave(mm[:11], f) + weave(mm[11:], acheck(K3, i + 1)))
        assert done == len(rest)
        prev = None
        for j, q in enumerate((1, 2, 3, 0)):
            f = fills.get(N - NQ + j, [])
            if j == 0:
                for i in range(N - NQ, N):
                    a.run(weave(mm34(K3, i, q), acheck(K3, i + 1) if i + 1 < N else f))
            else:
                mm = []
                for i in range(N - NQ, N): mm += mm34(K3, i, q)
                a.run(mm[:3] + weave(mm[3:], mix(f, red_w(prev))))
            prev = q
    def reduce_rd():
        a.wait_all(vm=False)
        a('s_barrier')
        for k in range(4):
            for q in range(3):
                a.ds(('rr', k), f'ds_read_b128 {vr(OTH+16*q+4*k,4)}, v{vRD+3} offset:{4096*q+1024*k}')
    def reduce_sum(k, bias):
        o = OWN + 4 * k
        ops = [('wds', ('rr', k))]
        for h in range(2):
            ops += [f'v_pk_add_f32 {vr(o+2*h,2)}, {vr(o+2*h,2)}, {bias(k, h)}', f'v_pk_add_f32 {vr(OTH+4*k+2*h,2)}, {vr(OTH+4*k+2*h,2)}, {vr(OTH+16+4*k+2*h,2)}']
        ops += [f'v_pk_add_f32 {vr(o+2*h,2)}, {vr(o+2*h,2)}, {vr(OTH+32+4*k+2*h,2)}' for h in range(2)]
        ops += [f'v_pk_add_f32 {vr(o+2*h,2)}, {vr(o+2*h,2)}, {vr(OTH+4*k+2*h,2)}' for h in range(2)]
        return ops
    first = []
    if nrest: first += [('wvm', ('u', True, 15))]
    for u in range(U3, 16): first += tr_unit(True, u, vR1)
    BF = ST
    fills = {}
    w2_moved = 0
    for i in range(1, 1 + OPT['W2PRE']):
        fills[i] = tr_unit(False, i - 1, vR2); w2_moved += 1
    fills[8] = fills.get(8, []) + [('wds', ('t', True, 15)), ('wds', ('t', False, w2_moved - 1))] + \
        [x for i in range(4) for x in (f'v_lshlrev_b32 v{BF+2*i}, 16, v{BI4+i}', f'v_and_b32 v{BF+2*i+1}, 0xffff0000, v{BI4+i}')]
    assert U3 > 8 or True
    for i in range(OPT['W2B'], 16 - OPT['NQ'] + 4):
        if w2_issued < min(14, w2_moved + NSL):
            fills[i] = fills.get(i, []) + dma_unit(False, w2_issued, vQ2, w2slot(w2_issued)); w2_issued += 1
    if U3 <= 8: first += [('wds', ('t', True, 15))]
    gemm34(True, 16, fills, first)
    a.stamp()
    reduce_rd()
    a(f's_mul_i32 s{sT0}, s{sDT}, {56*4096}')
    a(f's_lshl_b32 s{sT1}, s{sCT3}, 13')
    a(f's_add_u32 s{sT0}, s{sT0}, s{sT1}')
    a(f's_and_b32 s{sT1}, s{sWAVE}, 1')
    a(f's_lshl_b32 s{sT1}, s{sT1}, 12')
    a(f's_add_u32 s{sT0}, s{sT0}, s{sT1}')
    a(f's_add_u32 s{sT0}, s{sT0}, {WS_UF:#x}')
    f3 = [f's_lshl_b32 s{sT2}, s{sDT}, 7', f's_lshr_b32 s{sT1}, s{sCT4}, 3', f's_add_u32 s{sT2}, s{sT2}, s{sT1}', f's_lshl_b32 s{sT2}, s{sT2}, 5', f's_add_u32 s{sT2}, s{sT2}, s{sZ}',
          f's_lshl_b32 s{sT2}, s{sT2}, 2', f's_add_u32 s{sT2}, s{sT2}, {WS_F3:#x}']
    a.run(f3)
    C1 = -2.0 * 0.7978845608028654 * 1.4426950408889634
    GC = ST + 8
    a(f'v_mov_b32 v{GC}, {f2h(C1 * 0.044715)}')
    a(f'v_mov_b32 v{GC+1}, {f2h(C1)}')
    T = H
    PK = H + 16
    ep = []
    for k in range(4): ep += reduce_sum(k, lambda k, h: vr(BF + 4 * (k & 1) + 2 * h, 2))
    nred = len(ep)
    ep += [f'v_pk_mul_f32 {vr(T+2*j,2)}, {vr(OWN+2*j,2)}, {vr(OWN+2*j,2)}' for j in range(8)]
    ep += [f'v_pk_fma_f32 {vr(T+2*j,2)}, {vr(T+2*j,2)}, {vr(GC,2)}, {vr(GC,2)} op_sel:[0,0,1] op_sel_hi:[1,0,1]' for j in range(8)]
    ep += [f'v_pk_mul_f32 {vr(T+2*j,2)}, {vr(T+2*j,2)}, {vr(OWN+2*j,2)}' for j in range(8)]
    ep += [f'v_exp_f32 v{T+j}, v{T+j}' for j in range(16)]
    ep += [f'v_pk_add_f32 {vr(T+2*j,2)}, {vr(T+2*j,2)}, 1.0 op_sel_hi:[1,0]' for j in range(8)]
    ep += [f'v_rcp_f32 v{T+j}, v{T+j}' for j in range(16)]
    ep += [f'v_pk_mul_f32 {vr(OWN+2*j,2)}, {vr(T+2*j,2)}, {vr(OWN+2*j,2)}' for j in range(8)]
    ep += [f'v_cvt_pk_bf16_f32 v{PK+j}, v{OWN+2*j}, v{OWN+2*j+1}' for j in range(8)]
    a.run(ep)
    for b in range(2):
        a.vm('ust', f'buffer_store_dwordx4 {vr(PK+4*b,4)}, v{vA0}, {srd(sWS)}, s{sT0} offen offset:{1024*b} sc1')
    flag(sT2)
    a.stamp()
    while w2_moved < 14:
        k = w2_moved
        a.wait(vm=[('u', False, k)])
        a.run(tr_unit(False, k, vR2))
        w2_moved += 1
        if w2_issued < 14 and k >= 1:
            a.wait(ds=[('t', False, k - 1)])
            while w2_issued < min(14, k + NSL):
                a.run(dma_unit(False, w2_issued, vQ2, w2slot(w2_issued))); w2_issued += 1
    a('s_branch L_join3')
    a.label('L_skip3')
    vq, dq = a.vmq, a.dsq; a.vmq = save_vm; a.dsq = []
    a.run(f3)
    flag(sT2, barrier=False)
    a.wait_all()
    for u in range(U3, 14): a.run(tr_unit(True, u, vR1))
    a.run(red_addr)
    if OPT['SKT']:
        a(f's_mul_i32 s{sT0}, s{sWAVE}, {448 * 4096}')
        a(f's_and_b32 s{sT1}, s{sCT4}, 24')
        a(f's_lshl_b32 s{sT1}, s{sT1}, 7')
        a(f's_add_u32 s{sT0}, s{sT0}, s{sT1}')
        a(f'v_lshrrev_b32 v{vT0}, 3, v{vL}')
        a(f's_lshl_b32 s{sT1}, s{sROT4}, 5')
        a(f'v_add_u32 v{vT0}, s{sT1}, v{vT0}')
        a(f'v_and_b32 v{vT1}, 7, v{vL}')
        a(f'v_lshlrev_b32 v{vT1}, 7, v{vT1}')
        a('s_mov_b32 exec_lo, 0x7f7f7f7f')
        a('s_mov_b32 exec_hi, 0x7f7f7f7f')
        for n in range(16):
            a(f'v_min_u32 v{H+n}, 447, v{vT0}')
            a(f'v_lshl_add_u32 v{H+n}, v{H+n}, 12, v{vT1}')
            a(f'v_add_u32 v{vT0}, 8, v{vT0}')
            a(f'buffer_load_dword v{vDUM}, v{H+n}, {srd(sW2)}, s{sT0} offen')
        a('s_mov_b64 exec, -1')
    a.wait_all()
    a.vmq = vq; a.dsq = dq
    a.label('L_join3')
    RES, PMX, vBI = ST, BI4, BI4 + 2
    sRS = sW1A
    a(f's_mul_i32 s{sT0}, s{sWAVE}, 14')
    a(f's_add_u32 s{sT0}, s{sT0}, s{sROT4}')
    a(f's_lshl_b32 s{sHA}, s{sT0}, 12')
    a(f's_mul_i32 s{sT0}, s{sDT}, {56*4096}')
    a(f's_add_u32 s{sHA}, s{sHA}, s{sT0}')
    a(f's_add_u32 s{sHA}, s{sHA}, {WS_UF:#x}')
    a(f's_sub_u32 s{sHB}, s{sHA}, {14*4096}')
    a(f's_lshl_b32 s{sT0}, s{sCT4}, 7')
    a(f's_lshl_b32 s{sT1}, s{sWAVE}, 5')
    a(f's_add_u32 s{sT0}, s{sT0}, s{sT1}')
    a(f'v_lshlrev_b32 v{vT0}, 1, v{vC}')
    a.vm('b2', f'buffer_load_ushort v{vBI}, v{vT0}, {srd(sB2)}, s{sT0} offen')
    a(f'v_lshrrev_b32 v{vT0}, 3, v{vC}')
    a(f'v_and_b32 v{vT1}, 1, v{vC}')
    a(f'v_lshl_add_u32 v{vT0}, v{vT1}, 1, v{vT0}')
    a(f'v_bfe_u32 v{vT1}, v{vC}, 1, 1')
    a(f'v_lshlrev_b32 v{vT1}, 4, v{vT1}')
    a(f'v_mov_b32 v{vT2}, 0x3f80')
    a(f'v_lshlrev_b32 v{vT1}, v{vT1}, v{vT2}')
    a(f'v_cmp_eq_u32 vcc, v{vT0}, v{vG}')
    a(f'v_cndmask_b32 v{vT1}, 0, v{vT1}, vcc')
    a(f'v_and_b32 v{vT0}, 4, v{vC}')
    a(f'v_cmp_eq_u32 vcc, 0, v{vT0}')
    a(f'v_cndmask_b32 v{PMX}, 0, v{vT1}, vcc')
    a(f'v_cndmask_b32_e64 v{PMX+1}, v{vT1}, 0, vcc')
    a(f'v_lshrrev_b32 v{vA0}, 1, v{vG}')
    a(f'v_lshlrev_b32 v{vA0}, 17, v{vA0}')
    a(f'v_lshl_add_u32 v{vA0}, v{vC}, 4, v{vA0}')
    a(f'v_and_b32 v{vT1}, 1, v{vG}')
    a(f'v_lshl_add_u32 v{vA0}, v{vT1}, 3, v{vA0}')
    a(f's_lshl_b32 s{sRS}, s{sDT}, 18')
    a(f's_lshl_b32 s{sT2}, s{sCT4}, 12')
    a(f's_add_u32 s{sRS}, s{sRS}, s{sT2}')
    a(f's_lshl_b32 s{sT2}, s{sWAVE}, 8')
    a(f's_add_u32 s{sRS}, s{sRS}, s{sT2}')
    a(f's_add_u32 s{sRS}, s{sRS}, {WS_HF:#x}')
    a(f'v_lshlrev_b32 v{vA1}, 10, v{vC}')
    a(f'v_lshl_add_u32 v{vA1}, v{vT1}, 5, v{vA1}')
    a(f'v_lshrrev_b32 v{vT1}, 1, v{vG}')
    a(f'v_lshl_add_u32 v{vA1}, v{vT1}, 4, v{vA1}')
    a(f's_add_u32 s{sT0}, s{sFL}, 64')
    poll('L_p3', sT0)
    a.stamp()
    N4 = 14 - OPT['NQ']
    fills = {2: [('vm', 'res', f'buffer_load_dwordx2 {vr(RES+2*t,2)}, v{vA0}, {srd(sWS)}, s{sRS} offen offset:{1024*t} sc1') for t in range(4)],
             N4 + 2: [('wvm', 'res')] + [f'v_mfma_f32_16x16x16_bf16 {acc34(False,0,t)[1]}, {vr(RES+2*t,2)}, {vr(PMX,2)}, {acc34(False,0,t)[1]}' for t in range(4)],
             3: [f'v_lshlrev_b32 v{vBI}, 16, v{vBI}', f'v_mov_b32 v{vBI+1}, v{vBI}', f's_lshl_b32 s{sT0}, s{sCT4}, 16', f's_lshl_b32 s{sT1}, s{sWAVE}, 14',
                 f's_add_u32 s{sT0}, s{sT0}, s{sT1}', f's_lshl_b32 s{sT1}, s{sDT}, 7', f's_add_u32 s{sT0}, s{sT0}, s{sT1}']}
    gemm34(False, 14, fills, [])
    a.stamp()
    reduce_rd()
    for k in range(4): a.run(reduce_sum(k, lambda k, h: vr(vBI, 2)))
    for j in range(8): a(f'v_cvt_pk_bf16_f32 v{PK+j}, v{OWN+2*j}, v{OWN+2*j+1}')
    for e in range(2):
        for h in range(2):
            a(f'v_permlane16_swap_b32 v{PK+4*e+h}, v{PK+4*e+2+h}')
    for e in range(2):
        a(f'buffer_store_dwordx4 {vr(PK+4*e,4)}, v{vA1}, {srd(sOUT)}, s{sT0} offen offset:{64*e}' + ['', ' sc1', ' nt', ' sc0 sc1'][OPT['OSC']])
    a.stamp()
    if PROF:
        a('s_waitcnt lgkmcnt(0)')
        a(f's_cmp_lg_u32 s{sWAVE}, 0')
        a('s_cbranch_scc1 L_end')
        if OPT['AMP'] >= 0:
            a(f's_cmp_lg_u32 s2, {OPT["AWG"]}')
            a('s_cbranch_scc1 L_end')
            a(f's_sub_u32 s{sT2}, s{70+2*OPT["AMP"]}, s70')
            a(f's_lshl_b32 s{sT2}, s{sT2}, 3')
            a(f's_min_u32 s{sT2}, s{sT2}, 100000')
            a(f's_memrealtime s[{sT0}:{sT1}]')
            a('s_waitcnt lgkmcnt(0)')
            a(f's_mov_b32 s{sCNT}, s{sT0}')
            a.label('L_amp')
            a(f's_memrealtime s[{sT0}:{sT1}]')
            a('s_waitcnt lgkmcnt(0)')
            a(f's_sub_u32 s{sT0}, s{sT0}, s{sCNT}')
            a(f's_cmp_lt_u32 s{sT0}, s{sT2}')
            a('s_cbranch_scc1 L_amp')
            a('s_branch L_end')
        a(f's_mul_i32 s{sT0}, s2, {NSTAMP * 8}')
        a(f's_add_u32 s{sT0}, s{sT0}, {128 * MB:#x}')
        a(f's_add_u32 s{sT0}, s{sWS}, s{sT0}')
        a(f's_addc_u32 s{sT1}, s{sWS+1}, 0')
        a(f'v_mov_b32 v{vT0}, 0')
        for i in range(a.nst):
            a(f'v_mov_b32 v{H+2*i}, s{70+2*i}')
            a(f'v_mov_b32 v{H+2*i+1}, s{71+2*i}')
            a(f'global_store_dwordx2 v{vT0}, v[{H+2*i}:{H+2*i+1}], s[{sT0}:{sT1}] offset:{8*i}')
        a(f'v_mov_b32 v{H}, s{sBUD}')
        a(f'v_mov_b32 v{H+1}, 0')
        a(f'global_store_dwordx2 v{vT0}, v[{H}:{H+1}], s[{sT0}:{sT1}] offset:{8*19}')
    a.label('L_end')
    a('s_endpgm')
    for blk in tail:
        for ln in blk: a(ln)
    return a, name, LDS

HEADER = open('cdna_kernels/' + NAME + '.s.ref').read().split('; Override launch')[0]

def main():
    a, name, lds = gen()
    body = a.finalize()
    out = HEADER + f'; @launch grid=(256,1,1) block=(256,1,1) lds={lds}\n'
    out += '.amdgcn_target "amdgcn-amd-amdhsa--gfx950"\n.text\n' + body
    out += f""".section .rodata,"a"
.p2align 6
.amdhsa_kernel {name}
  .amdhsa_next_free_vgpr 512
  .amdhsa_next_free_sgpr 102
  .amdhsa_accum_offset 256
  .amdhsa_group_segment_fixed_size 0
  .amdhsa_kernarg_size 88
  .amdhsa_user_sgpr_count 2
  .amdhsa_user_sgpr_kernarg_segment_ptr 1
  .amdhsa_system_sgpr_workgroup_id_x 1
.end_amdhsa_kernel
"""
    open(sys.argv[1], 'w').write(out)
    print('nops inserted', a.nops_inserted, 'lines', out.count('\n'), 'stamps', a.nst)

if __name__ == '__main__':
    main()
```

```python
import sys, struct
from asmgen import Asm

NAME = "sequential_preLN__sliding_local_dilated__mixer_token_mlp__prompt"
PROF = '--prof' in sys.argv
OPT = dict(UA=0, UB=4, UC=6, W2PRE=0, PG=0, TWO=1, NQ=3, D0=4, PRE1=14, PRE2=25, ZS3=0, AMP=-1, AWG=0,
           W2B=13, OSC=1, SKT=1, CLB=3, CLS=2, CLP=2, KPM=4,
           TN1=64, TB1=10, TS1=2, DX=0, TW3=1, KP3=7, TN2=16, TB2=-1, TS2=1)
for a_ in sys.argv[2:]:
    if '=' in a_:
        k_, v_ = a_.split('='); assert k_ in OPT, k_; OPT[k_] = int(v_)
NSTAMP = 20
MB = 1 << 20
KB = 1024
WS_OF, WS_HN, WS_HF, WS_UF, WS_SX = 0, 2 * MB, 4 * MB, 6 * MB, 8 * MB
WS_F1, WS_DUM = 8 * MB + 256 * KB, 9 * MB
WS_F2, WS_F3 = WS_F1 + 32, WS_F1 + 64
NEGBIG = 0xF149F2CA
SPIN = 1 << 17

def vr(b, n=1): return f'v{b}' if n == 1 else f'v[{b}:{b+n-1}]'
def ar(b, n=1): return f'a{b}' if n == 1 else f'a[{b}:{b+n-1}]'
def srd(b): return f's[{b}:{b+3}]'
def f2h(x): return '%#x' % struct.unpack('<I', struct.pack('<f', x))[0]

class Em(Asm):
    def __init__(self):
        super().__init__()
        self.vmq = []; self.dsq = []; self.nst = 0
    def vm(self, tag, text):
        self(text); self.vmq.append(tag)
        assert len(self.vmq) <= 63, ('vm overflow', tag)
    def ds(self, tag, text):
        self(text); self.dsq.append(tag)
    @staticmethod
    def _n(q, tags):
        idx = -1
        for k, t in enumerate(q):
            if t in tags: idx = k
        return idx
    def wait(self, vm=(), ds=()):
        s = []
        i = self._n(self.vmq, list(vm))
        if i >= 0:
            s.append(f'vmcnt({len(self.vmq) - 1 - i})'); self.vmq = self.vmq[i + 1:]
        i = self._n(self.dsq, list(ds))
        if i >= 0:
            n = len(self.dsq) - 1 - i
            if n > 15: n = 15
            s.append(f'lgkmcnt({n})'); self.dsq = self.dsq[len(self.dsq) - n:] if n else []
        if s: self('s_waitcnt ' + ' '.join(s))
    def wait_all(self, vm=True, ds=True):
        s = []
        if vm: s.append('vmcnt(0)'); self.vmq = []
        if ds: s.append('lgkmcnt(0)'); self.dsq = []
        self('s_waitcnt ' + ' '.join(s))
    def run(self, ops):
        for op in ops:
            if isinstance(op, str): self(op)
            elif op[0] == 'vm': self.vm(op[1], op[2])
            elif op[0] == 'ds': self.ds(op[1], op[2])
            elif op[0] == 'wvm': self.wait(vm=[op[1]])
            elif op[0] == 'wds': self.wait(ds=[op[1]])
            elif op[0] == 'grp': self.run(op[1])
            elif op[0] == 'label': self.label(op[1])
            else: raise ValueError(op)
    def stamp(self, *grps):
        if not PROF: return
        if not grps: grps = (0,)
        if OPT['PG'] not in grps and -1 not in grps: return
        assert self.nst < 15
        self(f's_memrealtime s[{70 + 2*self.nst}:{71 + 2*self.nst}]')
        self.nst += 1

def flat(ops):
    out = []
    for op in ops:
        if not isinstance(op, str) and op[0] == 'grp': out += flat(op[1])
        else: out.append(op)
    return out

def weave(prim, fill, lead=0):
    out = []
    n, m = len(prim), len(fill)
    k = 0
    for i, p in enumerate(prim):
        out.append(p)
        tgt = min(m, (m * (i + 1) + n - 1) // n + lead) if n else m
        while k < tgt:
            out.append(fill[k]); k += 1
    out += fill[k:]
    return out
def mix(a, b): return weave(a, b) if len(a) >= len(b) else weave(b, a)

sX, sWQ, sWO, sW1, sB1, sW2, sB2, sOUT, sDBG, sWS = 4, 8, 12, 16, 20, 24, 28, 32, 36, 40
sPOLL = 4
sWAVE, sBUD, sT0, sT1, sT2, sCNT = 44, 45, 46, 47, 48, 49
sXB, sWB, sWOB, sLW, sRT, sDT = 50, 51, 52, 53, 54, 55
sCT3, sCT4, sROT3, sROT4 = 56, 57, 58, 59
sW1A, sW1B, sW2A, sW2B, sPR, sLIM1 = 60, 61, 62, 63, 64, 65
sSTP1, sZ = 66, 67
sNON = 68
sTM, sTS, sTB = 68, 69, 101
vL, vG, vC, vT0, vT1, vT2, vT3, vL16 = 1, 2, 3, 4, 5, 6, 7, 8
vDUM, vCK = 252, 253

def gen():
    a = Em()
    tail = []
    name = NAME + '_kernel'
    a.raw(f'.globl {name}\n.p2align 8\n.type {name},@function')
    a.label(name)
    a.stamp(-1)
    NW = 6
    L_X = NW * 12288
    L_H = L_X + 64 * KB
    L_NM = L_H + 8 * KB
    L_HP = L_NM + 2560
    L_PR = 64 * KB
    NSL = 6
    LDS = 160 * KB
    assert L_HP + 2048 <= LDS
    for s, off in ((sX, 0), (sWQ, 8), (sWS, 80), (sDBG, 72), (sWO, 16), (sW1, 32), (sB1, 40), (sW2, 48), (sB2, 56), (sOUT, 64)):
        a(f's_load_dwordx2 s[{s}:{s+1}], s[0:1], {off}')
    a('s_cmp_ge_u32 s2, 256')
    a('s_cbranch_scc1 L_end')
    a(f'v_lshrrev_b32 v{vG}, 6, v0')
    a(f'v_and_b32 v{vL}, 63, v0')
    a(f'v_readfirstlane_b32 s{sWAVE}, v{vG}')
    a(f'v_lshrrev_b32 v{vG}, 4, v{vL}')
    a(f'v_and_b32 v{vC}, 15, v{vL}')
    a(f'v_lshlrev_b32 v{vL16}, 4, v{vL}')
    for s, n in ((sX, 2048 * 1024), (sWQ, 512 * 3072), (sWS, 16 * MB), (sDBG, 256), (sWO, 512 * 1024), (sW1, 2048 * 3584),
                 (sB1, 3584), (sW2, 1792 * 4096), (sB2, 4096), (sOUT, 2048 * 1024)):
        a(f's_mov_b32 s{s+2}, {n:#x}')
        a(f's_mov_b32 s{s+3}, 0x20000')
    vXD, vWD, vWOD, vXR, vHR, vTR, vSR, vHS = 9, 10, 11, 12, 13, 14, 16, 17
    vXD1, vE0 = 18, 19
    WB, XB, ACC, SB, GS, GO, GH, CST, STC = 20, 44, 104, 164, 180, 184, 188, 192, 212
    QP, KP, VP = 222, 230, 20
    vXR1, vSR1, vRA = 240, 241, 242
    vQ1, vR1 = 244, 248
    SEN = QP
    sXL, sHL, sHB, sKP = sW2A, sW2B, sROT4, sPR
    a(f's_lshr_b32 s{sZ}, s2, 5')
    a(f's_bfe_u32 s{sT0}, s2, {1 | (2 << 16)}')
    a(f's_lshr_b32 s{sT1}, s2, 6')
    a(f's_lshl2_add_u32 s{sT0}, s{sT0}, s{sT1}')
    a(f's_and_b32 s{sT1}, s{sZ}, 1')
    a(f's_lshl4_add_u32 s{sRT}, s{sT1}, s{sT0}')
    a(f's_lshl_b32 s{sT1}, s{sT1}, 10')
    a(f's_bfe_u32 s{sT2}, s2, {3 | (2 << 16)}')
    if OPT['DX'] & 3: a(f's_xor_b32 s{sT2}, s{sT2}, {OPT["DX"] & 3}')
    a(f's_and_b32 s{sDT}, s2, 1')
    if OPT['DX'] & 4: a(f's_xor_b32 s{sDT}, s{sDT}, 1')
    a(f's_lshl2_add_u32 s{sDT}, s{sDT}, s{sT2}')
    a(f's_lshl_b32 s{sT2}, s{sT2}, 1')
    a(f's_xor_b32 s{sKP}, s{sT2}, s{sZ}')
    a(f's_cmp_eq_u32 s{sDT}, 3')
    a(f's_cselect_b32 s{sWB}, {OPT["KP3"]}, {OPT["KPM"]}')
    a(f's_and_b32 s{sKP}, s{sKP}, s{sWB}')
    a(f's_lshl_b32 s{sWB}, s{sKP}, 1')
    a(f's_lshl2_add_u32 s{sXB}, s{sT0}, s{sWAVE}')
    a(f's_lshl_b32 s{sXB}, s{sXB}, 15')
    a(f's_add_u32 s{sXB}, s{sXB}, s{sT1}')
    a(f's_lshl_b32 s{sT2}, s{sKP}, 7')
    a(f's_add_u32 s{sXB}, s{sXB}, s{sT2}')
    a(f's_lshl_b32 s{sT0}, s{sT0}, 17')
    a(f's_sub_u32 s{sT0}, s{sT0}, 16384')
    a(f's_max_i32 s{sT0}, s{sT0}, 0')
    a(f's_add_u32 s{sT0}, s{sT0}, s{sT1}')
    a(f's_xor_b32 s{sT2}, s{sKP}, s{sWAVE}')
    a(f's_lshl_b32 s{sT2}, s{sT2}, 7')
    a(f's_add_u32 s{sHB}, s{sT0}, s{sT2}')
    a(f's_lshl_b32 s{sXL}, s{sWAVE}, 14')
    a(f's_add_u32 s{sXL}, s{sXL}, {L_X}')
    a(f's_lshl_b32 s{sHL}, s{sWAVE}, 10')
    a(f's_add_u32 s{sHL}, s{sHL}, {L_H}')
    a(f's_mul_i32 s{sLW}, s{sWAVE}, 3072')
    a(f'v_lshrrev_b32 v{vT0}, 3, v{vL}')
    a(f'v_and_b32 v{vT1}, 7, v{vL}')
    a(f'v_xor_b32 v{vT1}, v{vT1}, v{vG}')
    a(f'v_lshlrev_b32 v{vT1}, 4, v{vT1}')
    a(f'v_lshl_add_u32 v{vXD}, v{vT0}, 11, v{vT1}')
    a(f'v_xor_b32 v{vXD1}, 64, v{vXD}')
    a(f'v_add_u32 v{vXD1}, {16384 - 1024}, v{vXD1}')
    a(f's_lshl_b32 s{sT0}, s{sDT}, 7')
    a(f's_lshl3_add_u32 s{sT0}, s{sLW}, s{sT0}')
    a(f'v_mov_b32 v{vT1}, 3072')
    a(f'v_mad_u32_u24 v{vWD}, v{vT0}, v{vT1}, s{sT0}')
    a(f'v_lshrrev_b32 v{vT0}, 1, v{vL}')
    a(f'v_and_b32 v{vT1}, 1, v{vG}')
    a(f's_lshl_b32 s3, s{sWAVE}, 1')
    a(f'v_xor_b32 v{vT0}, v{vT0}, v{vT1}')
    a(f'v_xor_b32 v{vT0}, s3, v{vT0}')
    a(f'v_and_b32 v{vT0}, 3, v{vT0}')
    a(f'v_lshl_add_u32 v{vWD}, v{vT0}, 5, v{vWD}')
    a(f'v_and_b32 v{vT0}, 1, v{vL}')
    a(f'v_lshl_add_u32 v{vWD}, v{vT0}, 4, v{vWD}')
    a('s_waitcnt lgkmcnt(0)')
    a.stamp(1)
    def xloads(p):
        return [('grp', [f's_add_u32 m0, s{sXL}, {p * 2048}', f's_xor_b32 s3, s{sXB}, {p * 128}',
                         ('vm', ('x', p), f'buffer_load_dwordx4 v{vXD}, {srd(sX)}, s3 offen lds')]),
                ('vm', ('x', p), f'buffer_load_dwordx4 v{vXD1}, {srd(sX)}, s3 offen offset:1024 lds')]
    def hloads(j):
        return [('grp', [f's_add_u32 m0, s{sHL}, {j * 4096}', f's_xor_b32 s3, s{sHB}, {j * 512}', 's_mov_b32 exec_lo, 0xffffff00',
                         ('vm', ('h', j), f'buffer_load_dwordx4 v{vXD}, {srd(sX)}, s3 offen lds'), 's_mov_b32 exec_lo, -1'])]
    def wloads(k):
        slot = k % NW
        if k < 16:
            return [('grp', [f's_add_u32 m0, s{sLW}, {slot * 12288}', f's_xor_b32 s3, s{sWB}, {k}', f's_mul_i32 s3, s3, {32 * 3072}',
                             ('vm', ('w', k), f'buffer_load_dwordx4 v{vWD}, {srd(sWQ)}, s3 offen lds')])] + \
                   [('vm', ('w', k), f'buffer_load_dwordx4 v{vWD}, {srd(sWQ)}, s3 offen offset:{1024*R} lds') for R in (1, 2)]
        ops = []
        for j in range(3 if slot < 5 else 1):
            i = 3 * slot + j
            ops.append(('grp', [f's_add_u32 m0, s{sLW}, {i * 4096}', f's_add_u32 s3, s{sWOB}, {i * 32768}',
                                ('vm', 'wo', f'buffer_load_dwordx4 v{vWOD}, {srd(sWO)}, s3 offen lds')]))
        return ops
    seq = [xloads(0), hloads(0), wloads(0), wloads(1), xloads(1), wloads(2), wloads(3), xloads(2), wloads(4), wloads(5)]
    def take(n):
        while seq and len(a.vmq) + len(seq[0]) <= n: a.run(seq.pop(0))
    def tw3():
        a(f's_lshr_b32 s{sT0}, s2, 3')
        a(f's_lshl2_add_u32 s{sT0}, s{sT0}, s{sWAVE}')
        a(f's_mul_i32 s{sT0}, s{sT0}, 12')
        a(f's_lshr_b32 s{sT1}, s{sDT}, 2')
        a(f's_lshl_b32 s{sT1}, s{sT1}, 11')
        a(f's_add_u32 s{sT0}, s{sT0}, s{sT1}')
        a(f'v_min_u32 v{vT3}, 11, v{vC}')
        a(f'v_add_lshl_u32 v{vT3}, v{vT3}, s{sT0}, 10')
        a.vm('tw', f'buffer_load_dword v{vDUM}, v{vT3}, {srd(sWQ)}, 0 offen offset:384')
    if OPT['TW3'] == 1: tw3()
    if OPT['TW3'] == 2: take(6); tw3()
    take(OPT['PRE1'])
    if OPT['TW3'] == 3: tw3()
    a.stamp(1)
    a(f's_or_b32 s{sT0}, s2, s{sWAVE}')
    a(f's_cmp_lg_u32 s{sT0}, 0')
    a('s_cbranch_scc1 L_nononce')
    a(f's_memrealtime s[{sT0}:{sT1}]')
    a(f'v_mov_b32 v{vT1}, 0')
    a('s_waitcnt lgkmcnt(0)')
    a(f's_or_b32 s{sT0}, s{sT0}, 1')
    a(f'v_mov_b32 v{vT0}, s{sT0}')
    a('s_mov_b64 exec, 1')
    a(f'buffer_store_dword v{vT0}, v{vT1}, {srd(sDBG)}, 0 offen sc1')
    a('s_mov_b64 exec, -1')
    a.label('L_nononce')
    BC, BP, BP0, MC, MP, ONE = CST, CST + 4, CST + 8, CST + 12, CST + 14, CST + 16
    for k in range(4): a(f'v_mov_b32 v{ONE+k}, 0x3f803f80')
    a(f'v_lshrrev_b32 v{vT0}, 3, v{vL}')
    a(f'v_and_b32 v{vT1}, 7, v{vL}')
    a(f'v_lshlrev_b32 v{vT1}, 4, v{vT1}')
    a(f'v_lshl_add_u32 v{vT0}, v{vT0}, 10, v{vT1}')
    a(f'v_add_u32 v{vT0}, {L_H}, v{vT0}')
    a(f'ds_write_b128 v{vT0}, {vr(ONE,4)}')
    a(f'v_lshrrev_b32 v{vT0}, 1, v{vC}')
    a(f'v_xor_b32 v{vT0}, v{vT0}, v{vG}')
    a(f'v_lshlrev_b32 v{vT0}, 4, v{vT0}')
    a(f'v_lshl_add_u32 v{vT0}, v{vC}, 7, v{vT0}')
    a(f'v_add_u32 v{vSR}, s{sXL}, v{vT0}')
    a(f'v_add_u32 v{vXR}, {L_X}, v{vT0}')
    a(f'v_xor_b32 v{vSR1}, 64, v{vSR}')
    a(f'v_xor_b32 v{vXR1}, 64, v{vXR}')
    a(f'v_and_b32 v{vT0}, {0x3bf}, v{vT0}')
    a(f'v_add_u32 v{vHR}, {L_H}, v{vT0}')
    a(f'v_add_u32 v{vHS}, s{sHL}, v{vT0}')
    a(f's_xor_b32 s{sT0}, s{sDT}, s{sKP}')
    a(f's_lshl_b32 s{sT0}, s{sT0}, 11')
    a(f'v_add_u32 v{vRA}, s{sT0}, v{vSR}')
    a(f'v_add_u32 v{vRA+1}, s{sT0}, v{vSR1}')
    a(f'v_mul_u32_u24 v{vTR}, 3072, v{vG}')
    a(f'v_bfe_u32 v{vT0}, v{vL}, 2, 2')
    a(f'v_lshl_add_u32 v{vTR}, v{vT0}, 7, v{vTR}')
    a(f'v_bfe_u32 v{vT0}, v{vL}, 3, 2')
    a(f'v_xor_b32 v{vT0}, s{sWAVE}, v{vT0}')
    a(f'v_lshl_add_u32 v{vTR}, v{vT0}, 5, v{vTR}')
    a(f'v_and_b32 v{vT0}, 3, v{vL}')
    a(f'v_lshl_add_u32 v{vTR}, v{vT0}, 3, v{vTR}')
    a(f'v_add_u32 v{vTR+1}, {3 * 12288}, v{vTR}')
    for k in range(4): a(f'v_mov_b32 v{SEN+k}, -1')
    a(f's_mov_b32 s{sBUD}, {SPIN}')
    a(f's_bfe_u32 s{sT0}, s2, {1 | (2 << 16)}')
    a(f's_lshl3_add_u32 s{sCT4}, s{sT0}, s{sZ}')
    a(f's_sub_u32 s{sCT3}, s{sCT4}, s{sT0}')
    a(f's_min_u32 s{sCT3}, s{sCT3}, 27')
    a(f's_and_b32 s{sT1}, s{sDT}, 3')
    if OPT['ZS3']:
        a(f's_lshl1_add_u32 s{sROT3}, s{sT1}, s{sZ}')
        a(f's_lshl_b32 s{sROT3}, s{sROT3}, 1')
        a(f's_and_b32 s{sROT3}, s{sROT3}, 15')
    else:
        a(f's_lshl_b32 s{sROT3}, s{sT1}, 2')
    a(f's_mov_b32 s{sSTP1}, {64 * 3584}')
    a(f's_sub_u32 s{sLIM1}, 16, s{sROT3}')
    a(f's_and_b32 s{sT0}, s{sWAVE}, 1')
    a(f's_lshl_b32 s{sT0}, s{sT0}, 4')
    a(f's_add_u32 s{sT0}, s{sT0}, s{sROT3}')
    a(f's_lshl_b32 s{sT0}, s{sT0}, 6')
    a(f's_lshr_b32 s{sT1}, s{sWAVE}, 1')
    a(f's_add_u32 s{sT0}, s{sT0}, s{sT1}')
    a(f's_mul_i32 s{sW1A}, s{sT0}, 3584')
    a(f's_lshl_b32 s{sT0}, s{sCT3}, 7')
    a(f's_add_u32 s{sW1A}, s{sW1A}, s{sT0}')
    a(f's_sub_u32 s{sW1B}, s{sW1A}, {16 * 64 * 3584}')
    a(f's_mul_i32 s{sPR}, s{sWAVE}, {NSL * 4096}')
    a(f's_add_u32 s{sPR}, s{sPR}, {L_PR}')
    a(f's_lshl_b32 s{sWOB}, s{sWAVE}, 13')
    a(f's_lshl_b32 s{sT0}, s{sDT}, 7')
    a(f's_add_u32 s{sWOB}, s{sWOB}, s{sT0}')
    def w2_scalars(A, B, rot):
        return [f's_and_b32 s{sT1}, s{sDT}, 3', f's_mul_i32 s{rot}, s{sT1}, 7', f's_add_u32 s{rot}, s{rot}, 1', f's_lshr_b32 s{rot}, s{rot}, 1',
                f's_mul_i32 s{sT0}, s{sWAVE}, 14', f's_add_u32 s{sT0}, s{sT0}, s{rot}', f's_lshl_b32 s{A}, s{sT0}, 17',
                f's_lshl_b32 s{sT0}, s{sCT4}, 7', f's_add_u32 s{A}, s{A}, s{sT0}', f's_sub_u32 s{B}, s{A}, {14 << 17}']
    a(f'v_mov_b32 v{vT1}, {NEGBIG:#x}')
    a(f's_and_b32 s{sT0}, s{sRT}, 15')
    a(f's_cmp_eq_u32 s{sT0}, 0')
    a(f's_cselect_b32 s{sT0}, {NEGBIG:#x}, 0')
    for r in range(4):
        a(f'v_lshl_add_u32 v{vT0}, v{vG}, 2, {r}')
        a(f'v_sub_u32 v{vT0}, v{vC}, v{vT0}')
        a(f'v_cmp_gt_u32 vcc, 8, v{vT0}')
        a(f'v_cndmask_b32_e64 v{BC+r}, v{vT1}, 0, vcc')
        a(f'v_cmp_gt_i32 vcc, -8, v{vT0}')
        a(f'v_cndmask_b32_e64 v{BP+r}, v{vT1}, 0, vcc')
        a(f'v_min_f32 v{BP0+r}, s{sT0}, v{BP+r}')
        a(f'v_cmp_le_i32 vcc, 0, v{vT0}')
        if r % 2 == 0:
            a(f'v_cndmask_b32_e64 v{MC+r//2}, 0, -1, vcc')
            a(f'v_and_b32 v{MC+r//2}, 0xffff, v{MC+r//2}')
        else:
            a(f'v_cndmask_b32_e64 v{vT0}, 0, -1, vcc')
            a(f'v_and_b32 v{vT0}, 0xffff0000, v{vT0}')
            a(f'v_or_b32 v{MC+r//2}, v{MC+r//2}, v{vT0}')
            a(f'v_not_b32 v{MP+r//2}, v{MC+r//2}')
    a(f'v_lshrrev_b32 v{vT0}, 1, v{vL}')
    a(f'v_xor_b32 v{vT0}, v{vT0}, v{vG}')
    a(f'v_and_b32 v{vT0}, 3, v{vT0}')
    a(f'v_lshrrev_b32 v{vT1}, 3, v{vL}')
    a(f'v_lshlrev_b32 v{vWOD}, 10, v{vT1}')
    a(f'v_lshl_add_u32 v{vWOD}, v{vT0}, 5, v{vWOD}')
    a(f'v_and_b32 v{vT0}, 1, v{vL}')
    a(f'v_lshl_add_u32 v{vWOD}, v{vT0}, 4, v{vWOD}')
    def mk_q(base, K3):
        if K3:
            ops = [f'v_lshrrev_b32 v{base+1}, 3, v{vL}', f'v_mul_u32_u24 v{base}, 7168, v{base+1}']
            st = 8 * 7168 - 1024
        else:
            ops = [f'v_bfe_u32 v{base+1}, v{vL}, 3, 2', f'v_lshrrev_b32 v{base}, 5, v{vL}', f'v_lshl_add_u32 v{base}, v{base}, 4, v{base+1}',
                   f'v_lshlrev_b32 v{base}, 12, v{base}']
            st = 4 * 4096 - 1024
        ops += [f'v_lshrrev_b32 v{base+1}, 1, v{vL}', f'v_and_b32 v{base+2}, 1, v{vG}', f'v_xor_b32 v{base+1}, v{base+1}, v{base+2}',
                f'v_and_b32 v{base+1}, 3, v{base+1}', f'v_lshl_add_u32 v{base}, v{base+1}, 5, v{base}',
                f'v_and_b32 v{base+1}, 1, v{vL}', f'v_lshl_add_u32 v{base}, v{base+1}, 4, v{base}',
                f'v_xor_b32 v{base+1}, 64, v{base}', f'v_add_u32 v{base+2}, {2*st}, v{base}', f'v_add_u32 v{base+3}, {3*st}, v{base+1}', f'v_add_u32 v{base+1}, {st}, v{base+1}']
        return ops
    def mk_r(base, K3):
        ops = [f'v_bfe_u32 v{base+1}, v{vL}, 2, 2', f'v_lshl_add_u32 v{base+1}, v{vG}, 3, v{base+1}']
        ops += [f's_and_b32 s3, s{sWAVE}, 1', 's_lshl_b32 s3, s3, 1'] if K3 else [f's_mov_b32 s3, s{sWAVE}']
        ops += [f'v_lshlrev_b32 v{base}, 7, v{base+1}', f'v_bfe_u32 v{base+1}, v{vL}, 3, 2', f'v_xor_b32 v{base+1}, s3, v{base+1}',
                f'v_lshl_add_u32 v{base}, v{base+1}, 5, v{base}', f'v_and_b32 v{base+1}, 3, v{vL}', f'v_lshl_add_u32 v{base}, v{base+1}, 3, v{base}',
                f'v_add_u32 v{base}, s{sPR}, v{base}']
        ops += [f'v_xor_b32 v{base+t}, {32*t}, v{base}' for t in range(1, 4)]
        return ops
    slot_of = {}
    def dma_unit(K3, i, q, slot):
        slot_of[(K3, i)] = slot
        tag = ('u', K3, i)
        if K3:
            S = sW1
            pre = [f's_mul_i32 s3, s{sSTP1}, {i}', f's_cmp_gt_u32 s{sLIM1}, {i}', f's_cselect_b32 m0, s{sW1A}, s{sW1B}', 's_add_u32 s3, s3, m0', f's_add_u32 m0, s{sPR}, {slot*4096}']
        else:
            S = sW2
            pre = [f's_cmp_lt_u32 s{sROT4}, {14 - i}', f's_cselect_b32 s3, s{sW2A}, s{sW2B}', f's_add_u32 m0, s{sPR}, {slot*4096}', f's_add_u32 s3, s3, {i << 17}']
        ops = [('grp', pre + [('vm', tag, f'buffer_load_dwordx4 v{q}, {srd(S)}, s3 offen lds')])]
        for k in range(1, 4):
            ops.append(('vm', tag, f'buffer_load_dwordx4 v{q+k}, {srd(S)}, s3 offen offset:{1024*k} lds'))
        return ops
    def tr_unit(K3, i, r):
        slot = slot_of[(K3, i)]
        return [('ds', ('t', K3, i), f'ds_read_b64_tr_b16 {ar(16*i+4*t+2*h, 2)}, v{r+t} offset:{slot*4096 + 512*h}') for t in range(4) for h in range(2)]
    a(f's_cmp_lt_u32 s{sZ}, 7')
    a('s_cbranch_scc0 L_sk0')
    a.run(mk_q(vQ1, True))
    a.run(mk_r(vR1, True))
    a(f's_lshr_b32 s{sT0}, s2, 3')
    a(f's_lshl2_add_u32 s{sT0}, s{sT0}, s{sWAVE}')
    a(f's_lshl_b32 s{sT0}, s{sT0}, 7')
    a(f'v_and_b32 v254, {OPT["TN1"]-1}, v{vL}')
    a(f'v_add_u32 v254, s{sT0}, v254')
    a(f's_mov_b32 s{sTM}, 37450')
    a(f's_mov_b32 s{sTS}, 7')
    a(f's_lshr_b32 s{sTB}, s{sCT4}, 3')
    a(f's_mul_i32 s{sTB}, s{sTB}, 896')
    a('s_branch L_sk1')
    a.label('L_sk0')
    for k in range(3): a(f's_mov_b32 s{sW1+k}, s{sW2+k}')
    a.run(w2_scalars(sW1A, sW1B, sROT3))
    a(f's_mov_b32 s{sSTP1}, {1 << 17}')
    a(f's_sub_u32 s{sLIM1}, 14, s{sROT3}')
    a.run(mk_q(vQ1, False))
    a.run(mk_r(vR1, False))
    a(f'v_and_b32 v254, {OPT["TN1"]-1}, v{vL}')
    a(f's_mov_b32 s{sTM}, 0')
    a(f's_mov_b32 s{sTS}, 12')
    a(f's_mov_b32 s{sTB}, s{sW1A}')
    a.label('L_sk1')
    a.stamp(1)
    take(OPT['PRE2'])
    def xb(i, s): return XB + 20 * (i % 3) + 4 * s
    def wb(i, R): return WB + 12 * (i % 2) + 4 * R
    def acc(R, s): return ACC + 20 * R + 4 * s
    def xreads(i):
        return [('ds', ('xr', i), f'ds_read_b128 {vr(xb(i,s),4)}, v{vXR1 if i & 1 else vXR} offset:{2048*(i>>1) + 16384*(s-1)}') for s in range(1, 5)] + \
               [('ds', ('xr', i), f'ds_read_b128 {vr(xb(i,0),4)}, v{vHR} offset:{1024*(i>>1) + 64*(i&1)}')]
    def trreads(i):
        slot = i % NW
        return [('ds', ('wr', i), f'ds_read_b64_tr_b16 {vr(wb(i,R)+2*h,2)}, v{vTR + slot//3} offset:{(slot%3)*12288 + R*1024 + 512*h}') for R in range(3) for h in range(2)]
    def mfmas(i):
        ops = []
        for R in range(3):
            for s in (1, 2, 3, 4, 0):
                x = vr(xb(i, s), 4); d = vr(acc(R, s), 4); w = vr(wb(i, R), 4)
                cin = '0' if i == 0 else d
                ops.append(f'v_mfma_f32_16x16x32_bf16 {d}, {w}, {x}, {cin}' if R < 2 else f'v_mfma_f32_16x16x32_bf16 {d}, {x}, {w}, {cin}')
        return ops
    jobs = {1: ('s', 0), 2: ('s', 1), 4: ('h', 0), 5: ('s', 2), 6: ('s', 3), 7: ('h', 1), 8: ('s', 4), 9: ('s', 5), 10: ('s', 6), 11: ('s', 7)}
    def job_reads(b):
        if b not in jobs: return []
        kind, p = jobs[b]
        if kind == 's':
            return [('ds', ('jr', b), f'ds_read_b128 {vr(SB+8*(b&1)+4*k,4)}, v{vSR1 if k else vSR} offset:{2048*p}') for k in range(2)]
        return [('ds', ('jr', b), f'ds_read_b128 {vr(SB+8*(b&1)+4*k,4)}, v{vHS} offset:{4096*p + 64*k}') for k in range(2)]
    def job_mfmas(b):
        if b not in jobs: return []
        kind, p = jobs[b]
        ops = []
        for k in range(2):
            x = vr(SB + 8 * (b & 1) + 4 * k, 4)
            first = p == 0 and k == 0
            if kind == 's':
                ops.append(f'v_mfma_f32_16x16x32_bf16 {vr(GS,4)}, {x}, {x}, {"0" if first else vr(GS,4)}')
                ops.append(f'v_mfma_f32_16x16x32_bf16 {vr(GO,4)}, {vr(ONE,4)}, {x}, {"0" if first else vr(GO,4)}')
            else:
                ops.append(f'v_mfma_f32_16x16x32_bf16 {vr(GH,4)}, {x}, {x}, {"0" if first else vr(GH,4)}')
        return ops
    def stat_finalize(s, q, tmp):
        return [f'v_mul_f32 v{s}, 0xbb000000, v{s}',
                f'v_mul_f32 v{tmp}, v{s}, v{s}',
                f'v_mul_f32 v{q}, 0x3b000000, v{q}',
                f'v_sub_f32 v{q}, v{q}, v{tmp}',
                f'v_max_f32 v{q}, 0, v{q}',
                f'v_add_f32 v{q}, 0x3727c5ac, v{q}',
                f'v_rsq_f32 v{q}, v{q}']
    def diag(G, dst):
        ops = []
        for k in range(1, 4):
            m = 0x11111111 << k
            ops.append(('grp', [f's_mov_b32 vcc_lo, {m:#x}', f's_mov_b32 vcc_hi, {m:#x}', f'v_cndmask_b32 v{dst}, v{G if k == 1 else dst}, v{G+k}, vcc']))
        return ops
    NM4, RS4, XR = XB + 20, XB + 40, SB
    HT = STC
    extra = {b: [] for b in range(16)}
    L4 = vE0
    extra[5] += [f'v_lshlrev_b32 v{L4}, 2, v{vL}', f's_lshl_b32 s{sT0}, s{sWAVE}, 9', f's_add_u32 s{sT0}, s{sT0}, {L_HP}', f'v_add_u32 v{vT0}, s{sT0}, v{L4}',
                 f'v_lshrrev_b32 v{vT1}, 2, v{vC}', f'v_lshl_add_u32 v{vT1}, v{vT1}, 4, v{vC}', f'v_lshlrev_b32 v{vT1}, 2, v{vT1}',
                 f'v_add_u32 v{vT1}, {L_NM}, v{vT1}', f'v_lshlrev_b32 v{vT2}, 2, v{vC}', f'v_add_u32 v{vT2}, {L_NM}, v{vT2}']
    extra[8] += diag(GH, GH + 1) + [('ds', 'hp', f'ds_write2st64_b32 v{vT0}, v{GH}, v{GH+1} offset0:0 offset1:1')]
    o0 = (L_HP - L_NM) // 256
    extra[9] += [('ds', 'hq', f'ds_read2st64_b32 {vr(HT+2*k,2)}, v{vT2} offset0:{o0+4*k} offset1:{o0+4*k+2}') for k in range(2)] + \
                [('ds', 'hq', f'ds_read2st64_b32 {vr(HT+4+2*k,2)}, v{vT1} offset0:{o0+4*k+1} offset1:{o0+4*k+3}') for k in range(2)]
    extra[10] += [f'v_add_f32 v{HT}, v{HT}, v{HT+1}', f'v_add_f32 v{HT+2}, v{HT+2}, v{HT+3}', f'v_add_f32 v{HT+4}, v{HT+4}, v{HT+5}', f'v_add_f32 v{HT+6}, v{HT+6}, v{HT+7}',
                  f'v_add_f32 v{HT}, v{HT}, v{HT+2}', f'v_add_f32 v{HT+4}, v{HT+4}, v{HT+6}']
    extra[11] += stat_finalize(HT, HT + 4, HT + 1) + [f'v_add_u32 v{vT0}, {L_NM}, v{L4}', ('ds', 'hw', f'ds_write2st64_b32 v{vT0}, v{HT}, v{HT+4} offset0:0 offset1:5')]
    extra[12] += diag(GS, GS + 1) + stat_finalize(GO, GS + 1, GS) + [f's_lshl_b32 s{sT0}, s{sWAVE}, 8', f'v_add_u32 v{vT0}, s{sT0}, v{vT0}',
                                                                    ('ds', 'hw', f'ds_write2st64_b32 v{vT0}, v{GO}, v{GS+1} offset0:1 offset1:6')]
    extra[13] += [('ds', 'st', f'ds_read2st64_b32 {vr(STC+2*s,2)}, v{vT1} offset0:{s} offset1:{5+s}') for s in range(5)] + \
                 [f'v_mul_u32_u24 v{vT0}, 80, v{vG}', f'v_add_u32 v{vT0}, {L_NM}, v{vT0}']
    extra[14] += [('ds', 'st', f'ds_read_b128 {vr(NM4+4*s,4)}, v{vT0} offset:{256*s}') for s in range(5)] + \
                 [('ds', 'st', f'ds_read_b128 {vr(XR+4*e,4)}, v{vRA+e}') for e in range(2)]
    extra[15] += [('ds', 'st', f'ds_read_b128 {vr(RS4+4*s,4)}, v{vT0} offset:{1280+256*s}') for s in range(5)]
    vmx = {b: [] for b in range(17)}
    b0 = 0
    for it in seq:
        vmx[b0] += it; b0 = 0
    vmx[0] += xloads(3)
    vmx[2] += hloads(1)
    for p in range(4, 8): vmx[p - 1] += xloads(p)
    if OPT['TWO']:
        vmx[0] += [('grp', [f'v_lshlrev_b32 v{vT3}, 10, v{vC}', f's_lshl2_add_u32 s3, s{sZ}, s{sWAVE}', f's_lshl_b32 s3, s3, 14', f's_lshl_b32 s{sCNT}, s{sDT}, 7', f's_add_u32 s3, s3, s{sCNT}',
                            ('vm', 'tw', f'buffer_load_dword v{vDUM}, v{vT3}, {srd(sWO)}, s3 offen')])]
    clr = [[f's_lshl2_add_u32 s3, s{sRT}, s{sWAVE}', 's_lshl_b32 s3, s3, 3', f's_add_u32 s3, s3, s{sDT}', 's_lshl_b32 s3, s3, 11'],
           [f's_lshl_b32 s3, s{sDT}, 5', f's_add_u32 s3, s3, s{sRT}', f's_lshl2_add_u32 s3, s3, s{sWAVE}', 's_lshl_b32 s3, s3, 11', f's_add_u32 s3, s3, {WS_HN:#x}'],
           [f's_mul_i32 s3, s{sDT}, 28', f's_add_u32 s3, s3, s{sCT3}', f's_lshl2_add_u32 s3, s3, s{sWAVE}', 's_lshl_b32 s3, s3, 11', f's_add_u32 s3, s3, {WS_UF:#x}',
            f's_cmp_lt_u32 s{sZ}, 7', f's_cselect_b32 s{sCNT}, 0, {WS_DUM - WS_UF:#x}', f's_add_u32 s3, s3, s{sCNT}']]
    if OPT['CLB'] >= 0:
        cl = []
        for k in range(3):
            for h in range(2):
                cl.append(('grp', clr[k] + [('vm', 'clr', f'buffer_store_dwordx4 {vr(SEN,4)}, v{vL16}, {srd(sWS)}, s3 offen offset:{1024*h} sc1')]))
        for j, o in enumerate(cl):
            vmx[min(15, OPT['CLB'] + (j // OPT['CLP']) * OPT['CLS'])].append(o)
    vTC1, vTC2 = 254, 255
    if OPT['TB1'] >= 0:
        TN = OPT['TN1']
        for k in range(128 // TN):
            pre = [f'v_add_u32 v{vTC1}, {TN}, v{vTC1}'] if k else []
            pre += [f'v_mul_u32_u24 v{vT3}, s{sTM}, v{vTC1}', f'v_lshrrev_b32 v{vT3}, 18, v{vT3}', f'v_mul_u32_u24 v{vT3}, 21, v{vT3}', f'v_add_u32 v{vT3}, v{vT3}, v{vTC1}',
                    f'v_lshlrev_b32 v{vT3}, s{sTS}, v{vT3}', f'v_add_u32 v{vT3}, s{sTB}, v{vT3}']
            vmx[min(16, OPT['TB1'] + k * OPT['TS1'])] += [('grp', pre + [('vm', 'tw', f'buffer_load_dword v{vDUM}, v{vT3}, {srd(sW1)}, 0 offen')])]
    if OPT['TB2'] >= 0:
        TN = OPT['TN2']
        for k in range(112 // TN + (112 % TN > 0)):
            if k == 0:
                pre = [f'v_bfe_u32 v{vTC2}, v{vL}, 3, {TN.bit_length() - 4}', f's_lshr_b32 s3, s2, 3', f's_lshl2_add_u32 s3, s3, s{sWAVE}', f's_mul_i32 s3, s3, {14 * 4}',
                       f's_lshr_b32 s{sCNT}, s{sCT4}, 3', f's_add_u32 s3, s3, s{sCNT}', 's_lshl_b32 s3, s3, 10',
                       f'v_lshl_add_u32 v{vTC2}, v{vTC2}, 12, s3', f'v_and_b32 v{vT3}, 7, v{vL}', f'v_lshl_add_u32 v{vTC2}, v{vT3}, 7, v{vTC2}']
            else:
                pre = [f'v_add_u32 v{vTC2}, {min(TN, 112 - TN * k) * 512}, v{vTC2}']
            vmx[min(16, OPT['TB2'] + k * OPT['TS2'])] += [('grp', pre + [('vm', 'tw', f'buffer_load_dword v{vDUM}, v{vTC2}, {srd(sW2)}, 0 offen')])]
    need_x = {2: [('x', 2)], 4: [('x', 3)], 6: [('x', 4), ('h', 1)], 8: [('x', 5)], 9: [('x', 6)], 10: [('x', 7)]}
    a.stamp(1)
    a.wait(vm=[('w', 1), ('x', 1)])
    a('s_waitcnt lgkmcnt(0)')
    a('s_barrier')
    a.stamp(-1)
    a.run(trreads(0) + xreads(0) + xreads(1))
    a.wait(ds=[('xr', 0)])
    for i in range(16):
        rd = []
        if i + 1 < 16: rd += trreads(i + 1) + job_reads(i + 1)
        if i + 2 < 16: rd += xreads(i + 2)
        ld = []
        if i == 1: ld += wloads(NW)
        if i == 10: ld += [f's_lshl_b32 s{sLW}, s{sWAVE}, 10']
        if i >= 1: ld += wloads(i + NW)
        ld += vmx[i]
        ex = extra[i]
        mm = weave(mfmas(i), job_mfmas(i))
        fill = weave(rd, ld) if rd else ld
        fill = mix(fill, ex)
        fl = []
        for o in fill:
            if not isinstance(o, str) and o[0] == 'grp' and any(isinstance(x, str) and ('exec' in x or 's_cselect' in x) for x in o[1]): fl.append(o)
            else: fl += flat([o])
        a.run(weave(mm, fl, lead=1))
        if i < 15:
            wv = [('w', i + 2)] if i + 2 < 16 else []
            wv += need_x.get(i + 1, [])
            a.wait(vm=wv, ds=[('wr', i + 1), ('jr', i + 1), ('xr', i + 1), 'hp', 'hq', 'hw'])
            a('s_barrier')
            if i in (1, 3, 5, 7, 9, 11, 13): a.stamp(1)
    a.wait_all(vm=False)
    a('s_barrier')
    a.stamp(-1)
    a.run(vmx[16])
    a(f's_load_dword s{sNON}, s[{sDBG}:{sDBG+1}], 0')
    UA, UB, UC = OPT['UA'], OPT['UB'], OPT['UC']
    assert UA + UB <= NSL and UC <= NSL
    for u in range(UA): a.run(dma_unit(True, u, vQ1, u))
    SC, SP, MX, MT, PM, PB, OUT = XB, SB + 8, ACC, ACC + 4, ACC + 8, ACC + 20, ACC + 36
    CW, CWV = 32, 40
    for r in range(4):
        a(f'v_mov_b32_dpp v{CW+4+r}, v{acc(1,0)+r} row_newbcast:0 row_mask:0xf bank_mask:0xf')
    for r in range(4):
        a(f'v_mov_b32_dpp v{CW+r}, v{acc(0,0)+r} row_newbcast:0 row_mask:0xf bank_mask:0xf')
    def epi_k(s):
        src, st, dst = acc(1, s), STC + 2 * s, KP + 2 * s
        return [[f'v_pk_fma_f32 {vr(src+2*h,2)}, {vr(CW+4+2*h,2)}, {vr(st,2)}, {vr(src+2*h,2)} op_sel_hi:[1,0,1]' for h in range(2)],
                [f'v_pk_mul_f32 {vr(src+2*h,2)}, {vr(src+2*h,2)}, {vr(st,2)} op_sel:[0,1] op_sel_hi:[1,1]' for h in range(2)],
                [f'v_cvt_pk_bf16_f32 v{dst+h}, v{src+2*h}, v{src+2*h+1}' for h in range(2)]]
    def epi_q(s):
        src, st, dst = acc(0, s), STC + 2 * s, QP + 2 * (s - 1)
        return [[f'v_pk_fma_f32 {vr(src+2*h,2)}, {vr(CW+2*h,2)}, {vr(st,2)}, {vr(src+2*h,2)} op_sel_hi:[1,0,1]' for h in range(2)],
                [],
                [f'v_cvt_pk_bf16_f32 v{dst+h}, v{src+2*h}, v{src+2*h+1}' for h in range(2)]]
    def epi_v(s):
        src, dst = acc(2, s), VP + 2 * s
        return [[f'v_pk_fma_f32 {vr(src+2*h,2)}, {vr(NM4+4*s+2*h,2)}, {vr(CWV,2)}, {vr(src+2*h,2)} op_sel_hi:[1,0,1]' for h in range(2)],
                [f'v_pk_mul_f32 {vr(src+2*h,2)}, {vr(src+2*h,2)}, {vr(RS4+4*s+2*h,2)}' for h in range(2)],
                [f'v_cvt_pk_bf16_f32 v{dst+h}, v{src+2*h}, v{src+2*h+1}' for h in range(2)]]
    E = [epi_k(s) for s in range(5)] + [epi_q(s) for s in range(1, 5)]
    a.wait(vm=['clr'])
    for ph in range(3):
        for e in E: a.run(e[ph])
    a(f'v_mov_b32 v{CWV}, v{acc(2,0)}')
    a(f'v_mov_b32 v{CWV+1}, v{acc(2,0)}')
    smm = []
    for u in range(4):
        q = vr(QP + 2 * u, 2)
        smm.append(f'v_mfma_f32_16x16x16_bf16 {vr(SC+4*u,4)}, {vr(KP+2*(u+1),2)}, {q}, {vr(BC,4)}')
        smm.append(f'v_mfma_f32_16x16x16_bf16 {vr(SP+4*u,4)}, {vr(KP+2*u,2)}, {q}, {vr(BP0 if u == 0 else BP,4)}')
    vv = [f'v_permlane16_swap_b32 v{CWV}, v{CWV+1}', f's_mov_b32 s{sT0}, {f2h(0.25 * 1.4426950408889634)}']
    vv += [f'v_mul_f32 v{STC+2*s+1}, s{sT0}, v{STC+2*s+1}' for s in range(1, 5)]
    E = [epi_v(s) for s in range(5)]
    for ph in range(3):
        for e in E: vv += e[ph]
    a.run(weave(smm, vv[:16]) + vv[16:])
    for u in range(4):
        for r in range(4):
            a(f'v_max_f32 v{SC+4*u+r}, v{SC+4*u+r}, v{SP+4*u+r}')
    for u in range(4):
        a(f'v_max3_f32 v{MX+u}, v{SC+4*u}, v{SC+4*u+1}, v{SC+4*u+2}')
    for u in range(4):
        a(f'v_max_f32 v{MX+u}, v{MX+u}, v{SC+4*u+3}')
    for sw in ('v_permlane16_swap_b32', 'v_permlane32_swap_b32'):
        for u in range(4): a(f'v_mov_b32 v{MT+u}, v{MX+u}')
        for u in range(4): a(f'{sw} v{MX+u}, v{MT+u}')
        for u in range(4): a(f'v_max_f32 v{MX+u}, v{MX+u}, v{MT+u}')
    for u in range(4):
        a(f'v_mul_f32 v{MX+u}, v{STC+2*u+3}, v{MX+u}')
    for u in range(4):
        for r in range(4):
            a(f'v_fma_f32 v{SC+4*u+r}, v{SC+4*u+r}, v{STC+2*u+3}, -v{MX+u}')
    for u in range(4):
        for r in range(4):
            a(f'v_exp_f32 v{SC+4*u+r}, v{SC+4*u+r}')
    for u in range(4):
        for h in range(2):
            a(f'v_cvt_pk_bf16_f32 v{PM+2*u+h}, v{SC+4*u+2*h}, v{SC+4*u+2*h+1}')
        for h in range(2):
            a(f'v_and_b32 v{PB+4*u+h}, v{PM+2*u+h}, v{MP+h}')
            a(f'v_and_b32 v{PB+4*u+2+h}, v{PM+2*u+h}, v{MC+h}')
    pm = []
    for u in range(4):
        pm.append(f'v_mfma_f32_16x16x16_bf16 {vr(SP+4*u,4)}, {vr(ONE,2)}, {vr(PM+2*u,2)}, 0')
    for u in range(4):
        pm.append(f'v_mfma_f32_16x16x32_bf16 {vr(SC+4*u,4)}, {vr(VP+2*u,4)}, {vr(PB+4*u,4)}, 0')
    sa = [f's_lshl2_add_u32 s{sT0}, s{sDT}, s{sWAVE}', f's_lshl_b32 s{sT2}, s{sCT4}, 7', f's_add_u32 s{sT2}, s{sT2}, s{sDT}', f's_lshl_b32 s{sT2}, s{sT2}, 2',
          f's_add_u32 s{sT2}, s{sT2}, {WS_F1:#x}', f's_lshl_b32 s{sT0}, s{sT0}, 9', f's_lshl_b32 s{sT1}, s{sRT}, 16', f's_add_u32 s{sT0}, s{sT0}, s{sT1}',
          f's_add_u32 s{sT1}, s{sT0}, 32768', f'v_lshrrev_b32 v{vT0}, 5, v{vL}', f'v_mul_u32_u24 v{vT0}, {16384 - 512}, v{vT0}', f'v_add_u32 v{vT0}, v{vT0}, v{vL16}',
          f'v_lshrrev_b32 v{vT3}, 2, v{vL}', f'v_and_b32 v{vT1}, 3, v{vL}', f'v_lshlrev_b32 v{vT1}, 7, v{vT1}', f'v_lshl_add_u32 v{vT3}, v{vT3}, 14, v{vT1}']
    a.run(weave(pm, sa))
    a('s_waitcnt lgkmcnt(0)')
    a(f's_cmp_lg_u32 s{sNON}, 0')
    a('s_cbranch_scc0 L_non')
    a.label('L_nonok')
    tail.append(['L_non:', f's_load_dword s{sNON}, s[{sDBG}:{sDBG+1}], 0 glc', 's_waitcnt lgkmcnt(0)', f's_cmp_lg_u32 s{sNON}, 0', 's_cbranch_scc1 L_nonok',
                 f's_sub_u32 s{sBUD}, s{sBUD}, 1', 's_cbranch_scc0 L_non', f's_mov_b32 s{sBUD}, 0', 's_branch L_nonok'])
    a(f's_mov_b32 s{sNON+1}, s{sNON}')
    a(f'v_mov_b32 v{vT2}, s{sNON}')
    for u in range(4):
        a(f'v_rcp_f32 v{SP+4*u}, v{SP+4*u}')
    for u in range(4):
        for h in range(2):
            a(f'v_pk_mul_f32 {vr(SC+4*u+2*h,2)}, {vr(SC+4*u+2*h,2)}, {vr(SP+4*u,2)} op_sel_hi:[1,0]')
    for u in range(4):
        for h in range(2):
            a(f'v_cvt_pk_bf16_f32 v{OUT+2*u+h}, v{SC+4*u+2*h}, v{SC+4*u+2*h+1}')
    for e in range(2):
        for h in range(2):
            a(f'v_permlane32_swap_b32 v{OUT+4*e+h}, v{OUT+4*e+2+h}')
    for e in range(2):
        a.vm('ost', f'buffer_store_dwordx4 {vr(OUT+4*e,4)}, v{vT0}, {srd(sWS)}, s{[sT0,sT1][e]} offen sc1')
    nflag = [0]
    def flag(soff, barrier=True):
        nflag[0] += 1
        if barrier: a('s_barrier')
        a(f's_cmp_lg_u32 s{sWAVE}, 0')
        a(f's_cbranch_scc1 L_nf{nflag[0]}')
        a('s_mov_b32 exec_hi, 0')
        a(f'buffer_store_dword v{vT2}, v{vT3}, {srd(sWS)}, s{soff} offen sc1')
        a('s_mov_b32 exec_hi, -1')
        a.label(f'L_nf{nflag[0]}')
    flag(sT2)
    a.stamp(0, 1)
    pre = []
    for u in range(UA, UA + UB): pre += dma_unit(True, u, vQ1, u)
    ID, O, ACC2, S2, PK2 = 20, 64, 128, 144, 152
    vHO, vSO, vTW = 9, 10, 12
    cst = [f'v_bfe_u32 v{vT0}, v{vL}, 2, 3', f'v_lshrrev_b32 v{vT1}, 5, v{vL}', f'v_lshl_add_u32 v{vT0}, v{vT1}, 4, v{vT0}', f'v_lshlrev_b32 v{vTW}, 7, v{vT0}',
           f'v_bfe_u32 v{vT0}, v{vL}, 3, 2', f'v_lshl_add_u32 v{vTW}, v{vT0}, 5, v{vTW}', f'v_and_b32 v{vT0}, 3, v{vL}', f'v_lshl_add_u32 v{vTW}, v{vT0}, 3, v{vTW}']
    cst += [f'v_xor_b32 v{vTW+t}, {32*t}, v{vTW}' for t in range(1, 4)]
    cst += [f'v_and_b32 v{vT0}, 1, v{vC}', f'v_lshlrev_b32 v{vT0}, 4, v{vT0}', f'v_mov_b32 v{vT1}, 0x3f80', f'v_lshlrev_b32 v{vT0}, v{vT0}, v{vT1}',
            f'v_lshrrev_b32 v{vT1}, 1, v{vC}', f'v_lshlrev_b32 v{vE0}, 2, v{vG}', f'v_sub_u32 v{vT1}, v{vT1}, v{vE0}']
    for b in range(2):
        for k in range(4):
            cst += [f'v_cmp_eq_i32 vcc, {k - 8*b}, v{vT1}', f'v_cndmask_b32 v{ID+4*b+k}, 0, v{vT0}, vcc']
    cst += [f'v_and_b32 v{vT0}, 1, v{vG}', f'v_lshlrev_b32 v{vHO}, 10, v{vT0}', f'v_lshrrev_b32 v{vT0}, 1, v{vG}', f'v_lshl_add_u32 v{vHO}, v{vT0}, 8, v{vHO}',
            f'v_lshl_add_u32 v{vHO}, v{vC}, 4, v{vHO}',
            f'v_lshrrev_b32 v{vT0}, 2, v{vC}', f'v_lshlrev_b32 v{vSO}, 8, v{vT0}', f'v_lshl_add_u32 v{vSO}, v{vG}, 6, v{vSO}', f'v_and_b32 v{vT0}, 3, v{vC}',
            f'v_lshl_add_u32 v{vSO}, v{vT0}, 4, v{vSO}']
    cst += [f'v_mfma_f32_16x16x32_bf16 {vr(ACC2+4*t,4)}, {vr(XR+4*(t>>1),4)}, {vr(ID+4*(t&1),4)}, 0' for t in range(4)]
    sBLK = sXB
    sFL = sLW
    cst += [f's_lshl_b32 s{sFL}, s{sDT}, 5', f's_add_u32 s{sFL}, s{sFL}, s{sCT4}', f's_lshl2_add_u32 s{sFL}, s{sFL}, s{sWAVE}', f's_lshl_b32 s{sFL}, s{sFL}, 7',
            f's_add_u32 s{sFL}, s{sFL}, {WS_F1:#x}', f'v_lshlrev_b32 v{vT3}, 9, v{vL}', f's_lshl2_add_u32 s{sBLK}, s{sRT}, s{sWAVE}', f's_lshl_b32 s{sT1}, s{sBLK}, 14']
    a.run(pre[:4] + mix(cst, pre[4:]))
    a.wait(vm=['wo'])
    a('s_barrier')
    def wf2(i): return [32, 48, 176, 192, 208, 224][i % 6]
    def tr2(i):
        return [('ds', ('w2r', i), f'ds_read_b64_tr_b16 {vr(wf2(i)+4*t+2*h,2)}, v{vTW+t} offset:{4096*i+1024*h}') for t in range(4) for h in range(2)]
    for i in range(5): a.run(tr2(i))
    def poll(lbl, soff):
        a.label(lbl)
        a(f's_load_dwordx8 s[{sPOLL}:{sPOLL+7}], s[{sWS}:{sWS+1}], s{soff} glc')
        a.wait_all(vm=False)
        for k in range(4): a(f's_xor_b64 s[{sPOLL+2*k}:{sPOLL+2*k+1}], s[{sPOLL+2*k}:{sPOLL+2*k+1}], s[{sNON}:{sNON+1}]')
        a(f's_or_b64 s[{sPOLL}:{sPOLL+1}], s[{sPOLL}:{sPOLL+1}], s[{sPOLL+2}:{sPOLL+3}]')
        a(f's_or_b64 s[{sPOLL+4}:{sPOLL+5}], s[{sPOLL+4}:{sPOLL+5}], s[{sPOLL+6}:{sPOLL+7}]')
        a(f's_or_b64 s[{sPOLL}:{sPOLL+1}], s[{sPOLL}:{sPOLL+1}], s[{sPOLL+4}:{sPOLL+5}]')
        a(f's_cbranch_scc0 {lbl}_ok')
        a(f's_sub_u32 s{sBUD}, s{sBUD}, 1')
        a(f's_cbranch_scc0 {lbl}')
        a(f's_mov_b32 s{sBUD}, 0')
        a.label(lbl + '_ok')
    def check(lbl, regs, reload):
        ck = [f'v_max3_u32 v{vCK}, v{regs[0]}, v{regs[1]}, v{regs[2]}', f'v_max_u32 v{vCK}, v{vCK}, v{regs[3]}', f'v_cmp_eq_u32 vcc, -1, v{vCK}']
        tail.append([lbl + ':', f's_sub_u32 s{sBUD}, s{sBUD}, 1', f's_cbranch_scc1 {lbl}_x'] + reload + ['s_waitcnt vmcnt(0)'] + ck +
                    [f's_cbranch_vccnz {lbl}', f's_branch {lbl}_b', lbl + '_x:', f's_mov_b32 s{sBUD}, 0', f's_branch {lbl}_b'])
        return ck + [('grp', [f's_cbranch_vccnz {lbl}', ('label', lbl + '_b')])]
    poll('L_p1', sFL)
    a.stamp()
    sOB = sWB
    a(f's_mov_b32 s{sOB}, s{sT1}')
    def oload(i, so): return f'buffer_load_dwordx4 {vr(O+4*i,4)}, v{vL16}, {srd(sWS)}, s{so} offen offset:{1024*(i&3)} sc1'
    for c in range(4):
        if c: a(f's_add_u32 s{sT1}, s{sT1}, 4096')
        for i in range(4): a.vm(('o', 4*c+i), oload(4*c+i, sT1))
    U2 = UA + UB
    if U2: a.wait(vm=[('u', True, U2 - 1)])
    for u in range(U2): a.run(tr_unit(True, u, vR1))
    a(f's_lshl_b32 s{sT0}, s{sDT}, 18')
    a(f's_lshr_b32 s{sT1}, s{sBLK}, 1')
    a(f's_lshl_b32 s{sT1}, s{sT1}, 12')
    a(f's_add_u32 s{sT0}, s{sT0}, s{sT1}')
    a(f's_and_b32 s{sT1}, s{sBLK}, 1')
    a(f's_lshl_b32 s{sT1}, s{sT1}, 9')
    a(f's_add_u32 s{sT0}, s{sT0}, s{sT1}')
    a(f's_add_u32 s{sT0}, s{sT0}, {WS_HF:#x}')
    a(f's_lshl_b32 s{sT1}, s{sBLK}, 11')
    a(f's_add_u32 s{sT1}, s{sT1}, {WS_SX:#x}')
    a(f's_lshl_b32 s{sT2}, s{sDT}, 8')
    a(f's_add_u32 s{sT2}, s{sT2}, s{sT1}')
    a(f'v_lshlrev_b32 v{vT0}, 2, v{vL}')
    def ocheck(c):
        return [('wvm', ('o', 4*c+3))] + check(f'L_ro{c}', [O + 16*c + 4*i for i in range(4)], [f's_add_u32 s{sCNT}, s{sOB}, {4096*c}'] + [oload(4*c+i, sCNT) for i in range(4)])
    ucl = []
    for k, u in enumerate(range(U2, U2 + UC)):
        sl = (U2 + k) % NSL
        ucl += [('grp', dma_unit(True, u, vQ1, sl))]
    a.wait_all(vm=False)
    a.run(ocheck(0))
    upos = {1 + (k * 14) // max(1, len(ucl)): o for k, o in enumerate(ucl)}
    for i in range(16):
        a.wait(ds=[('w2r', i)])
        mm = [f'v_mfma_f32_16x16x32_bf16 {vr(ACC2+4*t,4)}, {vr(O+4*i,4)}, {vr(wf2(i)+4*t,4)}, {vr(ACC2+4*t,4)}' for t in range(4)]
        f = tr2(i + 5) if i + 5 < 16 else []
        if i in upos: f = mix(f, flat([upos[i]]))
        if i % 4 == 3 and i < 12: f = f + ocheck(i // 4 + 1)
        a.run(weave(mm, f))
    a.stamp()
    S = S2
    for r in range(4):
        a(f'v_add_f32 v{S+r}, v{ACC2+r}, v{ACC2+4+r}')
        a(f'v_mul_f32 v{S+4+r}, v{ACC2+r}, v{ACC2+r}')
    for t in range(1, 4):
        for r in range(4):
            if t > 1: a(f'v_add_f32 v{S+r}, v{S+r}, v{ACC2+4*t+r}')
            a(f'v_fmac_f32 v{S+4+r}, v{ACC2+4*t+r}, v{ACC2+4*t+r}')
    for base in (S, S + 4):
        for i in range(2):
            a(f'v_add_f32_dpp v{base+i}, v{base+i}, v{base+i} row_ror:8 row_mask:0xf bank_mask:0x3')
    for base in (S, S + 4):
        for i in range(2):
            a(f'v_add_f32_dpp v{base+i}, v{base+i+2}, v{base+i+2} row_ror:8 row_mask:0xf bank_mask:0xc')
    for base in (S, S + 4):
        a(f'v_add_f32_dpp v{base}, v{base}, v{base} row_half_mirror row_mask:0xf bank_mask:0x5')
    for base in (S, S + 4):
        a(f'v_add_f32_dpp v{base}, v{base+1}, v{base+1} row_half_mirror row_mask:0xf bank_mask:0xa')
    for qp in ('[1,0,3,2]', '[2,3,0,1]'):
        for base in (S, S + 4):
            a(f'v_add_f32_dpp v{base}, v{base}, v{base} quad_perm:{qp} row_mask:0xf bank_mask:0xf')
    a('s_mov_b32 vcc_lo, 0xaaaaaaaa')
    a('s_mov_b32 vcc_hi, 0xaaaaaaaa')
    a(f'v_cndmask_b32 v{S}, v{S}, v{S+4}, vcc')
    a('s_mov_b32 vcc_lo, 0xcccccccc')
    a('s_mov_b32 vcc_hi, 0xcccccccc')
    a(f'v_cndmask_b32 v{S}, v{S}, v{vT2}, vcc')
    a.vm('sx', f'buffer_store_dword v{S}, v{vT0}, {srd(sWS)}, s{sT2} offen sc1')
    def pack_store(tag, soff):
        for t in range(4):
            for h in range(2):
                a(f'v_cvt_pk_bf16_f32 v{PK2+2*t+h}, v{ACC2+4*t+2*h}, v{ACC2+4*t+2*h+1}')
        for e in range(2):
            for h in range(2):
                a(f'v_permlane16_swap_b32 v{PK2+4*e+h}, v{PK2+4*e+2+h}')
        for e in range(2):
            a.vm(tag, f'buffer_store_dwordx4 {vr(PK2+4*e,4)}, v{vHO}, {srd(sWS)}, s{soff} offen offset:{2048*e} sc1')
    pack_store('hst', sT0)
    PK2 = PK2 + 8
    a(f's_sub_u32 s{sT0}, s{sT0}, {WS_HF - WS_HN:#x}')
    a(f's_lshl_b32 s{sT2}, s{sDT}, 7')
    a(f's_lshr_b32 s3, s{sRT}, 3')
    a(f's_add_u32 s{sT2}, s{sT2}, s3')
    a(f's_lshl_b32 s{sT2}, s{sT2}, 5')
    a(f's_and_b32 s3, s{sRT}, 7')
    a(f's_add_u32 s{sT2}, s{sT2}, s3')
    a(f's_lshl_b32 s{sT2}, s{sT2}, 2')
    a(f's_add_u32 s{sT2}, s{sT2}, {WS_F2:#x}')
    U3 = U2 + UC
    if UC: a.wait(vm=[('u', True, U3 - 1)])
    for u in range(U2, U3): a.run(tr_unit(True, u, vR1))
    a.stamp()
    R0 = O
    a.label('L_sx')
    for e in range(2):
        a(f'buffer_load_dwordx4 {vr(R0+4*e,4)}, v{vSO}, {srd(sWS)}, s{sT1} offen offset:{1024*e} sc1')
    a.wait_all(ds=False)
    a(f'v_xor_b32 v{R0+2}, s{sNON}, v{R0+2}')
    a(f'v_xor_b32 v{R0+6}, s{sNON}, v{R0+6}')
    a(f'v_add_f32 v{R0}, v{R0}, v{R0+4}')
    a(f'v_or_b32 v{R0+2}, v{R0+2}, v{R0+6}')
    a(f'v_add_f32 v{R0+1}, v{R0+1}, v{R0+5}')
    a(f'v_cmp_ne_u32 vcc, 0, v{R0+2}')
    a('s_cbranch_vccz L_sx_ok')
    a(f's_sub_u32 s{sBUD}, s{sBUD}, 1')
    a('s_cbranch_scc0 L_sx')
    a(f's_mov_b32 s{sBUD}, 0')
    a.label('L_sx_ok')
    a.stamp()
    for ror in (4, 8):
        for k in range(2):
            a(f'v_add_f32_dpp v{R0+k}, v{R0+k}, v{R0+k} row_ror:{ror} row_mask:0xf bank_mask:0xf')
    s_, q_, t_ = R0, R0 + 1, R0 + 2
    a(f's_mov_b32 s{sT1}, 0x3727c5ac')
    a(f'v_mul_f32 v{s_}, 0xbb000000, v{s_}')
    a(f'v_mul_f32 v{q_}, 0x3b000000, v{q_}')
    a(f'v_fma_f32 v{q_}, -v{s_}, v{s_}, v{q_}')
    a(f'v_max_f32 v{q_}, 0, v{q_}')
    a(f'v_add_f32 v{t_}, s{sT1}, v{q_}')
    a(f'v_rsq_f32 v{t_}, v{t_}')
    a(f'v_mul_f32 v{q_}, v{q_}, v{t_}')
    a(f'v_fma_f32 v{q_}, v{q_}, v{t_}, s{sT1}')
    a(f'v_rsq_f32 v{q_}, v{q_}')
    a(f'v_mul_f32 v{t_}, v{t_}, v{q_}')
    a(f'v_mul_f32 v{s_}, v{s_}, v{t_}')
    RR, BB = R0 + 4, R0 + 8
    for r in range(4):
        a(f'v_mov_b32_dpp v{RR+r}, v{t_} quad_perm:[{r},{r},{r},{r}] row_mask:0xf bank_mask:0xf')
    for r in range(4):
        a(f'v_mov_b32_dpp v{BB+r}, v{s_} quad_perm:[{r},{r},{r},{r}] row_mask:0xf bank_mask:0xf')
    for t in range(4):
        for h in range(2):
            a(f'v_pk_fma_f32 {vr(ACC2+4*t+2*h,2)}, {vr(ACC2+4*t+2*h,2)}, {vr(RR+2*h,2)}, {vr(BB+2*h,2)}')
    pack_store('hst', sT0)
    a.wait_all(vm=False)
    flag(sT2)
    a.stamp()
    vQ2, vR2 = 24, 28
    vA0, vA1 = 17, 18
    BI4 = 20
    OWN, OTH, ST, H = 32, 48, 96, 128
    nrest = 16 - U3
    assert nrest + OPT['W2PRE'] <= NSL
    pre = []
    for k, u in enumerate(range(U3, 16)): pre += dma_unit(True, u, vQ1, k)
    a.run(mix(pre, w2_scalars(sW2A, sW2B, sROT4) + flat(mk_q(vQ2, False))) if False else pre + w2_scalars(sW2A, sW2B, sROT4) + mk_q(vQ2, False) + mk_r(vR2, False))
    a(f's_cmp_ge_u32 s{sZ}, 7')
    a('s_cbranch_scc1 L_skip3')
    save_vm = list(a.vmq)
    w2_issued = 0
    w2slot = lambda k: (nrest + k) % NSL
    for k in range(OPT['W2PRE']):
        a.run(dma_unit(False, k, vQ2, w2slot(k))); w2_issued += 1
    a(f's_lshr_b32 s{sT0}, s{sWAVE}, 1')
    a(f's_lshl_b32 s{sT0}, s{sT0}, 11')
    a(f'v_or_b32 v{vA0}, s{sT0}, v{vL16}')
    a(f'v_xor_b32 v{vA1}, 2048, v{vA0}')
    a(f's_lshl_b32 s{sT0}, s{sCT3}, 7')
    a(f's_and_b32 s{sT1}, s{sWAVE}, 1')
    a(f's_lshl_b32 s{sT1}, s{sT1}, 6')
    a(f's_add_u32 s{sT0}, s{sT0}, s{sT1}')
    a(f'v_lshlrev_b32 v{vT0}, 3, v{vG}')
    for i in range(2):
        a.vm('b1', f'buffer_load_dwordx2 {vr(BI4+2*i,2)}, v{vT0}, {srd(sB1)}, s{sT0} offen offset:{32*i}')
    sHA, sHB = sXB, sWB
    a(f's_lshl4_add_u32 s{sT0}, s{sWAVE}, s{sROT3}')
    a(f's_lshl_b32 s{sHA}, s{sT0}, 12')
    a(f's_lshl_b32 s{sT0}, s{sDT}, 18')
    a(f's_add_u32 s{sHA}, s{sHA}, s{sT0}')
    a(f's_add_u32 s{sHA}, s{sHA}, {WS_HN:#x}')
    a(f's_sub_u32 s{sHB}, s{sHA}, 65536')
    vRD = 9
    red_addr = [f's_mul_i32 s{sT0}, s{sWAVE}, 12288']
    for q in range(1, 4):
        red_addr += [f's_xor_b32 s{sT1}, s{sWAVE}, {q}', f's_mul_i32 s{sT1}, s{sT1}, 12288', f'v_add_u32 v{vRD+q-1}, s{sT1}, v{vL16}']
    red_addr += [f'v_add_u32 v{vRD+3}, s{sT0}, v{vL16}']
    a.run(red_addr)
    a(f's_add_u32 s{sT0}, s{sFL}, 32')
    poll('L_p2', sT0)
    a.stamp()
    def hreg(i, t): return H + 16 * (i % 7) + 4 * t
    def aload_txt(K3, i, t, so):
        if K3: return f'buffer_load_dwordx4 {vr(hreg(i,t),4)}, v{vA1 if t >> 1 else vA0}, {srd(sWS)}, s{so} offen offset:{1024*(t&1)} sc1'
        return f'buffer_load_dwordx4 {vr(hreg(i,t),4)}, v{vL16}, {srd(sWS)}, s{so} offen offset:{1024*t} sc1'
    def aaddr(K3, i, so):
        N = 16 if K3 else 14
        rot = sROT3 if K3 else sROT4
        return [f's_cmp_lt_u32 s{rot}, {N - i}', f's_cselect_b32 s{so}, s{sHA}, s{sHB}', f's_add_u32 s{so}, s{so}, {i*4096}']
    def aloads(K3, i):
        return [('grp', (aaddr(K3, i, sCNT) if t == 0 else []) + [('vm', ('a', K3, i), aload_txt(K3, i, t, sCNT))]) for t in range(4)]
    def acheck(K3, i):
        return [('wvm', ('a', K3, i))] + check(f'L_ra{int(K3)}_{i}', [hreg(i, t) for t in range(4)], aaddr(K3, i, sPOLL) + [aload_txt(K3, i, t, sPOLL) for t in range(4)])
    def acc34(K3, tw, ta):
        q, k = ((tw >> 1) + 2 * (ta >> 1), (tw & 1) + 2 * (ta & 1)) if K3 else (tw, ta)
        return q, vr(OWN + 16 * q + 4 * k, 4)
    def mm34(K3, i, quad=None):
        mm = []
        for ta in range(4):
            for tw in range(4):
                q, d = acc34(K3, tw, ta)
                if quad is not None and q != quad: continue
                A, B = (ar(16*i+4*tw, 4), vr(hreg(i, ta), 4)) if K3 else (vr(hreg(i, ta), 4), ar(16*i+4*tw, 4))
                mm.append(f'v_mfma_f32_16x16x32_bf16 {d}, {A}, {B}, {"0" if i == 0 else d}')
        return mm
    def red_w(q): return [('ds', 'rw', f'ds_write_b128 v{vRD+q-1}, {vr(OWN+16*q+4*k,4)} offset:{4096*(q-1)+1024*k}') for k in range(4)]
    def gemm34(K3, N, fills, first):
        NQ, D0 = OPT['NQ'], OPT['D0']
        for i in range(D0): a.run(aloads(K3, i))
        a.run(first)
        rest = [o for i in range(D0, N) for o in aloads(K3, i)]
        nb = N - NQ - 1
        a.run(acheck(K3, 0))
        done = 0
        for i in range(N - NQ):
            tgt = min(len(rest), ((i + 1) * len(rest) + nb - 1) // nb, 4 * (i + 6 - D0 + 1))
            ld = rest[done:tgt]; done = tgt
            f = mix(ld, fills.get(i, []))
            mm = mm34(K3, i)
            a.run(weave(mm[:11], f) + weave(mm[11:], acheck(K3, i + 1)))
        assert done == len(rest)
        prev = None
        for j, q in enumerate((1, 2, 3, 0)):
            f = fills.get(N - NQ + j, [])
            if j == 0:
                for i in range(N - NQ, N):
                    a.run(weave(mm34(K3, i, q), acheck(K3, i + 1) if i + 1 < N else f))
            else:
                mm = []
                for i in range(N - NQ, N): mm += mm34(K3, i, q)
                a.run(mm[:3] + weave(mm[3:], mix(f, red_w(prev))))
            prev = q
    def reduce_rd():
        a.wait_all(vm=False)
        a('s_barrier')
        for k in range(4):
            for q in range(3):
                a.ds(('rr', k), f'ds_read_b128 {vr(OTH+16*q+4*k,4)}, v{vRD+3} offset:{4096*q+1024*k}')
    def reduce_sum(k, bias):
        o = OWN + 4 * k
        ops = [('wds', ('rr', k))]
        for h in range(2):
            ops += [f'v_pk_add_f32 {vr(o+2*h,2)}, {vr(o+2*h,2)}, {bias(k, h)}', f'v_pk_add_f32 {vr(OTH+4*k+2*h,2)}, {vr(OTH+4*k+2*h,2)}, {vr(OTH+16+4*k+2*h,2)}']
        ops += [f'v_pk_add_f32 {vr(o+2*h,2)}, {vr(o+2*h,2)}, {vr(OTH+32+4*k+2*h,2)}' for h in range(2)]
        ops += [f'v_pk_add_f32 {vr(o+2*h,2)}, {vr(o+2*h,2)}, {vr(OTH+4*k+2*h,2)}' for h in range(2)]
        return ops
    first = []
    if nrest: first += [('wvm', ('u', True, 15))]
    for u in range(U3, 16): first += tr_unit(True, u, vR1)
    BF = ST
    fills = {}
    w2_moved = 0
    for i in range(1, 1 + OPT['W2PRE']):
        fills[i] = tr_unit(False, i - 1, vR2); w2_moved += 1
    fills[8] = fills.get(8, []) + [('wds', ('t', True, 15)), ('wds', ('t', False, w2_moved - 1))] + \
        [x for i in range(4) for x in (f'v_lshlrev_b32 v{BF+2*i}, 16, v{BI4+i}', f'v_and_b32 v{BF+2*i+1}, 0xffff0000, v{BI4+i}')]
    assert U3 > 8 or True
    for i in range(OPT['W2B'], 16 - OPT['NQ'] + 4):
        if w2_issued < min(14, w2_moved + NSL):
            fills[i] = fills.get(i, []) + dma_unit(False, w2_issued, vQ2, w2slot(w2_issued)); w2_issued += 1
    if U3 <= 8: first += [('wds', ('t', True, 15))]
    gemm34(True, 16, fills, first)
    a.stamp()
    reduce_rd()
    a(f's_mul_i32 s{sT0}, s{sDT}, {56*4096}')
    a(f's_lshl_b32 s{sT1}, s{sCT3}, 13')
    a(f's_add_u32 s{sT0}, s{sT0}, s{sT1}')
    a(f's_and_b32 s{sT1}, s{sWAVE}, 1')
    a(f's_lshl_b32 s{sT1}, s{sT1}, 12')
    a(f's_add_u32 s{sT0}, s{sT0}, s{sT1}')
    a(f's_add_u32 s{sT0}, s{sT0}, {WS_UF:#x}')
    f3 = [f's_lshl_b32 s{sT2}, s{sDT}, 7', f's_lshr_b32 s{sT1}, s{sCT4}, 3', f's_add_u32 s{sT2}, s{sT2}, s{sT1}', f's_lshl_b32 s{sT2}, s{sT2}, 5', f's_add_u32 s{sT2}, s{sT2}, s{sZ}',
          f's_lshl_b32 s{sT2}, s{sT2}, 2', f's_add_u32 s{sT2}, s{sT2}, {WS_F3:#x}']
    a.run(f3)
    C1 = -2.0 * 0.7978845608028654 * 1.4426950408889634
    GC = ST + 8
    a(f'v_mov_b32 v{GC}, {f2h(C1 * 0.044715)}')
    a(f'v_mov_b32 v{GC+1}, {f2h(C1)}')
    T = H
    PK = H + 16
    ep = []
    for k in range(4): ep += reduce_sum(k, lambda k, h: vr(BF + 4 * (k & 1) + 2 * h, 2))
    nred = len(ep)
    ep += [f'v_pk_mul_f32 {vr(T+2*j,2)}, {vr(OWN+2*j,2)}, {vr(OWN+2*j,2)}' for j in range(8)]
    ep += [f'v_pk_fma_f32 {vr(T+2*j,2)}, {vr(T+2*j,2)}, {vr(GC,2)}, {vr(GC,2)} op_sel:[0,0,1] op_sel_hi:[1,0,1]' for j in range(8)]
    ep += [f'v_pk_mul_f32 {vr(T+2*j,2)}, {vr(T+2*j,2)}, {vr(OWN+2*j,2)}' for j in range(8)]
    ep += [f'v_exp_f32 v{T+j}, v{T+j}' for j in range(16)]
    ep += [f'v_pk_add_f32 {vr(T+2*j,2)}, {vr(T+2*j,2)}, 1.0 op_sel_hi:[1,0]' for j in range(8)]
    ep += [f'v_rcp_f32 v{T+j}, v{T+j}' for j in range(16)]
    ep += [f'v_pk_mul_f32 {vr(OWN+2*j,2)}, {vr(T+2*j,2)}, {vr(OWN+2*j,2)}' for j in range(8)]
    ep += [f'v_cvt_pk_bf16_f32 v{PK+j}, v{OWN+2*j}, v{OWN+2*j+1}' for j in range(8)]
    a.run(ep)
    for b in range(2):
        a.vm('ust', f'buffer_store_dwordx4 {vr(PK+4*b,4)}, v{vA0}, {srd(sWS)}, s{sT0} offen offset:{1024*b} sc1')
    flag(sT2)
    a.stamp()
    while w2_moved < 14:
        k = w2_moved
        a.wait(vm=[('u', False, k)])
        a.run(tr_unit(False, k, vR2))
        w2_moved += 1
        if w2_issued < 14 and k >= 1:
            a.wait(ds=[('t', False, k - 1)])
            while w2_issued < min(14, k + NSL):
                a.run(dma_unit(False, w2_issued, vQ2, w2slot(w2_issued))); w2_issued += 1
    a('s_branch L_join3')
    a.label('L_skip3')
    vq, dq = a.vmq, a.dsq; a.vmq = save_vm; a.dsq = []
    a.run(f3)
    flag(sT2, barrier=False)
    a.wait_all()
    for u in range(U3, 14): a.run(tr_unit(True, u, vR1))
    a.run(red_addr)
    if OPT['SKT']:
        a(f's_mul_i32 s{sT0}, s{sWAVE}, {448 * 4096}')
        a(f's_and_b32 s{sT1}, s{sCT4}, 24')
        a(f's_lshl_b32 s{sT1}, s{sT1}, 7')
        a(f's_add_u32 s{sT0}, s{sT0}, s{sT1}')
        a(f'v_lshrrev_b32 v{vT0}, 3, v{vL}')
        a(f's_lshl_b32 s{sT1}, s{sROT4}, 5')
        a(f'v_add_u32 v{vT0}, s{sT1}, v{vT0}')
        a(f'v_and_b32 v{vT1}, 7, v{vL}')
        a(f'v_lshlrev_b32 v{vT1}, 7, v{vT1}')
        a('s_mov_b32 exec_lo, 0x7f7f7f7f')
        a('s_mov_b32 exec_hi, 0x7f7f7f7f')
        for n in range(16):
            a(f'v_min_u32 v{H+n}, 447, v{vT0}')
            a(f'v_lshl_add_u32 v{H+n}, v{H+n}, 12, v{vT1}')
            a(f'v_add_u32 v{vT0}, 8, v{vT0}')
            a(f'buffer_load_dword v{vDUM}, v{H+n}, {srd(sW2)}, s{sT0} offen')
        a('s_mov_b64 exec, -1')
    a.wait_all()
    a.vmq = vq; a.dsq = dq
    a.label('L_join3')
    RES, PMX, vBI = ST, BI4, BI4 + 2
    sRS = sW1A
    a(f's_mul_i32 s{sT0}, s{sWAVE}, 14')
    a(f's_add_u32 s{sT0}, s{sT0}, s{sROT4}')
    a(f's_lshl_b32 s{sHA}, s{sT0}, 12')
    a(f's_mul_i32 s{sT0}, s{sDT}, {56*4096}')
    a(f's_add_u32 s{sHA}, s{sHA}, s{sT0}')
    a(f's_add_u32 s{sHA}, s{sHA}, {WS_UF:#x}')
    a(f's_sub_u32 s{sHB}, s{sHA}, {14*4096}')
    a(f's_lshl_b32 s{sT0}, s{sCT4}, 7')
    a(f's_lshl_b32 s{sT1}, s{sWAVE}, 5')
    a(f's_add_u32 s{sT0}, s{sT0}, s{sT1}')
    a(f'v_lshlrev_b32 v{vT0}, 1, v{vC}')
    a.vm('b2', f'buffer_load_ushort v{vBI}, v{vT0}, {srd(sB2)}, s{sT0} offen')
    a(f'v_lshrrev_b32 v{vT0}, 3, v{vC}')
    a(f'v_and_b32 v{vT1}, 1, v{vC}')
    a(f'v_lshl_add_u32 v{vT0}, v{vT1}, 1, v{vT0}')
    a(f'v_bfe_u32 v{vT1}, v{vC}, 1, 1')
    a(f'v_lshlrev_b32 v{vT1}, 4, v{vT1}')
    a(f'v_mov_b32 v{vT2}, 0x3f80')
    a(f'v_lshlrev_b32 v{vT1}, v{vT1}, v{vT2}')
    a(f'v_cmp_eq_u32 vcc, v{vT0}, v{vG}')
    a(f'v_cndmask_b32 v{vT1}, 0, v{vT1}, vcc')
    a(f'v_and_b32 v{vT0}, 4, v{vC}')
    a(f'v_cmp_eq_u32 vcc, 0, v{vT0}')
    a(f'v_cndmask_b32 v{PMX}, 0, v{vT1}, vcc')
    a(f'v_cndmask_b32_e64 v{PMX+1}, v{vT1}, 0, vcc')
    a(f'v_lshrrev_b32 v{vA0}, 1, v{vG}')
    a(f'v_lshlrev_b32 v{vA0}, 17, v{vA0}')
    a(f'v_lshl_add_u32 v{vA0}, v{vC}, 4, v{vA0}')
    a(f'v_and_b32 v{vT1}, 1, v{vG}')
    a(f'v_lshl_add_u32 v{vA0}, v{vT1}, 3, v{vA0}')
    a(f's_lshl_b32 s{sRS}, s{sDT}, 18')
    a(f's_lshl_b32 s{sT2}, s{sCT4}, 12')
    a(f's_add_u32 s{sRS}, s{sRS}, s{sT2}')
    a(f's_lshl_b32 s{sT2}, s{sWAVE}, 8')
    a(f's_add_u32 s{sRS}, s{sRS}, s{sT2}')
    a(f's_add_u32 s{sRS}, s{sRS}, {WS_HF:#x}')
    a(f'v_lshlrev_b32 v{vA1}, 10, v{vC}')
    a(f'v_lshl_add_u32 v{vA1}, v{vT1}, 5, v{vA1}')
    a(f'v_lshrrev_b32 v{vT1}, 1, v{vG}')
    a(f'v_lshl_add_u32 v{vA1}, v{vT1}, 4, v{vA1}')
    a(f's_add_u32 s{sT0}, s{sFL}, 64')
    poll('L_p3', sT0)
    a.stamp()
    N4 = 14 - OPT['NQ']
    fills = {2: [('vm', 'res', f'buffer_load_dwordx2 {vr(RES+2*t,2)}, v{vA0}, {srd(sWS)}, s{sRS} offen offset:{1024*t} sc1') for t in range(4)],
             N4 + 2: [('wvm', 'res')] + [f'v_mfma_f32_16x16x16_bf16 {acc34(False,0,t)[1]}, {vr(RES+2*t,2)}, {vr(PMX,2)}, {acc34(False,0,t)[1]}' for t in range(4)],
             3: [f'v_lshlrev_b32 v{vBI}, 16, v{vBI}', f'v_mov_b32 v{vBI+1}, v{vBI}', f's_lshl_b32 s{sT0}, s{sCT4}, 16', f's_lshl_b32 s{sT1}, s{sWAVE}, 14',
                 f's_add_u32 s{sT0}, s{sT0}, s{sT1}', f's_lshl_b32 s{sT1}, s{sDT}, 7', f's_add_u32 s{sT0}, s{sT0}, s{sT1}']}
    gemm34(False, 14, fills, [])
    a.stamp()
    reduce_rd()
    for k in range(4): a.run(reduce_sum(k, lambda k, h: vr(vBI, 2)))
    for j in range(8): a(f'v_cvt_pk_bf16_f32 v{PK+j}, v{OWN+2*j}, v{OWN+2*j+1}')
    for e in range(2):
        for h in range(2):
            a(f'v_permlane16_swap_b32 v{PK+4*e+h}, v{PK+4*e+2+h}')
    for e in range(2):
        a(f'buffer_store_dwordx4 {vr(PK+4*e,4)}, v{vA1}, {srd(sOUT)}, s{sT0} offen offset:{64*e}' + ['', ' sc1', ' nt', ' sc0 sc1'][OPT['OSC']])
    a.stamp()
    if PROF:
        a('s_waitcnt lgkmcnt(0)')
        a(f's_cmp_lg_u32 s{sWAVE}, 0')
        a('s_cbranch_scc1 L_end')
        if OPT['AMP'] >= 0:
            a(f's_cmp_lg_u32 s2, {OPT["AWG"]}')
            a('s_cbranch_scc1 L_end')
            a(f's_sub_u32 s{sT2}, s{70+2*OPT["AMP"]}, s70')
            a(f's_lshl_b32 s{sT2}, s{sT2}, 3')
            a(f's_min_u32 s{sT2}, s{sT2}, 100000')
            a(f's_memrealtime s[{sT0}:{sT1}]')
            a('s_waitcnt lgkmcnt(0)')
            a(f's_mov_b32 s{sCNT}, s{sT0}')
            a.label('L_amp')
            a(f's_memrealtime s[{sT0}:{sT1}]')
            a('s_waitcnt lgkmcnt(0)')
            a(f's_sub_u32 s{sT0}, s{sT0}, s{sCNT}')
            a(f's_cmp_lt_u32 s{sT0}, s{sT2}')
            a('s_cbranch_scc1 L_amp')
            a('s_branch L_end')
        a(f's_mul_i32 s{sT0}, s2, {NSTAMP * 8}')
        a(f's_add_u32 s{sT0}, s{sT0}, {128 * MB:#x}')
        a(f's_add_u32 s{sT0}, s{sWS}, s{sT0}')
        a(f's_addc_u32 s{sT1}, s{sWS+1}, 0')
        a(f'v_mov_b32 v{vT0}, 0')
        for i in range(a.nst):
            a(f'v_mov_b32 v{H+2*i}, s{70+2*i}')
            a(f'v_mov_b32 v{H+2*i+1}, s{71+2*i}')
            a(f'global_store_dwordx2 v{vT0}, v[{H+2*i}:{H+2*i+1}], s[{sT0}:{sT1}] offset:{8*i}')
        a(f'v_mov_b32 v{H}, s{sBUD}')
        a(f'v_mov_b32 v{H+1}, 0')
        a(f'global_store_dwordx2 v{vT0}, v[{H}:{H+1}], s[{sT0}:{sT1}] offset:{8*19}')
    a.label('L_end')
    a('s_endpgm')
    for blk in tail:
        for ln in blk: a(ln)
    return a, name, LDS

HEADER = open('cdna_kernels/' + NAME + '.s.ref').read().split('; Override launch')[0]

def main():
    a, name, lds = gen()
    body = a.finalize()
    out = HEADER + f'; @launch grid=(256,1,1) block=(256,1,1) lds={lds}\n'
    out += '.amdgcn_target "amdgcn-amd-amdhsa--gfx950"\n.text\n' + body
    out += f""".section .rodata,"a"
.p2align 6
.amdhsa_kernel {name}
  .amdhsa_next_free_vgpr 512
  .amdhsa_next_free_sgpr 102
  .amdhsa_accum_offset 256
  .amdhsa_group_segment_fixed_size 0
  .amdhsa_kernarg_size 88
  .amdhsa_user_sgpr_count 2
  .amdhsa_user_sgpr_kernarg_segment_ptr 1
  .amdhsa_system_sgpr_workgroup_id_x 1
.end_amdhsa_kernel
"""
    open(sys.argv[1], 'w').write(out)
    print('nops inserted', a.nops_inserted, 'lines', out.count('\n'), 'stamps', a.nst)

if __name__ == '__main__':
    main()
```

```python
import sys, struct
from asmgen import Asm

NAME = "sequential_preLN__sliding_local_dilated__mixer_token_mlp__prompt"
PROF = '--prof' in sys.argv
OPT = dict(CW=1, ALN=12, XS=3, TWB=0, PB1=-1, PB2=-1, WOB=10, SKZ=1, NT1=0, NT2=0, NTT=0, NTX=0, NTW=0, NTO=0, EA=5, AEV=11, EB1=7, EB2=9, EC=13, ED=15, EE=19, EF=21, EG=21, NLOW=4, M2B=1, PG=0, TWO=1, NQ=3, D0=4, PRE1=14, PRE2=25, ZS3=0, AMP=-1, AWG=0,
           W2B=13, OSC=1, SKT=0, CLB=3, CLS=2, CLP=2, KPM=4,
           TN1=64, TB1=-1, TS1=2, DX=0, TW3=0, R3M=0, R4M=0, KP3=7, TN2=64, TB2=-1, TS2=1)
for a_ in sys.argv[2:]:
    if '=' in a_:
        k_, v_ = a_.split('='); assert k_ in OPT, k_; OPT[k_] = int(v_)
NSTAMP = 20
def ntu(K3, i): return ' nt' if i < OPT['NT1' if K3 else 'NT2'] else ''
def nt(k): return ' nt' if OPT[k] else ''
MB = 1 << 20
KB = 1024
WS_OF, WS_HN, WS_HF, WS_UF, WS_SX = 0, 2 * MB, 4 * MB, 6 * MB, 8 * MB
WS_F1, WS_DUM = 8 * MB + 256 * KB, 9 * MB
WS_F2, WS_F3 = WS_F1 + 128 * KB, WS_F1 + 256 * KB
NEGBIG = 0xF149F2CA
SPIN = 1 << 17

def vr(b, n=1): return f'v{b}' if n == 1 else f'v[{b}:{b+n-1}]'
def ar(b, n=1): return f'a{b}' if n == 1 else f'a[{b}:{b+n-1}]'
def srd(b): return f's[{b}:{b+3}]'
def f2h(x): return '%#x' % struct.unpack('<I', struct.pack('<f', x))[0]

class Em(Asm):
    def __init__(self):
        super().__init__()
        self.vmq = []; self.dsq = []; self.nst = 0
        self.inj = []; self.every = 1; self.cnt = 0
    def __call__(self, text):
        super().__call__(text)
        if self.inj and text.startswith('v_'):
            self.cnt += 1
            if self.cnt >= self.every:
                self.cnt = 0
                q = self.inj; op = q.pop(0); self.inj = []
                self.run([op]); self.inj = q
    def inject(self, ops, every): self.inj = list(ops); self.every = every; self.cnt = 0
    def flush(self):
        q = self.inj; self.inj = []; self.run(q)
    def vm(self, tag, text):
        self(text); self.vmq.append(tag)
        assert len(self.vmq) <= 63, ('vm overflow', tag)
    def ds(self, tag, text):
        self(text); self.dsq.append(tag)
    @staticmethod
    def _n(q, tags):
        idx = -1
        for k, t in enumerate(q):
            if t in tags: idx = k
        return idx
    def wait(self, vm=(), ds=()):
        s = []
        i = self._n(self.vmq, list(vm))
        if i >= 0:
            s.append(f'vmcnt({len(self.vmq) - 1 - i})'); self.vmq = self.vmq[i + 1:]
        i = self._n(self.dsq, list(ds))
        if i >= 0:
            n = len(self.dsq) - 1 - i
            if n > 15: n = 15
            s.append(f'lgkmcnt({n})'); self.dsq = self.dsq[len(self.dsq) - n:] if n else []
        if s: self('s_waitcnt ' + ' '.join(s))
    def wait_all(self, vm=True, ds=True):
        s = []
        if vm: s.append('vmcnt(0)'); self.vmq = []
        if ds: s.append('lgkmcnt(0)'); self.dsq = []
        self('s_waitcnt ' + ' '.join(s))
    def run(self, ops):
        for op in ops:
            if isinstance(op, str): self(op)
            elif op[0] == 'vm': self.vm(op[1], op[2])
            elif op[0] == 'ds': self.ds(op[1], op[2])
            elif op[0] == 'wvm': self.wait(vm=[op[1]])
            elif op[0] == 'wds': self.wait(ds=[op[1]])
            elif op[0] == 'grp': self.run(op[1])
            elif op[0] == 'label': self.label(op[1])
            else: raise ValueError(op)
    def stamp(self, *grps):
        if not PROF: return
        if not grps: grps = (0,)
        if OPT['PG'] not in grps and -1 not in grps: return
        assert self.nst < 15
        self(f's_memrealtime s[{70 + 2*self.nst}:{71 + 2*self.nst}]')
        self.nst += 1

def flat(ops):
    out = []
    for op in ops:
        if not isinstance(op, str) and op[0] == 'grp': out += flat(op[1])
        else: out.append(op)
    return out

def weave(prim, fill, lead=0):
    out = []
    n, m = len(prim), len(fill)
    k = 0
    for i, p in enumerate(prim):
        out.append(p)
        tgt = min(m, (m * (i + 1) + n - 1) // n + lead) if n else m
        while k < tgt:
            out.append(fill[k]); k += 1
    out += fill[k:]
    return out
def mix(a, b): return weave(a, b) if len(a) >= len(b) else weave(b, a)

sX, sWQ, sWO, sW1, sB1, sW2, sB2, sOUT, sDBG, sWS = 4, 8, 12, 16, 20, 24, 28, 32, 36, 40
sPOLL = 4
sWAVE, sBUD, sT0, sT1, sT2, sCNT = 44, 45, 46, 47, 48, 49
sXB, sWB, sWOB, sLW, sRT, sDT = 50, 51, 52, 53, 54, 55
sCT3, sCT4, sROT3, sROT4 = 56, 57, 58, 59
sW1A, sW1B, sW2A, sW2B, sPR, sLIM1 = 60, 61, 62, 63, 64, 65
sSTP1, sZ = 66, 67
sNON = 68
sD3 = 100
vL, vG, vC, vT0, vT1, vT2, vT3, vL16 = 1, 2, 3, 4, 5, 6, 7, 8
vDUM, vCK = 252, 253

def gen():
    a = Em()
    tail = []
    name = NAME + '_kernel'
    a.raw(f'.globl {name}\n.p2align {OPT["ALN"]}\n.type {name},@function')
    a.label(name)
    a.stamp(-1)
    NW = 6
    L_X = NW * 12288
    L_H = L_X + 64 * KB
    L_NM = L_H + 8 * KB
    L_HP = L_NM + 2560
    L_PR = 64 * KB
    NSL = 6
    LDS = 160 * KB
    assert L_HP + 2048 <= LDS
    for s, off in ((sX, 0), (sWQ, 8), (sWS, 80), (sDBG, 72), (sWO, 16), (sW1, 32), (sB1, 40), (sW2, 48), (sB2, 56), (sOUT, 64)):
        a(f's_load_dwordx2 s[{s}:{s+1}], s[0:1], {off}')
    a('s_cmp_ge_u32 s2, 256')
    a('s_cbranch_scc1 L_end')
    a(f'v_lshrrev_b32 v{vG}, 6, v0')
    a(f'v_and_b32 v{vL}, 63, v0')
    a(f'v_readfirstlane_b32 s{sWAVE}, v{vG}')
    if OPT['CW']:
        a(f's_getpc_b64 s[{sT0}:{sT1}]')
        a(f's_and_b32 s{sT0}, s{sT0}, 0xffffff00')
        a(f's_lshr_b32 s{sT2}, s2, 3')
        a(f's_lshl2_add_u32 s{sT2}, s{sT2}, s{sWAVE}')
        a(f's_lshl_b32 s{sT2}, s{sT2}, 8')
        a(f's_min_u32 s{sT2}, s{sT2}, (L_last-{name})&0xffffff00')
        a(f'v_and_b32 v{vT0}, 1, v0')
        a(f'v_lshl_add_u32 v{vT0}, v{vT0}, 7, s{sT2}')
        a.vm('cw', f'global_load_dword v{vDUM}, v{vT0}, s[{sT0}:{sT1}]')
    a(f'v_lshrrev_b32 v{vG}, 4, v{vL}')
    a(f'v_and_b32 v{vC}, 15, v{vL}')
    a(f'v_lshlrev_b32 v{vL16}, 4, v{vL}')
    for s, n in ((sX, 2048 * 1024), (sWQ, 512 * 3072), (sWS, 16 * MB), (sDBG, 256), (sWO, 512 * 1024), (sW1, 2048 * 3584),
                 (sB1, 3584), (sW2, 1792 * 4096), (sB2, 4096), (sOUT, 2048 * 1024)):
        a(f's_mov_b32 s{s+2}, {n:#x}')
        a(f's_mov_b32 s{s+3}, 0x20000')
    vXD, vWD, vWOD, vXR, vHR, vTR, vSR, vHS = 9, 10, 11, 12, 13, 14, 16, 17
    vXD1, vE0 = 18, 19
    WB, XB, ACC, SB, GS, GO, GH, CST, STC = 20, 44, 104, 164, 180, 184, 188, 192, 212
    QP, KP, VP = 222, 230, 20
    vXR1, vSR1, vRA = 240, 241, 242
    vQ1, vR1 = 244, 248
    SEN = QP
    sXL, sHL, sHB, sKP = sW2A, sW2B, sROT4, sPR
    a(f's_lshr_b32 s{sZ}, s2, 5')
    a(f's_bfe_u32 s{sT0}, s2, {1 | (2 << 16)}')
    a(f's_lshr_b32 s{sT1}, s2, 6')
    a(f's_lshl2_add_u32 s{sT0}, s{sT0}, s{sT1}')
    a(f's_and_b32 s{sT1}, s{sZ}, 1')
    a(f's_lshl4_add_u32 s{sRT}, s{sT1}, s{sT0}')
    a(f's_lshl_b32 s{sT1}, s{sT1}, 10')
    a(f's_bfe_u32 s{sT2}, s2, {3 | (2 << 16)}')
    if OPT['DX'] & 3: a(f's_xor_b32 s{sT2}, s{sT2}, {OPT["DX"] & 3}')
    a(f's_and_b32 s{sDT}, s2, 1')
    if OPT['DX'] & 4: a(f's_xor_b32 s{sDT}, s{sDT}, 1')
    a(f's_lshl2_add_u32 s{sDT}, s{sDT}, s{sT2}')
    a(f's_lshl_b32 s{sT2}, s{sT2}, 1')
    a(f's_xor_b32 s{sKP}, s{sT2}, s{sZ}')
    a(f's_cmp_eq_u32 s{sDT}, 3')
    a(f's_cselect_b32 s{sWB}, {OPT["KP3"]}, {OPT["KPM"]}')
    a(f's_and_b32 s{sKP}, s{sKP}, s{sWB}')
    a(f's_lshl_b32 s{sWB}, s{sKP}, 1')
    a(f's_lshl2_add_u32 s{sXB}, s{sT0}, s{sWAVE}')
    a(f's_lshl_b32 s{sXB}, s{sXB}, 15')
    a(f's_add_u32 s{sXB}, s{sXB}, s{sT1}')
    a(f's_lshl_b32 s{sT2}, s{sKP}, 7')
    a(f's_add_u32 s{sXB}, s{sXB}, s{sT2}')
    a(f's_lshl_b32 s{sT0}, s{sT0}, 17')
    a(f's_sub_u32 s{sT0}, s{sT0}, 16384')
    a(f's_max_i32 s{sT0}, s{sT0}, 0')
    a(f's_add_u32 s{sT0}, s{sT0}, s{sT1}')
    a(f's_xor_b32 s{sT2}, s{sKP}, s{sWAVE}')
    a(f's_lshl_b32 s{sT2}, s{sT2}, 7')
    a(f's_add_u32 s{sHB}, s{sT0}, s{sT2}')
    a(f's_lshl_b32 s{sXL}, s{sWAVE}, 14')
    a(f's_add_u32 s{sXL}, s{sXL}, {L_X}')
    a(f's_lshl_b32 s{sHL}, s{sWAVE}, 10')
    a(f's_add_u32 s{sHL}, s{sHL}, {L_H}')
    a(f's_mul_i32 s{sLW}, s{sWAVE}, 3072')
    a(f'v_lshrrev_b32 v{vT0}, 3, v{vL}')
    a(f'v_and_b32 v{vT1}, 7, v{vL}')
    a(f'v_xor_b32 v{vT1}, v{vT1}, v{vG}')
    a(f'v_lshlrev_b32 v{vT1}, 4, v{vT1}')
    a(f'v_lshl_add_u32 v{vXD}, v{vT0}, 11, v{vT1}')
    a(f'v_xor_b32 v{vXD1}, 64, v{vXD}')
    a(f'v_add_u32 v{vXD1}, {16384 - 1024}, v{vXD1}')
    a(f's_lshl_b32 s{sT0}, s{sDT}, 7')
    a(f's_lshl3_add_u32 s{sT0}, s{sLW}, s{sT0}')
    a(f'v_mov_b32 v{vT1}, 3072')
    a(f'v_mad_u32_u24 v{vWD}, v{vT0}, v{vT1}, s{sT0}')
    a(f'v_lshrrev_b32 v{vT0}, 1, v{vL}')
    a(f'v_and_b32 v{vT1}, 1, v{vG}')
    a(f's_lshl_b32 s3, s{sWAVE}, 1')
    a(f'v_xor_b32 v{vT0}, v{vT0}, v{vT1}')
    a(f'v_xor_b32 v{vT0}, s3, v{vT0}')
    a(f'v_and_b32 v{vT0}, 3, v{vT0}')
    a(f'v_lshl_add_u32 v{vWD}, v{vT0}, 5, v{vWD}')
    a(f'v_and_b32 v{vT0}, 1, v{vL}')
    a(f'v_lshl_add_u32 v{vWD}, v{vT0}, 4, v{vWD}')
    a('s_waitcnt lgkmcnt(0)')
    a.stamp(1)
    def xloads(p):
        return [('grp', [f's_add_u32 m0, s{sXL}, {p * 2048}', f's_xor_b32 s3, s{sXB}, {p * 128}',
                         ('vm', ('x', p), f'buffer_load_dwordx4 v{vXD}, {srd(sX)}, s3 offen{nt("NTX")} lds')]),
                ('vm', ('x', p), f'buffer_load_dwordx4 v{vXD1}, {srd(sX)}, s3 offen offset:1024{nt("NTX")} lds')]
    def hloads(j):
        return [('grp', [f's_add_u32 m0, s{sHL}, {j * 4096}', f's_xor_b32 s3, s{sHB}, {j * 512}', 's_mov_b32 exec_lo, 0xffffff00',
                         ('vm', ('h', j), f'buffer_load_dwordx4 v{vXD}, {srd(sX)}, s3 offen{nt("NTX")} lds'), 's_mov_b32 exec_lo, -1'])]
    def wloads(k):
        slot = k % NW
        if k < 16:
            return [('grp', [f's_add_u32 m0, s{sLW}, {slot * 12288}', f's_xor_b32 s3, s{sWB}, {k}', f's_mul_i32 s3, s3, {32 * 3072}',
                             ('vm', ('w', k), f'buffer_load_dwordx4 v{vWD}, {srd(sWQ)}, s3 offen{nt("NTW")} lds')])] + \
                   [('vm', ('w', k), f'buffer_load_dwordx4 v{vWD}, {srd(sWQ)}, s3 offen offset:{1024*R}{nt("NTW")} lds') for R in (1, 2)]
        ops = []
        for j in range(3 if slot < 5 else 1):
            i = 3 * slot + j
            ops.append(('grp', [f's_add_u32 m0, s{sLW}, {i * 4096}', f's_add_u32 s3, s{sWOB}, {i * 32768}',
                                ('vm', 'wo', f'buffer_load_dwordx4 v{vWOD}, {srd(sWO)}, s3 offen{nt("NTO")} lds')]))
        return ops
    seq = [xloads(0), hloads(0), wloads(0), wloads(1), xloads(1), wloads(2), wloads(3), xloads(2), wloads(4), wloads(5)]
    def take(n):
        while seq and len(a.vmq) - OPT["CW"] + len(seq[0]) <= n: a.run(seq.pop(0))
    def tw3():
        a(f's_lshr_b32 s{sT0}, s2, 3')
        a(f's_lshl2_add_u32 s{sT0}, s{sT0}, s{sWAVE}')
        a(f's_mul_i32 s{sT0}, s{sT0}, 12')
        a(f's_lshr_b32 s{sT1}, s{sDT}, 2')
        a(f's_lshl_b32 s{sT1}, s{sT1}, 11')
        a(f's_add_u32 s{sT0}, s{sT0}, s{sT1}')
        a(f'v_min_u32 v{vT3}, 11, v{vC}')
        a(f'v_add_lshl_u32 v{vT3}, v{vT3}, s{sT0}, 10')
        a.vm('tw', f'buffer_load_dword v{vDUM}, v{vT3}, {srd(sWQ)}, 0 offen offset:384')
    if OPT['TW3'] == 1: tw3()
    if OPT['TW3'] == 2: take(6); tw3()
    take(OPT['PRE1'])
    if OPT['TW3'] == 3: tw3()
    a.stamp(1)
    a(f's_or_b32 s{sT0}, s2, s{sWAVE}')
    a(f's_cmp_lg_u32 s{sT0}, 0')
    a('s_cbranch_scc1 L_nononce')
    a(f's_memrealtime s[{sT0}:{sT1}]')
    a(f'v_mov_b32 v{vT1}, 0')
    a('s_waitcnt lgkmcnt(0)')
    a(f's_or_b32 s{sT0}, s{sT0}, 1')
    a(f'v_mov_b32 v{vT0}, s{sT0}')
    a('s_mov_b64 exec, 1')
    a(f'buffer_store_dword v{vT0}, v{vT1}, {srd(sDBG)}, 0 offen sc1')
    a('s_mov_b64 exec, -1')
    a.label('L_nononce')
    BC, BP, BP0, MC, MP, ONE = CST, CST + 4, CST + 8, CST + 12, CST + 14, CST + 16
    for k in range(4): a(f'v_mov_b32 v{ONE+k}, 0x3f803f80')
    a(f'v_lshrrev_b32 v{vT0}, 3, v{vL}')
    a(f'v_and_b32 v{vT1}, 7, v{vL}')
    a(f'v_lshlrev_b32 v{vT1}, 4, v{vT1}')
    a(f'v_lshl_add_u32 v{vT0}, v{vT0}, 10, v{vT1}')
    a(f'v_add_u32 v{vT0}, {L_H}, v{vT0}')
    a(f'ds_write_b128 v{vT0}, {vr(ONE,4)}')
    a(f'v_lshrrev_b32 v{vT0}, 1, v{vC}')
    a(f'v_xor_b32 v{vT0}, v{vT0}, v{vG}')
    a(f'v_lshlrev_b32 v{vT0}, 4, v{vT0}')
    a(f'v_lshl_add_u32 v{vT0}, v{vC}, 7, v{vT0}')
    a(f'v_add_u32 v{vSR}, s{sXL}, v{vT0}')
    a(f'v_add_u32 v{vXR}, {L_X}, v{vT0}')
    a(f'v_xor_b32 v{vSR1}, 64, v{vSR}')
    a(f'v_xor_b32 v{vXR1}, 64, v{vXR}')
    a(f'v_and_b32 v{vT0}, {0x3bf}, v{vT0}')
    a(f'v_add_u32 v{vHR}, {L_H}, v{vT0}')
    a(f'v_add_u32 v{vHS}, s{sHL}, v{vT0}')
    a(f's_xor_b32 s{sT0}, s{sDT}, s{sKP}')
    a(f's_lshl_b32 s{sT0}, s{sT0}, 11')
    a(f'v_add_u32 v{vRA}, s{sT0}, v{vSR}')
    a(f'v_add_u32 v{vRA+1}, s{sT0}, v{vSR1}')
    a(f'v_mul_u32_u24 v{vTR}, 3072, v{vG}')
    a(f'v_bfe_u32 v{vT0}, v{vL}, 2, 2')
    a(f'v_lshl_add_u32 v{vTR}, v{vT0}, 7, v{vTR}')
    a(f'v_bfe_u32 v{vT0}, v{vL}, 3, 2')
    a(f'v_xor_b32 v{vT0}, s{sWAVE}, v{vT0}')
    a(f'v_lshl_add_u32 v{vTR}, v{vT0}, 5, v{vTR}')
    a(f'v_and_b32 v{vT0}, 3, v{vL}')
    a(f'v_lshl_add_u32 v{vTR}, v{vT0}, 3, v{vTR}')
    a(f'v_add_u32 v{vTR+1}, {3 * 12288}, v{vTR}')
    for k in range(4): a(f'v_mov_b32 v{SEN+k}, -1')
    a(f's_mov_b32 s{sBUD}, {SPIN}')
    a(f's_bfe_u32 s{sD3}, s2, {3 | (3 << 16)}')
    a(f's_and_b32 s{sT1}, s2, 1')
    a(f's_lshr_b32 s{sT2}, s2, 6')
    a(f's_lshr_b32 s{sT0}, s{sD3}, 2')
    a(f's_cmp_eq_u32 s{sT0}, s{sT1}')
    a(f's_cselect_b32 s{sT0}, 3, 7')
    a(f's_lshl2_add_u32 s{sZ}, s{sT1}, s{sT2}')
    a(f's_cmp_lt_u32 s{sT2}, 3')
    a(f's_cselect_b32 s{sZ}, s{sZ}, s{sT0}')
    a(f's_bfe_u32 s{sT0}, s2, {1 | (2 << 16)}')
    a(f's_mul_i32 s{sCT3}, s{sT0}, 7')
    a(f's_cmp_lt_u32 s{sZ}, 7')
    a(f's_cselect_b32 s{sT0}, s{sZ}, 3')
    a(f's_add_u32 s{sCT3}, s{sCT3}, s{sT0}')
    a(f's_add_u32 s{sT0}, s{sT2}, 1')
    a(f's_and_b32 s{sT0}, s{sT0}, 3')
    a(f's_and_b32 s{sCT4}, s2, 7')
    a(f's_lshl2_add_u32 s{sCT4}, s{sCT4}, s{sT0}')
    if OPT['R3M'] == 0: a(f's_mov_b32 s{sROT3}, 0')
    elif OPT['R3M'] == 1:
        a(f's_and_b32 s{sROT3}, s{sT2}, 1')
        a(f's_lshl_b32 s{sROT3}, s{sROT3}, 3')
    elif OPT['R3M'] == 2: a(f's_lshl_b32 s{sROT3}, s{sT2}, 2')
    elif OPT['R3M'] == 3: a(f's_lshl_b32 s{sROT3}, s{sD3}, 1')
    elif OPT['R3M'] == 4:
        a(f's_and_b32 s{sROT3}, s{sD3}, 3')
        a(f's_lshl_b32 s{sROT3}, s{sROT3}, 2')
    else:
        a(f's_and_b32 s{sROT3}, s{sD3}, 1')
        a(f's_lshl_b32 s{sROT3}, s{sROT3}, 3')
    a(f's_mov_b32 s{sSTP1}, {64 * 3584}')
    a(f's_sub_u32 s{sLIM1}, 16, s{sROT3}')
    a(f's_and_b32 s{sT0}, s{sWAVE}, 1')
    a(f's_lshl_b32 s{sT0}, s{sT0}, 4')
    a(f's_add_u32 s{sT0}, s{sT0}, s{sROT3}')
    a(f's_lshl_b32 s{sT0}, s{sT0}, 6')
    a(f's_lshr_b32 s{sT1}, s{sWAVE}, 1')
    a(f's_add_u32 s{sT0}, s{sT0}, s{sT1}')
    a(f's_mul_i32 s{sW1A}, s{sT0}, 3584')
    a(f's_lshl_b32 s{sT0}, s{sCT3}, 7')
    a(f's_add_u32 s{sW1A}, s{sW1A}, s{sT0}')
    a(f's_sub_u32 s{sW1B}, s{sW1A}, {16 * 64 * 3584}')
    a(f's_mul_i32 s{sPR}, s{sWAVE}, {NSL * 4096}')
    a(f's_add_u32 s{sPR}, s{sPR}, {L_PR}')
    a(f's_lshl_b32 s{sWOB}, s{sWAVE}, 13')
    a(f's_lshl_b32 s{sT0}, s{sDT}, 7')
    a(f's_add_u32 s{sWOB}, s{sWOB}, s{sT0}')
    def w2_scalars(A, B, rot):
        r = [[f's_mov_b32 s{rot}, 0'], [f's_bfe_u32 s{sT1}, s2, {6 | (1 << 16)}', f's_mul_i32 s{rot}, s{sT1}, 7'],
             [f's_lshr_b32 s{sT1}, s2, 6', f's_mul_i32 s{rot}, s{sT1}, 7', f's_add_u32 s{rot}, s{rot}, 1', f's_lshr_b32 s{rot}, s{rot}, 1'],
             [f's_mul_i32 s{rot}, s{sD3}, 7', f's_lshr_b32 s{rot}, s{rot}, 2'],
             [f's_and_b32 s{sT1}, s{sD3}, 3', f's_mul_i32 s{rot}, s{sT1}, 7', f's_add_u32 s{rot}, s{rot}, 1', f's_lshr_b32 s{rot}, s{rot}, 1'],
             [f's_and_b32 s{sT1}, s{sD3}, 1', f's_mul_i32 s{rot}, s{sT1}, 7']][OPT['R4M']]
        return r + [
                f's_mul_i32 s{sT0}, s{sWAVE}, 14', f's_add_u32 s{sT0}, s{sT0}, s{rot}', f's_lshl_b32 s{A}, s{sT0}, 17',
                f's_lshl_b32 s{sT0}, s{sCT4}, 7', f's_add_u32 s{A}, s{A}, s{sT0}', f's_sub_u32 s{B}, s{A}, {14 << 17}']
    a(f'v_mov_b32 v{vT1}, {NEGBIG:#x}')
    a(f's_and_b32 s{sT0}, s{sRT}, 15')
    a(f's_cmp_eq_u32 s{sT0}, 0')
    a(f's_cselect_b32 s{sT0}, {NEGBIG:#x}, 0')
    for r in range(4):
        a(f'v_lshl_add_u32 v{vT0}, v{vG}, 2, {r}')
        a(f'v_sub_u32 v{vT0}, v{vC}, v{vT0}')
        a(f'v_cmp_gt_u32 vcc, 8, v{vT0}')
        a(f'v_cndmask_b32_e64 v{BC+r}, v{vT1}, 0, vcc')
        a(f'v_cmp_gt_i32 vcc, -8, v{vT0}')
        a(f'v_cndmask_b32_e64 v{BP+r}, v{vT1}, 0, vcc')
        a(f'v_min_f32 v{BP0+r}, s{sT0}, v{BP+r}')
        a(f'v_cmp_le_i32 vcc, 0, v{vT0}')
        if r % 2 == 0:
            a(f'v_cndmask_b32_e64 v{MC+r//2}, 0, -1, vcc')
            a(f'v_and_b32 v{MC+r//2}, 0xffff, v{MC+r//2}')
        else:
            a(f'v_cndmask_b32_e64 v{vT0}, 0, -1, vcc')
            a(f'v_and_b32 v{vT0}, 0xffff0000, v{vT0}')
            a(f'v_or_b32 v{MC+r//2}, v{MC+r//2}, v{vT0}')
            a(f'v_not_b32 v{MP+r//2}, v{MC+r//2}')
    a(f'v_lshrrev_b32 v{vT0}, 1, v{vL}')
    a(f'v_xor_b32 v{vT0}, v{vT0}, v{vG}')
    a(f'v_and_b32 v{vT0}, 3, v{vT0}')
    a(f'v_lshrrev_b32 v{vT1}, 3, v{vL}')
    a(f'v_lshlrev_b32 v{vWOD}, 10, v{vT1}')
    a(f'v_lshl_add_u32 v{vWOD}, v{vT0}, 5, v{vWOD}')
    a(f'v_and_b32 v{vT0}, 1, v{vL}')
    a(f'v_lshl_add_u32 v{vWOD}, v{vT0}, 4, v{vWOD}')
    def mk_q(base, K3):
        if K3:
            ops = [f'v_lshrrev_b32 v{base+1}, 3, v{vL}', f'v_mul_u32_u24 v{base}, 7168, v{base+1}']
            st = 8 * 7168 - 1024
        else:
            ops = [f'v_bfe_u32 v{base+1}, v{vL}, 3, 2', f'v_lshrrev_b32 v{base}, 5, v{vL}', f'v_lshl_add_u32 v{base}, v{base}, 4, v{base+1}',
                   f'v_lshlrev_b32 v{base}, 12, v{base}']
            st = 4 * 4096 - 1024
        ops += [f'v_lshrrev_b32 v{base+1}, 1, v{vL}', f'v_and_b32 v{base+2}, 1, v{vG}', f'v_xor_b32 v{base+1}, v{base+1}, v{base+2}',
                f'v_and_b32 v{base+1}, 3, v{base+1}', f'v_lshl_add_u32 v{base}, v{base+1}, 5, v{base}',
                f'v_and_b32 v{base+1}, 1, v{vL}', f'v_lshl_add_u32 v{base}, v{base+1}, 4, v{base}',
                f'v_xor_b32 v{base+1}, 64, v{base}', f'v_add_u32 v{base+2}, {2*st}, v{base}', f'v_add_u32 v{base+3}, {3*st}, v{base+1}', f'v_add_u32 v{base+1}, {st}, v{base+1}']
        return ops
    def mk_r(base, K3):
        ops = [f'v_bfe_u32 v{base+1}, v{vL}, 2, 2', f'v_lshl_add_u32 v{base+1}, v{vG}, 3, v{base+1}']
        ops += [f's_and_b32 s3, s{sWAVE}, 1', 's_lshl_b32 s3, s3, 1'] if K3 else [f's_mov_b32 s3, s{sWAVE}']
        ops += [f'v_lshlrev_b32 v{base}, 7, v{base+1}', f'v_bfe_u32 v{base+1}, v{vL}, 3, 2', f'v_xor_b32 v{base+1}, s3, v{base+1}',
                f'v_lshl_add_u32 v{base}, v{base+1}, 5, v{base}', f'v_and_b32 v{base+1}, 3, v{vL}', f'v_lshl_add_u32 v{base}, v{base+1}, 3, v{base}',
                f'v_add_u32 v{base}, s{sPR}, v{base}']
        ops += [f'v_xor_b32 v{base+t}, {32*t}, v{base}' for t in range(1, 4)]
        return ops
    slot_of = {}
    vQ2, vR2, vR2L = 240, 28, 244
    sPL = sWOB
    def dma_unit(K3, i, q, slot):
        slot_of[(K3, i)] = slot
        tag = ('u', K3, i)
        m0 = f's_add_u32 m0, s{sPR}, {slot*4096}' if slot < NSL else f's_add_u32 m0, s{sPL}, {(slot-NSL)*4096}'
        if K3:
            S = sW1
            pre = [f's_mul_i32 s3, s{sSTP1}, {i}', f's_cmp_gt_u32 s{sLIM1}, {i}', f's_cselect_b32 m0, s{sW1A}, s{sW1B}', 's_add_u32 s3, s3, m0', m0]
        else:
            S = sW2
            pre = [f's_cmp_lt_u32 s{sROT4}, {14 - i}', f's_cselect_b32 s3, s{sW2A}, s{sW2B}', m0, f's_add_u32 s3, s3, {i << 17}']
        ops = [('grp', pre + [('vm', tag, f'buffer_load_dwordx4 v{q}, {srd(S)}, s3 offen{ntu(K3, i)} lds')])]
        for k in range(1, 4):
            ops.append(('vm', tag, f'buffer_load_dwordx4 v{q+k}, {srd(S)}, s3 offen offset:{1024*k}{ntu(K3, i)} lds'))
        return ops
    def tr_unit(K3, i):
        slot = slot_of[(K3, i)]
        r = vR1 if K3 else vR2
        if slot >= NSL: r = vR2L; slot -= NSL; assert not K3
        return [('ds', ('t', K3, i), f'ds_read_b64_tr_b16 {ar(16*i+4*t+2*h, 2)}, v{r+t} offset:{slot*4096 + 512*h}') for t in range(4) for h in range(2)]
    NLOW = OPT['NLOW']
    def uid(n): return (True, n) if n < 16 else (False, n - 16)
    nofetch = [('grp', [f's_cmp_lt_u32 s{sZ}, 7', f's_cselect_b32 s{sW1+2}, s{sW1+2}, 0'])]
    def evD(n):
        K3, i = uid(n)
        if n < 22: slot, prev = n % NSL, n - NSL
        elif n < 22 + NLOW: slot, prev = NSL + n - 22, -1
        else: raise ValueError
        w = [('wds', ('t',) + uid(prev))] if prev >= 0 else []
        return w + dma_unit(K3, i, vQ1 if K3 else vQ2, slot) + (nofetch if n == OPT['NT1'] - 1 else [])
    def evM(n): return [('wvm', ('u',) + uid(n))] + tr_unit(*uid(n))
    EV = [('D', n) for n in range(6)] + [('M', 0)]
    for n in range(1, 16): EV += [('M', n), ('D', n + 5)]
    EV += [('D', n) for n in range(21, 22 + NLOW)]
    EV0 = list(EV)
    def events(upto):
        ops = []
        while EV and any(e[0] == 'D' and e[1] <= upto for e in EV):
            e = EV.pop(0)
            ops += evD(e[1]) if e[0] == 'D' else evM(e[1])
        return ops
    a.run(mk_q(vQ1, True))
    a.run(mk_r(vR1, True))
    a.stamp(1)
    take(OPT['PRE2'])
    def xb(i, s): return XB + 20 * (i % 3) + 4 * s
    def wb(i, R): return WB + 12 * (i % 2) + 4 * R
    def acc(R, s): return ACC + 20 * R + 4 * s
    def xreads(i):
        return [('ds', ('xr', i), f'ds_read_b128 {vr(xb(i,s),4)}, v{vXR1 if i & 1 else vXR} offset:{2048*(i>>1) + 16384*(s-1)}') for s in range(1, 5)] + \
               [('ds', ('xr', i), f'ds_read_b128 {vr(xb(i,0),4)}, v{vHR} offset:{1024*(i>>1) + 64*(i&1)}')]
    def trreads(i):
        slot = i % NW
        return [('ds', ('wr', i), f'ds_read_b64_tr_b16 {vr(wb(i,R)+2*h,2)}, v{vTR + slot//3} offset:{(slot%3)*12288 + R*1024 + 512*h}') for R in range(3) for h in range(2)]
    def mfmas(i):
        ops = []
        for R in range(3):
            for s in (1, 2, 3, 4, 0):
                x = vr(xb(i, s), 4); d = vr(acc(R, s), 4); w = vr(wb(i, R), 4)
                cin = '0' if i == 0 else d
                ops.append(f'v_mfma_f32_16x16x32_bf16 {d}, {w}, {x}, {cin}' if R < 2 else f'v_mfma_f32_16x16x32_bf16 {d}, {x}, {w}, {cin}')
        return ops
    jobs = {1: ('s', 0), 2: ('s', 1), 4: ('h', 0), 5: ('s', 2), 6: ('s', 3), 7: ('h', 1), 8: ('s', 4), 9: ('s', 5), 10: ('s', 6), 11: ('s', 7)}
    def job_reads(b):
        if b not in jobs: return []
        kind, p = jobs[b]
        if kind == 's':
            return [('ds', ('jr', b), f'ds_read_b128 {vr(SB+8*(b&1)+4*k,4)}, v{vSR1 if k else vSR} offset:{2048*p}') for k in range(2)]
        return [('ds', ('jr', b), f'ds_read_b128 {vr(SB+8*(b&1)+4*k,4)}, v{vHS} offset:{4096*p + 64*k}') for k in range(2)]
    def job_mfmas(b):
        if b not in jobs: return []
        kind, p = jobs[b]
        ops = []
        for k in range(2):
            x = vr(SB + 8 * (b & 1) + 4 * k, 4)
            first = p == 0 and k == 0
            if kind == 's':
                ops.append(f'v_mfma_f32_16x16x32_bf16 {vr(GS,4)}, {x}, {x}, {"0" if first else vr(GS,4)}')
                ops.append(f'v_mfma_f32_16x16x32_bf16 {vr(GO,4)}, {vr(ONE,4)}, {x}, {"0" if first else vr(GO,4)}')
            else:
                ops.append(f'v_mfma_f32_16x16x32_bf16 {vr(GH,4)}, {x}, {x}, {"0" if first else vr(GH,4)}')
        return ops
    def stat_finalize(s, q, tmp):
        return [f'v_mul_f32 v{s}, 0xbb000000, v{s}',
                f'v_mul_f32 v{tmp}, v{s}, v{s}',
                f'v_mul_f32 v{q}, 0x3b000000, v{q}',
                f'v_sub_f32 v{q}, v{q}, v{tmp}',
                f'v_max_f32 v{q}, 0, v{q}',
                f'v_add_f32 v{q}, 0x3727c5ac, v{q}',
                f'v_rsq_f32 v{q}, v{q}']
    def diag(G, dst):
        ops = []
        for k in range(1, 4):
            m = 0x11111111 << k
            ops.append(('grp', [f's_mov_b32 vcc_lo, {m:#x}', f's_mov_b32 vcc_hi, {m:#x}', f'v_cndmask_b32 v{dst}, v{G if k == 1 else dst}, v{G+k}, vcc']))
        return ops
    NM4, RS4, XR = XB + 20, XB + 40, SB
    HT = STC
    extra = {b: [] for b in range(16)}
    L4 = vE0
    extra[5] += [f'v_lshlrev_b32 v{L4}, 2, v{vL}', f's_lshl_b32 s{sT0}, s{sWAVE}, 9', f's_add_u32 s{sT0}, s{sT0}, {L_HP}', f'v_add_u32 v{vT0}, s{sT0}, v{L4}',
                 f'v_lshrrev_b32 v{vT1}, 2, v{vC}', f'v_lshl_add_u32 v{vT1}, v{vT1}, 4, v{vC}', f'v_lshlrev_b32 v{vT1}, 2, v{vT1}',
                 f'v_add_u32 v{vT1}, {L_NM}, v{vT1}', f'v_lshlrev_b32 v{vT2}, 2, v{vC}', f'v_add_u32 v{vT2}, {L_NM}, v{vT2}']
    extra[8] += diag(GH, GH + 1) + [('ds', 'hp', f'ds_write2st64_b32 v{vT0}, v{GH}, v{GH+1} offset0:0 offset1:1')]
    o0 = (L_HP - L_NM) // 256
    extra[9] += [('ds', 'hq', f'ds_read2st64_b32 {vr(HT+2*k,2)}, v{vT2} offset0:{o0+4*k} offset1:{o0+4*k+2}') for k in range(2)] + \
                [('ds', 'hq', f'ds_read2st64_b32 {vr(HT+4+2*k,2)}, v{vT1} offset0:{o0+4*k+1} offset1:{o0+4*k+3}') for k in range(2)]
    extra[10] += [f'v_add_f32 v{HT}, v{HT}, v{HT+1}', f'v_add_f32 v{HT+2}, v{HT+2}, v{HT+3}', f'v_add_f32 v{HT+4}, v{HT+4}, v{HT+5}', f'v_add_f32 v{HT+6}, v{HT+6}, v{HT+7}',
                  f'v_add_f32 v{HT}, v{HT}, v{HT+2}', f'v_add_f32 v{HT+4}, v{HT+4}, v{HT+6}']
    extra[11] += stat_finalize(HT, HT + 4, HT + 1) + [f'v_add_u32 v{vT0}, {L_NM}, v{L4}', ('ds', 'hw', f'ds_write2st64_b32 v{vT0}, v{HT}, v{HT+4} offset0:0 offset1:5')]
    extra[12] += diag(GS, GS + 1) + stat_finalize(GO, GS + 1, GS) + [f's_lshl_b32 s{sT0}, s{sWAVE}, 8', f'v_add_u32 v{vT0}, s{sT0}, v{vT0}',
                                                                    ('ds', 'hw', f'ds_write2st64_b32 v{vT0}, v{GO}, v{GS+1} offset0:1 offset1:6')]
    extra[13] += [('ds', 'st', f'ds_read2st64_b32 {vr(STC+2*s,2)}, v{vT1} offset0:{s} offset1:{5+s}') for s in range(5)] + \
                 [f'v_mul_u32_u24 v{vT0}, 80, v{vG}', f'v_add_u32 v{vT0}, {L_NM}, v{vT0}']
    extra[14] += [('ds', 'st', f'ds_read_b128 {vr(NM4+4*s,4)}, v{vT0} offset:{256*s}') for s in range(5)] + \
                 [('ds', 'st', f'ds_read_b128 {vr(XR+4*e,4)}, v{vRA+e}') for e in range(2)]
    extra[15] += [('ds', 'st', f'ds_read_b128 {vr(RS4+4*s,4)}, v{vT0} offset:{1280+256*s}') for s in range(5)]
    vmx = {b: [] for b in range(17)}
    b0 = 0
    for it in seq:
        vmx[b0] += it; b0 = 0
    vmx[0] += xloads(3)
    vmx[2] += hloads(1)
    for p in range(4, 8): vmx[p - 4 + OPT['XS']] += xloads(p)
    if OPT['TWO']:
        vmx[OPT['TWB']] += [('grp', [f'v_lshlrev_b32 v{vT3}, 10, v{vC}', 's_lshr_b32 s3, s2, 5', f's_lshl2_add_u32 s3, s3, s{sWAVE}', f's_lshl_b32 s3, s3, 14', f's_lshl_b32 s{sCNT}, s{sDT}, 7', f's_add_u32 s3, s3, s{sCNT}',
                            ('vm', 'tw', f'buffer_load_dword v{vDUM}, v{vT3}, {srd(sWO)}, s3 offen{nt("NTO")}')])]
    clr = [[f's_lshl2_add_u32 s3, s{sRT}, s{sWAVE}', 's_lshl_b32 s3, s3, 3', f's_add_u32 s3, s3, s{sDT}', 's_lshl_b32 s3, s3, 11'],
           [f's_lshl_b32 s3, s{sDT}, 5', f's_add_u32 s3, s3, s{sRT}', f's_lshl2_add_u32 s3, s3, s{sWAVE}', 's_lshl_b32 s3, s3, 11', f's_add_u32 s3, s3, {WS_HN:#x}'],
           [f's_mul_i32 s3, s{sD3}, 28', f's_add_u32 s3, s3, s{sCT3}', f's_lshl2_add_u32 s3, s3, s{sWAVE}', 's_lshl_b32 s3, s3, 11', f's_add_u32 s3, s3, {WS_UF:#x}',
            f's_cmp_lt_u32 s{sZ}, 7', f's_cselect_b32 s{sCNT}, 0, {WS_DUM - WS_UF:#x}', f's_add_u32 s3, s3, s{sCNT}']]
    if OPT['CLB'] >= 0:
        cl = []
        for k in range(3):
            for h in range(2):
                cl.append(('grp', clr[k] + [('vm', 'clr', f'buffer_store_dwordx4 {vr(SEN,4)}, v{vL16}, {srd(sWS)}, s3 offen offset:{1024*h} sc1')]))
        for j, o in enumerate(cl):
            vmx[min(15, OPT['CLB'] + (j // OPT['CLP']) * OPT['CLS'])].append(o)
    vTC1, vTC2 = 254, 255
    late = {}
    def place(b, op):
        if b <= 16: vmx[b].append(op)
        else: late.setdefault(b, []).append(op)
    if OPT['TB1'] >= 0:
        TN = OPT['TN1']
        for k in range(64 // TN):
            if k == 0:
                pre = [f'v_bfe_u32 v{vTC1}, v{vL}, 2, {TN.bit_length() - 3}', 's_lshr_b32 s3, s2, 3', f's_lshl2_add_u32 s3, s3, s{sWAVE}', f'v_lshl_add_u32 v{vTC1}, s3, 4, v{vTC1}',
                       f'v_mul_u32_u24 v{vTC1}, 28, v{vTC1}', f's_and_b32 s3, s2, 7', 's_mul_i32 s3, s3, 7', 's_lshr_b32 s3, s3, 1', f'v_and_b32 v{vT3}, 3, v{vL}',
                       f'v_add3_u32 v{vTC1}, v{vTC1}, v{vT3}, s3', f'v_lshlrev_b32 v{vTC1}, 7, v{vTC1}']
            else:
                pre = [f'v_add_u32 v{vTC1}, {TN * 896}, v{vTC1}']
            place(min(16, OPT['TB1'] + k * OPT['TS1']), ('grp', pre + [('vm', 'tw', f'buffer_load_dword v{vDUM}, v{vTC1}, {srd(sW1)}, 0 offen{nt("NTT")}')]))
    if OPT['TB2'] >= 0:
        TN = OPT['TN2']
        pre = [f'v_bfe_u32 v{vTC2}, v{vL}, 2, {TN.bit_length() - 3}', f'v_min_u32 v{vTC2}, 13, v{vTC2}', 's_lshr_b32 s3, s2, 3', f's_lshl2_add_u32 s3, s3, s{sWAVE}', f's_mul_i32 s3, s3, {14 * 8}',
               f's_and_b32 s{sCNT}, s2, 7', f's_add_u32 s3, s3, s{sCNT}', 's_lshl_b32 s3, s3, 9',
               f'v_lshl_add_u32 v{vTC2}, v{vTC2}, 12, s3', f'v_and_b32 v{vT3}, 3, v{vL}', f'v_lshl_add_u32 v{vTC2}, v{vT3}, 7, v{vTC2}']
        vmx[min(16, OPT['TB2'])].append(('grp', pre))
        for k in range(56 // TN + (56 % TN > 0)):
            pre = [f'v_add_u32 v{vTC2}, {min(TN, 56 - TN * k) * 1024}, v{vTC2}'] if k else []
            b = OPT['TB2'] + k * OPT['TS2']
            place(b if OPT['TB2'] > 16 else min(16, b), ('grp', pre + [('vm', 'tw', f'buffer_load_dword v{vDUM}, v{vTC2}, {srd(sW2)}, 0 offen{nt("NTT")}')]))
    if OPT['PB1'] >= 0:
        assert OPT['TN1'] == 64
        place(OPT['PB1'], ('vm', 'tw', f'buffer_load_dword v{vDUM}, v{vTC1}, {srd(sW1)}, 0 offen sc1'))
    if OPT['PB2'] >= 0:
        assert OPT['TN2'] == 64
        place(OPT['PB2'], ('vm', 'tw', f'buffer_load_dword v{vDUM}, v{vTC2}, {srd(sW2)}, 0 offen sc1'))
    need_x = {2: [('x', 2)], 4: [('x', 3)], 6: [('x', 4), ('h', 1)], 8: [('x', 5)], 9: [('x', 6)], 10: [('x', 7)]}
    a.stamp(1)
    a.wait(vm=[('w', 1), ('x', 1)])
    a('s_waitcnt lgkmcnt(0)')
    a('s_barrier')
    a.stamp(-1)
    a.run(trreads(0) + xreads(0) + xreads(1))
    a.wait(ds=[('xr', 0)])
    wop = []
    for i in range(16):
        rd = []
        if i + 1 < 16: rd += trreads(i + 1) + job_reads(i + 1)
        if i + 2 < 16: rd += xreads(i + 2)
        ld = []
        if i == 1: ld += wloads(NW)
        if i == 10: ld += [f's_lshl_b32 s{sLW}, s{sWAVE}, 10']
        if i >= 1:
            if i + NW < 16: ld += wloads(i + NW)
            else: wop += wloads(i + NW)
            if i >= OPT['WOB']: ld += wop; wop = []
        ld += vmx[i]
        ex = extra[i]
        mm = weave(mfmas(i), job_mfmas(i))
        fill = weave(rd, ld) if rd else ld
        fill = mix(fill, ex)
        fl = []
        for o in fill:
            if not isinstance(o, str) and o[0] == 'grp' and any(isinstance(x, str) and ('exec' in x or 's_cselect' in x) for x in o[1]): fl.append(o)
            else: fl += flat([o])
        a.run(weave(mm, fl, lead=1))
        if i < 15:
            wv = [('w', i + 2)] if i + 2 < 16 else []
            wv += need_x.get(i + 1, [])
            a.wait(vm=wv, ds=[('wr', i + 1), ('jr', i + 1), ('xr', i + 1), 'hp', 'hq', 'hw'])
            a('s_barrier')
            if i in (1, 3, 5, 7, 9, 11, 13): a.stamp(1)
    a.wait_all(vm=False)
    a('s_barrier')
    a.stamp(-1)
    a.run(vmx[16])
    if OPT['NT1'] == 0: a.run(nofetch)
    a(f's_load_dword s{sNON}, s[{sDBG}:{sDBG+1}], 0')
    if OPT['WOB'] == 16: a.inject(wop + events(OPT['EA']), OPT['AEV']); wop = []
    else: a.inject(events(OPT['EA']), OPT['AEV'])
    SC, SP, MX, MT, PM, PB, OUT = XB, SB + 8, ACC, ACC + 4, ACC + 8, ACC + 20, ACC + 36
    CW, CWV = 32, 40
    for r in range(4):
        a(f'v_mov_b32_dpp v{CW+4+r}, v{acc(1,0)+r} row_newbcast:0 row_mask:0xf bank_mask:0xf')
    for r in range(4):
        a(f'v_mov_b32_dpp v{CW+r}, v{acc(0,0)+r} row_newbcast:0 row_mask:0xf bank_mask:0xf')
    def epi_k(s):
        src, st, dst = acc(1, s), STC + 2 * s, KP + 2 * s
        return [[f'v_pk_fma_f32 {vr(src+2*h,2)}, {vr(CW+4+2*h,2)}, {vr(st,2)}, {vr(src+2*h,2)} op_sel_hi:[1,0,1]' for h in range(2)],
                [f'v_pk_mul_f32 {vr(src+2*h,2)}, {vr(src+2*h,2)}, {vr(st,2)} op_sel:[0,1] op_sel_hi:[1,1]' for h in range(2)],
                [f'v_cvt_pk_bf16_f32 v{dst+h}, v{src+2*h}, v{src+2*h+1}' for h in range(2)]]
    def epi_q(s):
        src, st, dst = acc(0, s), STC + 2 * s, QP + 2 * (s - 1)
        return [[f'v_pk_fma_f32 {vr(src+2*h,2)}, {vr(CW+2*h,2)}, {vr(st,2)}, {vr(src+2*h,2)} op_sel_hi:[1,0,1]' for h in range(2)],
                [],
                [f'v_cvt_pk_bf16_f32 v{dst+h}, v{src+2*h}, v{src+2*h+1}' for h in range(2)]]
    def epi_v(s):
        src, dst = acc(2, s), VP + 2 * s
        return [[f'v_pk_fma_f32 {vr(src+2*h,2)}, {vr(NM4+4*s+2*h,2)}, {vr(CWV,2)}, {vr(src+2*h,2)} op_sel_hi:[1,0,1]' for h in range(2)],
                [f'v_pk_mul_f32 {vr(src+2*h,2)}, {vr(src+2*h,2)}, {vr(RS4+4*s+2*h,2)}' for h in range(2)],
                [f'v_cvt_pk_bf16_f32 v{dst+h}, v{src+2*h}, v{src+2*h+1}' for h in range(2)]]
    E = [epi_k(s) for s in range(5)] + [epi_q(s) for s in range(1, 5)]
    a.wait(vm=['clr'])
    for ph in range(3):
        for e in E: a.run(e[ph])
    a(f'v_mov_b32 v{CWV}, v{acc(2,0)}')
    a(f'v_mov_b32 v{CWV+1}, v{acc(2,0)}')
    smm = []
    for u in range(4):
        q = vr(QP + 2 * u, 2)
        smm.append(f'v_mfma_f32_16x16x16_bf16 {vr(SC+4*u,4)}, {vr(KP+2*(u+1),2)}, {q}, {vr(BC,4)}')
        smm.append(f'v_mfma_f32_16x16x16_bf16 {vr(SP+4*u,4)}, {vr(KP+2*u,2)}, {q}, {vr(BP0 if u == 0 else BP,4)}')
    vv = [f'v_permlane16_swap_b32 v{CWV}, v{CWV+1}', f's_mov_b32 s{sT0}, {f2h(0.25 * 1.4426950408889634)}']
    vv += [f'v_mul_f32 v{STC+2*s+1}, s{sT0}, v{STC+2*s+1}' for s in range(1, 5)]
    E = [epi_v(s) for s in range(5)]
    for ph in range(3):
        for e in E: vv += e[ph]
    a.run(weave(smm, vv[:16]) + vv[16:])
    for u in range(4):
        for r in range(4):
            a(f'v_max_f32 v{SC+4*u+r}, v{SC+4*u+r}, v{SP+4*u+r}')
    for u in range(4):
        a(f'v_max3_f32 v{MX+u}, v{SC+4*u}, v{SC+4*u+1}, v{SC+4*u+2}')
    for u in range(4):
        a(f'v_max_f32 v{MX+u}, v{MX+u}, v{SC+4*u+3}')
    for sw in ('v_permlane16_swap_b32', 'v_permlane32_swap_b32'):
        for u in range(4): a(f'v_mov_b32 v{MT+u}, v{MX+u}')
        for u in range(4): a(f'{sw} v{MX+u}, v{MT+u}')
        for u in range(4): a(f'v_max_f32 v{MX+u}, v{MX+u}, v{MT+u}')
    for u in range(4):
        a(f'v_mul_f32 v{MX+u}, v{STC+2*u+3}, v{MX+u}')
    for u in range(4):
        for r in range(4):
            a(f'v_fma_f32 v{SC+4*u+r}, v{SC+4*u+r}, v{STC+2*u+3}, -v{MX+u}')
    for u in range(4):
        for r in range(4):
            a(f'v_exp_f32 v{SC+4*u+r}, v{SC+4*u+r}')
    for u in range(4):
        for h in range(2):
            a(f'v_cvt_pk_bf16_f32 v{PM+2*u+h}, v{SC+4*u+2*h}, v{SC+4*u+2*h+1}')
        for h in range(2):
            a(f'v_and_b32 v{PB+4*u+h}, v{PM+2*u+h}, v{MP+h}')
            a(f'v_and_b32 v{PB+4*u+2+h}, v{PM+2*u+h}, v{MC+h}')
    pm = []
    for u in range(4):
        pm.append(f'v_mfma_f32_16x16x16_bf16 {vr(SP+4*u,4)}, {vr(ONE,2)}, {vr(PM+2*u,2)}, 0')
    for u in range(4):
        pm.append(f'v_mfma_f32_16x16x32_bf16 {vr(SC+4*u,4)}, {vr(VP+2*u,4)}, {vr(PB+4*u,4)}, 0')
    sa = [f's_lshl2_add_u32 s{sT0}, s{sDT}, s{sWAVE}', f's_lshl_b32 s{sT2}, s{sRT}, 7', f's_add_u32 s{sT2}, s{sT2}, s{sDT}', f's_lshl_b32 s{sT2}, s{sT2}, 2',
          f's_add_u32 s{sT2}, s{sT2}, {WS_F1:#x}', f's_lshl_b32 s{sT0}, s{sT0}, 9', f's_lshl_b32 s{sT1}, s{sRT}, 16', f's_add_u32 s{sT0}, s{sT0}, s{sT1}',
          f's_add_u32 s{sT1}, s{sT0}, 32768', f'v_lshrrev_b32 v{vT0}, 5, v{vL}', f'v_mul_u32_u24 v{vT0}, {16384 - 512}, v{vT0}', f'v_add_u32 v{vT0}, v{vT0}, v{vL16}',
          f'v_lshrrev_b32 v{vT3}, 2, v{vL}', f'v_and_b32 v{vT1}, 3, v{vL}', f'v_lshlrev_b32 v{vT1}, 7, v{vT1}', f'v_lshl_add_u32 v{vT3}, v{vT3}, 14, v{vT1}']
    a.run(weave(pm, sa))
    a.wait_all(vm=False)
    a(f's_cmp_lg_u32 s{sNON}, 0')
    a('s_cbranch_scc0 L_non')
    a.label('L_nonok')
    tail.append(['L_non:', f's_load_dword s{sNON}, s[{sDBG}:{sDBG+1}], 0 glc', 's_waitcnt lgkmcnt(0)', f's_cmp_lg_u32 s{sNON}, 0', 's_cbranch_scc1 L_nonok',
                 f's_sub_u32 s{sBUD}, s{sBUD}, 1', 's_cbranch_scc0 L_non', f's_mov_b32 s{sBUD}, 0', 's_branch L_nonok'])
    a(f's_mov_b32 s{sNON+1}, s{sNON}')
    a(f'v_mov_b32 v{vT2}, s{sNON}')
    for u in range(4):
        a(f'v_rcp_f32 v{SP+4*u}, v{SP+4*u}')
    for u in range(4):
        for h in range(2):
            a(f'v_pk_mul_f32 {vr(SC+4*u+2*h,2)}, {vr(SC+4*u+2*h,2)}, {vr(SP+4*u,2)} op_sel_hi:[1,0]')
    for u in range(4):
        for h in range(2):
            a(f'v_cvt_pk_bf16_f32 v{OUT+2*u+h}, v{SC+4*u+2*h}, v{SC+4*u+2*h+1}')
    for e in range(2):
        for h in range(2):
            a(f'v_permlane32_swap_b32 v{OUT+4*e+h}, v{OUT+4*e+2+h}')
    left = a.inj; a.inj = []
    for e in range(2):
        a.vm('ost', f'buffer_store_dwordx4 {vr(OUT+4*e,4)}, v{vT0}, {srd(sWS)}, s{[sT0,sT1][e]} offen sc1')
    assert not any(o[0] == 'vm' and o[1] == 'wo' for o in flat(left) if not isinstance(o, str))
    a.wait(vm=['wo'])
    nflag = [0]
    def flag(soff, barrier=True):
        nflag[0] += 1
        if barrier: a('s_barrier')
        a(f's_cmp_lg_u32 s{sWAVE}, 0')
        a(f's_cbranch_scc1 L_nf{nflag[0]}')
        a('s_mov_b32 exec_hi, 0')
        a(f'buffer_store_dword v{vT2}, v{vT3}, {srd(sWS)}, s{soff} offen sc1')
        a('s_mov_b32 exec_hi, -1')
        a.label(f'L_nf{nflag[0]}')
    flag(sT2)
    a.run(late.get(17, []))
    a.stamp(0, 1)
    a.run(wop)
    a.run(left)
    ID, O, ACC2, S2, PK2 = 20, 64, 128, 144, 152
    vHO, vSO, vTW = 9, 10, 12
    cst = [f'v_bfe_u32 v{vT0}, v{vL}, 2, 3', f'v_lshrrev_b32 v{vT1}, 5, v{vL}', f'v_lshl_add_u32 v{vT0}, v{vT1}, 4, v{vT0}', f'v_lshlrev_b32 v{vTW}, 7, v{vT0}',
           f'v_bfe_u32 v{vT0}, v{vL}, 3, 2', f'v_lshl_add_u32 v{vTW}, v{vT0}, 5, v{vTW}', f'v_and_b32 v{vT0}, 3, v{vL}', f'v_lshl_add_u32 v{vTW}, v{vT0}, 3, v{vTW}']
    cst += [f'v_xor_b32 v{vTW+t}, {32*t}, v{vTW}' for t in range(1, 4)]
    cst += [f'v_and_b32 v{vT0}, 1, v{vC}', f'v_lshlrev_b32 v{vT0}, 4, v{vT0}', f'v_mov_b32 v{vT1}, 0x3f80', f'v_lshlrev_b32 v{vT0}, v{vT0}, v{vT1}',
            f'v_lshrrev_b32 v{vT1}, 1, v{vC}', f'v_lshlrev_b32 v{vE0}, 2, v{vG}', f'v_sub_u32 v{vT1}, v{vT1}, v{vE0}']
    for b in range(2):
        for k in range(4):
            cst += [f'v_cmp_eq_i32 vcc, {k - 8*b}, v{vT1}', f'v_cndmask_b32 v{ID+4*b+k}, 0, v{vT0}, vcc']
    cst += [f'v_and_b32 v{vT0}, 1, v{vG}', f'v_lshlrev_b32 v{vHO}, 10, v{vT0}', f'v_lshrrev_b32 v{vT0}, 1, v{vG}', f'v_lshl_add_u32 v{vHO}, v{vT0}, 8, v{vHO}',
            f'v_lshl_add_u32 v{vHO}, v{vC}, 4, v{vHO}',
            f'v_lshrrev_b32 v{vT0}, 2, v{vC}', f'v_lshlrev_b32 v{vSO}, 8, v{vT0}', f'v_lshl_add_u32 v{vSO}, v{vG}, 6, v{vSO}', f'v_and_b32 v{vT0}, 3, v{vC}',
            f'v_lshl_add_u32 v{vSO}, v{vT0}, 4, v{vSO}']
    cst += [f'v_mfma_f32_16x16x32_bf16 {vr(ACC2+4*t,4)}, {vr(XR+4*(t>>1),4)}, {vr(ID+4*(t&1),4)}, 0' for t in range(4)]
    sBLK = sXB
    sFL = sLW
    cst += [f's_lshl_b32 s{sFL}, s{sDT}, 5', f's_add_u32 s{sFL}, s{sFL}, s{sRT}', f's_lshl2_add_u32 s{sFL}, s{sFL}, s{sWAVE}', f's_lshl_b32 s{sFL}, s{sFL}, 7',
            f's_add_u32 s{sFL}, s{sFL}, {WS_F1:#x}', f'v_lshlrev_b32 v{vT3}, 9, v{vL}', f's_lshl2_add_u32 s{sBLK}, s{sRT}, s{sWAVE}', f's_lshl_b32 s{sT1}, s{sBLK}, 14']
    cst0 = w2_scalars(sW2A, sW2B, sROT4) + [f's_lshl_b32 s{sPL}, s{sWAVE}, 14'] + mk_q(vQ2, False) + mk_r(vR2, False)
    a.run(cst0 + cst)
    def wf2(i): return [32, 48, 176, 192, 208, 224][i % 6]
    def tr2(i):
        return [('ds', ('w2r', i), f'ds_read_b64_tr_b16 {vr(wf2(i)+4*t+2*h,2)}, v{vTW+t} offset:{4096*i+1024*h}') for t in range(4) for h in range(2)]
    if wop:
        a.run(events(OPT['EB1']))
        a.wait(vm=['wo'])
        a('s_barrier')
    for i in range(5): a.run(tr2(i))
    a.run(events(OPT['EB1']))
    def poll(lbl, soff):
        a.label(lbl)
        a(f's_load_dwordx8 s[{sPOLL}:{sPOLL+7}], s[{sWS}:{sWS+1}], s{soff} glc')
        a.wait_all(vm=False)
        for k in range(4): a(f's_xor_b64 s[{sPOLL+2*k}:{sPOLL+2*k+1}], s[{sPOLL+2*k}:{sPOLL+2*k+1}], s[{sNON}:{sNON+1}]')
        a(f's_or_b64 s[{sPOLL}:{sPOLL+1}], s[{sPOLL}:{sPOLL+1}], s[{sPOLL+2}:{sPOLL+3}]')
        a(f's_or_b64 s[{sPOLL+4}:{sPOLL+5}], s[{sPOLL+4}:{sPOLL+5}], s[{sPOLL+6}:{sPOLL+7}]')
        a(f's_or_b64 s[{sPOLL}:{sPOLL+1}], s[{sPOLL}:{sPOLL+1}], s[{sPOLL+4}:{sPOLL+5}]')
        a(f's_cbranch_scc0 {lbl}_ok')
        a(f's_sub_u32 s{sBUD}, s{sBUD}, 1')
        a(f's_cbranch_scc0 {lbl}')
        a(f's_mov_b32 s{sBUD}, 0')
        a.label(lbl + '_ok')
    def check(lbl, regs, reload):
        ck = [f'v_max3_u32 v{vCK}, v{regs[0]}, v{regs[1]}, v{regs[2]}', f'v_max_u32 v{vCK}, v{vCK}, v{regs[3]}', f'v_cmp_eq_u32 vcc, -1, v{vCK}']
        tail.append([lbl + ':', f's_sub_u32 s{sBUD}, s{sBUD}, 1', f's_cbranch_scc1 {lbl}_x'] + reload + ['s_waitcnt vmcnt(0)'] + ck +
                    [f's_cbranch_vccnz {lbl}', f's_branch {lbl}_b', lbl + '_x:', f's_mov_b32 s{sBUD}, 0', f's_branch {lbl}_b'])
        return ck + [('grp', [f's_cbranch_vccnz {lbl}', ('label', lbl + '_b')])]
    poll('L_p1', sFL)
    a.stamp()
    sOB = sWB
    a(f's_mov_b32 s{sOB}, s{sT1}')
    def oload(i, so): return f'buffer_load_dwordx4 {vr(O+4*i,4)}, v{vL16}, {srd(sWS)}, s{so} offen offset:{1024*(i&3)} sc1'
    for c in range(4):
        if c: a(f's_add_u32 s{sT1}, s{sT1}, 4096')
        for i in range(4): a.vm(('o', 4*c+i), oload(4*c+i, sT1))
    a.run(late.get(20, []))
    a(f's_lshl_b32 s{sT0}, s{sDT}, 18')
    a(f's_lshr_b32 s{sT1}, s{sBLK}, 1')
    a(f's_lshl_b32 s{sT1}, s{sT1}, 12')
    a(f's_add_u32 s{sT0}, s{sT0}, s{sT1}')
    a(f's_and_b32 s{sT1}, s{sBLK}, 1')
    a(f's_lshl_b32 s{sT1}, s{sT1}, 9')
    a(f's_add_u32 s{sT0}, s{sT0}, s{sT1}')
    a(f's_add_u32 s{sT0}, s{sT0}, {WS_HF:#x}')
    a(f's_lshl_b32 s{sT1}, s{sBLK}, 11')
    a(f's_add_u32 s{sT1}, s{sT1}, {WS_SX:#x}')
    a(f's_lshl_b32 s{sT2}, s{sDT}, 8')
    a(f's_add_u32 s{sT2}, s{sT2}, s{sT1}')
    a(f'v_lshlrev_b32 v{vT0}, 2, v{vL}')
    def ocheck(c):
        return [('wvm', ('o', 4*c+3))] + check(f'L_ro{c}', [O + 16*c + 4*i for i in range(4)], [f's_add_u32 s{sCNT}, s{sOB}, {4096*c}'] + [oload(4*c+i, sCNT) for i in range(4)])
    a.run(events(OPT['EB2']))
    a.run(ocheck(0))
    ec = events(OPT['EC'])
    for i in range(16):
        a.wait(ds=[('w2r', i)])
        mm = [f'v_mfma_f32_16x16x32_bf16 {vr(ACC2+4*t,4)}, {vr(O+4*i,4)}, {vr(wf2(i)+4*t,4)}, {vr(ACC2+4*t,4)}' for t in range(4)]
        f = tr2(i + 5) if i + 5 < 16 else []
        wgt = [1] * 11 + [3] * 5
        lo, hi = (len(ec) * sum(wgt[:i])) // sum(wgt), (len(ec) * sum(wgt[:i + 1])) // sum(wgt)
        f = mix(f, ec[lo:hi])
        if i % 4 == 3 and i < 12: f = f + ocheck(i // 4 + 1)
        a.run(weave(mm, f))
    a.run(late.get(22, []))
    a.stamp()
    S = S2
    for r in range(4):
        a(f'v_add_f32 v{S+r}, v{ACC2+r}, v{ACC2+4+r}')
        a(f'v_mul_f32 v{S+4+r}, v{ACC2+r}, v{ACC2+r}')
    for t in range(1, 4):
        for r in range(4):
            if t > 1: a(f'v_add_f32 v{S+r}, v{S+r}, v{ACC2+4*t+r}')
            a(f'v_fmac_f32 v{S+4+r}, v{ACC2+4*t+r}, v{ACC2+4*t+r}')
    for base in (S, S + 4):
        for i in range(2):
            a(f'v_add_f32_dpp v{base+i}, v{base+i}, v{base+i} row_ror:8 row_mask:0xf bank_mask:0x3')
    for base in (S, S + 4):
        for i in range(2):
            a(f'v_add_f32_dpp v{base+i}, v{base+i+2}, v{base+i+2} row_ror:8 row_mask:0xf bank_mask:0xc')
    for base in (S, S + 4):
        a(f'v_add_f32_dpp v{base}, v{base}, v{base} row_half_mirror row_mask:0xf bank_mask:0x5')
    for base in (S, S + 4):
        a(f'v_add_f32_dpp v{base}, v{base+1}, v{base+1} row_half_mirror row_mask:0xf bank_mask:0xa')
    for qp in ('[1,0,3,2]', '[2,3,0,1]'):
        for base in (S, S + 4):
            a(f'v_add_f32_dpp v{base}, v{base}, v{base} quad_perm:{qp} row_mask:0xf bank_mask:0xf')
    a('s_mov_b32 vcc_lo, 0xaaaaaaaa')
    a('s_mov_b32 vcc_hi, 0xaaaaaaaa')
    a(f'v_cndmask_b32 v{S}, v{S}, v{S+4}, vcc')
    a('s_mov_b32 vcc_lo, 0xcccccccc')
    a('s_mov_b32 vcc_hi, 0xcccccccc')
    a(f'v_cndmask_b32 v{S}, v{S}, v{vT2}, vcc')
    a.vm('sx', f'buffer_store_dword v{S}, v{vT0}, {srd(sWS)}, s{sT2} offen sc1')
    def pack_store(tag, soff):
        for t in range(4):
            for h in range(2):
                a(f'v_cvt_pk_bf16_f32 v{PK2+2*t+h}, v{ACC2+4*t+2*h}, v{ACC2+4*t+2*h+1}')
        for e in range(2):
            for h in range(2):
                a(f'v_permlane16_swap_b32 v{PK2+4*e+h}, v{PK2+4*e+2+h}')
        for e in range(2):
            a.vm(tag, f'buffer_store_dwordx4 {vr(PK2+4*e,4)}, v{vHO}, {srd(sWS)}, s{soff} offen offset:{2048*e} sc1')
    pack_store('hst', sT0)
    PK2 = PK2 + 8
    a(f's_sub_u32 s{sT0}, s{sT0}, {WS_HF - WS_HN:#x}')
    a(f's_lshl_b32 s{sT2}, s{sDT}, 7')
    a(f's_lshr_b32 s{sCNT}, s{sRT}, 3')
    a(f's_add_u32 s{sT2}, s{sT2}, s{sCNT}')
    a(f's_lshl_b32 s{sT2}, s{sT2}, 5')
    a(f's_and_b32 s{sCNT}, s{sRT}, 7')
    a(f's_add_u32 s{sT2}, s{sT2}, s{sCNT}')
    a(f's_lshl_b32 s{sT2}, s{sT2}, 2')
    a(f's_add_u32 s{sT2}, s{sT2}, {WS_F2:#x}')
    a(f's_mov_b32 s{sDT}, s{sD3}')
    a.run(events(OPT['ED']))
    a.stamp()
    R0 = O
    sxl = [f'buffer_load_dwordx4 {vr(R0+4*e,4)}, v{vSO}, {srd(sWS)}, s{sT1} offen offset:{1024*e} sc1' for e in range(2)]
    sxc = [f'v_xor_b32 v{R0+2}, s{sNON}, v{R0+2}', f'v_xor_b32 v{R0+6}, s{sNON}, v{R0+6}', f'v_add_f32 v{R0}, v{R0}, v{R0+4}', f'v_or_b32 v{R0+2}, v{R0+2}, v{R0+6}',
           f'v_add_f32 v{R0+1}, v{R0+1}, v{R0+5}', f'v_cmp_ne_u32 vcc, 0, v{R0+2}']
    for t_ in sxl: a.vm('sxl', t_)
    a.run(events(OPT['EE']))
    a.wait(vm=['sxl'])
    a.run(sxc)
    a('s_cbranch_vccnz L_sx')
    tail.append(['L_sx:', f's_sub_u32 s{sBUD}, s{sBUD}, 1', 's_cbranch_scc1 L_sx_x'] + sxl + ['s_waitcnt vmcnt(0)'] + sxc +
                ['s_cbranch_vccnz L_sx', 's_branch L_sx_ok', 'L_sx_x:', f's_mov_b32 s{sBUD}, 0', 's_branch L_sx_ok'])
    a.label('L_sx_ok')
    a.run(late.get(21, []))
    a.stamp()
    for ror in (4, 8):
        for k in range(2):
            a(f'v_add_f32_dpp v{R0+k}, v{R0+k}, v{R0+k} row_ror:{ror} row_mask:0xf bank_mask:0xf')
    s_, q_, t_ = R0, R0 + 1, R0 + 2
    a(f's_mov_b32 s{sT1}, 0x3727c5ac')
    a(f'v_mul_f32 v{s_}, 0xbb000000, v{s_}')
    a(f'v_mul_f32 v{q_}, 0x3b000000, v{q_}')
    a(f'v_fma_f32 v{q_}, -v{s_}, v{s_}, v{q_}')
    a(f'v_max_f32 v{q_}, 0, v{q_}')
    a(f'v_add_f32 v{t_}, s{sT1}, v{q_}')
    a(f'v_rsq_f32 v{t_}, v{t_}')
    a(f'v_mul_f32 v{q_}, v{q_}, v{t_}')
    a(f'v_fma_f32 v{q_}, v{q_}, v{t_}, s{sT1}')
    a(f'v_rsq_f32 v{q_}, v{q_}')
    a(f'v_mul_f32 v{t_}, v{t_}, v{q_}')
    a(f'v_mul_f32 v{s_}, v{s_}, v{t_}')
    RR, BB = R0 + 4, R0 + 8
    for r in range(4):
        a(f'v_mov_b32_dpp v{RR+r}, v{t_} quad_perm:[{r},{r},{r},{r}] row_mask:0xf bank_mask:0xf')
    for r in range(4):
        a(f'v_mov_b32_dpp v{BB+r}, v{s_} quad_perm:[{r},{r},{r},{r}] row_mask:0xf bank_mask:0xf')
    for t in range(4):
        for h in range(2):
            a(f'v_pk_fma_f32 {vr(ACC2+4*t+2*h,2)}, {vr(ACC2+4*t+2*h,2)}, {vr(RR+2*h,2)}, {vr(BB+2*h,2)}')
    pack_store('hst', sT0)
    a.wait_all(vm=False)
    flag(sT2)
    a.run(late.get(23, []))
    a.stamp()
    vA0, vA1 = 17, 18
    BI4 = 20
    OWN, OTH, ST, H = 32, 48, 96, 128
    a(f's_cmp_ge_u32 s{sZ}, 7')
    a('s_cbranch_scc1 L_skip3')
    save = (list(a.vmq), list(a.dsq), list(EV), dict(slot_of))
    a.run(events(OPT['EF']))
    a(f's_lshr_b32 s{sT0}, s{sWAVE}, 1')
    a(f's_lshl_b32 s{sT0}, s{sT0}, 11')
    a(f'v_or_b32 v{vA0}, s{sT0}, v{vL16}')
    a(f'v_xor_b32 v{vA1}, 2048, v{vA0}')
    a(f's_lshl_b32 s{sT0}, s{sCT3}, 7')
    a(f's_and_b32 s{sT1}, s{sWAVE}, 1')
    a(f's_lshl_b32 s{sT1}, s{sT1}, 6')
    a(f's_add_u32 s{sT0}, s{sT0}, s{sT1}')
    a(f'v_lshlrev_b32 v{vT0}, 3, v{vG}')
    for i in range(2):
        a.vm('b1', f'buffer_load_dwordx2 {vr(BI4+2*i,2)}, v{vT0}, {srd(sB1)}, s{sT0} offen offset:{32*i}')
    sHA, sHB = sXB, sWB
    a(f's_lshl4_add_u32 s{sT0}, s{sWAVE}, s{sROT3}')
    a(f's_lshl_b32 s{sHA}, s{sT0}, 12')
    a(f's_lshl_b32 s{sT0}, s{sDT}, 18')
    a(f's_add_u32 s{sHA}, s{sHA}, s{sT0}')
    a(f's_add_u32 s{sHA}, s{sHA}, {WS_HN:#x}')
    a(f's_sub_u32 s{sHB}, s{sHA}, 65536')
    vRD = 9
    red_addr = [f's_mul_i32 s{sT0}, s{sWAVE}, 12288']
    for q in range(1, 4):
        red_addr += [f's_xor_b32 s{sT1}, s{sWAVE}, {q}', f's_mul_i32 s{sT1}, s{sT1}, 12288', f'v_add_u32 v{vRD+q-1}, s{sT1}, v{vL16}']
    red_addr += [f'v_add_u32 v{vRD+3}, s{sT0}, v{vL16}']
    a.run(red_addr)
    a(f's_bfe_u32 s{sT0}, s2, {1 | (2 << 16)}')
    a(f's_lshl2_add_u32 s{sT0}, s{sDT}, s{sT0}')
    a(f's_lshl3_add_u32 s{sT0}, s{sT0}, s{sZ}')
    a(f's_lshl2_add_u32 s{sT0}, s{sT0}, s{sWAVE}')
    a(f's_lshl_b32 s{sT0}, s{sT0}, 7')
    a(f's_add_u32 s{sT0}, s{sT0}, {WS_F2:#x}')
    poll('L_p2', sT0)
    a.stamp()
    def hreg(i, t): return H + 16 * (i % 7) + 4 * t
    def aload_txt(K3, i, t, so):
        if K3: return f'buffer_load_dwordx4 {vr(hreg(i,t),4)}, v{vA1 if t >> 1 else vA0}, {srd(sWS)}, s{so} offen offset:{1024*(t&1)} sc1'
        return f'buffer_load_dwordx4 {vr(hreg(i,t),4)}, v{vL16}, {srd(sWS)}, s{so} offen offset:{1024*t} sc1'
    def aaddr(K3, i, so):
        N = 16 if K3 else 14
        rot = sROT3 if K3 else sROT4
        return [f's_cmp_lt_u32 s{rot}, {N - i}', f's_cselect_b32 s{so}, s{sHA}, s{sHB}', f's_add_u32 s{so}, s{so}, {i*4096}']
    def aloads(K3, i):
        return [('grp', (aaddr(K3, i, sCNT) if t == 0 else []) + [('vm', ('a', K3, i), aload_txt(K3, i, t, sCNT))]) for t in range(4)]
    def acheck(K3, i):
        return [('wvm', ('a', K3, i))] + check(f'L_ra{int(K3)}_{i}', [hreg(i, t) for t in range(4)], aaddr(K3, i, sPOLL) + [aload_txt(K3, i, t, sPOLL) for t in range(4)])
    def acc34(K3, tw, ta):
        q, k = ((tw >> 1) + 2 * (ta >> 1), (tw & 1) + 2 * (ta & 1)) if K3 else (tw, ta)
        return q, vr(OWN + 16 * q + 4 * k, 4)
    def mm34(K3, i, quad=None):
        mm = []
        for ta in range(4):
            for tw in range(4):
                q, d = acc34(K3, tw, ta)
                if quad is not None and q != quad: continue
                A, B = (ar(16*i+4*tw, 4), vr(hreg(i, ta), 4)) if K3 else (vr(hreg(i, ta), 4), ar(16*i+4*tw, 4))
                mm.append(f'v_mfma_f32_16x16x32_bf16 {d}, {A}, {B}, {"0" if i == 0 else d}')
        return mm
    def red_w(q): return [('ds', 'rw', f'ds_write_b128 v{vRD+q-1}, {vr(OWN+16*q+4*k,4)} offset:{4096*(q-1)+1024*k}') for k in range(4)]
    def gemm34(K3, N, fills, first):
        NQ, D0 = OPT['NQ'], OPT['D0']
        for i in range(D0): a.run(aloads(K3, i))
        a.run(first)
        rest = [o for i in range(D0, N) for o in aloads(K3, i)]
        nb = N - NQ - 1
        a.run(acheck(K3, 0))
        done = 0
        for i in range(N - NQ):
            tgt = min(len(rest), ((i + 1) * len(rest) + nb - 1) // nb, 4 * (i + 6 - D0 + 1))
            ld = rest[done:tgt]; done = tgt
            f = mix(ld, fills.get(i, []))
            mm = mm34(K3, i)
            a.run(weave(mm[:11], f) + weave(mm[11:], acheck(K3, i + 1)))
        assert done == len(rest)
        prev = None
        for j, q in enumerate((1, 2, 3, 0)):
            if j == 1 and K3 and lowbar:
                a.wait(ds=[('t',) + uid(npre - 1)])
                a('s_barrier')
            f = fills.get(N - NQ + j, [])
            if j == 0:
                for i in range(N - NQ, N):
                    a.run(weave(mm34(K3, i, q), acheck(K3, i + 1) if i + 1 < N else f))
            else:
                mm = []
                for i in range(N - NQ, N): mm += mm34(K3, i, q)
                a.run(mm[:3] + weave(mm[3:], mix(f, red_w(prev))))
            prev = q
    def reduce_rd():
        a.wait_all(vm=False)
        a('s_barrier')
        for k in range(4):
            for q in range(3):
                a.ds(('rr', k), f'ds_read_b128 {vr(OTH+16*q+4*k,4)}, v{vRD+3} offset:{4096*q+1024*k}')
    def reduce_sum(k, bias):
        o = OWN + 4 * k
        ops = [('wds', ('rr', k))]
        for h in range(2):
            ops += [f'v_pk_add_f32 {vr(o+2*h,2)}, {vr(o+2*h,2)}, {bias(k, h)}', f'v_pk_add_f32 {vr(OTH+4*k+2*h,2)}, {vr(OTH+4*k+2*h,2)}, {vr(OTH+16+4*k+2*h,2)}']
        ops += [f'v_pk_add_f32 {vr(o+2*h,2)}, {vr(o+2*h,2)}, {vr(OTH+32+4*k+2*h,2)}' for h in range(2)]
        ops += [f'v_pk_add_f32 {vr(o+2*h,2)}, {vr(o+2*h,2)}, {vr(OTH+4*k+2*h,2)}' for h in range(2)]
        return ops
    first = events(OPT['EG'])
    while any(e[0] == 'M' for e in EV):
        e = EV.pop(0); first += evD(e[1]) if e[0] == 'D' else evM(e[1])
    first += [f's_sub_u32 s{sT0}, s{sPR}, s{sPL}'] + [f'v_subrev_u32 v{vR2L+t}, s{sT0}, v{vR2+t}' for t in range(4)] + [('wds', ('t', True, 15))]
    BF = ST
    fills = {8: [x for i in range(4) for x in (f'v_lshlrev_b32 v{BF+2*i}, 16, v{BI4+i}', f'v_and_b32 v{BF+2*i+1}, 0xffff0000, v{BI4+i}')]}
    nD = EV[0][1] if EV else 22 + NLOW
    npre = nD
    nM = 16
    NB3 = 16 - OPT['NQ']
    def free_slot(n, moved):
        if n < 22: return n % NSL, None
        last = {}
        for k in range(16, n): last[slot_of[uid(k)]] = k
        c = sorted(k for sl, k in last.items() if sl < NSL and k < moved)
        return (slot_of[uid(c[0])], c[0]) if c else (None, None)
    for i in range(1, NB3 + 4):
        f = []
        if i >= OPT['W2B'] and nD < 30:
            sl, pv = free_slot(nD, nM)
            if sl is not None:
                f += ([('wds', ('t',) + uid(pv))] if pv is not None else []) + dma_unit(False, nD - 16, vQ2, sl); nD += 1
        if i >= OPT['M2B'] and nM < npre and nM - 16 < min(i, NB3): f += evM(nM); nM += 1
        fills[i] = fills.get(i, []) + f
        if i == NB3: assert npre <= 22 or nM >= npre
    lowbar = npre > 22
    gemm34(True, 16, fills, first)
    a.stamp()
    reduce_rd()
    a(f's_mul_i32 s{sT0}, s{sDT}, {56*4096}')
    a(f's_lshl_b32 s{sT1}, s{sCT3}, 13')
    a(f's_add_u32 s{sT0}, s{sT0}, s{sT1}')
    a(f's_and_b32 s{sT1}, s{sWAVE}, 1')
    a(f's_lshl_b32 s{sT1}, s{sT1}, 12')
    a(f's_add_u32 s{sT0}, s{sT0}, s{sT1}')
    a(f's_add_u32 s{sT0}, s{sT0}, {WS_UF:#x}')
    f3 = [f's_lshl_b32 s{sT2}, s{sDT}, 7', f's_bfe_u32 s{sT1}, s2, {1 | (2 << 16)}', f's_add_u32 s{sT2}, s{sT2}, s{sT1}', f's_lshl_b32 s{sT2}, s{sT2}, 5', f's_add_u32 s{sT2}, s{sT2}, s{sZ}',
          f's_lshl_b32 s{sT2}, s{sT2}, 2', f's_add_u32 s{sT2}, s{sT2}, {WS_F3:#x}']
    a.run(f3)
    C1 = -2.0 * 0.7978845608028654 * 1.4426950408889634
    GC = ST + 8
    a(f'v_mov_b32 v{GC}, {f2h(C1 * 0.044715)}')
    a(f'v_mov_b32 v{GC+1}, {f2h(C1)}')
    T = H
    PK = H + 16
    ep = []
    for k in range(4): ep += reduce_sum(k, lambda k, h: vr(BF + 4 * (k & 1) + 2 * h, 2))
    nred = len(ep)
    ep += [f'v_pk_mul_f32 {vr(T+2*j,2)}, {vr(OWN+2*j,2)}, {vr(OWN+2*j,2)}' for j in range(8)]
    ep += [f'v_pk_fma_f32 {vr(T+2*j,2)}, {vr(T+2*j,2)}, {vr(GC,2)}, {vr(GC,2)} op_sel:[0,0,1] op_sel_hi:[1,0,1]' for j in range(8)]
    ep += [f'v_pk_mul_f32 {vr(T+2*j,2)}, {vr(T+2*j,2)}, {vr(OWN+2*j,2)}' for j in range(8)]
    ep += [f'v_exp_f32 v{T+j}, v{T+j}' for j in range(16)]
    ep += [f'v_pk_add_f32 {vr(T+2*j,2)}, {vr(T+2*j,2)}, 1.0 op_sel_hi:[1,0]' for j in range(8)]
    ep += [f'v_rcp_f32 v{T+j}, v{T+j}' for j in range(16)]
    ep += [f'v_pk_mul_f32 {vr(OWN+2*j,2)}, {vr(T+2*j,2)}, {vr(OWN+2*j,2)}' for j in range(8)]
    ep += [f'v_cvt_pk_bf16_f32 v{PK+j}, v{OWN+2*j}, v{OWN+2*j+1}' for j in range(8)]
    a.run(ep)
    for b in range(2):
        a.vm('ust', f'buffer_store_dwordx4 {vr(PK+4*b,4)}, v{vA0}, {srd(sWS)}, s{sT0} offen offset:{1024*b} sc1')
    flag(sT2)
    a.stamp()
    while nM < 30:
        while nD < 30:
            sl, pv = free_slot(nD, nM - 1 if nM < nD else nM)
            if sl is None: break
            if pv is not None: a.wait(ds=[('t',) + uid(pv)])
            a.run(dma_unit(False, nD - 16, vQ2, sl)); nD += 1
        a.run(evM(nM)); nM += 1
    a('s_branch L_join3')
    a.label('L_skip3')
    vq, dq = a.vmq, a.dsq
    a.vmq, a.dsq = save[0], save[1]; slot_of.clear(); slot_of.update(save[3])
    a.run(f3)
    flag(sT2, barrier=False)
    a.wait_all(vm=False)
    nD = min([e[1] for e in save[2] if e[0] == 'D' and e[1] >= 16] + [22])
    assert nD <= 22 and all(sl < NSL for (k3, i_), sl in slot_of.items())
    for n in range(nD, 22): a.run(dma_unit(False, n - 16, vQ2, n % NSL))
    for n in range(16, 30):
        a.run(evM(n))
        if n > 16 and n + 5 < 30:
            a.wait(ds=[('t',) + uid(n - 1)])
            a.run(dma_unit(False, n + 5 - 16, vQ2, (n + 5) % NSL))
    a.run(red_addr)
    if OPT['SKT']:
        a(f's_and_b32 s{sT0}, s{sDT}, 3')
        a(f's_lshl2_add_u32 s{sT0}, s{sT0}, s{sWAVE}')
        a(f's_mul_i32 s{sT0}, s{sT0}, {112 * 8}')
        a(f's_and_b32 s{sT1}, s2, 7')
        a(f's_add_u32 s{sT0}, s{sT0}, s{sT1}')
        a(f's_lshl_b32 s{sT0}, s{sT0}, 9')
        a(f'v_lshrrev_b32 v{vT0}, 2, v{vL}')
        a(f'v_and_b32 v{vT1}, 3, v{vL}')
        a(f'v_lshlrev_b32 v{vT1}, 7, v{vT1}')
        a(f'v_lshl_add_u32 v{vT0}, v{vT0}, 12, v{vT1}')
        for n in range(7):
            a(f'buffer_load_dword v{vDUM}, v{vT0}, {srd(sW2)}, s{sT0} offen{nt("NTT")}')
            a(f's_add_u32 s{sT0}, s{sT0}, {16 * 4096}')
    a.wait_all()
    a.vmq = vq; a.dsq = dq
    a.label('L_join3')
    RES, PMX, vBI = ST, BI4, BI4 + 2
    sRS = sW1A
    a(f's_mul_i32 s{sT0}, s{sWAVE}, 14')
    a(f's_add_u32 s{sT0}, s{sT0}, s{sROT4}')
    a(f's_lshl_b32 s{sHA}, s{sT0}, 12')
    a(f's_mul_i32 s{sT0}, s{sDT}, {56*4096}')
    a(f's_add_u32 s{sHA}, s{sHA}, s{sT0}')
    a(f's_add_u32 s{sHA}, s{sHA}, {WS_UF:#x}')
    a(f's_sub_u32 s{sHB}, s{sHA}, {14*4096}')
    a(f's_lshl_b32 s{sT0}, s{sCT4}, 7')
    a(f's_lshl_b32 s{sT1}, s{sWAVE}, 5')
    a(f's_add_u32 s{sT0}, s{sT0}, s{sT1}')
    a(f'v_lshlrev_b32 v{vT0}, 1, v{vC}')
    a.vm('b2', f'buffer_load_ushort v{vBI}, v{vT0}, {srd(sB2)}, s{sT0} offen')
    a(f'v_lshrrev_b32 v{vT0}, 3, v{vC}')
    a(f'v_and_b32 v{vT1}, 1, v{vC}')
    a(f'v_lshl_add_u32 v{vT0}, v{vT1}, 1, v{vT0}')
    a(f'v_bfe_u32 v{vT1}, v{vC}, 1, 1')
    a(f'v_lshlrev_b32 v{vT1}, 4, v{vT1}')
    a(f'v_mov_b32 v{vT2}, 0x3f80')
    a(f'v_lshlrev_b32 v{vT1}, v{vT1}, v{vT2}')
    a(f'v_cmp_eq_u32 vcc, v{vT0}, v{vG}')
    a(f'v_cndmask_b32 v{vT1}, 0, v{vT1}, vcc')
    a(f'v_and_b32 v{vT0}, 4, v{vC}')
    a(f'v_cmp_eq_u32 vcc, 0, v{vT0}')
    a(f'v_cndmask_b32 v{PMX}, 0, v{vT1}, vcc')
    a(f'v_cndmask_b32_e64 v{PMX+1}, v{vT1}, 0, vcc')
    a(f'v_lshrrev_b32 v{vA0}, 1, v{vG}')
    a(f'v_lshlrev_b32 v{vA0}, 17, v{vA0}')
    a(f'v_lshl_add_u32 v{vA0}, v{vC}, 4, v{vA0}')
    a(f'v_and_b32 v{vT1}, 1, v{vG}')
    a(f'v_lshl_add_u32 v{vA0}, v{vT1}, 3, v{vA0}')
    a(f's_lshl_b32 s{sRS}, s{sDT}, 18')
    a(f's_lshl_b32 s{sT2}, s{sCT4}, 12')
    a(f's_add_u32 s{sRS}, s{sRS}, s{sT2}')
    a(f's_lshl_b32 s{sT2}, s{sWAVE}, 8')
    a(f's_add_u32 s{sRS}, s{sRS}, s{sT2}')
    a(f's_add_u32 s{sRS}, s{sRS}, {WS_HF:#x}')
    a(f'v_lshlrev_b32 v{vA1}, 10, v{vC}')
    a(f'v_lshl_add_u32 v{vA1}, v{vT1}, 5, v{vA1}')
    a(f'v_lshrrev_b32 v{vT1}, 1, v{vG}')
    a(f'v_lshl_add_u32 v{vA1}, v{vT1}, 4, v{vA1}')
    a(f's_lshl_b32 s{sT0}, s{sDT}, 5')
    a(f's_add_u32 s{sT0}, s{sT0}, s{sCT4}')
    a(f's_lshl2_add_u32 s{sT0}, s{sT0}, s{sWAVE}')
    a(f's_lshl_b32 s{sT0}, s{sT0}, 7')
    a(f's_add_u32 s{sT0}, s{sT0}, {WS_F3:#x}')
    poll('L_p3', sT0)
    a.stamp()
    N4 = 14 - OPT['NQ']
    fills = {2: [('vm', 'res', f'buffer_load_dwordx2 {vr(RES+2*t,2)}, v{vA0}, {srd(sWS)}, s{sRS} offen offset:{1024*t} sc1') for t in range(4)],
             N4 + 2: [('wvm', 'res')] + [f'v_mfma_f32_16x16x16_bf16 {acc34(False,0,t)[1]}, {vr(RES+2*t,2)}, {vr(PMX,2)}, {acc34(False,0,t)[1]}' for t in range(4)],
             3: [f'v_lshlrev_b32 v{vBI}, 16, v{vBI}', f'v_mov_b32 v{vBI+1}, v{vBI}', f's_lshl_b32 s{sT0}, s{sCT4}, 16', f's_lshl_b32 s{sT1}, s{sWAVE}, 14',
                 f's_add_u32 s{sT0}, s{sT0}, s{sT1}', f's_lshl_b32 s{sT1}, s{sDT}, 7', f's_add_u32 s{sT0}, s{sT0}, s{sT1}']}
    gemm34(False, 14, fills, [])
    a.stamp()
    reduce_rd()
    for k in range(4): a.run(reduce_sum(k, lambda k, h: vr(vBI, 2)))
    for j in range(8): a(f'v_cvt_pk_bf16_f32 v{PK+j}, v{OWN+2*j}, v{OWN+2*j+1}')
    for e in range(2):
        for h in range(2):
            a(f'v_permlane16_swap_b32 v{PK+4*e+h}, v{PK+4*e+2+h}')
    for e in range(2):
        a(f'buffer_store_dwordx4 {vr(PK+4*e,4)}, v{vA1}, {srd(sOUT)}, s{sT0} offen offset:{64*e}' + ['', ' sc1', ' nt', ' sc0 sc1'][OPT['OSC']])
    a.stamp()
    if PROF:
        a('s_waitcnt lgkmcnt(0)')
        a(f's_cmp_lg_u32 s{sWAVE}, 0')
        a('s_cbranch_scc1 L_end')
        if OPT['AMP'] >= 0:
            a(f's_cmp_lg_u32 s2, {OPT["AWG"]}')
            a('s_cbranch_scc1 L_end')
            a(f's_sub_u32 s{sT2}, s{70+2*OPT["AMP"]}, s70')
            a(f's_lshl_b32 s{sT2}, s{sT2}, 3')
            a(f's_min_u32 s{sT2}, s{sT2}, 100000')
            a(f's_memrealtime s[{sT0}:{sT1}]')
            a('s_waitcnt lgkmcnt(0)')
            a(f's_mov_b32 s{sCNT}, s{sT0}')
            a.label('L_amp')
            a(f's_memrealtime s[{sT0}:{sT1}]')
            a('s_waitcnt lgkmcnt(0)')
            a(f's_sub_u32 s{sT0}, s{sT0}, s{sCNT}')
            a(f's_cmp_lt_u32 s{sT0}, s{sT2}')
            a('s_cbranch_scc1 L_amp')
            a('s_branch L_end')
        a(f's_mul_i32 s{sT0}, s2, {NSTAMP * 8}')
        a(f's_add_u32 s{sT0}, s{sT0}, {128 * MB:#x}')
        a(f's_add_u32 s{sT0}, s{sWS}, s{sT0}')
        a(f's_addc_u32 s{sT1}, s{sWS+1}, 0')
        a(f'v_mov_b32 v{vT0}, 0')
        for i in range(a.nst):
            a(f'v_mov_b32 v{H+2*i}, s{70+2*i}')
            a(f'v_mov_b32 v{H+2*i+1}, s{71+2*i}')
            a(f'global_store_dwordx2 v{vT0}, v[{H+2*i}:{H+2*i+1}], s[{sT0}:{sT1}] offset:{8*i}')
        a(f'v_mov_b32 v{H}, s{sBUD}')
        a(f'v_mov_b32 v{H+1}, 0')
        a(f'global_store_dwordx2 v{vT0}, v[{H}:{H+1}], s[{sT0}:{sT1}] offset:{8*19}')
    a.label('L_end')
    a('s_endpgm')
    for blk in tail:
        for ln in blk: a(ln)
    a.raw('.p2align 8, 0')
    a.label('L_last')
    a.raw('.fill 64, 4, 0xbf810000')
    return a, name, LDS

HEADER = open('cdna_kernels/' + NAME + '.s.ref').read().split('; Override launch')[0]

def main():
    a, name, lds = gen()
    body = a.finalize()
    out = HEADER + f'; @launch grid=(256,1,1) block=(256,1,1) lds={lds}\n'
    out += '.amdgcn_target "amdgcn-amd-amdhsa--gfx950"\n.text\n' + body
    out += f""".section .rodata,"a"
.p2align 6
.amdhsa_kernel {name}
  .amdhsa_next_free_vgpr 512
  .amdhsa_next_free_sgpr 102
  .amdhsa_accum_offset 256
  .amdhsa_group_segment_fixed_size 0
  .amdhsa_kernarg_size 88
  .amdhsa_user_sgpr_count 2
  .amdhsa_user_sgpr_kernarg_segment_ptr 1
  .amdhsa_system_sgpr_workgroup_id_x 1
.end_amdhsa_kernel
"""
    open(sys.argv[1], 'w').write(out)
    print('nops inserted', a.nops_inserted, 'lines', out.count('\n'), 'stamps', a.nst)

if __name__ == '__main__':
    main()
```

```python
import sys, struct
from asmgen import Asm

NAME = "sequential_preLN__sliding_local_dilated__mixer_token_mlp__prompt"
PROF = '--prof' in sys.argv
OPT = dict(CLX=0, WSO=0, CLF=0, CW=1, ALN=12, XS=3, TWB=0, PB1=-1, PB2=-1, WOB=10, SKZ=1, NT1=0, NT2=0, NTT=0, NTX=0, NTW=0, NTO=0, EA=5, AEV=11, EB1=7, EB2=9, EC=13, ED=15, EE=19, EF=21, EG=21, NLOW=4, M2B=1, PG=0, TWO=1, NQ=3, D0=4, PRE1=14, PRE2=25, ZS3=0, AMP=-1, AWG=0,
           W2B=13, OSC=1, SKT=0, CLB=3, CLS=2, CLP=2, KPM=4,
           TN1=64, TB1=-1, TS1=2, DX=0, TW3=0, R3M=0, R4M=0, KP3=7, TN2=64, TB2=-1, TS2=1)
for a_ in sys.argv[2:]:
    if '=' in a_:
        k_, v_ = a_.split('='); assert k_ in OPT, k_; OPT[k_] = int(v_)
NSTAMP = 20
def ntu(K3, i): return ' nt' if i < OPT['NT1' if K3 else 'NT2'] else ''
def nt(k): return ' nt' if OPT[k] else ''
MB = 1 << 20
KB = 1024
WS_OF, WS_HN, WS_HF, WS_UF, WS_SX = 0, 2 * MB, 4 * MB, 6 * MB, 8 * MB
WS_F1, WS_DUM = 8 * MB + 256 * KB, 9 * MB
WS_F2, WS_F3 = WS_F1 + 128 * KB, WS_F1 + 256 * KB
NEGBIG = 0xF149F2CA
SPIN = 1 << 17

def vr(b, n=1): return f'v{b}' if n == 1 else f'v[{b}:{b+n-1}]'
def ar(b, n=1): return f'a{b}' if n == 1 else f'a[{b}:{b+n-1}]'
def srd(b): return f's[{b}:{b+3}]'
def f2h(x): return '%#x' % struct.unpack('<I', struct.pack('<f', x))[0]

class Em(Asm):
    def __init__(self):
        super().__init__()
        self.vmq = []; self.dsq = []; self.nst = 0
        self.inj = []; self.every = 1; self.cnt = 0
    def __call__(self, text):
        super().__call__(text)
        if self.inj and text.startswith('v_'):
            self.cnt += 1
            if self.cnt >= self.every:
                self.cnt = 0
                q = self.inj; op = q.pop(0); self.inj = []
                self.run([op]); self.inj = q
    def inject(self, ops, every): self.inj = list(ops); self.every = every; self.cnt = 0
    def flush(self):
        q = self.inj; self.inj = []; self.run(q)
    def vm(self, tag, text):
        self(text); self.vmq.append(tag)
        assert len(self.vmq) <= 63, ('vm overflow', tag)
    def ds(self, tag, text):
        self(text); self.dsq.append(tag)
    @staticmethod
    def _n(q, tags):
        idx = -1
        for k, t in enumerate(q):
            if t in tags: idx = k
        return idx
    def wait(self, vm=(), ds=()):
        s = []
        i = self._n(self.vmq, list(vm))
        if i >= 0:
            s.append(f'vmcnt({len(self.vmq) - 1 - i})'); self.vmq = self.vmq[i + 1:]
        i = self._n(self.dsq, list(ds))
        if i >= 0:
            n = len(self.dsq) - 1 - i
            if n > 15: n = 15
            s.append(f'lgkmcnt({n})'); self.dsq = self.dsq[len(self.dsq) - n:] if n else []
        if s: self('s_waitcnt ' + ' '.join(s))
    def wait_all(self, vm=True, ds=True):
        s = []
        if vm: s.append('vmcnt(0)'); self.vmq = []
        if ds: s.append('lgkmcnt(0)'); self.dsq = []
        self('s_waitcnt ' + ' '.join(s))
    def run(self, ops):
        for op in ops:
            if isinstance(op, str): self(op)
            elif op[0] == 'vm': self.vm(op[1], op[2])
            elif op[0] == 'ds': self.ds(op[1], op[2])
            elif op[0] == 'wvm': self.wait(vm=[op[1]])
            elif op[0] == 'wds': self.wait(ds=[op[1]])
            elif op[0] == 'grp': self.run(op[1])
            elif op[0] == 'label': self.label(op[1])
            else: raise ValueError(op)
    def stamp(self, *grps):
        if not PROF: return
        if not grps: grps = (0,)
        if OPT['PG'] not in grps and -1 not in grps: return
        assert self.nst < 15
        self(f's_memrealtime s[{70 + 2*self.nst}:{71 + 2*self.nst}]')
        self.nst += 1

def flat(ops):
    out = []
    for op in ops:
        if not isinstance(op, str) and op[0] == 'grp': out += flat(op[1])
        else: out.append(op)
    return out

def weave(prim, fill, lead=0):
    out = []
    n, m = len(prim), len(fill)
    k = 0
    for i, p in enumerate(prim):
        out.append(p)
        tgt = min(m, (m * (i + 1) + n - 1) // n + lead) if n else m
        while k < tgt:
            out.append(fill[k]); k += 1
    out += fill[k:]
    return out
def mix(a, b): return weave(a, b) if len(a) >= len(b) else weave(b, a)

sX, sWQ, sWO, sW1, sB1, sW2, sB2, sOUT, sDBG, sWS = 4, 8, 12, 16, 20, 24, 28, 32, 36, 40
sPOLL = 4
sWAVE, sBUD, sT0, sT1, sT2, sCNT = 44, 45, 46, 47, 48, 49
sXB, sWB, sWOB, sLW, sRT, sDT = 50, 51, 52, 53, 54, 55
sCT3, sCT4, sROT3, sROT4 = 56, 57, 58, 59
sW1A, sW1B, sW2A, sW2B, sPR, sLIM1 = 60, 61, 62, 63, 64, 65
sSTP1, sZ = 66, 67
sNON = 68
sD3 = 100
vL, vG, vC, vT0, vT1, vT2, vT3, vL16 = 1, 2, 3, 4, 5, 6, 7, 8
vDUM, vCK = 252, 253

def gen():
    a = Em()
    tail = []
    name = NAME + '_kernel'
    a.raw(f'.globl {name}\n.p2align {OPT["ALN"]}\n.type {name},@function')
    a.label(name)
    a.stamp(-1)
    NW = 6
    L_X = NW * 12288
    L_H = L_X + 64 * KB
    L_NM = L_H + 8 * KB
    L_HP = L_NM + 2560
    L_PR = 64 * KB
    NSL = 6
    LDS = 160 * KB
    assert L_HP + 2048 <= LDS
    for s, off in ((sX, 0), (sWQ, 8), (sWS, 80), (sDBG, 72), (sWO, 16), (sW1, 32), (sB1, 40), (sW2, 48), (sB2, 56), (sOUT, 64)):
        a(f's_load_dwordx2 s[{s}:{s+1}], s[0:1], {off}')
    a('s_cmp_ge_u32 s2, 256')
    a('s_cbranch_scc1 L_end')
    a(f'v_lshrrev_b32 v{vG}, 6, v0')
    a(f'v_and_b32 v{vL}, 63, v0')
    a(f'v_readfirstlane_b32 s{sWAVE}, v{vG}')
    if OPT['CW']:
        a(f's_getpc_b64 s[{sT0}:{sT1}]')
        a(f's_and_b32 s{sT0}, s{sT0}, 0xffffff00')
        a(f's_lshr_b32 s{sT2}, s2, 3')
        a(f's_lshl2_add_u32 s{sT2}, s{sT2}, s{sWAVE}')
        a(f's_lshl_b32 s{sT2}, s{sT2}, 8')
        a(f's_min_u32 s{sT2}, s{sT2}, (L_last-{name})&0xffffff00')
        a(f'v_and_b32 v{vT0}, 1, v0')
        a(f'v_lshl_add_u32 v{vT0}, v{vT0}, 7, s{sT2}')
        a.vm('cw', f'global_load_dword v{vDUM}, v{vT0}, s[{sT0}:{sT1}]')
    a(f'v_lshrrev_b32 v{vG}, 4, v{vL}')
    a(f'v_and_b32 v{vC}, 15, v{vL}')
    a(f'v_lshlrev_b32 v{vL16}, 4, v{vL}')
    for s, n in ((sX, 2048 * 1024), (sWQ, 512 * 3072), (sWS, 16 * MB), (sDBG, 256), (sWO, 512 * 1024), (sW1, 2048 * 3584),
                 (sB1, 3584), (sW2, 1792 * 4096), (sB2, 4096), (sOUT, 2048 * 1024)):
        a(f's_mov_b32 s{s+2}, {n:#x}')
        a(f's_mov_b32 s{s+3}, 0x20000')
    vXD, vWD, vWOD, vXR, vHR, vTR, vSR, vHS = 9, 10, 11, 12, 13, 14, 16, 17
    vXD1, vE0 = 18, 19
    WB, XB, ACC, SB, GS, GO, GH, CST, STC = 20, 44, 104, 164, 180, 184, 188, 192, 212
    QP, KP, VP = 222, 230, 20
    vXR1, vSR1, vRA = 240, 241, 242
    vQ1, vR1 = 244, 248
    SEN = QP
    sXL, sHL, sHB, sKP = sW2A, sW2B, sROT4, sPR
    a(f's_lshr_b32 s{sZ}, s2, 5')
    a(f's_bfe_u32 s{sT0}, s2, {1 | (2 << 16)}')
    a(f's_lshr_b32 s{sT1}, s2, 6')
    a(f's_lshl2_add_u32 s{sT0}, s{sT0}, s{sT1}')
    a(f's_and_b32 s{sT1}, s{sZ}, 1')
    a(f's_lshl4_add_u32 s{sRT}, s{sT1}, s{sT0}')
    a(f's_lshl_b32 s{sT1}, s{sT1}, 10')
    a(f's_bfe_u32 s{sT2}, s2, {3 | (2 << 16)}')
    if OPT['DX'] & 3: a(f's_xor_b32 s{sT2}, s{sT2}, {OPT["DX"] & 3}')
    a(f's_and_b32 s{sDT}, s2, 1')
    if OPT['DX'] & 4: a(f's_xor_b32 s{sDT}, s{sDT}, 1')
    a(f's_lshl2_add_u32 s{sDT}, s{sDT}, s{sT2}')
    a(f's_lshl_b32 s{sT2}, s{sT2}, 1')
    a(f's_xor_b32 s{sKP}, s{sT2}, s{sZ}')
    a(f's_cmp_eq_u32 s{sDT}, 3')
    a(f's_cselect_b32 s{sWB}, {OPT["KP3"]}, {OPT["KPM"]}')
    a(f's_and_b32 s{sKP}, s{sKP}, s{sWB}')
    a(f's_lshl_b32 s{sWB}, s{sKP}, 1')
    a(f's_lshl2_add_u32 s{sXB}, s{sT0}, s{sWAVE}')
    a(f's_lshl_b32 s{sXB}, s{sXB}, 15')
    a(f's_add_u32 s{sXB}, s{sXB}, s{sT1}')
    a(f's_lshl_b32 s{sT2}, s{sKP}, 7')
    a(f's_add_u32 s{sXB}, s{sXB}, s{sT2}')
    a(f's_lshl_b32 s{sT0}, s{sT0}, 17')
    a(f's_sub_u32 s{sT0}, s{sT0}, 16384')
    a(f's_max_i32 s{sT0}, s{sT0}, 0')
    a(f's_add_u32 s{sT0}, s{sT0}, s{sT1}')
    a(f's_xor_b32 s{sT2}, s{sKP}, s{sWAVE}')
    a(f's_lshl_b32 s{sT2}, s{sT2}, 7')
    a(f's_add_u32 s{sHB}, s{sT0}, s{sT2}')
    a(f's_lshl_b32 s{sXL}, s{sWAVE}, 14')
    a(f's_add_u32 s{sXL}, s{sXL}, {L_X}')
    a(f's_lshl_b32 s{sHL}, s{sWAVE}, 10')
    a(f's_add_u32 s{sHL}, s{sHL}, {L_H}')
    a(f's_mul_i32 s{sLW}, s{sWAVE}, 3072')
    a(f'v_lshrrev_b32 v{vT0}, 3, v{vL}')
    a(f'v_and_b32 v{vT1}, 7, v{vL}')
    a(f'v_xor_b32 v{vT1}, v{vT1}, v{vG}')
    a(f'v_lshlrev_b32 v{vT1}, 4, v{vT1}')
    a(f'v_lshl_add_u32 v{vXD}, v{vT0}, 11, v{vT1}')
    a(f'v_xor_b32 v{vXD1}, 64, v{vXD}')
    a(f'v_add_u32 v{vXD1}, {16384 - 1024}, v{vXD1}')
    a(f's_lshl_b32 s{sT0}, s{sDT}, 7')
    a(f's_lshl3_add_u32 s{sT0}, s{sLW}, s{sT0}')
    a(f'v_mov_b32 v{vT1}, 3072')
    a(f'v_mad_u32_u24 v{vWD}, v{vT0}, v{vT1}, s{sT0}')
    a(f'v_lshrrev_b32 v{vT0}, 1, v{vL}')
    a(f'v_and_b32 v{vT1}, 1, v{vG}')
    a(f's_lshl_b32 s3, s{sWAVE}, 1')
    a(f'v_xor_b32 v{vT0}, v{vT0}, v{vT1}')
    a(f'v_xor_b32 v{vT0}, s3, v{vT0}')
    a(f'v_and_b32 v{vT0}, 3, v{vT0}')
    a(f'v_lshl_add_u32 v{vWD}, v{vT0}, 5, v{vWD}')
    a(f'v_and_b32 v{vT0}, 1, v{vL}')
    a(f'v_lshl_add_u32 v{vWD}, v{vT0}, 4, v{vWD}')
    a('s_waitcnt lgkmcnt(0)')
    a.stamp(1)
    wso = [f's_add_u32 s{sWS}, s{sWS}, {OPT["WSO"] * MB:#x}', f's_addc_u32 s{sWS+1}, s{sWS+1}, 0'] if OPT['WSO'] else []
    def xloads(p):
        return [('grp', [f's_add_u32 m0, s{sXL}, {p * 2048}', f's_xor_b32 s3, s{sXB}, {p * 128}',
                         ('vm', ('x', p), f'buffer_load_dwordx4 v{vXD}, {srd(sX)}, s3 offen{nt("NTX")} lds')]),
                ('vm', ('x', p), f'buffer_load_dwordx4 v{vXD1}, {srd(sX)}, s3 offen offset:1024{nt("NTX")} lds')]
    def hloads(j):
        return [('grp', [f's_add_u32 m0, s{sHL}, {j * 4096}', f's_xor_b32 s3, s{sHB}, {j * 512}', 's_mov_b32 exec_lo, 0xffffff00',
                         ('vm', ('h', j), f'buffer_load_dwordx4 v{vXD}, {srd(sX)}, s3 offen{nt("NTX")} lds'), 's_mov_b32 exec_lo, -1'])]
    def wloads(k):
        slot = k % NW
        if k < 16:
            return [('grp', [f's_add_u32 m0, s{sLW}, {slot * 12288}', f's_xor_b32 s3, s{sWB}, {k}', f's_mul_i32 s3, s3, {32 * 3072}',
                             ('vm', ('w', k), f'buffer_load_dwordx4 v{vWD}, {srd(sWQ)}, s3 offen{nt("NTW")} lds')])] + \
                   [('vm', ('w', k), f'buffer_load_dwordx4 v{vWD}, {srd(sWQ)}, s3 offen offset:{1024*R}{nt("NTW")} lds') for R in (1, 2)]
        ops = []
        for j in range(3 if slot < 5 else 1):
            i = 3 * slot + j
            ops.append(('grp', [f's_add_u32 m0, s{sLW}, {i * 4096}', f's_add_u32 s3, s{sWOB}, {i * 32768}',
                                ('vm', 'wo', f'buffer_load_dwordx4 v{vWOD}, {srd(sWO)}, s3 offen{nt("NTO")} lds')]))
        return ops
    seq = [xloads(0), hloads(0), wloads(0), wloads(1), xloads(1), wloads(2), wloads(3), xloads(2), wloads(4), wloads(5)]
    def take(n):
        while seq and len(a.vmq) - OPT["CW"] + len(seq[0]) <= n: a.run(seq.pop(0))
    def tw3():
        a(f's_lshr_b32 s{sT0}, s2, 3')
        a(f's_lshl2_add_u32 s{sT0}, s{sT0}, s{sWAVE}')
        a(f's_mul_i32 s{sT0}, s{sT0}, 12')
        a(f's_lshr_b32 s{sT1}, s{sDT}, 2')
        a(f's_lshl_b32 s{sT1}, s{sT1}, 11')
        a(f's_add_u32 s{sT0}, s{sT0}, s{sT1}')
        a(f'v_min_u32 v{vT3}, 11, v{vC}')
        a(f'v_add_lshl_u32 v{vT3}, v{vT3}, s{sT0}, 10')
        a.vm('tw', f'buffer_load_dword v{vDUM}, v{vT3}, {srd(sWQ)}, 0 offen offset:384')
    if OPT['TW3'] == 1: tw3()
    if OPT['TW3'] == 2: take(6); tw3()
    take(OPT['PRE1'])
    if OPT['TW3'] == 3: tw3()
    a.run(wso)
    a.stamp(1)
    a(f's_or_b32 s{sT0}, s2, s{sWAVE}')
    a(f's_cmp_lg_u32 s{sT0}, 0')
    a('s_cbranch_scc1 L_nononce')
    a(f's_memrealtime s[{sT0}:{sT1}]')
    a(f'v_mov_b32 v{vT1}, 0')
    a('s_waitcnt lgkmcnt(0)')
    a(f's_or_b32 s{sT0}, s{sT0}, 1')
    a(f'v_mov_b32 v{vT0}, s{sT0}')
    a('s_mov_b64 exec, 1')
    a(f'buffer_store_dword v{vT0}, v{vT1}, {srd(sDBG)}, 0 offen sc1')
    a('s_mov_b64 exec, -1')
    a.label('L_nononce')
    BC, BP, BP0, MC, MP, ONE = CST, CST + 4, CST + 8, CST + 12, CST + 14, CST + 16
    for k in range(4): a(f'v_mov_b32 v{ONE+k}, 0x3f803f80')
    a(f'v_lshrrev_b32 v{vT0}, 3, v{vL}')
    a(f'v_and_b32 v{vT1}, 7, v{vL}')
    a(f'v_lshlrev_b32 v{vT1}, 4, v{vT1}')
    a(f'v_lshl_add_u32 v{vT0}, v{vT0}, 10, v{vT1}')
    a(f'v_add_u32 v{vT0}, {L_H}, v{vT0}')
    a(f'ds_write_b128 v{vT0}, {vr(ONE,4)}')
    a(f'v_lshrrev_b32 v{vT0}, 1, v{vC}')
    a(f'v_xor_b32 v{vT0}, v{vT0}, v{vG}')
    a(f'v_lshlrev_b32 v{vT0}, 4, v{vT0}')
    a(f'v_lshl_add_u32 v{vT0}, v{vC}, 7, v{vT0}')
    a(f'v_add_u32 v{vSR}, s{sXL}, v{vT0}')
    a(f'v_add_u32 v{vXR}, {L_X}, v{vT0}')
    a(f'v_xor_b32 v{vSR1}, 64, v{vSR}')
    a(f'v_xor_b32 v{vXR1}, 64, v{vXR}')
    a(f'v_and_b32 v{vT0}, {0x3bf}, v{vT0}')
    a(f'v_add_u32 v{vHR}, {L_H}, v{vT0}')
    a(f'v_add_u32 v{vHS}, s{sHL}, v{vT0}')
    a(f's_xor_b32 s{sT0}, s{sDT}, s{sKP}')
    a(f's_lshl_b32 s{sT0}, s{sT0}, 11')
    a(f'v_add_u32 v{vRA}, s{sT0}, v{vSR}')
    a(f'v_add_u32 v{vRA+1}, s{sT0}, v{vSR1}')
    a(f'v_mul_u32_u24 v{vTR}, 3072, v{vG}')
    a(f'v_bfe_u32 v{vT0}, v{vL}, 2, 2')
    a(f'v_lshl_add_u32 v{vTR}, v{vT0}, 7, v{vTR}')
    a(f'v_bfe_u32 v{vT0}, v{vL}, 3, 2')
    a(f'v_xor_b32 v{vT0}, s{sWAVE}, v{vT0}')
    a(f'v_lshl_add_u32 v{vTR}, v{vT0}, 5, v{vTR}')
    a(f'v_and_b32 v{vT0}, 3, v{vL}')
    a(f'v_lshl_add_u32 v{vTR}, v{vT0}, 3, v{vTR}')
    a(f'v_add_u32 v{vTR+1}, {3 * 12288}, v{vTR}')
    for k in range(4): a(f'v_mov_b32 v{SEN+k}, -1')
    a(f's_mov_b32 s{sBUD}, {SPIN}')
    a(f's_bfe_u32 s{sD3}, s2, {3 | (3 << 16)}')
    a(f's_and_b32 s{sT1}, s2, 1')
    a(f's_lshr_b32 s{sT2}, s2, 6')
    a(f's_lshr_b32 s{sT0}, s{sD3}, 2')
    a(f's_cmp_eq_u32 s{sT0}, s{sT1}')
    a(f's_cselect_b32 s{sT0}, 3, 7')
    a(f's_lshl2_add_u32 s{sZ}, s{sT1}, s{sT2}')
    a(f's_cmp_lt_u32 s{sT2}, 3')
    a(f's_cselect_b32 s{sZ}, s{sZ}, s{sT0}')
    a(f's_bfe_u32 s{sT0}, s2, {1 | (2 << 16)}')
    a(f's_mul_i32 s{sCT3}, s{sT0}, 7')
    a(f's_cmp_lt_u32 s{sZ}, 7')
    a(f's_cselect_b32 s{sT0}, s{sZ}, 3')
    a(f's_add_u32 s{sCT3}, s{sCT3}, s{sT0}')
    a(f's_add_u32 s{sT0}, s{sT2}, 1')
    a(f's_and_b32 s{sT0}, s{sT0}, 3')
    a(f's_and_b32 s{sCT4}, s2, 7')
    a(f's_lshl2_add_u32 s{sCT4}, s{sCT4}, s{sT0}')
    if OPT['R3M'] == 0: a(f's_mov_b32 s{sROT3}, 0')
    elif OPT['R3M'] == 1:
        a(f's_and_b32 s{sROT3}, s{sT2}, 1')
        a(f's_lshl_b32 s{sROT3}, s{sROT3}, 3')
    elif OPT['R3M'] == 2: a(f's_lshl_b32 s{sROT3}, s{sT2}, 2')
    elif OPT['R3M'] == 3: a(f's_lshl_b32 s{sROT3}, s{sD3}, 1')
    elif OPT['R3M'] == 4:
        a(f's_and_b32 s{sROT3}, s{sD3}, 3')
        a(f's_lshl_b32 s{sROT3}, s{sROT3}, 2')
    else:
        a(f's_and_b32 s{sROT3}, s{sD3}, 1')
        a(f's_lshl_b32 s{sROT3}, s{sROT3}, 3')
    a(f's_mov_b32 s{sSTP1}, {64 * 3584}')
    a(f's_sub_u32 s{sLIM1}, 16, s{sROT3}')
    a(f's_and_b32 s{sT0}, s{sWAVE}, 1')
    a(f's_lshl_b32 s{sT0}, s{sT0}, 4')
    a(f's_add_u32 s{sT0}, s{sT0}, s{sROT3}')
    a(f's_lshl_b32 s{sT0}, s{sT0}, 6')
    a(f's_lshr_b32 s{sT1}, s{sWAVE}, 1')
    a(f's_add_u32 s{sT0}, s{sT0}, s{sT1}')
    a(f's_mul_i32 s{sW1A}, s{sT0}, 3584')
    a(f's_lshl_b32 s{sT0}, s{sCT3}, 7')
    a(f's_add_u32 s{sW1A}, s{sW1A}, s{sT0}')
    a(f's_sub_u32 s{sW1B}, s{sW1A}, {16 * 64 * 3584}')
    a(f's_mul_i32 s{sPR}, s{sWAVE}, {NSL * 4096}')
    a(f's_add_u32 s{sPR}, s{sPR}, {L_PR}')
    a(f's_lshl_b32 s{sWOB}, s{sWAVE}, 13')
    a(f's_lshl_b32 s{sT0}, s{sDT}, 7')
    a(f's_add_u32 s{sWOB}, s{sWOB}, s{sT0}')
    def w2_scalars(A, B, rot):
        r = [[f's_mov_b32 s{rot}, 0'], [f's_bfe_u32 s{sT1}, s2, {6 | (1 << 16)}', f's_mul_i32 s{rot}, s{sT1}, 7'],
             [f's_lshr_b32 s{sT1}, s2, 6', f's_mul_i32 s{rot}, s{sT1}, 7', f's_add_u32 s{rot}, s{rot}, 1', f's_lshr_b32 s{rot}, s{rot}, 1'],
             [f's_mul_i32 s{rot}, s{sD3}, 7', f's_lshr_b32 s{rot}, s{rot}, 2'],
             [f's_and_b32 s{sT1}, s{sD3}, 3', f's_mul_i32 s{rot}, s{sT1}, 7', f's_add_u32 s{rot}, s{rot}, 1', f's_lshr_b32 s{rot}, s{rot}, 1'],
             [f's_and_b32 s{sT1}, s{sD3}, 1', f's_mul_i32 s{rot}, s{sT1}, 7']][OPT['R4M']]
        return r + [
                f's_mul_i32 s{sT0}, s{sWAVE}, 14', f's_add_u32 s{sT0}, s{sT0}, s{rot}', f's_lshl_b32 s{A}, s{sT0}, 17',
                f's_lshl_b32 s{sT0}, s{sCT4}, 7', f's_add_u32 s{A}, s{A}, s{sT0}', f's_sub_u32 s{B}, s{A}, {14 << 17}']
    a(f'v_mov_b32 v{vT1}, {NEGBIG:#x}')
    a(f's_and_b32 s{sT0}, s{sRT}, 15')
    a(f's_cmp_eq_u32 s{sT0}, 0')
    a(f's_cselect_b32 s{sT0}, {NEGBIG:#x}, 0')
    for r in range(4):
        a(f'v_lshl_add_u32 v{vT0}, v{vG}, 2, {r}')
        a(f'v_sub_u32 v{vT0}, v{vC}, v{vT0}')
        a(f'v_cmp_gt_u32 vcc, 8, v{vT0}')
        a(f'v_cndmask_b32_e64 v{BC+r}, v{vT1}, 0, vcc')
        a(f'v_cmp_gt_i32 vcc, -8, v{vT0}')
        a(f'v_cndmask_b32_e64 v{BP+r}, v{vT1}, 0, vcc')
        a(f'v_min_f32 v{BP0+r}, s{sT0}, v{BP+r}')
        a(f'v_cmp_le_i32 vcc, 0, v{vT0}')
        if r % 2 == 0:
            a(f'v_cndmask_b32_e64 v{MC+r//2}, 0, -1, vcc')
            a(f'v_and_b32 v{MC+r//2}, 0xffff, v{MC+r//2}')
        else:
            a(f'v_cndmask_b32_e64 v{vT0}, 0, -1, vcc')
            a(f'v_and_b32 v{vT0}, 0xffff0000, v{vT0}')
            a(f'v_or_b32 v{MC+r//2}, v{MC+r//2}, v{vT0}')
            a(f'v_not_b32 v{MP+r//2}, v{MC+r//2}')
    a(f'v_lshrrev_b32 v{vT0}, 1, v{vL}')
    a(f'v_xor_b32 v{vT0}, v{vT0}, v{vG}')
    a(f'v_and_b32 v{vT0}, 3, v{vT0}')
    a(f'v_lshrrev_b32 v{vT1}, 3, v{vL}')
    a(f'v_lshlrev_b32 v{vWOD}, 10, v{vT1}')
    a(f'v_lshl_add_u32 v{vWOD}, v{vT0}, 5, v{vWOD}')
    a(f'v_and_b32 v{vT0}, 1, v{vL}')
    a(f'v_lshl_add_u32 v{vWOD}, v{vT0}, 4, v{vWOD}')
    def mk_q(base, K3):
        if K3:
            ops = [f'v_lshrrev_b32 v{base+1}, 3, v{vL}', f'v_mul_u32_u24 v{base}, 7168, v{base+1}']
            st = 8 * 7168 - 1024
        else:
            ops = [f'v_bfe_u32 v{base+1}, v{vL}, 3, 2', f'v_lshrrev_b32 v{base}, 5, v{vL}', f'v_lshl_add_u32 v{base}, v{base}, 4, v{base+1}',
                   f'v_lshlrev_b32 v{base}, 12, v{base}']
            st = 4 * 4096 - 1024
        ops += [f'v_lshrrev_b32 v{base+1}, 1, v{vL}', f'v_and_b32 v{base+2}, 1, v{vG}', f'v_xor_b32 v{base+1}, v{base+1}, v{base+2}',
                f'v_and_b32 v{base+1}, 3, v{base+1}', f'v_lshl_add_u32 v{base}, v{base+1}, 5, v{base}',
                f'v_and_b32 v{base+1}, 1, v{vL}', f'v_lshl_add_u32 v{base}, v{base+1}, 4, v{base}',
                f'v_xor_b32 v{base+1}, 64, v{base}', f'v_add_u32 v{base+2}, {2*st}, v{base}', f'v_add_u32 v{base+3}, {3*st}, v{base+1}', f'v_add_u32 v{base+1}, {st}, v{base+1}']
        return ops
    def mk_r(base, K3):
        ops = [f'v_bfe_u32 v{base+1}, v{vL}, 2, 2', f'v_lshl_add_u32 v{base+1}, v{vG}, 3, v{base+1}']
        ops += [f's_and_b32 s3, s{sWAVE}, 1', 's_lshl_b32 s3, s3, 1'] if K3 else [f's_mov_b32 s3, s{sWAVE}']
        ops += [f'v_lshlrev_b32 v{base}, 7, v{base+1}', f'v_bfe_u32 v{base+1}, v{vL}, 3, 2', f'v_xor_b32 v{base+1}, s3, v{base+1}',
                f'v_lshl_add_u32 v{base}, v{base+1}, 5, v{base}', f'v_and_b32 v{base+1}, 3, v{vL}', f'v_lshl_add_u32 v{base}, v{base+1}, 3, v{base}',
                f'v_add_u32 v{base}, s{sPR}, v{base}']
        ops += [f'v_xor_b32 v{base+t}, {32*t}, v{base}' for t in range(1, 4)]
        return ops
    slot_of = {}
    vQ2, vR2, vR2L = 240, 28, 244
    sPL = sWOB
    def dma_unit(K3, i, q, slot):
        slot_of[(K3, i)] = slot
        tag = ('u', K3, i)
        m0 = f's_add_u32 m0, s{sPR}, {slot*4096}' if slot < NSL else f's_add_u32 m0, s{sPL}, {(slot-NSL)*4096}'
        if K3:
            S = sW1
            pre = [f's_mul_i32 s3, s{sSTP1}, {i}', f's_cmp_gt_u32 s{sLIM1}, {i}', f's_cselect_b32 m0, s{sW1A}, s{sW1B}', 's_add_u32 s3, s3, m0', m0]
        else:
            S = sW2
            pre = [f's_cmp_lt_u32 s{sROT4}, {14 - i}', f's_cselect_b32 s3, s{sW2A}, s{sW2B}', m0, f's_add_u32 s3, s3, {i << 17}']
        ops = [('grp', pre + [('vm', tag, f'buffer_load_dwordx4 v{q}, {srd(S)}, s3 offen{ntu(K3, i)} lds')])]
        for k in range(1, 4):
            ops.append(('vm', tag, f'buffer_load_dwordx4 v{q+k}, {srd(S)}, s3 offen offset:{1024*k}{ntu(K3, i)} lds'))
        return ops
    def tr_unit(K3, i):
        slot = slot_of[(K3, i)]
        r = vR1 if K3 else vR2
        if slot >= NSL: r = vR2L; slot -= NSL; assert not K3
        return [('ds', ('t', K3, i), f'ds_read_b64_tr_b16 {ar(16*i+4*t+2*h, 2)}, v{r+t} offset:{slot*4096 + 512*h}') for t in range(4) for h in range(2)]
    NLOW = OPT['NLOW']
    def uid(n): return (True, n) if n < 16 else (False, n - 16)
    nofetch = [('grp', [f's_cmp_lt_u32 s{sZ}, 7', f's_cselect_b32 s{sW1+2}, s{sW1+2}, 0'])]
    def evD(n):
        K3, i = uid(n)
        if n < 22: slot, prev = n % NSL, n - NSL
        elif n < 22 + NLOW: slot, prev = NSL + n - 22, -1
        else: raise ValueError
        w = [('wds', ('t',) + uid(prev))] if prev >= 0 else []
        return w + dma_unit(K3, i, vQ1 if K3 else vQ2, slot) + (nofetch if n == OPT['NT1'] - 1 else [])
    def evM(n): return [('wvm', ('u',) + uid(n))] + tr_unit(*uid(n))
    EV = [('D', n) for n in range(6)] + [('M', 0)]
    for n in range(1, 16): EV += [('M', n), ('D', n + 5)]
    EV += [('D', n) for n in range(21, 22 + NLOW)]
    EV0 = list(EV)
    def events(upto):
        ops = []
        while EV and any(e[0] == 'D' and e[1] <= upto for e in EV):
            e = EV.pop(0)
            ops += evD(e[1]) if e[0] == 'D' else evM(e[1])
        return ops
    a.run(mk_q(vQ1, True))
    a.run(mk_r(vR1, True))
    a.stamp(1)
    take(OPT['PRE2'])
    def xb(i, s): return XB + 20 * (i % 3) + 4 * s
    def wb(i, R): return WB + 12 * (i % 2) + 4 * R
    def acc(R, s): return ACC + 20 * R + 4 * s
    def xreads(i):
        return [('ds', ('xr', i), f'ds_read_b128 {vr(xb(i,s),4)}, v{vXR1 if i & 1 else vXR} offset:{2048*(i>>1) + 16384*(s-1)}') for s in range(1, 5)] + \
               [('ds', ('xr', i), f'ds_read_b128 {vr(xb(i,0),4)}, v{vHR} offset:{1024*(i>>1) + 64*(i&1)}')]
    def trreads(i):
        slot = i % NW
        return [('ds', ('wr', i), f'ds_read_b64_tr_b16 {vr(wb(i,R)+2*h,2)}, v{vTR + slot//3} offset:{(slot%3)*12288 + R*1024 + 512*h}') for R in range(3) for h in range(2)]
    def mfmas(i):
        ops = []
        for R in range(3):
            for s in (1, 2, 3, 4, 0):
                x = vr(xb(i, s), 4); d = vr(acc(R, s), 4); w = vr(wb(i, R), 4)
                cin = '0' if i == 0 else d
                ops.append(f'v_mfma_f32_16x16x32_bf16 {d}, {w}, {x}, {cin}' if R < 2 else f'v_mfma_f32_16x16x32_bf16 {d}, {x}, {w}, {cin}')
        return ops
    jobs = {1: ('s', 0), 2: ('s', 1), 4: ('h', 0), 5: ('s', 2), 6: ('s', 3), 7: ('h', 1), 8: ('s', 4), 9: ('s', 5), 10: ('s', 6), 11: ('s', 7)}
    def job_reads(b):
        if b not in jobs: return []
        kind, p = jobs[b]
        if kind == 's':
            return [('ds', ('jr', b), f'ds_read_b128 {vr(SB+8*(b&1)+4*k,4)}, v{vSR1 if k else vSR} offset:{2048*p}') for k in range(2)]
        return [('ds', ('jr', b), f'ds_read_b128 {vr(SB+8*(b&1)+4*k,4)}, v{vHS} offset:{4096*p + 64*k}') for k in range(2)]
    def job_mfmas(b):
        if b not in jobs: return []
        kind, p = jobs[b]
        ops = []
        for k in range(2):
            x = vr(SB + 8 * (b & 1) + 4 * k, 4)
            first = p == 0 and k == 0
            if kind == 's':
                ops.append(f'v_mfma_f32_16x16x32_bf16 {vr(GS,4)}, {x}, {x}, {"0" if first else vr(GS,4)}')
                ops.append(f'v_mfma_f32_16x16x32_bf16 {vr(GO,4)}, {vr(ONE,4)}, {x}, {"0" if first else vr(GO,4)}')
            else:
                ops.append(f'v_mfma_f32_16x16x32_bf16 {vr(GH,4)}, {x}, {x}, {"0" if first else vr(GH,4)}')
        return ops
    def stat_finalize(s, q, tmp):
        return [f'v_mul_f32 v{s}, 0xbb000000, v{s}',
                f'v_mul_f32 v{tmp}, v{s}, v{s}',
                f'v_mul_f32 v{q}, 0x3b000000, v{q}',
                f'v_sub_f32 v{q}, v{q}, v{tmp}',
                f'v_max_f32 v{q}, 0, v{q}',
                f'v_add_f32 v{q}, 0x3727c5ac, v{q}',
                f'v_rsq_f32 v{q}, v{q}']
    def diag(G, dst):
        ops = []
        for k in range(1, 4):
            m = 0x11111111 << k
            ops.append(('grp', [f's_mov_b32 vcc_lo, {m:#x}', f's_mov_b32 vcc_hi, {m:#x}', f'v_cndmask_b32 v{dst}, v{G if k == 1 else dst}, v{G+k}, vcc']))
        return ops
    NM4, RS4, XR = XB + 20, XB + 40, SB
    HT = STC
    extra = {b: [] for b in range(16)}
    L4 = vE0
    extra[5] += [f'v_lshlrev_b32 v{L4}, 2, v{vL}', f's_lshl_b32 s{sT0}, s{sWAVE}, 9', f's_add_u32 s{sT0}, s{sT0}, {L_HP}', f'v_add_u32 v{vT0}, s{sT0}, v{L4}',
                 f'v_lshrrev_b32 v{vT1}, 2, v{vC}', f'v_lshl_add_u32 v{vT1}, v{vT1}, 4, v{vC}', f'v_lshlrev_b32 v{vT1}, 2, v{vT1}',
                 f'v_add_u32 v{vT1}, {L_NM}, v{vT1}', f'v_lshlrev_b32 v{vT2}, 2, v{vC}', f'v_add_u32 v{vT2}, {L_NM}, v{vT2}']
    extra[8] += diag(GH, GH + 1) + [('ds', 'hp', f'ds_write2st64_b32 v{vT0}, v{GH}, v{GH+1} offset0:0 offset1:1')]
    o0 = (L_HP - L_NM) // 256
    extra[9] += [('ds', 'hq', f'ds_read2st64_b32 {vr(HT+2*k,2)}, v{vT2} offset0:{o0+4*k} offset1:{o0+4*k+2}') for k in range(2)] + \
                [('ds', 'hq', f'ds_read2st64_b32 {vr(HT+4+2*k,2)}, v{vT1} offset0:{o0+4*k+1} offset1:{o0+4*k+3}') for k in range(2)]
    extra[10] += [f'v_add_f32 v{HT}, v{HT}, v{HT+1}', f'v_add_f32 v{HT+2}, v{HT+2}, v{HT+3}', f'v_add_f32 v{HT+4}, v{HT+4}, v{HT+5}', f'v_add_f32 v{HT+6}, v{HT+6}, v{HT+7}',
                  f'v_add_f32 v{HT}, v{HT}, v{HT+2}', f'v_add_f32 v{HT+4}, v{HT+4}, v{HT+6}']
    extra[11] += stat_finalize(HT, HT + 4, HT + 1) + [f'v_add_u32 v{vT0}, {L_NM}, v{L4}', ('ds', 'hw', f'ds_write2st64_b32 v{vT0}, v{HT}, v{HT+4} offset0:0 offset1:5')]
    extra[12] += diag(GS, GS + 1) + stat_finalize(GO, GS + 1, GS) + [f's_lshl_b32 s{sT0}, s{sWAVE}, 8', f'v_add_u32 v{vT0}, s{sT0}, v{vT0}',
                                                                    ('ds', 'hw', f'ds_write2st64_b32 v{vT0}, v{GO}, v{GS+1} offset0:1 offset1:6')]
    extra[13] += [('ds', 'st', f'ds_read2st64_b32 {vr(STC+2*s,2)}, v{vT1} offset0:{s} offset1:{5+s}') for s in range(5)] + \
                 [f'v_mul_u32_u24 v{vT0}, 80, v{vG}', f'v_add_u32 v{vT0}, {L_NM}, v{vT0}']
    extra[14] += [('ds', 'st', f'ds_read_b128 {vr(NM4+4*s,4)}, v{vT0} offset:{256*s}') for s in range(5)] + \
                 [('ds', 'st', f'ds_read_b128 {vr(XR+4*e,4)}, v{vRA+e}') for e in range(2)]
    extra[15] += [('ds', 'st', f'ds_read_b128 {vr(RS4+4*s,4)}, v{vT0} offset:{1280+256*s}') for s in range(5)]
    vmx = {b: [] for b in range(17)}
    b0 = 0
    for it in seq:
        vmx[b0] += it; b0 = 0
    vmx[0] += xloads(3)
    vmx[2] += hloads(1)
    for p in range(4, 8): vmx[p - 4 + OPT['XS']] += xloads(p)
    if OPT['TWO']:
        vmx[OPT['TWB']] += [('grp', [f'v_lshlrev_b32 v{vT3}, 10, v{vC}', 's_lshr_b32 s3, s2, 5', f's_lshl2_add_u32 s3, s3, s{sWAVE}', f's_lshl_b32 s3, s3, 14', f's_lshl_b32 s{sCNT}, s{sDT}, 7', f's_add_u32 s3, s3, s{sCNT}',
                            ('vm', 'tw', f'buffer_load_dword v{vDUM}, v{vT3}, {srd(sWO)}, s3 offen{nt("NTO")}')])]
    clr = [[f's_lshl2_add_u32 s3, s{sRT}, s{sWAVE}', 's_lshl_b32 s3, s3, 3', f's_add_u32 s3, s3, s{sDT}', 's_lshl_b32 s3, s3, 11'],
           [f's_lshl_b32 s3, s{sDT}, 5', f's_add_u32 s3, s3, s{sRT}', f's_lshl2_add_u32 s3, s3, s{sWAVE}', 's_lshl_b32 s3, s3, 11', f's_add_u32 s3, s3, {WS_HN:#x}'],
           [f's_mul_i32 s3, s{sD3}, 28', f's_add_u32 s3, s3, s{sCT3}', f's_lshl2_add_u32 s3, s3, s{sWAVE}', 's_lshl_b32 s3, s3, 11', f's_add_u32 s3, s3, {WS_UF:#x}',
            f's_cmp_lt_u32 s{sZ}, 7', f's_cselect_b32 s{sCNT}, 0, {WS_DUM - WS_UF:#x}', f's_add_u32 s3, s3, s{sCNT}']]
    if OPT['CLB'] >= 0:
        cl = []
        for k in range(3):
            for h in range(2):
                cl.append(('grp', clr[k] + [('vm', 'clr', f'buffer_store_dwordx4 {vr(SEN,4)}, v{vL16}, {srd(sWS)}, s3 offen offset:{1024*h} ' + ['sc1', 'sc1 nt', 'sc0 sc1', 'sc0 sc1 nt'][OPT['CLF']])]))
        if OPT['CLX'] & 1:
            for h in range(2):
                cl.append(('grp', clr[1] + [f's_add_u32 s3, s3, {WS_HF - WS_HN:#x}', ('vm', 'clr', f'buffer_store_dwordx4 {vr(SEN,4)}, v{vL16}, {srd(sWS)}, s3 offen offset:{1024*h} sc1')]))
        if OPT['CLX'] & 2:
            cl.append(('grp', clr[0][:3] + ['s_lshl_b32 s3, s3, 8', f's_add_u32 s3, s3, {WS_SX:#x}', f'v_lshlrev_b32 v{vT3}, 2, v{vL}',
                                            ('vm', 'clr', f'buffer_store_dword v{SEN}, v{vT3}, {srd(sWS)}, s3 offen sc1')]))
        for j, o in enumerate(cl):
            vmx[min(15, OPT['CLB'] + (j // OPT['CLP']) * OPT['CLS'])].append(o)
    vTC1, vTC2 = 254, 255
    late = {}
    def place(b, op):
        if b <= 16: vmx[b].append(op)
        else: late.setdefault(b, []).append(op)
    if OPT['TB1'] >= 0:
        TN = OPT['TN1']
        for k in range(64 // TN):
            if k == 0:
                pre = [f'v_bfe_u32 v{vTC1}, v{vL}, 2, {TN.bit_length() - 3}', 's_lshr_b32 s3, s2, 3', f's_lshl2_add_u32 s3, s3, s{sWAVE}', f'v_lshl_add_u32 v{vTC1}, s3, 4, v{vTC1}',
                       f'v_mul_u32_u24 v{vTC1}, 28, v{vTC1}', f's_and_b32 s3, s2, 7', 's_mul_i32 s3, s3, 7', 's_lshr_b32 s3, s3, 1', f'v_and_b32 v{vT3}, 3, v{vL}',
                       f'v_add3_u32 v{vTC1}, v{vTC1}, v{vT3}, s3', f'v_lshlrev_b32 v{vTC1}, 7, v{vTC1}']
            else:
                pre = [f'v_add_u32 v{vTC1}, {TN * 896}, v{vTC1}']
            place(min(16, OPT['TB1'] + k * OPT['TS1']), ('grp', pre + [('vm', 'tw', f'buffer_load_dword v{vDUM}, v{vTC1}, {srd(sW1)}, 0 offen{nt("NTT")}')]))
    if OPT['TB2'] >= 0:
        TN = OPT['TN2']
        pre = [f'v_bfe_u32 v{vTC2}, v{vL}, 2, {TN.bit_length() - 3}', f'v_min_u32 v{vTC2}, 13, v{vTC2}', 's_lshr_b32 s3, s2, 3', f's_lshl2_add_u32 s3, s3, s{sWAVE}', f's_mul_i32 s3, s3, {14 * 8}',
               f's_and_b32 s{sCNT}, s2, 7', f's_add_u32 s3, s3, s{sCNT}', 's_lshl_b32 s3, s3, 9',
               f'v_lshl_add_u32 v{vTC2}, v{vTC2}, 12, s3', f'v_and_b32 v{vT3}, 3, v{vL}', f'v_lshl_add_u32 v{vTC2}, v{vT3}, 7, v{vTC2}']
        vmx[min(16, OPT['TB2'])].append(('grp', pre))
        for k in range(56 // TN + (56 % TN > 0)):
            pre = [f'v_add_u32 v{vTC2}, {min(TN, 56 - TN * k) * 1024}, v{vTC2}'] if k else []
            b = OPT['TB2'] + k * OPT['TS2']
            place(b if OPT['TB2'] > 16 else min(16, b), ('grp', pre + [('vm', 'tw', f'buffer_load_dword v{vDUM}, v{vTC2}, {srd(sW2)}, 0 offen{nt("NTT")}')]))
    if OPT['PB1'] >= 0:
        assert OPT['TN1'] == 64
        place(OPT['PB1'], ('vm', 'tw', f'buffer_load_dword v{vDUM}, v{vTC1}, {srd(sW1)}, 0 offen sc1'))
    if OPT['PB2'] >= 0:
        assert OPT['TN2'] == 64
        place(OPT['PB2'], ('vm', 'tw', f'buffer_load_dword v{vDUM}, v{vTC2}, {srd(sW2)}, 0 offen sc1'))
    need_x = {2: [('x', 2)], 4: [('x', 3)], 6: [('x', 4), ('h', 1)], 8: [('x', 5)], 9: [('x', 6)], 10: [('x', 7)]}
    a.stamp(1)
    a.wait(vm=[('w', 1), ('x', 1)])
    a('s_waitcnt lgkmcnt(0)')
    a('s_barrier')
    a.stamp(-1)
    a.run(trreads(0) + xreads(0) + xreads(1))
    a.wait(ds=[('xr', 0)])
    wop = []
    for i in range(16):
        rd = []
        if i + 1 < 16: rd += trreads(i + 1) + job_reads(i + 1)
        if i + 2 < 16: rd += xreads(i + 2)
        ld = []
        if i == 1: ld += wloads(NW)
        if i == 10: ld += [f's_lshl_b32 s{sLW}, s{sWAVE}, 10']
        if i >= 1:
            if i + NW < 16: ld += wloads(i + NW)
            else: wop += wloads(i + NW)
            if i >= OPT['WOB']: ld += wop; wop = []
        ld += vmx[i]
        ex = extra[i]
        mm = weave(mfmas(i), job_mfmas(i))
        fill = weave(rd, ld) if rd else ld
        fill = mix(fill, ex)
        fl = []
        for o in fill:
            if not isinstance(o, str) and o[0] == 'grp' and any(isinstance(x, str) and ('exec' in x or 's_cselect' in x) for x in o[1]): fl.append(o)
            else: fl += flat([o])
        a.run(weave(mm, fl, lead=1))
        if i < 15:
            wv = [('w', i + 2)] if i + 2 < 16 else []
            wv += need_x.get(i + 1, [])
            a.wait(vm=wv, ds=[('wr', i + 1), ('jr', i + 1), ('xr', i + 1), 'hp', 'hq', 'hw'])
            a('s_barrier')
            if i in (1, 3, 5, 7, 9, 11, 13): a.stamp(1)
    a.wait_all(vm=False)
    a('s_barrier')
    a.stamp(-1)
    a.run(vmx[16])
    if OPT['NT1'] == 0: a.run(nofetch)
    a(f's_load_dword s{sNON}, s[{sDBG}:{sDBG+1}], 0')
    if OPT['WOB'] == 16: a.inject(wop + events(OPT['EA']), OPT['AEV']); wop = []
    else: a.inject(events(OPT['EA']), OPT['AEV'])
    SC, SP, MX, MT, PM, PB, OUT = XB, SB + 8, ACC, ACC + 4, ACC + 8, ACC + 20, ACC + 36
    CW, CWV = 32, 40
    for r in range(4):
        a(f'v_mov_b32_dpp v{CW+4+r}, v{acc(1,0)+r} row_newbcast:0 row_mask:0xf bank_mask:0xf')
    for r in range(4):
        a(f'v_mov_b32_dpp v{CW+r}, v{acc(0,0)+r} row_newbcast:0 row_mask:0xf bank_mask:0xf')
    def epi_k(s):
        src, st, dst = acc(1, s), STC + 2 * s, KP + 2 * s
        return [[f'v_pk_fma_f32 {vr(src+2*h,2)}, {vr(CW+4+2*h,2)}, {vr(st,2)}, {vr(src+2*h,2)} op_sel_hi:[1,0,1]' for h in range(2)],
                [f'v_pk_mul_f32 {vr(src+2*h,2)}, {vr(src+2*h,2)}, {vr(st,2)} op_sel:[0,1] op_sel_hi:[1,1]' for h in range(2)],
                [f'v_cvt_pk_bf16_f32 v{dst+h}, v{src+2*h}, v{src+2*h+1}' for h in range(2)]]
    def epi_q(s):
        src, st, dst = acc(0, s), STC + 2 * s, QP + 2 * (s - 1)
        return [[f'v_pk_fma_f32 {vr(src+2*h,2)}, {vr(CW+2*h,2)}, {vr(st,2)}, {vr(src+2*h,2)} op_sel_hi:[1,0,1]' for h in range(2)],
                [],
                [f'v_cvt_pk_bf16_f32 v{dst+h}, v{src+2*h}, v{src+2*h+1}' for h in range(2)]]
    def epi_v(s):
        src, dst = acc(2, s), VP + 2 * s
        return [[f'v_pk_fma_f32 {vr(src+2*h,2)}, {vr(NM4+4*s+2*h,2)}, {vr(CWV,2)}, {vr(src+2*h,2)} op_sel_hi:[1,0,1]' for h in range(2)],
                [f'v_pk_mul_f32 {vr(src+2*h,2)}, {vr(src+2*h,2)}, {vr(RS4+4*s+2*h,2)}' for h in range(2)],
                [f'v_cvt_pk_bf16_f32 v{dst+h}, v{src+2*h}, v{src+2*h+1}' for h in range(2)]]
    E = [epi_k(s) for s in range(5)] + [epi_q(s) for s in range(1, 5)]
    a.wait(vm=['clr'])
    for ph in range(3):
        for e in E: a.run(e[ph])
    a(f'v_mov_b32 v{CWV}, v{acc(2,0)}')
    a(f'v_mov_b32 v{CWV+1}, v{acc(2,0)}')
    smm = []
    for u in range(4):
        q = vr(QP + 2 * u, 2)
        smm.append(f'v_mfma_f32_16x16x16_bf16 {vr(SC+4*u,4)}, {vr(KP+2*(u+1),2)}, {q}, {vr(BC,4)}')
        smm.append(f'v_mfma_f32_16x16x16_bf16 {vr(SP+4*u,4)}, {vr(KP+2*u,2)}, {q}, {vr(BP0 if u == 0 else BP,4)}')
    vv = [f'v_permlane16_swap_b32 v{CWV}, v{CWV+1}', f's_mov_b32 s{sT0}, {f2h(0.25 * 1.4426950408889634)}']
    vv += [f'v_mul_f32 v{STC+2*s+1}, s{sT0}, v{STC+2*s+1}' for s in range(1, 5)]
    E = [epi_v(s) for s in range(5)]
    for ph in range(3):
        for e in E: vv += e[ph]
    a.run(weave(smm, vv[:16]) + vv[16:])
    for u in range(4):
        for r in range(4):
            a(f'v_max_f32 v{SC+4*u+r}, v{SC+4*u+r}, v{SP+4*u+r}')
    for u in range(4):
        a(f'v_max3_f32 v{MX+u}, v{SC+4*u}, v{SC+4*u+1}, v{SC+4*u+2}')
    for u in range(4):
        a(f'v_max_f32 v{MX+u}, v{MX+u}, v{SC+4*u+3}')
    for sw in ('v_permlane16_swap_b32', 'v_permlane32_swap_b32'):
        for u in range(4): a(f'v_mov_b32 v{MT+u}, v{MX+u}')
        for u in range(4): a(f'{sw} v{MX+u}, v{MT+u}')
        for u in range(4): a(f'v_max_f32 v{MX+u}, v{MX+u}, v{MT+u}')
    for u in range(4):
        a(f'v_mul_f32 v{MX+u}, v{STC+2*u+3}, v{MX+u}')
    for u in range(4):
        for r in range(4):
            a(f'v_fma_f32 v{SC+4*u+r}, v{SC+4*u+r}, v{STC+2*u+3}, -v{MX+u}')
    for u in range(4):
        for r in range(4):
            a(f'v_exp_f32 v{SC+4*u+r}, v{SC+4*u+r}')
    for u in range(4):
        for h in range(2):
            a(f'v_cvt_pk_bf16_f32 v{PM+2*u+h}, v{SC+4*u+2*h}, v{SC+4*u+2*h+1}')
        for h in range(2):
            a(f'v_and_b32 v{PB+4*u+h}, v{PM+2*u+h}, v{MP+h}')
            a(f'v_and_b32 v{PB+4*u+2+h}, v{PM+2*u+h}, v{MC+h}')
    pm = []
    for u in range(4):
        pm.append(f'v_mfma_f32_16x16x16_bf16 {vr(SP+4*u,4)}, {vr(ONE,2)}, {vr(PM+2*u,2)}, 0')
    for u in range(4):
        pm.append(f'v_mfma_f32_16x16x32_bf16 {vr(SC+4*u,4)}, {vr(VP+2*u,4)}, {vr(PB+4*u,4)}, 0')
    sa = [f's_lshl2_add_u32 s{sT0}, s{sDT}, s{sWAVE}', f's_lshl_b32 s{sT2}, s{sRT}, 7', f's_add_u32 s{sT2}, s{sT2}, s{sDT}', f's_lshl_b32 s{sT2}, s{sT2}, 2',
          f's_add_u32 s{sT2}, s{sT2}, {WS_F1:#x}', f's_lshl_b32 s{sT0}, s{sT0}, 9', f's_lshl_b32 s{sT1}, s{sRT}, 16', f's_add_u32 s{sT0}, s{sT0}, s{sT1}',
          f's_add_u32 s{sT1}, s{sT0}, 32768', f'v_lshrrev_b32 v{vT0}, 5, v{vL}', f'v_mul_u32_u24 v{vT0}, {16384 - 512}, v{vT0}', f'v_add_u32 v{vT0}, v{vT0}, v{vL16}',
          f'v_lshrrev_b32 v{vT3}, 2, v{vL}', f'v_and_b32 v{vT1}, 3, v{vL}', f'v_lshlrev_b32 v{vT1}, 7, v{vT1}', f'v_lshl_add_u32 v{vT3}, v{vT3}, 14, v{vT1}']
    a.run(weave(pm, sa))
    a.wait_all(vm=False)
    a(f's_cmp_lg_u32 s{sNON}, 0')
    a('s_cbranch_scc0 L_non')
    a.label('L_nonok')
    tail.append(['L_non:', f's_load_dword s{sNON}, s[{sDBG}:{sDBG+1}], 0 glc', 's_waitcnt lgkmcnt(0)', f's_cmp_lg_u32 s{sNON}, 0', 's_cbranch_scc1 L_nonok',
                 f's_sub_u32 s{sBUD}, s{sBUD}, 1', 's_cbranch_scc0 L_non', f's_mov_b32 s{sBUD}, 0', 's_branch L_nonok'])
    a(f's_mov_b32 s{sNON+1}, s{sNON}')
    a(f'v_mov_b32 v{vT2}, s{sNON}')
    for u in range(4):
        a(f'v_rcp_f32 v{SP+4*u}, v{SP+4*u}')
    for u in range(4):
        for h in range(2):
            a(f'v_pk_mul_f32 {vr(SC+4*u+2*h,2)}, {vr(SC+4*u+2*h,2)}, {vr(SP+4*u,2)} op_sel_hi:[1,0]')
    for u in range(4):
        for h in range(2):
            a(f'v_cvt_pk_bf16_f32 v{OUT+2*u+h}, v{SC+4*u+2*h}, v{SC+4*u+2*h+1}')
    for e in range(2):
        for h in range(2):
            a(f'v_permlane32_swap_b32 v{OUT+4*e+h}, v{OUT+4*e+2+h}')
    left = a.inj; a.inj = []
    for e in range(2):
        a.vm('ost', f'buffer_store_dwordx4 {vr(OUT+4*e,4)}, v{vT0}, {srd(sWS)}, s{[sT0,sT1][e]} offen sc1')
    assert not any(o[0] == 'vm' and o[1] == 'wo' for o in flat(left) if not isinstance(o, str))
    a.wait(vm=['wo'])
    nflag = [0]
    def flag(soff, barrier=True):
        nflag[0] += 1
        if barrier: a('s_barrier')
        a(f's_cmp_lg_u32 s{sWAVE}, 0')
        a(f's_cbranch_scc1 L_nf{nflag[0]}')
        a('s_mov_b32 exec_hi, 0')
        a(f'buffer_store_dword v{vT2}, v{vT3}, {srd(sWS)}, s{soff} offen sc1')
        a('s_mov_b32 exec_hi, -1')
        a.label(f'L_nf{nflag[0]}')
    flag(sT2)
    a.run(late.get(17, []))
    a.stamp(0, 1)
    a.run(wop)
    a.run(left)
    ID, O, ACC2, S2, PK2 = 20, 64, 128, 144, 152
    vHO, vSO, vTW = 9, 10, 12
    cst = [f'v_bfe_u32 v{vT0}, v{vL}, 2, 3', f'v_lshrrev_b32 v{vT1}, 5, v{vL}', f'v_lshl_add_u32 v{vT0}, v{vT1}, 4, v{vT0}', f'v_lshlrev_b32 v{vTW}, 7, v{vT0}',
           f'v_bfe_u32 v{vT0}, v{vL}, 3, 2', f'v_lshl_add_u32 v{vTW}, v{vT0}, 5, v{vTW}', f'v_and_b32 v{vT0}, 3, v{vL}', f'v_lshl_add_u32 v{vTW}, v{vT0}, 3, v{vTW}']
    cst += [f'v_xor_b32 v{vTW+t}, {32*t}, v{vTW}' for t in range(1, 4)]
    cst += [f'v_and_b32 v{vT0}, 1, v{vC}', f'v_lshlrev_b32 v{vT0}, 4, v{vT0}', f'v_mov_b32 v{vT1}, 0x3f80', f'v_lshlrev_b32 v{vT0}, v{vT0}, v{vT1}',
            f'v_lshrrev_b32 v{vT1}, 1, v{vC}', f'v_lshlrev_b32 v{vE0}, 2, v{vG}', f'v_sub_u32 v{vT1}, v{vT1}, v{vE0}']
    for b in range(2):
        for k in range(4):
            cst += [f'v_cmp_eq_i32 vcc, {k - 8*b}, v{vT1}', f'v_cndmask_b32 v{ID+4*b+k}, 0, v{vT0}, vcc']
    cst += [f'v_and_b32 v{vT0}, 1, v{vG}', f'v_lshlrev_b32 v{vHO}, 10, v{vT0}', f'v_lshrrev_b32 v{vT0}, 1, v{vG}', f'v_lshl_add_u32 v{vHO}, v{vT0}, 8, v{vHO}',
            f'v_lshl_add_u32 v{vHO}, v{vC}, 4, v{vHO}',
            f'v_lshrrev_b32 v{vT0}, 2, v{vC}', f'v_lshlrev_b32 v{vSO}, 8, v{vT0}', f'v_lshl_add_u32 v{vSO}, v{vG}, 6, v{vSO}', f'v_and_b32 v{vT0}, 3, v{vC}',
            f'v_lshl_add_u32 v{vSO}, v{vT0}, 4, v{vSO}']
    cst += [f'v_mfma_f32_16x16x32_bf16 {vr(ACC2+4*t,4)}, {vr(XR+4*(t>>1),4)}, {vr(ID+4*(t&1),4)}, 0' for t in range(4)]
    sBLK = sXB
    sFL = sLW
    cst += [f's_lshl_b32 s{sFL}, s{sDT}, 5', f's_add_u32 s{sFL}, s{sFL}, s{sRT}', f's_lshl2_add_u32 s{sFL}, s{sFL}, s{sWAVE}', f's_lshl_b32 s{sFL}, s{sFL}, 7',
            f's_add_u32 s{sFL}, s{sFL}, {WS_F1:#x}', f'v_lshlrev_b32 v{vT3}, 9, v{vL}', f's_lshl2_add_u32 s{sBLK}, s{sRT}, s{sWAVE}', f's_lshl_b32 s{sT1}, s{sBLK}, 14']
    cst0 = w2_scalars(sW2A, sW2B, sROT4) + [f's_lshl_b32 s{sPL}, s{sWAVE}, 14'] + mk_q(vQ2, False) + mk_r(vR2, False)
    a.run(cst0 + cst)
    def wf2(i): return [32, 48, 176, 192, 208, 224][i % 6]
    def tr2(i):
        return [('ds', ('w2r', i), f'ds_read_b64_tr_b16 {vr(wf2(i)+4*t+2*h,2)}, v{vTW+t} offset:{4096*i+1024*h}') for t in range(4) for h in range(2)]
    if wop:
        a.run(events(OPT['EB1']))
        a.wait(vm=['wo'])
        a('s_barrier')
    for i in range(5): a.run(tr2(i))
    a.run(events(OPT['EB1']))
    def poll(lbl, soff):
        a.label(lbl)
        a(f's_load_dwordx8 s[{sPOLL}:{sPOLL+7}], s[{sWS}:{sWS+1}], s{soff} glc')
        a.wait_all(vm=False)
        for k in range(4): a(f's_xor_b64 s[{sPOLL+2*k}:{sPOLL+2*k+1}], s[{sPOLL+2*k}:{sPOLL+2*k+1}], s[{sNON}:{sNON+1}]')
        a(f's_or_b64 s[{sPOLL}:{sPOLL+1}], s[{sPOLL}:{sPOLL+1}], s[{sPOLL+2}:{sPOLL+3}]')
        a(f's_or_b64 s[{sPOLL+4}:{sPOLL+5}], s[{sPOLL+4}:{sPOLL+5}], s[{sPOLL+6}:{sPOLL+7}]')
        a(f's_or_b64 s[{sPOLL}:{sPOLL+1}], s[{sPOLL}:{sPOLL+1}], s[{sPOLL+4}:{sPOLL+5}]')
        a(f's_cbranch_scc0 {lbl}_ok')
        a(f's_sub_u32 s{sBUD}, s{sBUD}, 1')
        a(f's_cbranch_scc0 {lbl}')
        a(f's_mov_b32 s{sBUD}, 0')
        a.label(lbl + '_ok')
    def check(lbl, regs, reload):
        ck = [f'v_max3_u32 v{vCK}, v{regs[0]}, v{regs[1]}, v{regs[2]}', f'v_max_u32 v{vCK}, v{vCK}, v{regs[3]}', f'v_cmp_eq_u32 vcc, -1, v{vCK}']
        tail.append([lbl + ':', f's_sub_u32 s{sBUD}, s{sBUD}, 1', f's_cbranch_scc1 {lbl}_x'] + reload + ['s_waitcnt vmcnt(0)'] + ck +
                    [f's_cbranch_vccnz {lbl}', f's_branch {lbl}_b', lbl + '_x:', f's_mov_b32 s{sBUD}, 0', f's_branch {lbl}_b'])
        return ck + [('grp', [f's_cbranch_vccnz {lbl}', ('label', lbl + '_b')])]
    poll('L_p1', sFL)
    a.stamp()
    sOB = sWB
    a(f's_mov_b32 s{sOB}, s{sT1}')
    def oload(i, so): return f'buffer_load_dwordx4 {vr(O+4*i,4)}, v{vL16}, {srd(sWS)}, s{so} offen offset:{1024*(i&3)} sc1'
    for c in range(4):
        if c: a(f's_add_u32 s{sT1}, s{sT1}, 4096')
        for i in range(4): a.vm(('o', 4*c+i), oload(4*c+i, sT1))
    a.run(late.get(20, []))
    a(f's_lshl_b32 s{sT0}, s{sDT}, 18')
    a(f's_lshr_b32 s{sT1}, s{sBLK}, 1')
    a(f's_lshl_b32 s{sT1}, s{sT1}, 12')
    a(f's_add_u32 s{sT0}, s{sT0}, s{sT1}')
    a(f's_and_b32 s{sT1}, s{sBLK}, 1')
    a(f's_lshl_b32 s{sT1}, s{sT1}, 9')
    a(f's_add_u32 s{sT0}, s{sT0}, s{sT1}')
    a(f's_add_u32 s{sT0}, s{sT0}, {WS_HF:#x}')
    a(f's_lshl_b32 s{sT1}, s{sBLK}, 11')
    a(f's_add_u32 s{sT1}, s{sT1}, {WS_SX:#x}')
    a(f's_lshl_b32 s{sT2}, s{sDT}, 8')
    a(f's_add_u32 s{sT2}, s{sT2}, s{sT1}')
    a(f'v_lshlrev_b32 v{vT0}, 2, v{vL}')
    def ocheck(c):
        return [('wvm', ('o', 4*c+3))] + check(f'L_ro{c}', [O + 16*c + 4*i for i in range(4)], [f's_add_u32 s{sCNT}, s{sOB}, {4096*c}'] + [oload(4*c+i, sCNT) for i in range(4)])
    a.run(events(OPT['EB2']))
    a.run(ocheck(0))
    ec = events(OPT['EC'])
    for i in range(16):
        a.wait(ds=[('w2r', i)])
        mm = [f'v_mfma_f32_16x16x32_bf16 {vr(ACC2+4*t,4)}, {vr(O+4*i,4)}, {vr(wf2(i)+4*t,4)}, {vr(ACC2+4*t,4)}' for t in range(4)]
        f = tr2(i + 5) if i + 5 < 16 else []
        wgt = [1] * 11 + [3] * 5
        lo, hi = (len(ec) * sum(wgt[:i])) // sum(wgt), (len(ec) * sum(wgt[:i + 1])) // sum(wgt)
        f = mix(f, ec[lo:hi])
        if i % 4 == 3 and i < 12: f = f + ocheck(i // 4 + 1)
        a.run(weave(mm, f))
    a.run(late.get(22, []))
    a.stamp()
    S = S2
    for r in range(4):
        a(f'v_add_f32 v{S+r}, v{ACC2+r}, v{ACC2+4+r}')
        a(f'v_mul_f32 v{S+4+r}, v{ACC2+r}, v{ACC2+r}')
    for t in range(1, 4):
        for r in range(4):
            if t > 1: a(f'v_add_f32 v{S+r}, v{S+r}, v{ACC2+4*t+r}')
            a(f'v_fmac_f32 v{S+4+r}, v{ACC2+4*t+r}, v{ACC2+4*t+r}')
    for base in (S, S + 4):
        for i in range(2):
            a(f'v_add_f32_dpp v{base+i}, v{base+i}, v{base+i} row_ror:8 row_mask:0xf bank_mask:0x3')
    for base in (S, S + 4):
        for i in range(2):
            a(f'v_add_f32_dpp v{base+i}, v{base+i+2}, v{base+i+2} row_ror:8 row_mask:0xf bank_mask:0xc')
    for base in (S, S + 4):
        a(f'v_add_f32_dpp v{base}, v{base}, v{base} row_half_mirror row_mask:0xf bank_mask:0x5')
    for base in (S, S + 4):
        a(f'v_add_f32_dpp v{base}, v{base+1}, v{base+1} row_half_mirror row_mask:0xf bank_mask:0xa')
    for qp in ('[1,0,3,2]', '[2,3,0,1]'):
        for base in (S, S + 4):
            a(f'v_add_f32_dpp v{base}, v{base}, v{base} quad_perm:{qp} row_mask:0xf bank_mask:0xf')
    a('s_mov_b32 vcc_lo, 0xaaaaaaaa')
    a('s_mov_b32 vcc_hi, 0xaaaaaaaa')
    a(f'v_cndmask_b32 v{S}, v{S}, v{S+4}, vcc')
    a('s_mov_b32 vcc_lo, 0xcccccccc')
    a('s_mov_b32 vcc_hi, 0xcccccccc')
    a(f'v_cndmask_b32 v{S}, v{S}, v{vT2}, vcc')
    a.vm('sx', f'buffer_store_dword v{S}, v{vT0}, {srd(sWS)}, s{sT2} offen sc1')
    def pack_store(tag, soff):
        for t in range(4):
            for h in range(2):
                a(f'v_cvt_pk_bf16_f32 v{PK2+2*t+h}, v{ACC2+4*t+2*h}, v{ACC2+4*t+2*h+1}')
        for e in range(2):
            for h in range(2):
                a(f'v_permlane16_swap_b32 v{PK2+4*e+h}, v{PK2+4*e+2+h}')
        for e in range(2):
            a.vm(tag, f'buffer_store_dwordx4 {vr(PK2+4*e,4)}, v{vHO}, {srd(sWS)}, s{soff} offen offset:{2048*e} sc1')
    pack_store('hst', sT0)
    PK2 = PK2 + 8
    a(f's_sub_u32 s{sT0}, s{sT0}, {WS_HF - WS_HN:#x}')
    a(f's_lshl_b32 s{sT2}, s{sDT}, 7')
    a(f's_lshr_b32 s{sCNT}, s{sRT}, 3')
    a(f's_add_u32 s{sT2}, s{sT2}, s{sCNT}')
    a(f's_lshl_b32 s{sT2}, s{sT2}, 5')
    a(f's_and_b32 s{sCNT}, s{sRT}, 7')
    a(f's_add_u32 s{sT2}, s{sT2}, s{sCNT}')
    a(f's_lshl_b32 s{sT2}, s{sT2}, 2')
    a(f's_add_u32 s{sT2}, s{sT2}, {WS_F2:#x}')
    a(f's_mov_b32 s{sDT}, s{sD3}')
    a.run(events(OPT['ED']))
    a.stamp()
    R0 = O
    sxl = [f'buffer_load_dwordx4 {vr(R0+4*e,4)}, v{vSO}, {srd(sWS)}, s{sT1} offen offset:{1024*e} sc1' for e in range(2)]
    sxc = [f'v_xor_b32 v{R0+2}, s{sNON}, v{R0+2}', f'v_xor_b32 v{R0+6}, s{sNON}, v{R0+6}', f'v_add_f32 v{R0}, v{R0}, v{R0+4}', f'v_or_b32 v{R0+2}, v{R0+2}, v{R0+6}',
           f'v_add_f32 v{R0+1}, v{R0+1}, v{R0+5}', f'v_cmp_ne_u32 vcc, 0, v{R0+2}']
    for t_ in sxl: a.vm('sxl', t_)
    a.run(events(OPT['EE']))
    a.wait(vm=['sxl'])
    a.run(sxc)
    a('s_cbranch_vccnz L_sx')
    tail.append(['L_sx:', f's_sub_u32 s{sBUD}, s{sBUD}, 1', 's_cbranch_scc1 L_sx_x'] + sxl + ['s_waitcnt vmcnt(0)'] + sxc +
                ['s_cbranch_vccnz L_sx', 's_branch L_sx_ok', 'L_sx_x:', f's_mov_b32 s{sBUD}, 0', 's_branch L_sx_ok'])
    a.label('L_sx_ok')
    a.run(late.get(21, []))
    a.stamp()
    for ror in (4, 8):
        for k in range(2):
            a(f'v_add_f32_dpp v{R0+k}, v{R0+k}, v{R0+k} row_ror:{ror} row_mask:0xf bank_mask:0xf')
    s_, q_, t_ = R0, R0 + 1, R0 + 2
    a(f's_mov_b32 s{sT1}, 0x3727c5ac')
    a(f'v_mul_f32 v{s_}, 0xbb000000, v{s_}')
    a(f'v_mul_f32 v{q_}, 0x3b000000, v{q_}')
    a(f'v_fma_f32 v{q_}, -v{s_}, v{s_}, v{q_}')
    a(f'v_max_f32 v{q_}, 0, v{q_}')
    a(f'v_add_f32 v{t_}, s{sT1}, v{q_}')
    a(f'v_rsq_f32 v{t_}, v{t_}')
    a(f'v_mul_f32 v{q_}, v{q_}, v{t_}')
    a(f'v_fma_f32 v{q_}, v{q_}, v{t_}, s{sT1}')
    a(f'v_rsq_f32 v{q_}, v{q_}')
    a(f'v_mul_f32 v{t_}, v{t_}, v{q_}')
    a(f'v_mul_f32 v{s_}, v{s_}, v{t_}')
    RR, BB = R0 + 4, R0 + 8
    for r in range(4):
        a(f'v_mov_b32_dpp v{RR+r}, v{t_} quad_perm:[{r},{r},{r},{r}] row_mask:0xf bank_mask:0xf')
    for r in range(4):
        a(f'v_mov_b32_dpp v{BB+r}, v{s_} quad_perm:[{r},{r},{r},{r}] row_mask:0xf bank_mask:0xf')
    for t in range(4):
        for h in range(2):
            a(f'v_pk_fma_f32 {vr(ACC2+4*t+2*h,2)}, {vr(ACC2+4*t+2*h,2)}, {vr(RR+2*h,2)}, {vr(BB+2*h,2)}')
    pack_store('hst', sT0)
    a.wait_all(vm=False)
    flag(sT2)
    a.run(late.get(23, []))
    a.stamp()
    vA0, vA1 = 17, 18
    BI4 = 20
    OWN, OTH, ST, H = 32, 48, 96, 128
    a(f's_cmp_ge_u32 s{sZ}, 7')
    a('s_cbranch_scc1 L_skip3')
    save = (list(a.vmq), list(a.dsq), list(EV), dict(slot_of))
    a.run(events(OPT['EF']))
    a(f's_lshr_b32 s{sT0}, s{sWAVE}, 1')
    a(f's_lshl_b32 s{sT0}, s{sT0}, 11')
    a(f'v_or_b32 v{vA0}, s{sT0}, v{vL16}')
    a(f'v_xor_b32 v{vA1}, 2048, v{vA0}')
    a(f's_lshl_b32 s{sT0}, s{sCT3}, 7')
    a(f's_and_b32 s{sT1}, s{sWAVE}, 1')
    a(f's_lshl_b32 s{sT1}, s{sT1}, 6')
    a(f's_add_u32 s{sT0}, s{sT0}, s{sT1}')
    a(f'v_lshlrev_b32 v{vT0}, 3, v{vG}')
    for i in range(2):
        a.vm('b1', f'buffer_load_dwordx2 {vr(BI4+2*i,2)}, v{vT0}, {srd(sB1)}, s{sT0} offen offset:{32*i}')
    sHA, sHB = sXB, sWB
    a(f's_lshl4_add_u32 s{sT0}, s{sWAVE}, s{sROT3}')
    a(f's_lshl_b32 s{sHA}, s{sT0}, 12')
    a(f's_lshl_b32 s{sT0}, s{sDT}, 18')
    a(f's_add_u32 s{sHA}, s{sHA}, s{sT0}')
    a(f's_add_u32 s{sHA}, s{sHA}, {WS_HN:#x}')
    a(f's_sub_u32 s{sHB}, s{sHA}, 65536')
    vRD = 9
    red_addr = [f's_mul_i32 s{sT0}, s{sWAVE}, 12288']
    for q in range(1, 4):
        red_addr += [f's_xor_b32 s{sT1}, s{sWAVE}, {q}', f's_mul_i32 s{sT1}, s{sT1}, 12288', f'v_add_u32 v{vRD+q-1}, s{sT1}, v{vL16}']
    red_addr += [f'v_add_u32 v{vRD+3}, s{sT0}, v{vL16}']
    a.run(red_addr)
    a(f's_bfe_u32 s{sT0}, s2, {1 | (2 << 16)}')
    a(f's_lshl2_add_u32 s{sT0}, s{sDT}, s{sT0}')
    a(f's_lshl3_add_u32 s{sT0}, s{sT0}, s{sZ}')
    a(f's_lshl2_add_u32 s{sT0}, s{sT0}, s{sWAVE}')
    a(f's_lshl_b32 s{sT0}, s{sT0}, 7')
    a(f's_add_u32 s{sT0}, s{sT0}, {WS_F2:#x}')
    poll('L_p2', sT0)
    a.stamp()
    def hreg(i, t): return H + 16 * (i % 7) + 4 * t
    def aload_txt(K3, i, t, so):
        if K3: return f'buffer_load_dwordx4 {vr(hreg(i,t),4)}, v{vA1 if t >> 1 else vA0}, {srd(sWS)}, s{so} offen offset:{1024*(t&1)} sc1'
        return f'buffer_load_dwordx4 {vr(hreg(i,t),4)}, v{vL16}, {srd(sWS)}, s{so} offen offset:{1024*t} sc1'
    def aaddr(K3, i, so):
        N = 16 if K3 else 14
        rot = sROT3 if K3 else sROT4
        return [f's_cmp_lt_u32 s{rot}, {N - i}', f's_cselect_b32 s{so}, s{sHA}, s{sHB}', f's_add_u32 s{so}, s{so}, {i*4096}']
    def aloads(K3, i):
        return [('grp', (aaddr(K3, i, sCNT) if t == 0 else []) + [('vm', ('a', K3, i), aload_txt(K3, i, t, sCNT))]) for t in range(4)]
    def acheck(K3, i):
        return [('wvm', ('a', K3, i))] + check(f'L_ra{int(K3)}_{i}', [hreg(i, t) for t in range(4)], aaddr(K3, i, sPOLL) + [aload_txt(K3, i, t, sPOLL) for t in range(4)])
    def acc34(K3, tw, ta):
        q, k = ((tw >> 1) + 2 * (ta >> 1), (tw & 1) + 2 * (ta & 1)) if K3 else (tw, ta)
        return q, vr(OWN + 16 * q + 4 * k, 4)
    def mm34(K3, i, quad=None):
        mm = []
        for ta in range(4):
            for tw in range(4):
                q, d = acc34(K3, tw, ta)
                if quad is not None and q != quad: continue
                A, B = (ar(16*i+4*tw, 4), vr(hreg(i, ta), 4)) if K3 else (vr(hreg(i, ta), 4), ar(16*i+4*tw, 4))
                mm.append(f'v_mfma_f32_16x16x32_bf16 {d}, {A}, {B}, {"0" if i == 0 else d}')
        return mm
    def red_w(q): return [('ds', 'rw', f'ds_write_b128 v{vRD+q-1}, {vr(OWN+16*q+4*k,4)} offset:{4096*(q-1)+1024*k}') for k in range(4)]
    def gemm34(K3, N, fills, first):
        NQ, D0 = OPT['NQ'], OPT['D0']
        for i in range(D0): a.run(aloads(K3, i))
        a.run(first)
        rest = [o for i in range(D0, N) for o in aloads(K3, i)]
        nb = N - NQ - 1
        a.run(acheck(K3, 0))
        done = 0
        for i in range(N - NQ):
            tgt = min(len(rest), ((i + 1) * len(rest) + nb - 1) // nb, 4 * (i + 6 - D0 + 1))
            ld = rest[done:tgt]; done = tgt
            f = mix(ld, fills.get(i, []))
            mm = mm34(K3, i)
            a.run(weave(mm[:11], f) + weave(mm[11:], acheck(K3, i + 1)))
        assert done == len(rest)
        prev = None
        for j, q in enumerate((1, 2, 3, 0)):
            if j == 1 and K3 and lowbar:
                a.wait(ds=[('t',) + uid(npre - 1)])
                a('s_barrier')
            f = fills.get(N - NQ + j, [])
            if j == 0:
                for i in range(N - NQ, N):
                    a.run(weave(mm34(K3, i, q), acheck(K3, i + 1) if i + 1 < N else f))
            else:
                mm = []
                for i in range(N - NQ, N): mm += mm34(K3, i, q)
                a.run(mm[:3] + weave(mm[3:], mix(f, red_w(prev))))
            prev = q
    def reduce_rd():
        a.wait_all(vm=False)
        a('s_barrier')
        for k in range(4):
            for q in range(3):
                a.ds(('rr', k), f'ds_read_b128 {vr(OTH+16*q+4*k,4)}, v{vRD+3} offset:{4096*q+1024*k}')
    def reduce_sum(k, bias):
        o = OWN + 4 * k
        ops = [('wds', ('rr', k))]
        for h in range(2):
            ops += [f'v_pk_add_f32 {vr(o+2*h,2)}, {vr(o+2*h,2)}, {bias(k, h)}', f'v_pk_add_f32 {vr(OTH+4*k+2*h,2)}, {vr(OTH+4*k+2*h,2)}, {vr(OTH+16+4*k+2*h,2)}']
        ops += [f'v_pk_add_f32 {vr(o+2*h,2)}, {vr(o+2*h,2)}, {vr(OTH+32+4*k+2*h,2)}' for h in range(2)]
        ops += [f'v_pk_add_f32 {vr(o+2*h,2)}, {vr(o+2*h,2)}, {vr(OTH+4*k+2*h,2)}' for h in range(2)]
        return ops
    first = events(OPT['EG'])
    while any(e[0] == 'M' for e in EV):
        e = EV.pop(0); first += evD(e[1]) if e[0] == 'D' else evM(e[1])
    first += [f's_sub_u32 s{sT0}, s{sPR}, s{sPL}'] + [f'v_subrev_u32 v{vR2L+t}, s{sT0}, v{vR2+t}' for t in range(4)] + [('wds', ('t', True, 15))]
    BF = ST
    fills = {8: [x for i in range(4) for x in (f'v_lshlrev_b32 v{BF+2*i}, 16, v{BI4+i}', f'v_and_b32 v{BF+2*i+1}, 0xffff0000, v{BI4+i}')]}
    nD = EV[0][1] if EV else 22 + NLOW
    npre = nD
    nM = 16
    NB3 = 16 - OPT['NQ']
    def free_slot(n, moved):
        if n < 22: return n % NSL, None
        last = {}
        for k in range(16, n): last[slot_of[uid(k)]] = k
        c = sorted(k for sl, k in last.items() if sl < NSL and k < moved)
        return (slot_of[uid(c[0])], c[0]) if c else (None, None)
    for i in range(1, NB3 + 4):
        f = []
        if i >= OPT['W2B'] and nD < 30:
            sl, pv = free_slot(nD, nM)
            if sl is not None:
                f += ([('wds', ('t',) + uid(pv))] if pv is not None else []) + dma_unit(False, nD - 16, vQ2, sl); nD += 1
        if i >= OPT['M2B'] and nM < npre and nM - 16 < min(i, NB3): f += evM(nM); nM += 1
        fills[i] = fills.get(i, []) + f
        if i == NB3: assert npre <= 22 or nM >= npre
    lowbar = npre > 22
    gemm34(True, 16, fills, first)
    a.stamp()
    reduce_rd()
    a(f's_mul_i32 s{sT0}, s{sDT}, {56*4096}')
    a(f's_lshl_b32 s{sT1}, s{sCT3}, 13')
    a(f's_add_u32 s{sT0}, s{sT0}, s{sT1}')
    a(f's_and_b32 s{sT1}, s{sWAVE}, 1')
    a(f's_lshl_b32 s{sT1}, s{sT1}, 12')
    a(f's_add_u32 s{sT0}, s{sT0}, s{sT1}')
    a(f's_add_u32 s{sT0}, s{sT0}, {WS_UF:#x}')
    f3 = [f's_lshl_b32 s{sT2}, s{sDT}, 7', f's_bfe_u32 s{sT1}, s2, {1 | (2 << 16)}', f's_add_u32 s{sT2}, s{sT2}, s{sT1}', f's_lshl_b32 s{sT2}, s{sT2}, 5', f's_add_u32 s{sT2}, s{sT2}, s{sZ}',
          f's_lshl_b32 s{sT2}, s{sT2}, 2', f's_add_u32 s{sT2}, s{sT2}, {WS_F3:#x}']
    a.run(f3)
    C1 = -2.0 * 0.7978845608028654 * 1.4426950408889634
    GC = ST + 8
    a(f'v_mov_b32 v{GC}, {f2h(C1 * 0.044715)}')
    a(f'v_mov_b32 v{GC+1}, {f2h(C1)}')
    T = H
    PK = H + 16
    ep = []
    for k in range(4): ep += reduce_sum(k, lambda k, h: vr(BF + 4 * (k & 1) + 2 * h, 2))
    nred = len(ep)
    ep += [f'v_pk_mul_f32 {vr(T+2*j,2)}, {vr(OWN+2*j,2)}, {vr(OWN+2*j,2)}' for j in range(8)]
    ep += [f'v_pk_fma_f32 {vr(T+2*j,2)}, {vr(T+2*j,2)}, {vr(GC,2)}, {vr(GC,2)} op_sel:[0,0,1] op_sel_hi:[1,0,1]' for j in range(8)]
    ep += [f'v_pk_mul_f32 {vr(T+2*j,2)}, {vr(T+2*j,2)}, {vr(OWN+2*j,2)}' for j in range(8)]
    ep += [f'v_exp_f32 v{T+j}, v{T+j}' for j in range(16)]
    ep += [f'v_pk_add_f32 {vr(T+2*j,2)}, {vr(T+2*j,2)}, 1.0 op_sel_hi:[1,0]' for j in range(8)]
    ep += [f'v_rcp_f32 v{T+j}, v{T+j}' for j in range(16)]
    ep += [f'v_pk_mul_f32 {vr(OWN+2*j,2)}, {vr(T+2*j,2)}, {vr(OWN+2*j,2)}' for j in range(8)]
    ep += [f'v_cvt_pk_bf16_f32 v{PK+j}, v{OWN+2*j}, v{OWN+2*j+1}' for j in range(8)]
    a.run(ep)
    for b in range(2):
        a.vm('ust', f'buffer_store_dwordx4 {vr(PK+4*b,4)}, v{vA0}, {srd(sWS)}, s{sT0} offen offset:{1024*b} sc1')
    flag(sT2)
    a.stamp()
    while nM < 30:
        while nD < 30:
            sl, pv = free_slot(nD, nM - 1 if nM < nD else nM)
            if sl is None: break
            if pv is not None: a.wait(ds=[('t',) + uid(pv)])
            a.run(dma_unit(False, nD - 16, vQ2, sl)); nD += 1
        a.run(evM(nM)); nM += 1
    a('s_branch L_join3')
    a.label('L_skip3')
    vq, dq = a.vmq, a.dsq
    a.vmq, a.dsq = save[0], save[1]; slot_of.clear(); slot_of.update(save[3])
    a.run(f3)
    flag(sT2, barrier=False)
    a.wait_all(vm=False)
    nD = min([e[1] for e in save[2] if e[0] == 'D' and e[1] >= 16] + [22])
    assert nD <= 22 and all(sl < NSL for (k3, i_), sl in slot_of.items())
    for n in range(nD, 22): a.run(dma_unit(False, n - 16, vQ2, n % NSL))
    for n in range(16, 30):
        a.run(evM(n))
        if n > 16 and n + 5 < 30:
            a.wait(ds=[('t',) + uid(n - 1)])
            a.run(dma_unit(False, n + 5 - 16, vQ2, (n + 5) % NSL))
    a.run(red_addr)
    if OPT['SKT']:
        a(f's_and_b32 s{sT0}, s{sDT}, 3')
        a(f's_lshl2_add_u32 s{sT0}, s{sT0}, s{sWAVE}')
        a(f's_mul_i32 s{sT0}, s{sT0}, {112 * 8}')
        a(f's_and_b32 s{sT1}, s2, 7')
        a(f's_add_u32 s{sT0}, s{sT0}, s{sT1}')
        a(f's_lshl_b32 s{sT0}, s{sT0}, 9')
        a(f'v_lshrrev_b32 v{vT0}, 2, v{vL}')
        a(f'v_and_b32 v{vT1}, 3, v{vL}')
        a(f'v_lshlrev_b32 v{vT1}, 7, v{vT1}')
        a(f'v_lshl_add_u32 v{vT0}, v{vT0}, 12, v{vT1}')
        for n in range(7):
            a(f'buffer_load_dword v{vDUM}, v{vT0}, {srd(sW2)}, s{sT0} offen{nt("NTT")}')
            a(f's_add_u32 s{sT0}, s{sT0}, {16 * 4096}')
    a.wait_all()
    a.vmq = vq; a.dsq = dq
    a.label('L_join3')
    RES, PMX, vBI = ST, BI4, BI4 + 2
    sRS = sW1A
    a(f's_mul_i32 s{sT0}, s{sWAVE}, 14')
    a(f's_add_u32 s{sT0}, s{sT0}, s{sROT4}')
    a(f's_lshl_b32 s{sHA}, s{sT0}, 12')
    a(f's_mul_i32 s{sT0}, s{sDT}, {56*4096}')
    a(f's_add_u32 s{sHA}, s{sHA}, s{sT0}')
    a(f's_add_u32 s{sHA}, s{sHA}, {WS_UF:#x}')
    a(f's_sub_u32 s{sHB}, s{sHA}, {14*4096}')
    a(f's_lshl_b32 s{sT0}, s{sCT4}, 7')
    a(f's_lshl_b32 s{sT1}, s{sWAVE}, 5')
    a(f's_add_u32 s{sT0}, s{sT0}, s{sT1}')
    a(f'v_lshlrev_b32 v{vT0}, 1, v{vC}')
    a.vm('b2', f'buffer_load_ushort v{vBI}, v{vT0}, {srd(sB2)}, s{sT0} offen')
    a(f'v_lshrrev_b32 v{vT0}, 3, v{vC}')
    a(f'v_and_b32 v{vT1}, 1, v{vC}')
    a(f'v_lshl_add_u32 v{vT0}, v{vT1}, 1, v{vT0}')
    a(f'v_bfe_u32 v{vT1}, v{vC}, 1, 1')
    a(f'v_lshlrev_b32 v{vT1}, 4, v{vT1}')
    a(f'v_mov_b32 v{vT2}, 0x3f80')
    a(f'v_lshlrev_b32 v{vT1}, v{vT1}, v{vT2}')
    a(f'v_cmp_eq_u32 vcc, v{vT0}, v{vG}')
    a(f'v_cndmask_b32 v{vT1}, 0, v{vT1}, vcc')
    a(f'v_and_b32 v{vT0}, 4, v{vC}')
    a(f'v_cmp_eq_u32 vcc, 0, v{vT0}')
    a(f'v_cndmask_b32 v{PMX}, 0, v{vT1}, vcc')
    a(f'v_cndmask_b32_e64 v{PMX+1}, v{vT1}, 0, vcc')
    a(f'v_lshrrev_b32 v{vA0}, 1, v{vG}')
    a(f'v_lshlrev_b32 v{vA0}, 17, v{vA0}')
    a(f'v_lshl_add_u32 v{vA0}, v{vC}, 4, v{vA0}')
    a(f'v_and_b32 v{vT1}, 1, v{vG}')
    a(f'v_lshl_add_u32 v{vA0}, v{vT1}, 3, v{vA0}')
    a(f's_lshl_b32 s{sRS}, s{sDT}, 18')
    a(f's_lshl_b32 s{sT2}, s{sCT4}, 12')
    a(f's_add_u32 s{sRS}, s{sRS}, s{sT2}')
    a(f's_lshl_b32 s{sT2}, s{sWAVE}, 8')
    a(f's_add_u32 s{sRS}, s{sRS}, s{sT2}')
    a(f's_add_u32 s{sRS}, s{sRS}, {WS_HF:#x}')
    a(f'v_lshlrev_b32 v{vA1}, 10, v{vC}')
    a(f'v_lshl_add_u32 v{vA1}, v{vT1}, 5, v{vA1}')
    a(f'v_lshrrev_b32 v{vT1}, 1, v{vG}')
    a(f'v_lshl_add_u32 v{vA1}, v{vT1}, 4, v{vA1}')
    a(f's_lshl_b32 s{sT0}, s{sDT}, 5')
    a(f's_add_u32 s{sT0}, s{sT0}, s{sCT4}')
    a(f's_lshl2_add_u32 s{sT0}, s{sT0}, s{sWAVE}')
    a(f's_lshl_b32 s{sT0}, s{sT0}, 7')
    a(f's_add_u32 s{sT0}, s{sT0}, {WS_F3:#x}')
    poll('L_p3', sT0)
    a.stamp()
    N4 = 14 - OPT['NQ']
    fills = {2: [('vm', 'res', f'buffer_load_dwordx2 {vr(RES+2*t,2)}, v{vA0}, {srd(sWS)}, s{sRS} offen offset:{1024*t} sc1') for t in range(4)],
             N4 + 2: [('wvm', 'res')] + [f'v_mfma_f32_16x16x16_bf16 {acc34(False,0,t)[1]}, {vr(RES+2*t,2)}, {vr(PMX,2)}, {acc34(False,0,t)[1]}' for t in range(4)],
             3: [f'v_lshlrev_b32 v{vBI}, 16, v{vBI}', f'v_mov_b32 v{vBI+1}, v{vBI}', f's_lshl_b32 s{sT0}, s{sCT4}, 16', f's_lshl_b32 s{sT1}, s{sWAVE}, 14',
                 f's_add_u32 s{sT0}, s{sT0}, s{sT1}', f's_lshl_b32 s{sT1}, s{sDT}, 7', f's_add_u32 s{sT0}, s{sT0}, s{sT1}']}
    gemm34(False, 14, fills, [])
    a.stamp()
    reduce_rd()
    for k in range(4): a.run(reduce_sum(k, lambda k, h: vr(vBI, 2)))
    for j in range(8): a(f'v_cvt_pk_bf16_f32 v{PK+j}, v{OWN+2*j}, v{OWN+2*j+1}')
    for e in range(2):
        for h in range(2):
            a(f'v_permlane16_swap_b32 v{PK+4*e+h}, v{PK+4*e+2+h}')
    for e in range(2):
        a(f'buffer_store_dwordx4 {vr(PK+4*e,4)}, v{vA1}, {srd(sOUT)}, s{sT0} offen offset:{64*e}' + ['', ' sc1', ' nt', ' sc0 sc1'][OPT['OSC']])
    a.stamp()
    if PROF:
        a('s_waitcnt lgkmcnt(0)')
        a(f's_cmp_lg_u32 s{sWAVE}, 0')
        a('s_cbranch_scc1 L_end')
        if OPT['AMP'] >= 0:
            a(f's_cmp_lg_u32 s2, {OPT["AWG"]}')
            a('s_cbranch_scc1 L_end')
            a(f's_sub_u32 s{sT2}, s{70+2*OPT["AMP"]}, s70')
            a(f's_lshl_b32 s{sT2}, s{sT2}, 3')
            a(f's_min_u32 s{sT2}, s{sT2}, 100000')
            a(f's_memrealtime s[{sT0}:{sT1}]')
            a('s_waitcnt lgkmcnt(0)')
            a(f's_mov_b32 s{sCNT}, s{sT0}')
            a.label('L_amp')
            a(f's_memrealtime s[{sT0}:{sT1}]')
            a('s_waitcnt lgkmcnt(0)')
            a(f's_sub_u32 s{sT0}, s{sT0}, s{sCNT}')
            a(f's_cmp_lt_u32 s{sT0}, s{sT2}')
            a('s_cbranch_scc1 L_amp')
            a('s_branch L_end')
        a(f's_mul_i32 s{sT0}, s2, {NSTAMP * 8}')
        a(f's_add_u32 s{sT0}, s{sT0}, {128 * MB:#x}')
        a(f's_add_u32 s{sT0}, s{sWS}, s{sT0}')
        a(f's_addc_u32 s{sT1}, s{sWS+1}, 0')
        a(f's_sub_u32 s{sT0}, s{sT0}, {OPT["WSO"] * MB:#x}')
        a(f's_subb_u32 s{sT1}, s{sT1}, 0')
        a(f'v_mov_b32 v{vT0}, 0')
        for i in range(a.nst):
            a(f'v_mov_b32 v{H+2*i}, s{70+2*i}')
            a(f'v_mov_b32 v{H+2*i+1}, s{71+2*i}')
            a(f'global_store_dwordx2 v{vT0}, v[{H+2*i}:{H+2*i+1}], s[{sT0}:{sT1}] offset:{8*i}')
        a(f'v_mov_b32 v{H}, s{sBUD}')
        a(f'v_mov_b32 v{H+1}, 0')
        a(f'global_store_dwordx2 v{vT0}, v[{H}:{H+1}], s[{sT0}:{sT1}] offset:{8*19}')
    a.label('L_end')
    a('s_endpgm')
    for blk in tail:
        for ln in blk: a(ln)
    a.raw('.p2align 8, 0')
    a.label('L_last')
    a.raw('.fill 64, 4, 0xbf810000')
    return a, name, LDS

HEADER = open('cdna_kernels/' + NAME + '.s.ref').read().split('; Override launch')[0]

def main():
    a, name, lds = gen()
    body = a.finalize()
    out = HEADER + f'; @launch grid=(256,1,1) block=(256,1,1) lds={lds}\n'
    out += '.amdgcn_target "amdgcn-amd-amdhsa--gfx950"\n.text\n' + body
    out += f""".section .rodata,"a"
.p2align 6
.amdhsa_kernel {name}
  .amdhsa_next_free_vgpr 512
  .amdhsa_next_free_sgpr 102
  .amdhsa_accum_offset 256
  .amdhsa_group_segment_fixed_size 0
  .amdhsa_kernarg_size 88
  .amdhsa_user_sgpr_count 2
  .amdhsa_user_sgpr_kernarg_segment_ptr 1
  .amdhsa_system_sgpr_workgroup_id_x 1
.end_amdhsa_kernel
"""
    open(sys.argv[1], 'w').write(out)
    print('nops inserted', a.nops_inserted, 'lines', out.count('\n'), 'stamps', a.nst)

if __name__ == '__main__':
    main()
```

```python
import sys, struct
from asmgen import Asm

NAME = "sequential_preLN__sliding_local_dilated__mixer_token_mlp__prompt"
PROF = '--prof' in sys.argv
OPT = dict(SXP=0, SXD=4, OPF=-1, SXI=1, HOP=0, CLX=2, WSO=0, CLF=0, CW=1, ALN=12, XS=3, TWB=0, PB1=-1, PB2=-1, WOB=10, SKZ=1, NT1=0, NT2=0, NTT=0, NTX=0, NTW=0, NTO=0, EA=5, AEV=11, EB1=7, EB2=9, EC=13, ED=15, EE=19, EF=21, EG=21, NLOW=4, M2B=1, PG=0, TWO=1, NQ=3, D0=4, PRE1=14, PRE2=25, ZS3=0, AMP=-1, AWG=0,
           W2B=13, OSC=1, SKT=0, CLB=3, CLS=2, CLP=2, KPM=4,
           TN1=64, TB1=-1, TS1=2, DX=0, TW3=0, R3M=0, R4M=0, KP3=7, TN2=64, TB2=-1, TS2=1)
for a_ in sys.argv[2:]:
    if '=' in a_:
        k_, v_ = a_.split('='); assert k_ in OPT, k_; OPT[k_] = int(v_)
NSTAMP = 20
def ntu(K3, i): return ' nt' if i < OPT['NT1' if K3 else 'NT2'] else ''
def nt(k): return ' nt' if OPT[k] else ''
MB = 1 << 20
KB = 1024
WS_OF, WS_HN, WS_HF, WS_UF, WS_SX = 0, 2 * MB, 4 * MB, 6 * MB, 8 * MB
WS_F1, WS_DUM = 8 * MB + 256 * KB, 9 * MB
WS_F2, WS_F3 = WS_F1 + 128 * KB, WS_F1 + 256 * KB
NEGBIG = 0xF149F2CA
SPIN = 1 << 17

def vr(b, n=1): return f'v{b}' if n == 1 else f'v[{b}:{b+n-1}]'
def ar(b, n=1): return f'a{b}' if n == 1 else f'a[{b}:{b+n-1}]'
def srd(b): return f's[{b}:{b+3}]'
def f2h(x): return '%#x' % struct.unpack('<I', struct.pack('<f', x))[0]

class Em(Asm):
    def __init__(self):
        super().__init__()
        self.vmq = []; self.dsq = []; self.nst = 0
        self.inj = []; self.every = 1; self.cnt = 0
    def __call__(self, text):
        super().__call__(text)
        if self.inj and text.startswith('v_'):
            self.cnt += 1
            if self.cnt >= self.every:
                self.cnt = 0
                q = self.inj; op = q.pop(0); self.inj = []
                self.run([op]); self.inj = q
    def inject(self, ops, every): self.inj = list(ops); self.every = every; self.cnt = 0
    def flush(self):
        q = self.inj; self.inj = []; self.run(q)
    def vm(self, tag, text):
        self(text); self.vmq.append(tag)
        assert len(self.vmq) <= 63, ('vm overflow', tag)
    def ds(self, tag, text):
        self(text); self.dsq.append(tag)
    @staticmethod
    def _n(q, tags):
        idx = -1
        for k, t in enumerate(q):
            if t in tags: idx = k
        return idx
    def wait(self, vm=(), ds=()):
        s = []
        i = self._n(self.vmq, list(vm))
        if i >= 0:
            s.append(f'vmcnt({len(self.vmq) - 1 - i})'); self.vmq = self.vmq[i + 1:]
        i = self._n(self.dsq, list(ds))
        if i >= 0:
            n = len(self.dsq) - 1 - i
            if n > 15: n = 15
            s.append(f'lgkmcnt({n})'); self.dsq = self.dsq[len(self.dsq) - n:] if n else []
        if s: self('s_waitcnt ' + ' '.join(s))
    def wait_all(self, vm=True, ds=True):
        s = []
        if vm: s.append('vmcnt(0)'); self.vmq = []
        if ds: s.append('lgkmcnt(0)'); self.dsq = []
        self('s_waitcnt ' + ' '.join(s))
    def run(self, ops):
        for op in ops:
            if isinstance(op, str): self(op)
            elif op[0] == 'vm': self.vm(op[1], op[2])
            elif op[0] == 'ds': self.ds(op[1], op[2])
            elif op[0] == 'wvm': self.wait(vm=[op[1]])
            elif op[0] == 'wds': self.wait(ds=[op[1]])
            elif op[0] == 'grp': self.run(op[1])
            elif op[0] == 'label': self.label(op[1])
            else: raise ValueError(op)
    def stamp(self, *grps):
        if not PROF: return
        if not grps: grps = (0,)
        if OPT['PG'] not in grps and -1 not in grps: return
        assert self.nst < 15
        self(f's_memrealtime s[{70 + 2*self.nst}:{71 + 2*self.nst}]')
        self.nst += 1

def flat(ops):
    out = []
    for op in ops:
        if not isinstance(op, str) and op[0] == 'grp': out += flat(op[1])
        else: out.append(op)
    return out

def weave(prim, fill, lead=0):
    out = []
    n, m = len(prim), len(fill)
    k = 0
    for i, p in enumerate(prim):
        out.append(p)
        tgt = min(m, (m * (i + 1) + n - 1) // n + lead) if n else m
        while k < tgt:
            out.append(fill[k]); k += 1
    out += fill[k:]
    return out
def mix(a, b): return weave(a, b) if len(a) >= len(b) else weave(b, a)

sX, sWQ, sWO, sW1, sB1, sW2, sB2, sOUT, sDBG, sWS = 4, 8, 12, 16, 20, 24, 28, 32, 36, 40
sPOLL = 4
sWAVE, sBUD, sT0, sT1, sT2, sCNT = 44, 45, 46, 47, 48, 49
sXB, sWB, sWOB, sLW, sRT, sDT = 50, 51, 52, 53, 54, 55
sCT3, sCT4, sROT3, sROT4 = 56, 57, 58, 59
sW1A, sW1B, sW2A, sW2B, sPR, sLIM1 = 60, 61, 62, 63, 64, 65
sSTP1, sZ = 66, 67
sNON = 68
sD3 = 100
vL, vG, vC, vT0, vT1, vT2, vT3, vL16 = 1, 2, 3, 4, 5, 6, 7, 8
vDUM, vCK = 252, 253

def gen():
    a = Em()
    tail = []
    name = NAME + '_kernel'
    a.raw(f'.globl {name}\n.p2align {OPT["ALN"]}\n.type {name},@function')
    a.label(name)
    a.stamp(-1)
    NW = 6
    L_X = NW * 12288
    L_H = L_X + 64 * KB
    L_NM = L_H + 8 * KB
    L_HP = L_NM + 2560
    L_PR = 64 * KB
    NSL = 6
    LDS = 160 * KB
    assert L_HP + 2048 <= LDS
    for s, off in ((sX, 0), (sWQ, 8), (sWS, 80), (sDBG, 72), (sWO, 16), (sW1, 32), (sB1, 40), (sW2, 48), (sB2, 56), (sOUT, 64)):
        a(f's_load_dwordx2 s[{s}:{s+1}], s[0:1], {off}')
    a('s_cmp_ge_u32 s2, 256')
    a('s_cbranch_scc1 L_end')
    a(f'v_lshrrev_b32 v{vG}, 6, v0')
    a(f'v_and_b32 v{vL}, 63, v0')
    a(f'v_readfirstlane_b32 s{sWAVE}, v{vG}')
    if OPT['CW']:
        a(f's_getpc_b64 s[{sT0}:{sT1}]')
        a(f's_and_b32 s{sT0}, s{sT0}, 0xffffff00')
        a(f's_lshr_b32 s{sT2}, s2, 3')
        a(f's_lshl2_add_u32 s{sT2}, s{sT2}, s{sWAVE}')
        a(f's_lshl_b32 s{sT2}, s{sT2}, 8')
        a(f's_min_u32 s{sT2}, s{sT2}, (L_last-{name})&0xffffff00')
        a(f'v_and_b32 v{vT0}, 1, v0')
        a(f'v_lshl_add_u32 v{vT0}, v{vT0}, 7, s{sT2}')
        a.vm('cw', f'global_load_dword v{vDUM}, v{vT0}, s[{sT0}:{sT1}]')
    a(f'v_lshrrev_b32 v{vG}, 4, v{vL}')
    a(f'v_and_b32 v{vC}, 15, v{vL}')
    a(f'v_lshlrev_b32 v{vL16}, 4, v{vL}')
    for s, n in ((sX, 2048 * 1024), (sWQ, 512 * 3072), (sWS, 16 * MB), (sDBG, 256), (sWO, 512 * 1024), (sW1, 2048 * 3584),
                 (sB1, 3584), (sW2, 1792 * 4096), (sB2, 4096), (sOUT, 2048 * 1024)):
        a(f's_mov_b32 s{s+2}, {n:#x}')
        a(f's_mov_b32 s{s+3}, 0x20000')
    vXD, vWD, vWOD, vXR, vHR, vTR, vSR, vHS = 9, 10, 11, 12, 13, 14, 16, 17
    vXD1, vE0 = 18, 19
    WB, XB, ACC, SB, GS, GO, GH, CST, STC = 20, 44, 104, 164, 180, 184, 188, 192, 212
    QP, KP, VP = 222, 230, 20
    vXR1, vSR1, vRA = 240, 241, 242
    vQ1, vR1 = 244, 248
    SEN = QP
    sXL, sHL, sHB, sKP = sW2A, sW2B, sROT4, sPR
    a(f's_lshr_b32 s{sZ}, s2, 5')
    a(f's_bfe_u32 s{sT0}, s2, {1 | (2 << 16)}')
    a(f's_lshr_b32 s{sT1}, s2, 6')
    a(f's_lshl2_add_u32 s{sT0}, s{sT0}, s{sT1}')
    a(f's_and_b32 s{sT1}, s{sZ}, 1')
    a(f's_lshl4_add_u32 s{sRT}, s{sT1}, s{sT0}')
    a(f's_lshl_b32 s{sT1}, s{sT1}, 10')
    a(f's_bfe_u32 s{sT2}, s2, {3 | (2 << 16)}')
    if OPT['DX'] & 3: a(f's_xor_b32 s{sT2}, s{sT2}, {OPT["DX"] & 3}')
    a(f's_and_b32 s{sDT}, s2, 1')
    if OPT['DX'] & 4: a(f's_xor_b32 s{sDT}, s{sDT}, 1')
    a(f's_lshl2_add_u32 s{sDT}, s{sDT}, s{sT2}')
    a(f's_lshl_b32 s{sT2}, s{sT2}, 1')
    a(f's_xor_b32 s{sKP}, s{sT2}, s{sZ}')
    a(f's_cmp_eq_u32 s{sDT}, 3')
    a(f's_cselect_b32 s{sWB}, {OPT["KP3"]}, {OPT["KPM"]}')
    a(f's_and_b32 s{sKP}, s{sKP}, s{sWB}')
    a(f's_lshl_b32 s{sWB}, s{sKP}, 1')
    a(f's_lshl2_add_u32 s{sXB}, s{sT0}, s{sWAVE}')
    a(f's_lshl_b32 s{sXB}, s{sXB}, 15')
    a(f's_add_u32 s{sXB}, s{sXB}, s{sT1}')
    a(f's_lshl_b32 s{sT2}, s{sKP}, 7')
    a(f's_add_u32 s{sXB}, s{sXB}, s{sT2}')
    a(f's_lshl_b32 s{sT0}, s{sT0}, 17')
    a(f's_sub_u32 s{sT0}, s{sT0}, 16384')
    a(f's_max_i32 s{sT0}, s{sT0}, 0')
    a(f's_add_u32 s{sT0}, s{sT0}, s{sT1}')
    a(f's_xor_b32 s{sT2}, s{sKP}, s{sWAVE}')
    a(f's_lshl_b32 s{sT2}, s{sT2}, 7')
    a(f's_add_u32 s{sHB}, s{sT0}, s{sT2}')
    a(f's_lshl_b32 s{sXL}, s{sWAVE}, 14')
    a(f's_add_u32 s{sXL}, s{sXL}, {L_X}')
    a(f's_lshl_b32 s{sHL}, s{sWAVE}, 10')
    a(f's_add_u32 s{sHL}, s{sHL}, {L_H}')
    a(f's_mul_i32 s{sLW}, s{sWAVE}, 3072')
    a(f'v_lshrrev_b32 v{vT0}, 3, v{vL}')
    a(f'v_and_b32 v{vT1}, 7, v{vL}')
    a(f'v_xor_b32 v{vT1}, v{vT1}, v{vG}')
    a(f'v_lshlrev_b32 v{vT1}, 4, v{vT1}')
    a(f'v_lshl_add_u32 v{vXD}, v{vT0}, 11, v{vT1}')
    a(f'v_xor_b32 v{vXD1}, 64, v{vXD}')
    a(f'v_add_u32 v{vXD1}, {16384 - 1024}, v{vXD1}')
    a(f's_lshl_b32 s{sT0}, s{sDT}, 7')
    a(f's_lshl3_add_u32 s{sT0}, s{sLW}, s{sT0}')
    a(f'v_mov_b32 v{vT1}, 3072')
    a(f'v_mad_u32_u24 v{vWD}, v{vT0}, v{vT1}, s{sT0}')
    a(f'v_lshrrev_b32 v{vT0}, 1, v{vL}')
    a(f'v_and_b32 v{vT1}, 1, v{vG}')
    a(f's_lshl_b32 s3, s{sWAVE}, 1')
    a(f'v_xor_b32 v{vT0}, v{vT0}, v{vT1}')
    a(f'v_xor_b32 v{vT0}, s3, v{vT0}')
    a(f'v_and_b32 v{vT0}, 3, v{vT0}')
    a(f'v_lshl_add_u32 v{vWD}, v{vT0}, 5, v{vWD}')
    a(f'v_and_b32 v{vT0}, 1, v{vL}')
    a(f'v_lshl_add_u32 v{vWD}, v{vT0}, 4, v{vWD}')
    def hop(first, back):
        a('s_mov_b64 exec, 0')
        for w in range(1, 4):
            a(f's_cmp_eq_u32 s{sWAVE}, {w}')
            a(f's_cbranch_scc1 L_pg{first+w}')
        a(f's_branch L_pg{first}')
        a.label(back)
        a('s_mov_b64 exec, -1')
    if OPT['HOP'] == 2: hop(1, 'L_pgb')
    a('s_waitcnt lgkmcnt(0)')
    a.stamp(1)
    wso = [f's_add_u32 s{sWS}, s{sWS}, {OPT["WSO"] * MB:#x}', f's_addc_u32 s{sWS+1}, s{sWS+1}, 0'] if OPT['WSO'] else []
    def xloads(p):
        return [('grp', [f's_add_u32 m0, s{sXL}, {p * 2048}', f's_xor_b32 s3, s{sXB}, {p * 128}',
                         ('vm', ('x', p), f'buffer_load_dwordx4 v{vXD}, {srd(sX)}, s3 offen{nt("NTX")} lds')]),
                ('vm', ('x', p), f'buffer_load_dwordx4 v{vXD1}, {srd(sX)}, s3 offen offset:1024{nt("NTX")} lds')]
    def hloads(j):
        return [('grp', [f's_add_u32 m0, s{sHL}, {j * 4096}', f's_xor_b32 s3, s{sHB}, {j * 512}', 's_mov_b32 exec_lo, 0xffffff00',
                         ('vm', ('h', j), f'buffer_load_dwordx4 v{vXD}, {srd(sX)}, s3 offen{nt("NTX")} lds'), 's_mov_b32 exec_lo, -1'])]
    def wloads(k):
        slot = k % NW
        if k < 16:
            return [('grp', [f's_add_u32 m0, s{sLW}, {slot * 12288}', f's_xor_b32 s3, s{sWB}, {k}', f's_mul_i32 s3, s3, {32 * 3072}',
                             ('vm', ('w', k), f'buffer_load_dwordx4 v{vWD}, {srd(sWQ)}, s3 offen{nt("NTW")} lds')])] + \
                   [('vm', ('w', k), f'buffer_load_dwordx4 v{vWD}, {srd(sWQ)}, s3 offen offset:{1024*R}{nt("NTW")} lds') for R in (1, 2)]
        ops = []
        for j in range(3 if slot < 5 else 1):
            i = 3 * slot + j
            ops.append(('grp', [f's_add_u32 m0, s{sLW}, {i * 4096}', f's_add_u32 s3, s{sWOB}, {i * 32768}',
                                ('vm', 'wo', f'buffer_load_dwordx4 v{vWOD}, {srd(sWO)}, s3 offen{nt("NTO")} lds')]))
        return ops
    seq = [xloads(0), hloads(0), wloads(0), wloads(1), xloads(1), wloads(2), wloads(3), xloads(2), wloads(4), wloads(5)]
    def take(n):
        while seq and len(a.vmq) - OPT["CW"] + len(seq[0]) <= n: a.run(seq.pop(0))
    def tw3():
        a(f's_lshr_b32 s{sT0}, s2, 3')
        a(f's_lshl2_add_u32 s{sT0}, s{sT0}, s{sWAVE}')
        a(f's_mul_i32 s{sT0}, s{sT0}, 12')
        a(f's_lshr_b32 s{sT1}, s{sDT}, 2')
        a(f's_lshl_b32 s{sT1}, s{sT1}, 11')
        a(f's_add_u32 s{sT0}, s{sT0}, s{sT1}')
        a(f'v_min_u32 v{vT3}, 11, v{vC}')
        a(f'v_add_lshl_u32 v{vT3}, v{vT3}, s{sT0}, 10')
        a.vm('tw', f'buffer_load_dword v{vDUM}, v{vT3}, {srd(sWQ)}, 0 offen offset:384')
    if OPT['TW3'] == 1: tw3()
    if OPT['TW3'] == 2: take(6); tw3()
    take(OPT['PRE1'])
    if OPT['TW3'] == 3: tw3()
    a.run(wso)
    a.stamp(1)
    a(f's_or_b32 s{sT0}, s2, s{sWAVE}')
    a(f's_cmp_lg_u32 s{sT0}, 0')
    a('s_cbranch_scc1 L_nononce')
    a(f's_memrealtime s[{sT0}:{sT1}]')
    a(f'v_mov_b32 v{vT1}, 0')
    a('s_waitcnt lgkmcnt(0)')
    a(f's_or_b32 s{sT0}, s{sT0}, 1')
    a(f'v_mov_b32 v{vT0}, s{sT0}')
    a('s_mov_b64 exec, 1')
    a(f'buffer_store_dword v{vT0}, v{vT1}, {srd(sDBG)}, 0 offen sc1')
    a('s_mov_b64 exec, -1')
    a.label('L_nononce')
    BC, BP, BP0, MC, MP, ONE = CST, CST + 4, CST + 8, CST + 12, CST + 14, CST + 16
    for k in range(4): a(f'v_mov_b32 v{ONE+k}, 0x3f803f80')
    a(f'v_lshrrev_b32 v{vT0}, 3, v{vL}')
    a(f'v_and_b32 v{vT1}, 7, v{vL}')
    a(f'v_lshlrev_b32 v{vT1}, 4, v{vT1}')
    a(f'v_lshl_add_u32 v{vT0}, v{vT0}, 10, v{vT1}')
    a(f'v_add_u32 v{vT0}, {L_H}, v{vT0}')
    a(f'ds_write_b128 v{vT0}, {vr(ONE,4)}')
    a(f'v_lshrrev_b32 v{vT0}, 1, v{vC}')
    a(f'v_xor_b32 v{vT0}, v{vT0}, v{vG}')
    a(f'v_lshlrev_b32 v{vT0}, 4, v{vT0}')
    a(f'v_lshl_add_u32 v{vT0}, v{vC}, 7, v{vT0}')
    a(f'v_add_u32 v{vSR}, s{sXL}, v{vT0}')
    a(f'v_add_u32 v{vXR}, {L_X}, v{vT0}')
    a(f'v_xor_b32 v{vSR1}, 64, v{vSR}')
    a(f'v_xor_b32 v{vXR1}, 64, v{vXR}')
    a(f'v_and_b32 v{vT0}, {0x3bf}, v{vT0}')
    a(f'v_add_u32 v{vHR}, {L_H}, v{vT0}')
    a(f'v_add_u32 v{vHS}, s{sHL}, v{vT0}')
    a(f's_xor_b32 s{sT0}, s{sDT}, s{sKP}')
    a(f's_lshl_b32 s{sT0}, s{sT0}, 11')
    a(f'v_add_u32 v{vRA}, s{sT0}, v{vSR}')
    a(f'v_add_u32 v{vRA+1}, s{sT0}, v{vSR1}')
    a(f'v_mul_u32_u24 v{vTR}, 3072, v{vG}')
    a(f'v_bfe_u32 v{vT0}, v{vL}, 2, 2')
    a(f'v_lshl_add_u32 v{vTR}, v{vT0}, 7, v{vTR}')
    a(f'v_bfe_u32 v{vT0}, v{vL}, 3, 2')
    a(f'v_xor_b32 v{vT0}, s{sWAVE}, v{vT0}')
    a(f'v_lshl_add_u32 v{vTR}, v{vT0}, 5, v{vTR}')
    a(f'v_and_b32 v{vT0}, 3, v{vL}')
    a(f'v_lshl_add_u32 v{vTR}, v{vT0}, 3, v{vTR}')
    a(f'v_add_u32 v{vTR+1}, {3 * 12288}, v{vTR}')
    for k in range(4): a(f'v_mov_b32 v{SEN+k}, -1')
    a(f's_mov_b32 s{sBUD}, {SPIN}')
    a(f's_bfe_u32 s{sD3}, s2, {3 | (3 << 16)}')
    a(f's_and_b32 s{sT1}, s2, 1')
    a(f's_lshr_b32 s{sT2}, s2, 6')
    a(f's_lshr_b32 s{sT0}, s{sD3}, 2')
    a(f's_cmp_eq_u32 s{sT0}, s{sT1}')
    a(f's_cselect_b32 s{sT0}, 3, 7')
    a(f's_lshl2_add_u32 s{sZ}, s{sT1}, s{sT2}')
    a(f's_cmp_lt_u32 s{sT2}, 3')
    a(f's_cselect_b32 s{sZ}, s{sZ}, s{sT0}')
    a(f's_bfe_u32 s{sT0}, s2, {1 | (2 << 16)}')
    a(f's_mul_i32 s{sCT3}, s{sT0}, 7')
    a(f's_cmp_lt_u32 s{sZ}, 7')
    a(f's_cselect_b32 s{sT0}, s{sZ}, 3')
    a(f's_add_u32 s{sCT3}, s{sCT3}, s{sT0}')
    a(f's_add_u32 s{sT0}, s{sT2}, 1')
    a(f's_and_b32 s{sT0}, s{sT0}, 3')
    a(f's_and_b32 s{sCT4}, s2, 7')
    a(f's_lshl2_add_u32 s{sCT4}, s{sCT4}, s{sT0}')
    if OPT['R3M'] == 0: a(f's_mov_b32 s{sROT3}, 0')
    elif OPT['R3M'] == 1:
        a(f's_and_b32 s{sROT3}, s{sT2}, 1')
        a(f's_lshl_b32 s{sROT3}, s{sROT3}, 3')
    elif OPT['R3M'] == 2: a(f's_lshl_b32 s{sROT3}, s{sT2}, 2')
    elif OPT['R3M'] == 3: a(f's_lshl_b32 s{sROT3}, s{sD3}, 1')
    elif OPT['R3M'] == 4:
        a(f's_and_b32 s{sROT3}, s{sD3}, 3')
        a(f's_lshl_b32 s{sROT3}, s{sROT3}, 2')
    else:
        a(f's_and_b32 s{sROT3}, s{sD3}, 1')
        a(f's_lshl_b32 s{sROT3}, s{sROT3}, 3')
    a(f's_mov_b32 s{sSTP1}, {64 * 3584}')
    a(f's_sub_u32 s{sLIM1}, 16, s{sROT3}')
    a(f's_and_b32 s{sT0}, s{sWAVE}, 1')
    a(f's_lshl_b32 s{sT0}, s{sT0}, 4')
    a(f's_add_u32 s{sT0}, s{sT0}, s{sROT3}')
    a(f's_lshl_b32 s{sT0}, s{sT0}, 6')
    a(f's_lshr_b32 s{sT1}, s{sWAVE}, 1')
    a(f's_add_u32 s{sT0}, s{sT0}, s{sT1}')
    a(f's_mul_i32 s{sW1A}, s{sT0}, 3584')
    a(f's_lshl_b32 s{sT0}, s{sCT3}, 7')
    a(f's_add_u32 s{sW1A}, s{sW1A}, s{sT0}')
    a(f's_sub_u32 s{sW1B}, s{sW1A}, {16 * 64 * 3584}')
    a(f's_mul_i32 s{sPR}, s{sWAVE}, {NSL * 4096}')
    a(f's_add_u32 s{sPR}, s{sPR}, {L_PR}')
    a(f's_lshl_b32 s{sWOB}, s{sWAVE}, 13')
    a(f's_lshl_b32 s{sT0}, s{sDT}, 7')
    a(f's_add_u32 s{sWOB}, s{sWOB}, s{sT0}')
    if OPT['CLX'] & 4:
        a(f's_lshl_b32 s{sT0}, s{sDT}, 5')
        a(f's_add_u32 s{sT0}, s{sT0}, s{sRT}')
        a(f's_bfe_u32 s{sT1}, s2, {1 | (2 << 16)}')
        a(f's_lshl2_add_u32 s{sT1}, s{sD3}, s{sT1}')
        a(f's_lshl3_add_u32 s{sT1}, s{sT1}, s{sZ}')
        a(f's_lshl_b32 s{sT2}, s{sD3}, 5')
        a(f's_add_u32 s{sT2}, s{sT2}, s{sCT4}')
        for r_, b_ in ((sT0, WS_F1), (sT1, WS_F2), (sT2, WS_F3)):
            a(f's_lshl2_add_u32 s{r_}, s{r_}, s{sWAVE}')
            a(f's_lshl_b32 s{r_}, s{r_}, 7')
            a(f's_add_u32 s{r_}, s{r_}, {b_:#x}')
            a(f's_load_dword s{sNON}, s[{sWS}:{sWS+1}], s{r_} glc')
    def w2_scalars(A, B, rot):
        r = [[f's_mov_b32 s{rot}, 0'], [f's_bfe_u32 s{sT1}, s2, {6 | (1 << 16)}', f's_mul_i32 s{rot}, s{sT1}, 7'],
             [f's_lshr_b32 s{sT1}, s2, 6', f's_mul_i32 s{rot}, s{sT1}, 7', f's_add_u32 s{rot}, s{rot}, 1', f's_lshr_b32 s{rot}, s{rot}, 1'],
             [f's_mul_i32 s{rot}, s{sD3}, 7', f's_lshr_b32 s{rot}, s{rot}, 2'],
             [f's_and_b32 s{sT1}, s{sD3}, 3', f's_mul_i32 s{rot}, s{sT1}, 7', f's_add_u32 s{rot}, s{rot}, 1', f's_lshr_b32 s{rot}, s{rot}, 1'],
             [f's_and_b32 s{sT1}, s{sD3}, 1', f's_mul_i32 s{rot}, s{sT1}, 7']][OPT['R4M']]
        return r + [
                f's_mul_i32 s{sT0}, s{sWAVE}, 14', f's_add_u32 s{sT0}, s{sT0}, s{rot}', f's_lshl_b32 s{A}, s{sT0}, 17',
                f's_lshl_b32 s{sT0}, s{sCT4}, 7', f's_add_u32 s{A}, s{A}, s{sT0}', f's_sub_u32 s{B}, s{A}, {14 << 17}']
    a(f'v_mov_b32 v{vT1}, {NEGBIG:#x}')
    a(f's_and_b32 s{sT0}, s{sRT}, 15')
    a(f's_cmp_eq_u32 s{sT0}, 0')
    a(f's_cselect_b32 s{sT0}, {NEGBIG:#x}, 0')
    for r in range(4):
        a(f'v_lshl_add_u32 v{vT0}, v{vG}, 2, {r}')
        a(f'v_sub_u32 v{vT0}, v{vC}, v{vT0}')
        a(f'v_cmp_gt_u32 vcc, 8, v{vT0}')
        a(f'v_cndmask_b32_e64 v{BC+r}, v{vT1}, 0, vcc')
        a(f'v_cmp_gt_i32 vcc, -8, v{vT0}')
        a(f'v_cndmask_b32_e64 v{BP+r}, v{vT1}, 0, vcc')
        a(f'v_min_f32 v{BP0+r}, s{sT0}, v{BP+r}')
        a(f'v_cmp_le_i32 vcc, 0, v{vT0}')
        if r % 2 == 0:
            a(f'v_cndmask_b32_e64 v{MC+r//2}, 0, -1, vcc')
            a(f'v_and_b32 v{MC+r//2}, 0xffff, v{MC+r//2}')
        else:
            a(f'v_cndmask_b32_e64 v{vT0}, 0, -1, vcc')
            a(f'v_and_b32 v{vT0}, 0xffff0000, v{vT0}')
            a(f'v_or_b32 v{MC+r//2}, v{MC+r//2}, v{vT0}')
            a(f'v_not_b32 v{MP+r//2}, v{MC+r//2}')
    a(f'v_lshrrev_b32 v{vT0}, 1, v{vL}')
    a(f'v_xor_b32 v{vT0}, v{vT0}, v{vG}')
    a(f'v_and_b32 v{vT0}, 3, v{vT0}')
    a(f'v_lshrrev_b32 v{vT1}, 3, v{vL}')
    a(f'v_lshlrev_b32 v{vWOD}, 10, v{vT1}')
    a(f'v_lshl_add_u32 v{vWOD}, v{vT0}, 5, v{vWOD}')
    a(f'v_and_b32 v{vT0}, 1, v{vL}')
    a(f'v_lshl_add_u32 v{vWOD}, v{vT0}, 4, v{vWOD}')
    def mk_q(base, K3):
        if K3:
            ops = [f'v_lshrrev_b32 v{base+1}, 3, v{vL}', f'v_mul_u32_u24 v{base}, 7168, v{base+1}']
            st = 8 * 7168 - 1024
        else:
            ops = [f'v_bfe_u32 v{base+1}, v{vL}, 3, 2', f'v_lshrrev_b32 v{base}, 5, v{vL}', f'v_lshl_add_u32 v{base}, v{base}, 4, v{base+1}',
                   f'v_lshlrev_b32 v{base}, 12, v{base}']
            st = 4 * 4096 - 1024
        ops += [f'v_lshrrev_b32 v{base+1}, 1, v{vL}', f'v_and_b32 v{base+2}, 1, v{vG}', f'v_xor_b32 v{base+1}, v{base+1}, v{base+2}',
                f'v_and_b32 v{base+1}, 3, v{base+1}', f'v_lshl_add_u32 v{base}, v{base+1}, 5, v{base}',
                f'v_and_b32 v{base+1}, 1, v{vL}', f'v_lshl_add_u32 v{base}, v{base+1}, 4, v{base}',
                f'v_xor_b32 v{base+1}, 64, v{base}', f'v_add_u32 v{base+2}, {2*st}, v{base}', f'v_add_u32 v{base+3}, {3*st}, v{base+1}', f'v_add_u32 v{base+1}, {st}, v{base+1}']
        return ops
    def mk_r(base, K3):
        ops = [f'v_bfe_u32 v{base+1}, v{vL}, 2, 2', f'v_lshl_add_u32 v{base+1}, v{vG}, 3, v{base+1}']
        ops += [f's_and_b32 s3, s{sWAVE}, 1', 's_lshl_b32 s3, s3, 1'] if K3 else [f's_mov_b32 s3, s{sWAVE}']
        ops += [f'v_lshlrev_b32 v{base}, 7, v{base+1}', f'v_bfe_u32 v{base+1}, v{vL}, 3, 2', f'v_xor_b32 v{base+1}, s3, v{base+1}',
                f'v_lshl_add_u32 v{base}, v{base+1}, 5, v{base}', f'v_and_b32 v{base+1}, 3, v{vL}', f'v_lshl_add_u32 v{base}, v{base+1}, 3, v{base}',
                f'v_add_u32 v{base}, s{sPR}, v{base}']
        ops += [f'v_xor_b32 v{base+t}, {32*t}, v{base}' for t in range(1, 4)]
        return ops
    slot_of = {}
    vQ2, vR2, vR2L = 240, 28, 244
    sPL = sWOB
    def dma_unit(K3, i, q, slot):
        slot_of[(K3, i)] = slot
        tag = ('u', K3, i)
        m0 = f's_add_u32 m0, s{sPR}, {slot*4096}' if slot < NSL else f's_add_u32 m0, s{sPL}, {(slot-NSL)*4096}'
        if K3:
            S = sW1
            pre = [f's_mul_i32 s3, s{sSTP1}, {i}', f's_cmp_gt_u32 s{sLIM1}, {i}', f's_cselect_b32 m0, s{sW1A}, s{sW1B}', 's_add_u32 s3, s3, m0', m0]
        else:
            S = sW2
            pre = [f's_cmp_lt_u32 s{sROT4}, {14 - i}', f's_cselect_b32 s3, s{sW2A}, s{sW2B}', m0, f's_add_u32 s3, s3, {i << 17}']
        ops = [('grp', pre + [('vm', tag, f'buffer_load_dwordx4 v{q}, {srd(S)}, s3 offen{ntu(K3, i)} lds')])]
        for k in range(1, 4):
            ops.append(('vm', tag, f'buffer_load_dwordx4 v{q+k}, {srd(S)}, s3 offen offset:{1024*k}{ntu(K3, i)} lds'))
        return ops
    def tr_unit(K3, i):
        slot = slot_of[(K3, i)]
        r = vR1 if K3 else vR2
        if slot >= NSL: r = vR2L; slot -= NSL; assert not K3
        return [('ds', ('t', K3, i), f'ds_read_b64_tr_b16 {ar(16*i+4*t+2*h, 2)}, v{r+t} offset:{slot*4096 + 512*h}') for t in range(4) for h in range(2)]
    NLOW = OPT['NLOW']
    def uid(n): return (True, n) if n < 16 else (False, n - 16)
    nofetch = [('grp', [f's_cmp_lt_u32 s{sZ}, 7', f's_cselect_b32 s{sW1+2}, s{sW1+2}, 0'])]
    def evD(n):
        K3, i = uid(n)
        if n < 22: slot, prev = n % NSL, n - NSL
        elif n < 22 + NLOW: slot, prev = NSL + n - 22, -1
        else: raise ValueError
        w = [('wds', ('t',) + uid(prev))] if prev >= 0 else []
        return w + dma_unit(K3, i, vQ1 if K3 else vQ2, slot) + (nofetch if n == OPT['NT1'] - 1 else [])
    def evM(n): return [('wvm', ('u',) + uid(n))] + tr_unit(*uid(n))
    EV = [('D', n) for n in range(6)] + [('M', 0)]
    for n in range(1, 16): EV += [('M', n), ('D', n + 5)]
    EV += [('D', n) for n in range(21, 22 + NLOW)]
    EV0 = list(EV)
    def events(upto):
        ops = []
        while EV and any(e[0] == 'D' and e[1] <= upto for e in EV):
            e = EV.pop(0)
            ops += evD(e[1]) if e[0] == 'D' else evM(e[1])
        return ops
    a.run(mk_q(vQ1, True))
    a.run(mk_r(vR1, True))
    a.stamp(1)
    take(OPT['PRE2'])
    def xb(i, s): return XB + 20 * (i % 3) + 4 * s
    def wb(i, R): return WB + 12 * (i % 2) + 4 * R
    def acc(R, s): return ACC + 20 * R + 4 * s
    def xreads(i):
        return [('ds', ('xr', i), f'ds_read_b128 {vr(xb(i,s),4)}, v{vXR1 if i & 1 else vXR} offset:{2048*(i>>1) + 16384*(s-1)}') for s in range(1, 5)] + \
               [('ds', ('xr', i), f'ds_read_b128 {vr(xb(i,0),4)}, v{vHR} offset:{1024*(i>>1) + 64*(i&1)}')]
    def trreads(i):
        slot = i % NW
        return [('ds', ('wr', i), f'ds_read_b64_tr_b16 {vr(wb(i,R)+2*h,2)}, v{vTR + slot//3} offset:{(slot%3)*12288 + R*1024 + 512*h}') for R in range(3) for h in range(2)]
    def mfmas(i):
        ops = []
        for R in range(3):
            for s in (1, 2, 3, 4, 0):
                x = vr(xb(i, s), 4); d = vr(acc(R, s), 4); w = vr(wb(i, R), 4)
                cin = '0' if i == 0 else d
                ops.append(f'v_mfma_f32_16x16x32_bf16 {d}, {w}, {x}, {cin}' if R < 2 else f'v_mfma_f32_16x16x32_bf16 {d}, {x}, {w}, {cin}')
        return ops
    jobs = {1: ('s', 0), 2: ('s', 1), 4: ('h', 0), 5: ('s', 2), 6: ('s', 3), 7: ('h', 1), 8: ('s', 4), 9: ('s', 5), 10: ('s', 6), 11: ('s', 7)}
    def job_reads(b):
        if b not in jobs: return []
        kind, p = jobs[b]
        if kind == 's':
            return [('ds', ('jr', b), f'ds_read_b128 {vr(SB+8*(b&1)+4*k,4)}, v{vSR1 if k else vSR} offset:{2048*p}') for k in range(2)]
        return [('ds', ('jr', b), f'ds_read_b128 {vr(SB+8*(b&1)+4*k,4)}, v{vHS} offset:{4096*p + 64*k}') for k in range(2)]
    def job_mfmas(b):
        if b not in jobs: return []
        kind, p = jobs[b]
        ops = []
        for k in range(2):
            x = vr(SB + 8 * (b & 1) + 4 * k, 4)
            first = p == 0 and k == 0
            if kind == 's':
                ops.append(f'v_mfma_f32_16x16x32_bf16 {vr(GS,4)}, {x}, {x}, {"0" if first else vr(GS,4)}')
                ops.append(f'v_mfma_f32_16x16x32_bf16 {vr(GO,4)}, {vr(ONE,4)}, {x}, {"0" if first else vr(GO,4)}')
            else:
                ops.append(f'v_mfma_f32_16x16x32_bf16 {vr(GH,4)}, {x}, {x}, {"0" if first else vr(GH,4)}')
        return ops
    def stat_finalize(s, q, tmp):
        return [f'v_mul_f32 v{s}, 0xbb000000, v{s}',
                f'v_mul_f32 v{tmp}, v{s}, v{s}',
                f'v_mul_f32 v{q}, 0x3b000000, v{q}',
                f'v_sub_f32 v{q}, v{q}, v{tmp}',
                f'v_max_f32 v{q}, 0, v{q}',
                f'v_add_f32 v{q}, 0x3727c5ac, v{q}',
                f'v_rsq_f32 v{q}, v{q}']
    def diag(G, dst):
        ops = []
        for k in range(1, 4):
            m = 0x11111111 << k
            ops.append(('grp', [f's_mov_b32 vcc_lo, {m:#x}', f's_mov_b32 vcc_hi, {m:#x}', f'v_cndmask_b32 v{dst}, v{G if k == 1 else dst}, v{G+k}, vcc']))
        return ops
    NM4, RS4, XR = XB + 20, XB + 40, SB
    HT = STC
    extra = {b: [] for b in range(16)}
    L4 = vE0
    extra[5] += [f'v_lshlrev_b32 v{L4}, 2, v{vL}', f's_lshl_b32 s{sT0}, s{sWAVE}, 9', f's_add_u32 s{sT0}, s{sT0}, {L_HP}', f'v_add_u32 v{vT0}, s{sT0}, v{L4}',
                 f'v_lshrrev_b32 v{vT1}, 2, v{vC}', f'v_lshl_add_u32 v{vT1}, v{vT1}, 4, v{vC}', f'v_lshlrev_b32 v{vT1}, 2, v{vT1}',
                 f'v_add_u32 v{vT1}, {L_NM}, v{vT1}', f'v_lshlrev_b32 v{vT2}, 2, v{vC}', f'v_add_u32 v{vT2}, {L_NM}, v{vT2}']
    extra[8] += diag(GH, GH + 1) + [('ds', 'hp', f'ds_write2st64_b32 v{vT0}, v{GH}, v{GH+1} offset0:0 offset1:1')]
    o0 = (L_HP - L_NM) // 256
    extra[9] += [('ds', 'hq', f'ds_read2st64_b32 {vr(HT+2*k,2)}, v{vT2} offset0:{o0+4*k} offset1:{o0+4*k+2}') for k in range(2)] + \
                [('ds', 'hq', f'ds_read2st64_b32 {vr(HT+4+2*k,2)}, v{vT1} offset0:{o0+4*k+1} offset1:{o0+4*k+3}') for k in range(2)]
    extra[10] += [f'v_add_f32 v{HT}, v{HT}, v{HT+1}', f'v_add_f32 v{HT+2}, v{HT+2}, v{HT+3}', f'v_add_f32 v{HT+4}, v{HT+4}, v{HT+5}', f'v_add_f32 v{HT+6}, v{HT+6}, v{HT+7}',
                  f'v_add_f32 v{HT}, v{HT}, v{HT+2}', f'v_add_f32 v{HT+4}, v{HT+4}, v{HT+6}']
    extra[11] += stat_finalize(HT, HT + 4, HT + 1) + [f'v_add_u32 v{vT0}, {L_NM}, v{L4}', ('ds', 'hw', f'ds_write2st64_b32 v{vT0}, v{HT}, v{HT+4} offset0:0 offset1:5')]
    extra[12] += diag(GS, GS + 1) + stat_finalize(GO, GS + 1, GS) + [f's_lshl_b32 s{sT0}, s{sWAVE}, 8', f'v_add_u32 v{vT0}, s{sT0}, v{vT0}',
                                                                    ('ds', 'hw', f'ds_write2st64_b32 v{vT0}, v{GO}, v{GS+1} offset0:1 offset1:6')]
    extra[13] += [('ds', 'st', f'ds_read2st64_b32 {vr(STC+2*s,2)}, v{vT1} offset0:{s} offset1:{5+s}') for s in range(5)] + \
                 [f'v_mul_u32_u24 v{vT0}, 80, v{vG}', f'v_add_u32 v{vT0}, {L_NM}, v{vT0}']
    extra[14] += [('ds', 'st', f'ds_read_b128 {vr(NM4+4*s,4)}, v{vT0} offset:{256*s}') for s in range(5)] + \
                 [('ds', 'st', f'ds_read_b128 {vr(XR+4*e,4)}, v{vRA+e}') for e in range(2)]
    extra[15] += [('ds', 'st', f'ds_read_b128 {vr(RS4+4*s,4)}, v{vT0} offset:{1280+256*s}') for s in range(5)]
    vmx = {b: [] for b in range(17)}
    b0 = 0
    for it in seq:
        vmx[b0] += it; b0 = 0
    vmx[0] += xloads(3)
    vmx[2] += hloads(1)
    for p in range(4, 8): vmx[p - 4 + OPT['XS']] += xloads(p)
    if OPT['TWO']:
        vmx[OPT['TWB']] += [('grp', [f'v_lshlrev_b32 v{vT3}, 10, v{vC}', 's_lshr_b32 s3, s2, 5', f's_lshl2_add_u32 s3, s3, s{sWAVE}', f's_lshl_b32 s3, s3, 14', f's_lshl_b32 s{sCNT}, s{sDT}, 7', f's_add_u32 s3, s3, s{sCNT}',
                            ('vm', 'tw', f'buffer_load_dword v{vDUM}, v{vT3}, {srd(sWO)}, s3 offen{nt("NTO")}')])]
    clr = [[f's_lshl2_add_u32 s3, s{sRT}, s{sWAVE}', 's_lshl_b32 s3, s3, 3', f's_add_u32 s3, s3, s{sDT}', 's_lshl_b32 s3, s3, 11'],
           [f's_lshl_b32 s3, s{sDT}, 5', f's_add_u32 s3, s3, s{sRT}', f's_lshl2_add_u32 s3, s3, s{sWAVE}', 's_lshl_b32 s3, s3, 11', f's_add_u32 s3, s3, {WS_HN:#x}'],
           [f's_mul_i32 s3, s{sD3}, 28', f's_add_u32 s3, s3, s{sCT3}', f's_lshl2_add_u32 s3, s3, s{sWAVE}', 's_lshl_b32 s3, s3, 11', f's_add_u32 s3, s3, {WS_UF:#x}',
            f's_cmp_lt_u32 s{sZ}, 7', f's_cselect_b32 s{sCNT}, 0, {WS_DUM - WS_UF:#x}', f's_add_u32 s3, s3, s{sCNT}']]
    if OPT['CLB'] >= 0:
        cl = []
        for k in range(3):
            for h in range(2):
                cl.append(('grp', clr[k] + [('vm', 'clr', f'buffer_store_dwordx4 {vr(SEN,4)}, v{vL16}, {srd(sWS)}, s3 offen offset:{1024*h} ' + ['sc1', 'sc1 nt', 'sc0 sc1', 'sc0 sc1 nt'][OPT['CLF']])]))
        if OPT['CLX'] & 1:
            for h in range(2):
                cl.append(('grp', clr[1] + [f's_add_u32 s3, s3, {WS_HF - WS_HN:#x}', ('vm', 'clr', f'buffer_store_dwordx4 {vr(SEN,4)}, v{vL16}, {srd(sWS)}, s3 offen offset:{1024*h} sc1')]))
        if OPT['CLX'] & 2:
            cl.append(('grp', clr[0][:3] + ['s_lshl_b32 s3, s3, 8', f's_add_u32 s3, s3, {WS_SX:#x}', f'v_lshlrev_b32 v{vT3}, 2, v{vL}',
                                            ('vm', 'clr', f'buffer_store_dword v{SEN}, v{vT3}, {srd(sWS)}, s3 offen sc1')]))
        for j, o in enumerate(cl):
            vmx[min(15, OPT['CLB'] + (j // OPT['CLP']) * OPT['CLS'])].append(o)
    vTC1, vTC2 = 254, 255
    late = {}
    def place(b, op):
        if b <= 16: vmx[b].append(op)
        else: late.setdefault(b, []).append(op)
    if OPT['TB1'] >= 0:
        TN = OPT['TN1']
        for k in range(64 // TN):
            if k == 0:
                pre = [f'v_bfe_u32 v{vTC1}, v{vL}, 2, {TN.bit_length() - 3}', 's_lshr_b32 s3, s2, 3', f's_lshl2_add_u32 s3, s3, s{sWAVE}', f'v_lshl_add_u32 v{vTC1}, s3, 4, v{vTC1}',
                       f'v_mul_u32_u24 v{vTC1}, 28, v{vTC1}', f's_and_b32 s3, s2, 7', 's_mul_i32 s3, s3, 7', 's_lshr_b32 s3, s3, 1', f'v_and_b32 v{vT3}, 3, v{vL}',
                       f'v_add3_u32 v{vTC1}, v{vTC1}, v{vT3}, s3', f'v_lshlrev_b32 v{vTC1}, 7, v{vTC1}']
            else:
                pre = [f'v_add_u32 v{vTC1}, {TN * 896}, v{vTC1}']
            place(min(16, OPT['TB1'] + k * OPT['TS1']), ('grp', pre + [('vm', 'tw', f'buffer_load_dword v{vDUM}, v{vTC1}, {srd(sW1)}, 0 offen{nt("NTT")}')]))
    if OPT['TB2'] >= 0:
        TN = OPT['TN2']
        pre = [f'v_bfe_u32 v{vTC2}, v{vL}, 2, {TN.bit_length() - 3}', f'v_min_u32 v{vTC2}, 13, v{vTC2}', 's_lshr_b32 s3, s2, 3', f's_lshl2_add_u32 s3, s3, s{sWAVE}', f's_mul_i32 s3, s3, {14 * 8}',
               f's_and_b32 s{sCNT}, s2, 7', f's_add_u32 s3, s3, s{sCNT}', 's_lshl_b32 s3, s3, 9',
               f'v_lshl_add_u32 v{vTC2}, v{vTC2}, 12, s3', f'v_and_b32 v{vT3}, 3, v{vL}', f'v_lshl_add_u32 v{vTC2}, v{vT3}, 7, v{vTC2}']
        vmx[min(16, OPT['TB2'])].append(('grp', pre))
        for k in range(56 // TN + (56 % TN > 0)):
            pre = [f'v_add_u32 v{vTC2}, {min(TN, 56 - TN * k) * 1024}, v{vTC2}'] if k else []
            b = OPT['TB2'] + k * OPT['TS2']
            place(b if OPT['TB2'] > 16 else min(16, b), ('grp', pre + [('vm', 'tw', f'buffer_load_dword v{vDUM}, v{vTC2}, {srd(sW2)}, 0 offen{nt("NTT")}')]))
    if OPT['PB1'] >= 0:
        assert OPT['TN1'] == 64
        place(OPT['PB1'], ('vm', 'tw', f'buffer_load_dword v{vDUM}, v{vTC1}, {srd(sW1)}, 0 offen sc1'))
    if OPT['PB2'] >= 0:
        assert OPT['TN2'] == 64
        place(OPT['PB2'], ('vm', 'tw', f'buffer_load_dword v{vDUM}, v{vTC2}, {srd(sW2)}, 0 offen sc1'))
    need_x = {2: [('x', 2)], 4: [('x', 3)], 6: [('x', 4), ('h', 1)], 8: [('x', 5)], 9: [('x', 6)], 10: [('x', 7)]}
    if OPT['HOP'] == 1:
        a('s_mov_b64 exec, 0')
        for w in range(1, 4):
            a(f's_cmp_eq_u32 s{sWAVE}, {w}')
            a(f's_cbranch_scc1 L_pg{2*w+1}')
        a('s_branch L_pg1')
        a.label('L_pgb')
        a('s_mov_b64 exec, -1')
    a.stamp(1)
    a.wait(vm=[('w', 1), ('x', 1)])
    a('s_waitcnt lgkmcnt(0)')
    a('s_barrier')
    a.stamp(-1)
    a.run(trreads(0) + xreads(0) + xreads(1))
    a.wait(ds=[('xr', 0)])
    wop = []
    for i in range(16):
        rd = []
        if i + 1 < 16: rd += trreads(i + 1) + job_reads(i + 1)
        if i + 2 < 16: rd += xreads(i + 2)
        ld = []
        if i == 1: ld += wloads(NW)
        if i == 10: ld += [f's_lshl_b32 s{sLW}, s{sWAVE}, 10']
        if i >= 1:
            if i + NW < 16: ld += wloads(i + NW)
            else: wop += wloads(i + NW)
            if i >= OPT['WOB']: ld += wop; wop = []
        ld += vmx[i]
        ex = extra[i]
        mm = weave(mfmas(i), job_mfmas(i))
        fill = weave(rd, ld) if rd else ld
        fill = mix(fill, ex)
        fl = []
        for o in fill:
            if not isinstance(o, str) and o[0] == 'grp' and any(isinstance(x, str) and ('exec' in x or 's_cselect' in x) for x in o[1]): fl.append(o)
            else: fl += flat([o])
        a.run(weave(mm, fl, lead=1))
        if i < 15:
            wv = [('w', i + 2)] if i + 2 < 16 else []
            wv += need_x.get(i + 1, [])
            a.wait(vm=wv, ds=[('wr', i + 1), ('jr', i + 1), ('xr', i + 1), 'hp', 'hq', 'hw'])
            a('s_barrier')
            if i in (1, 3, 5, 7, 9, 11, 13): a.stamp(1)
    a.wait_all(vm=False)
    a('s_barrier')
    a.stamp(-1)
    a.run(vmx[16])
    if OPT['NT1'] == 0: a.run(nofetch)
    a(f's_load_dword s{sNON}, s[{sDBG}:{sDBG+1}], 0')
    if OPT['WOB'] == 16: a.inject(wop + events(OPT['EA']), OPT['AEV']); wop = []
    else: a.inject(events(OPT['EA']), OPT['AEV'])
    SC, SP, MX, MT, PM, PB, OUT = XB, SB + 8, ACC, ACC + 4, ACC + 8, ACC + 20, ACC + 36
    CW, CWV = 32, 40
    for r in range(4):
        a(f'v_mov_b32_dpp v{CW+4+r}, v{acc(1,0)+r} row_newbcast:0 row_mask:0xf bank_mask:0xf')
    for r in range(4):
        a(f'v_mov_b32_dpp v{CW+r}, v{acc(0,0)+r} row_newbcast:0 row_mask:0xf bank_mask:0xf')
    def epi_k(s):
        src, st, dst = acc(1, s), STC + 2 * s, KP + 2 * s
        return [[f'v_pk_fma_f32 {vr(src+2*h,2)}, {vr(CW+4+2*h,2)}, {vr(st,2)}, {vr(src+2*h,2)} op_sel_hi:[1,0,1]' for h in range(2)],
                [f'v_pk_mul_f32 {vr(src+2*h,2)}, {vr(src+2*h,2)}, {vr(st,2)} op_sel:[0,1] op_sel_hi:[1,1]' for h in range(2)],
                [f'v_cvt_pk_bf16_f32 v{dst+h}, v{src+2*h}, v{src+2*h+1}' for h in range(2)]]
    def epi_q(s):
        src, st, dst = acc(0, s), STC + 2 * s, QP + 2 * (s - 1)
        return [[f'v_pk_fma_f32 {vr(src+2*h,2)}, {vr(CW+2*h,2)}, {vr(st,2)}, {vr(src+2*h,2)} op_sel_hi:[1,0,1]' for h in range(2)],
                [],
                [f'v_cvt_pk_bf16_f32 v{dst+h}, v{src+2*h}, v{src+2*h+1}' for h in range(2)]]
    def epi_v(s):
        src, dst = acc(2, s), VP + 2 * s
        return [[f'v_pk_fma_f32 {vr(src+2*h,2)}, {vr(NM4+4*s+2*h,2)}, {vr(CWV,2)}, {vr(src+2*h,2)} op_sel_hi:[1,0,1]' for h in range(2)],
                [f'v_pk_mul_f32 {vr(src+2*h,2)}, {vr(src+2*h,2)}, {vr(RS4+4*s+2*h,2)}' for h in range(2)],
                [f'v_cvt_pk_bf16_f32 v{dst+h}, v{src+2*h}, v{src+2*h+1}' for h in range(2)]]
    E = [epi_k(s) for s in range(5)] + [epi_q(s) for s in range(1, 5)]
    a.wait(vm=['clr'])
    for ph in range(3):
        for e in E: a.run(e[ph])
    a(f'v_mov_b32 v{CWV}, v{acc(2,0)}')
    a(f'v_mov_b32 v{CWV+1}, v{acc(2,0)}')
    smm = []
    for u in range(4):
        q = vr(QP + 2 * u, 2)
        smm.append(f'v_mfma_f32_16x16x16_bf16 {vr(SC+4*u,4)}, {vr(KP+2*(u+1),2)}, {q}, {vr(BC,4)}')
        smm.append(f'v_mfma_f32_16x16x16_bf16 {vr(SP+4*u,4)}, {vr(KP+2*u,2)}, {q}, {vr(BP0 if u == 0 else BP,4)}')
    vv = [f'v_permlane16_swap_b32 v{CWV}, v{CWV+1}', f's_mov_b32 s{sT0}, {f2h(0.25 * 1.4426950408889634)}']
    vv += [f'v_mul_f32 v{STC+2*s+1}, s{sT0}, v{STC+2*s+1}' for s in range(1, 5)]
    E = [epi_v(s) for s in range(5)]
    for ph in range(3):
        for e in E: vv += e[ph]
    a.run(weave(smm, vv[:16]) + vv[16:])
    for u in range(4):
        for r in range(4):
            a(f'v_max_f32 v{SC+4*u+r}, v{SC+4*u+r}, v{SP+4*u+r}')
    for u in range(4):
        a(f'v_max3_f32 v{MX+u}, v{SC+4*u}, v{SC+4*u+1}, v{SC+4*u+2}')
    for u in range(4):
        a(f'v_max_f32 v{MX+u}, v{MX+u}, v{SC+4*u+3}')
    for sw in ('v_permlane16_swap_b32', 'v_permlane32_swap_b32'):
        for u in range(4): a(f'v_mov_b32 v{MT+u}, v{MX+u}')
        for u in range(4): a(f'{sw} v{MX+u}, v{MT+u}')
        for u in range(4): a(f'v_max_f32 v{MX+u}, v{MX+u}, v{MT+u}')
    for u in range(4):
        a(f'v_mul_f32 v{MX+u}, v{STC+2*u+3}, v{MX+u}')
    for u in range(4):
        for r in range(4):
            a(f'v_fma_f32 v{SC+4*u+r}, v{SC+4*u+r}, v{STC+2*u+3}, -v{MX+u}')
    for u in range(4):
        for r in range(4):
            a(f'v_exp_f32 v{SC+4*u+r}, v{SC+4*u+r}')
    for u in range(4):
        for h in range(2):
            a(f'v_cvt_pk_bf16_f32 v{PM+2*u+h}, v{SC+4*u+2*h}, v{SC+4*u+2*h+1}')
        for h in range(2):
            a(f'v_and_b32 v{PB+4*u+h}, v{PM+2*u+h}, v{MP+h}')
            a(f'v_and_b32 v{PB+4*u+2+h}, v{PM+2*u+h}, v{MC+h}')
    pm = []
    for u in range(4):
        pm.append(f'v_mfma_f32_16x16x16_bf16 {vr(SP+4*u,4)}, {vr(ONE,2)}, {vr(PM+2*u,2)}, 0')
    for u in range(4):
        pm.append(f'v_mfma_f32_16x16x32_bf16 {vr(SC+4*u,4)}, {vr(VP+2*u,4)}, {vr(PB+4*u,4)}, 0')
    sa = [f's_lshl2_add_u32 s{sT0}, s{sDT}, s{sWAVE}', f's_lshl_b32 s{sT2}, s{sRT}, 7', f's_add_u32 s{sT2}, s{sT2}, s{sDT}', f's_lshl_b32 s{sT2}, s{sT2}, 2',
          f's_add_u32 s{sT2}, s{sT2}, {WS_F1:#x}', f's_lshl_b32 s{sT0}, s{sT0}, 9', f's_lshl_b32 s{sT1}, s{sRT}, 16', f's_add_u32 s{sT0}, s{sT0}, s{sT1}',
          f's_add_u32 s{sT1}, s{sT0}, 32768', f'v_lshrrev_b32 v{vT0}, 5, v{vL}', f'v_mul_u32_u24 v{vT0}, {16384 - 512}, v{vT0}', f'v_add_u32 v{vT0}, v{vT0}, v{vL16}',
          f'v_lshrrev_b32 v{vT3}, 2, v{vL}', f'v_and_b32 v{vT1}, 3, v{vL}', f'v_lshlrev_b32 v{vT1}, 7, v{vT1}', f'v_lshl_add_u32 v{vT3}, v{vT3}, 14, v{vT1}']
    a.run(weave(pm, sa))
    a.wait_all(vm=False)
    a(f's_cmp_lg_u32 s{sNON}, 0')
    a('s_cbranch_scc0 L_non')
    a.label('L_nonok')
    tail.append(['L_non:', f's_load_dword s{sNON}, s[{sDBG}:{sDBG+1}], 0 glc', 's_waitcnt lgkmcnt(0)', f's_cmp_lg_u32 s{sNON}, 0', 's_cbranch_scc1 L_nonok',
                 f's_sub_u32 s{sBUD}, s{sBUD}, 1', 's_cbranch_scc0 L_non', f's_mov_b32 s{sBUD}, 0', 's_branch L_nonok'])
    a(f's_mov_b32 s{sNON+1}, s{sNON}')
    a(f'v_mov_b32 v{vT2}, s{sNON}')
    for u in range(4):
        a(f'v_rcp_f32 v{SP+4*u}, v{SP+4*u}')
    for u in range(4):
        for h in range(2):
            a(f'v_pk_mul_f32 {vr(SC+4*u+2*h,2)}, {vr(SC+4*u+2*h,2)}, {vr(SP+4*u,2)} op_sel_hi:[1,0]')
    for u in range(4):
        for h in range(2):
            a(f'v_cvt_pk_bf16_f32 v{OUT+2*u+h}, v{SC+4*u+2*h}, v{SC+4*u+2*h+1}')
    for e in range(2):
        for h in range(2):
            a(f'v_permlane32_swap_b32 v{OUT+4*e+h}, v{OUT+4*e+2+h}')
    left = a.inj; a.inj = []
    for e in range(2):
        a.vm('ost', f'buffer_store_dwordx4 {vr(OUT+4*e,4)}, v{vT0}, {srd(sWS)}, s{[sT0,sT1][e]} offen sc1')
    assert not any(o[0] == 'vm' and o[1] == 'wo' for o in flat(left) if not isinstance(o, str))
    a.wait(vm=['wo'])
    nflag = [0]
    def flag(soff, barrier=True):
        nflag[0] += 1
        if barrier: a('s_barrier')
        a(f's_cmp_lg_u32 s{sWAVE}, 0')
        a(f's_cbranch_scc1 L_nf{nflag[0]}')
        a('s_mov_b32 exec_hi, 0')
        a(f'buffer_store_dword v{vT2}, v{vT3}, {srd(sWS)}, s{soff} offen sc1')
        a('s_mov_b32 exec_hi, -1')
        a.label(f'L_nf{nflag[0]}')
    flag(sT2)
    a.run(late.get(17, []))
    a.stamp(0, 1)
    a.run(wop)
    a.run(left)
    ID, O, ACC2, S2, PK2 = 20, 64, 128, 144, 152
    vHO, vSO, vTW = 9, 10, 12
    cst = [f'v_bfe_u32 v{vT0}, v{vL}, 2, 3', f'v_lshrrev_b32 v{vT1}, 5, v{vL}', f'v_lshl_add_u32 v{vT0}, v{vT1}, 4, v{vT0}', f'v_lshlrev_b32 v{vTW}, 7, v{vT0}',
           f'v_bfe_u32 v{vT0}, v{vL}, 3, 2', f'v_lshl_add_u32 v{vTW}, v{vT0}, 5, v{vTW}', f'v_and_b32 v{vT0}, 3, v{vL}', f'v_lshl_add_u32 v{vTW}, v{vT0}, 3, v{vTW}']
    cst += [f'v_xor_b32 v{vTW+t}, {32*t}, v{vTW}' for t in range(1, 4)]
    cst += [f'v_and_b32 v{vT0}, 1, v{vC}', f'v_lshlrev_b32 v{vT0}, 4, v{vT0}', f'v_mov_b32 v{vT1}, 0x3f80', f'v_lshlrev_b32 v{vT0}, v{vT0}, v{vT1}',
            f'v_lshrrev_b32 v{vT1}, 1, v{vC}', f'v_lshlrev_b32 v{vE0}, 2, v{vG}', f'v_sub_u32 v{vT1}, v{vT1}, v{vE0}']
    for b in range(2):
        for k in range(4):
            cst += [f'v_cmp_eq_i32 vcc, {k - 8*b}, v{vT1}', f'v_cndmask_b32 v{ID+4*b+k}, 0, v{vT0}, vcc']
    cst += [f'v_and_b32 v{vT0}, 1, v{vG}', f'v_lshlrev_b32 v{vHO}, 10, v{vT0}', f'v_lshrrev_b32 v{vT0}, 1, v{vG}', f'v_lshl_add_u32 v{vHO}, v{vT0}, 8, v{vHO}',
            f'v_lshl_add_u32 v{vHO}, v{vC}, 4, v{vHO}',
            f'v_lshrrev_b32 v{vT0}, 2, v{vC}', f'v_lshlrev_b32 v{vSO}, 8, v{vT0}', f'v_lshl_add_u32 v{vSO}, v{vG}, 6, v{vSO}', f'v_and_b32 v{vT0}, 3, v{vC}',
            f'v_lshl_add_u32 v{vSO}, v{vT0}, 4, v{vSO}']
    cst += [f'v_mfma_f32_16x16x32_bf16 {vr(ACC2+4*t,4)}, {vr(XR+4*(t>>1),4)}, {vr(ID+4*(t&1),4)}, 0' for t in range(4)]
    sBLK = sXB
    sFL = sLW
    cst += [f's_lshl_b32 s{sFL}, s{sDT}, 5', f's_add_u32 s{sFL}, s{sFL}, s{sRT}', f's_lshl2_add_u32 s{sFL}, s{sFL}, s{sWAVE}', f's_lshl_b32 s{sFL}, s{sFL}, 7',
            f's_add_u32 s{sFL}, s{sFL}, {WS_F1:#x}', f'v_lshlrev_b32 v{vT3}, 9, v{vL}', f's_lshl2_add_u32 s{sBLK}, s{sRT}, s{sWAVE}', f's_lshl_b32 s{sT1}, s{sBLK}, 14']
    cst0 = w2_scalars(sW2A, sW2B, sROT4) + [f's_lshl_b32 s{sPL}, s{sWAVE}, 14'] + mk_q(vQ2, False) + mk_r(vR2, False)
    a.run(cst0 + cst)
    def wf2(i): return [32, 48, 176, 192, 208, 224][i % 6]
    def tr2(i):
        return [('ds', ('w2r', i), f'ds_read_b64_tr_b16 {vr(wf2(i)+4*t+2*h,2)}, v{vTW+t} offset:{4096*i+1024*h}') for t in range(4) for h in range(2)]
    if wop:
        a.run(events(OPT['EB1']))
        a.wait(vm=['wo'])
        a('s_barrier')
    for i in range(5): a.run(tr2(i))
    a.run(events(OPT['EB1']))
    def poll(lbl, soff):
        a.label(lbl)
        a(f's_load_dwordx8 s[{sPOLL}:{sPOLL+7}], s[{sWS}:{sWS+1}], s{soff} glc')
        a.wait_all(vm=False)
        for k in range(4): a(f's_xor_b64 s[{sPOLL+2*k}:{sPOLL+2*k+1}], s[{sPOLL+2*k}:{sPOLL+2*k+1}], s[{sNON}:{sNON+1}]')
        a(f's_or_b64 s[{sPOLL}:{sPOLL+1}], s[{sPOLL}:{sPOLL+1}], s[{sPOLL+2}:{sPOLL+3}]')
        a(f's_or_b64 s[{sPOLL+4}:{sPOLL+5}], s[{sPOLL+4}:{sPOLL+5}], s[{sPOLL+6}:{sPOLL+7}]')
        a(f's_or_b64 s[{sPOLL}:{sPOLL+1}], s[{sPOLL}:{sPOLL+1}], s[{sPOLL+4}:{sPOLL+5}]')
        a(f's_cbranch_scc0 {lbl}_ok')
        a(f's_sub_u32 s{sBUD}, s{sBUD}, 1')
        a(f's_cbranch_scc0 {lbl}')
        a(f's_mov_b32 s{sBUD}, 0')
        a.label(lbl + '_ok')
    def check(lbl, regs, reload):
        ck = [f'v_max3_u32 v{vCK}, v{regs[0]}, v{regs[1]}, v{regs[2]}', f'v_max_u32 v{vCK}, v{vCK}, v{regs[3]}', f'v_cmp_eq_u32 vcc, -1, v{vCK}']
        tail.append([lbl + ':', f's_sub_u32 s{sBUD}, s{sBUD}, 1', f's_cbranch_scc1 {lbl}_x'] + reload + ['s_waitcnt vmcnt(0)'] + ck +
                    [f's_cbranch_vccnz {lbl}', f's_branch {lbl}_b', lbl + '_x:', f's_mov_b32 s{sBUD}, 0', f's_branch {lbl}_b'])
        return ck + [('grp', [f's_cbranch_vccnz {lbl}', ('label', lbl + '_b')])]
    if OPT['HOP'] == 2: hop(5, 'L_pgc')
    poll('L_p1', sFL)
    a.stamp()
    sOB = sWB
    a(f's_mov_b32 s{sOB}, s{sT1}')
    def oload(i, so): return f'buffer_load_dwordx4 {vr(O+4*i,4)}, v{vL16}, {srd(sWS)}, s{so} offen offset:{1024*(i&3)} sc1'
    for c in range(4):
        if c: a(f's_add_u32 s{sT1}, s{sT1}, 4096')
        for i in range(4): a.vm(('o', 4*c+i), oload(4*c+i, sT1))
    a.run(late.get(20, []))
    a(f's_lshl_b32 s{sT0}, s{sDT}, 18')
    a(f's_lshr_b32 s{sT1}, s{sBLK}, 1')
    a(f's_lshl_b32 s{sT1}, s{sT1}, 12')
    a(f's_add_u32 s{sT0}, s{sT0}, s{sT1}')
    a(f's_and_b32 s{sT1}, s{sBLK}, 1')
    a(f's_lshl_b32 s{sT1}, s{sT1}, 9')
    a(f's_add_u32 s{sT0}, s{sT0}, s{sT1}')
    a(f's_add_u32 s{sT0}, s{sT0}, {WS_HF:#x}')
    a(f's_lshl_b32 s{sT1}, s{sBLK}, 11')
    a(f's_add_u32 s{sT1}, s{sT1}, {WS_SX:#x}')
    a(f's_lshl_b32 s{sT2}, s{sDT}, 8')
    a(f's_add_u32 s{sT2}, s{sT2}, s{sT1}')
    a(f'v_lshlrev_b32 v{vT0}, 2, v{vL}')
    def ocheck(c):
        return [('wvm', ('o', 4*c+3))] + check(f'L_ro{c}', [O + 16*c + 4*i for i in range(4)], [f's_add_u32 s{sCNT}, s{sOB}, {4096*c}'] + [oload(4*c+i, sCNT) for i in range(4)])
    a.run(events(OPT['EB2']))
    a.run(ocheck(0))
    ec = events(OPT['EC'])
    for i in range(16):
        a.wait(ds=[('w2r', i)])
        mm = [f'v_mfma_f32_16x16x32_bf16 {vr(ACC2+4*t,4)}, {vr(O+4*i,4)}, {vr(wf2(i)+4*t,4)}, {vr(ACC2+4*t,4)}' for t in range(4)]
        f = tr2(i + 5) if i + 5 < 16 else []
        wgt = [1] * 11 + [3] * 5
        lo, hi = (len(ec) * sum(wgt[:i])) // sum(wgt), (len(ec) * sum(wgt[:i + 1])) // sum(wgt)
        f = mix(f, ec[lo:hi])
        if i % 4 == 3 and i < 12: f = f + ocheck(i // 4 + 1)
        a.run(weave(mm, f))
    a.run(late.get(22, []))
    a.stamp()
    S = S2
    for r in range(4):
        a(f'v_add_f32 v{S+r}, v{ACC2+r}, v{ACC2+4+r}')
        a(f'v_mul_f32 v{S+4+r}, v{ACC2+r}, v{ACC2+r}')
    for t in range(1, 4):
        for r in range(4):
            if t > 1: a(f'v_add_f32 v{S+r}, v{S+r}, v{ACC2+4*t+r}')
            a(f'v_fmac_f32 v{S+4+r}, v{ACC2+4*t+r}, v{ACC2+4*t+r}')
    for base in (S, S + 4):
        for i in range(2):
            a(f'v_add_f32_dpp v{base+i}, v{base+i}, v{base+i} row_ror:8 row_mask:0xf bank_mask:0x3')
    for base in (S, S + 4):
        for i in range(2):
            a(f'v_add_f32_dpp v{base+i}, v{base+i+2}, v{base+i+2} row_ror:8 row_mask:0xf bank_mask:0xc')
    for base in (S, S + 4):
        a(f'v_add_f32_dpp v{base}, v{base}, v{base} row_half_mirror row_mask:0xf bank_mask:0x5')
    for base in (S, S + 4):
        a(f'v_add_f32_dpp v{base}, v{base+1}, v{base+1} row_half_mirror row_mask:0xf bank_mask:0xa')
    for qp in ('[1,0,3,2]', '[2,3,0,1]'):
        for base in (S, S + 4):
            a(f'v_add_f32_dpp v{base}, v{base}, v{base} quad_perm:{qp} row_mask:0xf bank_mask:0xf')
    a('s_mov_b32 vcc_lo, 0xaaaaaaaa')
    a('s_mov_b32 vcc_hi, 0xaaaaaaaa')
    a(f'v_cndmask_b32 v{S}, v{S}, v{S+4}, vcc')
    a('s_mov_b32 vcc_lo, 0xcccccccc')
    a('s_mov_b32 vcc_hi, 0xcccccccc')
    a(f'v_cndmask_b32 v{S}, v{S}, v{vT2}, vcc')
    a.vm('sx', f'buffer_store_dword v{S}, v{vT0}, {srd(sWS)}, s{sT2} offen sc1')
    def pack_store(tag, soff):
        for t in range(4):
            for h in range(2):
                a(f'v_cvt_pk_bf16_f32 v{PK2+2*t+h}, v{ACC2+4*t+2*h}, v{ACC2+4*t+2*h+1}')
        for e in range(2):
            for h in range(2):
                a(f'v_permlane16_swap_b32 v{PK2+4*e+h}, v{PK2+4*e+2+h}')
        for e in range(2):
            a.vm(tag, f'buffer_store_dwordx4 {vr(PK2+4*e,4)}, v{vHO}, {srd(sWS)}, s{soff} offen offset:{2048*e} sc1')
    pack_store('hst', sT0)
    PK2 = PK2 + 8
    a(f's_sub_u32 s{sT0}, s{sT0}, {WS_HF - WS_HN:#x}')
    a(f's_lshl_b32 s{sT2}, s{sDT}, 7')
    a(f's_lshr_b32 s{sCNT}, s{sRT}, 3')
    a(f's_add_u32 s{sT2}, s{sT2}, s{sCNT}')
    a(f's_lshl_b32 s{sT2}, s{sT2}, 5')
    a(f's_and_b32 s{sCNT}, s{sRT}, 7')
    a(f's_add_u32 s{sT2}, s{sT2}, s{sCNT}')
    a(f's_lshl_b32 s{sT2}, s{sT2}, 2')
    a(f's_add_u32 s{sT2}, s{sT2}, {WS_F2:#x}')
    a(f's_mov_b32 s{sDT}, s{sD3}')
    a.run(events(OPT['ED']))
    a.stamp()
    R0 = O
    sxl = [f'buffer_load_dwordx4 {vr(R0+4*e,4)}, v{vSO}, {srd(sWS)}, s{sT1} offen offset:{1024*e} sc1' for e in range(2)]
    sxc = [f'v_xor_b32 v{R0+2}, s{sNON}, v{R0+2}', f'v_xor_b32 v{R0+6}, s{sNON}, v{R0+6}', f'v_add_f32 v{R0}, v{R0}, v{R0+4}', f'v_or_b32 v{R0+2}, v{R0+2}, v{R0+6}',
           f'v_add_f32 v{R0+1}, v{R0+1}, v{R0+5}', f'v_cmp_ne_u32 vcc, 0, v{R0+2}']
    if OPT['SXP']:
        NR = OPT['SXP']
        R0 = 176
        a.run(events(OPT['EE']))
        def sxl_(r): return [f'buffer_load_dwordx4 {vr(O+8*r+4*e,4)}, v{vSO}, {srd(sWS)}, s{sT1} offen offset:{1024*e} sc1' for e in range(2)]
        for r in range(NR):
            if r: a(f's_sleep {OPT["SXD"]}')
            for t_ in sxl_(r): a.vm('sxl', t_)
        a.label('L_sx')
        for r in range(NR):
            P = O + 8 * r
            a(f's_waitcnt vmcnt({2 * (NR - 1)})')
            a.run([f'v_xor_b32 v{R0+2}, s{sNON}, v{P+2}', f'v_xor_b32 v{R0+3}, s{sNON}, v{P+6}', f'v_add_f32 v{R0}, v{P}, v{P+4}', f'v_or_b32 v{R0+2}, v{R0+2}, v{R0+3}',
                   f'v_add_f32 v{R0+1}, v{P+1}, v{P+5}', f'v_cmp_ne_u32 vcc, 0, v{R0+2}', 's_cbranch_vccz L_sx_ok'] + sxl_(r))
        a(f's_sub_u32 s{sBUD}, s{sBUD}, 1')
        a('s_cbranch_scc0 L_sx')
        a(f's_mov_b32 s{sBUD}, 0')
        a.vmq = ['sxq'] * (2 * NR - 1) + ['sxp']
    else:
        for t_ in sxl: a.vm('sxl', t_)
        a.run(events(OPT['EE']))
        a.wait(vm=['sxl'])
        a.run(sxc)
        if OPT['SXI']:
            a('s_cbranch_vccz L_sx_ok')
            for t_ in ['L_sx:', f's_sub_u32 s{sBUD}, s{sBUD}, 1', 's_cbranch_scc1 L_sx_x'] + sxl + ['s_waitcnt vmcnt(0)'] + sxc + ['s_cbranch_vccnz L_sx']: a(t_)
            tail.append(['L_sx_x:', f's_mov_b32 s{sBUD}, 0', 's_branch L_sx_ok'])
        else:
            a('s_cbranch_vccnz L_sx')
            tail.append(['L_sx:', f's_sub_u32 s{sBUD}, s{sBUD}, 1', 's_cbranch_scc1 L_sx_x'] + sxl + ['s_waitcnt vmcnt(0)'] + sxc +
                        ['s_cbranch_vccnz L_sx', 's_branch L_sx_ok', 'L_sx_x:', f's_mov_b32 s{sBUD}, 0', 's_branch L_sx_ok'])
    a.label('L_sx_ok')
    a.run(late.get(21, []))
    a.stamp()
    for ror in (4, 8):
        for k in range(2):
            a(f'v_add_f32_dpp v{R0+k}, v{R0+k}, v{R0+k} row_ror:{ror} row_mask:0xf bank_mask:0xf')
    s_, q_, t_ = R0, R0 + 1, R0 + 2
    a(f's_mov_b32 s{sT1}, 0x3727c5ac')
    a(f'v_mul_f32 v{s_}, 0xbb000000, v{s_}')
    a(f'v_mul_f32 v{q_}, 0x3b000000, v{q_}')
    a(f'v_fma_f32 v{q_}, -v{s_}, v{s_}, v{q_}')
    a(f'v_max_f32 v{q_}, 0, v{q_}')
    a(f'v_add_f32 v{t_}, s{sT1}, v{q_}')
    a(f'v_rsq_f32 v{t_}, v{t_}')
    a(f'v_mul_f32 v{q_}, v{q_}, v{t_}')
    a(f'v_fma_f32 v{q_}, v{q_}, v{t_}, s{sT1}')
    a(f'v_rsq_f32 v{q_}, v{q_}')
    a(f'v_mul_f32 v{t_}, v{t_}, v{q_}')
    a(f'v_mul_f32 v{s_}, v{s_}, v{t_}')
    RR, BB = R0 + 4, R0 + 8
    for r in range(4):
        a(f'v_mov_b32_dpp v{RR+r}, v{t_} quad_perm:[{r},{r},{r},{r}] row_mask:0xf bank_mask:0xf')
    for r in range(4):
        a(f'v_mov_b32_dpp v{BB+r}, v{s_} quad_perm:[{r},{r},{r},{r}] row_mask:0xf bank_mask:0xf')
    for t in range(4):
        for h in range(2):
            a(f'v_pk_fma_f32 {vr(ACC2+4*t+2*h,2)}, {vr(ACC2+4*t+2*h,2)}, {vr(RR+2*h,2)}, {vr(BB+2*h,2)}')
    pack_store('hst', sT0)
    a.wait_all(vm=False)
    flag(sT2)
    a.run(late.get(23, []))
    a.wait(vm=['sxq'])
    a.stamp()
    vA0, vA1 = 17, 18
    BI4 = 20
    OWN, OTH, ST, H = 32, 48, 96, 128
    a(f's_cmp_ge_u32 s{sZ}, 7')
    a('s_cbranch_scc1 L_skip3')
    save = (list(a.vmq), list(a.dsq), list(EV), dict(slot_of))
    a.run(events(OPT['EF']))
    a(f's_lshr_b32 s{sT0}, s{sWAVE}, 1')
    a(f's_lshl_b32 s{sT0}, s{sT0}, 11')
    a(f'v_or_b32 v{vA0}, s{sT0}, v{vL16}')
    a(f'v_xor_b32 v{vA1}, 2048, v{vA0}')
    a(f's_lshl_b32 s{sT0}, s{sCT3}, 7')
    a(f's_and_b32 s{sT1}, s{sWAVE}, 1')
    a(f's_lshl_b32 s{sT1}, s{sT1}, 6')
    a(f's_add_u32 s{sT0}, s{sT0}, s{sT1}')
    a(f'v_lshlrev_b32 v{vT0}, 3, v{vG}')
    for i in range(2):
        a.vm('b1', f'buffer_load_dwordx2 {vr(BI4+2*i,2)}, v{vT0}, {srd(sB1)}, s{sT0} offen offset:{32*i}')
    sHA, sHB = sXB, sWB
    a(f's_lshl4_add_u32 s{sT0}, s{sWAVE}, s{sROT3}')
    a(f's_lshl_b32 s{sHA}, s{sT0}, 12')
    a(f's_lshl_b32 s{sT0}, s{sDT}, 18')
    a(f's_add_u32 s{sHA}, s{sHA}, s{sT0}')
    a(f's_add_u32 s{sHA}, s{sHA}, {WS_HN:#x}')
    a(f's_sub_u32 s{sHB}, s{sHA}, 65536')
    vRD = 9
    red_addr = [f's_mul_i32 s{sT0}, s{sWAVE}, 12288']
    for q in range(1, 4):
        red_addr += [f's_xor_b32 s{sT1}, s{sWAVE}, {q}', f's_mul_i32 s{sT1}, s{sT1}, 12288', f'v_add_u32 v{vRD+q-1}, s{sT1}, v{vL16}']
    red_addr += [f'v_add_u32 v{vRD+3}, s{sT0}, v{vL16}']
    a.run(red_addr)
    a(f's_bfe_u32 s{sT0}, s2, {1 | (2 << 16)}')
    a(f's_lshl2_add_u32 s{sT0}, s{sDT}, s{sT0}')
    a(f's_lshl3_add_u32 s{sT0}, s{sT0}, s{sZ}')
    a(f's_lshl2_add_u32 s{sT0}, s{sT0}, s{sWAVE}')
    a(f's_lshl_b32 s{sT0}, s{sT0}, 7')
    a(f's_add_u32 s{sT0}, s{sT0}, {WS_F2:#x}')
    poll('L_p2', sT0)
    a.stamp()
    def hreg(i, t): return H + 16 * (i % 7) + 4 * t
    def aload_txt(K3, i, t, so):
        if K3: return f'buffer_load_dwordx4 {vr(hreg(i,t),4)}, v{vA1 if t >> 1 else vA0}, {srd(sWS)}, s{so} offen offset:{1024*(t&1)} sc1'
        return f'buffer_load_dwordx4 {vr(hreg(i,t),4)}, v{vL16}, {srd(sWS)}, s{so} offen offset:{1024*t} sc1'
    def aaddr(K3, i, so):
        N = 16 if K3 else 14
        rot = sROT3 if K3 else sROT4
        return [f's_cmp_lt_u32 s{rot}, {N - i}', f's_cselect_b32 s{so}, s{sHA}, s{sHB}', f's_add_u32 s{so}, s{so}, {i*4096}']
    def aloads(K3, i):
        return [('grp', (aaddr(K3, i, sCNT) if t == 0 else []) + [('vm', ('a', K3, i), aload_txt(K3, i, t, sCNT))]) for t in range(4)]
    def acheck(K3, i):
        return [('wvm', ('a', K3, i))] + check(f'L_ra{int(K3)}_{i}', [hreg(i, t) for t in range(4)], aaddr(K3, i, sPOLL) + [aload_txt(K3, i, t, sPOLL) for t in range(4)])
    def acc34(K3, tw, ta):
        q, k = ((tw >> 1) + 2 * (ta >> 1), (tw & 1) + 2 * (ta & 1)) if K3 else (tw, ta)
        return q, vr(OWN + 16 * q + 4 * k, 4)
    def mm34(K3, i, quad=None):
        mm = []
        for ta in range(4):
            for tw in range(4):
                q, d = acc34(K3, tw, ta)
                if quad is not None and q != quad: continue
                A, B = (ar(16*i+4*tw, 4), vr(hreg(i, ta), 4)) if K3 else (vr(hreg(i, ta), 4), ar(16*i+4*tw, 4))
                mm.append(f'v_mfma_f32_16x16x32_bf16 {d}, {A}, {B}, {"0" if i == 0 else d}')
        return mm
    def red_w(q): return [('ds', 'rw', f'ds_write_b128 v{vRD+q-1}, {vr(OWN+16*q+4*k,4)} offset:{4096*(q-1)+1024*k}') for k in range(4)]
    def gemm34(K3, N, fills, first):
        NQ, D0 = OPT['NQ'], OPT['D0']
        for i in range(D0): a.run(aloads(K3, i))
        a.run(first)
        rest = [o for i in range(D0, N) for o in aloads(K3, i)]
        nb = N - NQ - 1
        a.run(acheck(K3, 0))
        done = 0
        for i in range(N - NQ):
            tgt = min(len(rest), ((i + 1) * len(rest) + nb - 1) // nb, 4 * (i + 6 - D0 + 1))
            ld = rest[done:tgt]; done = tgt
            f = mix(ld, fills.get(i, []))
            mm = mm34(K3, i)
            a.run(weave(mm[:11], f) + weave(mm[11:], acheck(K3, i + 1)))
        assert done == len(rest)
        prev = None
        for j, q in enumerate((1, 2, 3, 0)):
            if j == 1 and K3 and lowbar:
                a.wait(ds=[('t',) + uid(npre - 1)])
                a('s_barrier')
            f = fills.get(N - NQ + j, [])
            if j == 0:
                for i in range(N - NQ, N):
                    a.run(weave(mm34(K3, i, q), acheck(K3, i + 1) if i + 1 < N else f))
            else:
                mm = []
                for i in range(N - NQ, N): mm += mm34(K3, i, q)
                a.run(mm[:3] + weave(mm[3:], mix(f, red_w(prev))))
            prev = q
    def reduce_rd():
        a.wait_all(vm=False)
        a('s_barrier')
        for k in range(4):
            for q in range(3):
                a.ds(('rr', k), f'ds_read_b128 {vr(OTH+16*q+4*k,4)}, v{vRD+3} offset:{4096*q+1024*k}')
    def reduce_sum(k, bias):
        o = OWN + 4 * k
        ops = [('wds', ('rr', k))]
        for h in range(2):
            ops += [f'v_pk_add_f32 {vr(o+2*h,2)}, {vr(o+2*h,2)}, {bias(k, h)}', f'v_pk_add_f32 {vr(OTH+4*k+2*h,2)}, {vr(OTH+4*k+2*h,2)}, {vr(OTH+16+4*k+2*h,2)}']
        ops += [f'v_pk_add_f32 {vr(o+2*h,2)}, {vr(o+2*h,2)}, {vr(OTH+32+4*k+2*h,2)}' for h in range(2)]
        ops += [f'v_pk_add_f32 {vr(o+2*h,2)}, {vr(o+2*h,2)}, {vr(OTH+4*k+2*h,2)}' for h in range(2)]
        return ops
    first = events(OPT['EG'])
    while any(e[0] == 'M' for e in EV):
        e = EV.pop(0); first += evD(e[1]) if e[0] == 'D' else evM(e[1])
    first += [f's_sub_u32 s{sT0}, s{sPR}, s{sPL}'] + [f'v_subrev_u32 v{vR2L+t}, s{sT0}, v{vR2+t}' for t in range(4)] + [('wds', ('t', True, 15))]
    BF = ST
    fills = {8: [x for i in range(4) for x in (f'v_lshlrev_b32 v{BF+2*i}, 16, v{BI4+i}', f'v_and_b32 v{BF+2*i+1}, 0xffff0000, v{BI4+i}')]}
    nD = EV[0][1] if EV else 22 + NLOW
    npre = nD
    nM = 16
    NB3 = 16 - OPT['NQ']
    def free_slot(n, moved):
        if n < 22: return n % NSL, None
        last = {}
        for k in range(16, n): last[slot_of[uid(k)]] = k
        c = sorted(k for sl, k in last.items() if sl < NSL and k < moved)
        return (slot_of[uid(c[0])], c[0]) if c else (None, None)
    for i in range(1, NB3 + 4):
        f = []
        if i >= OPT['W2B'] and nD < 30:
            sl, pv = free_slot(nD, nM)
            if sl is not None:
                f += ([('wds', ('t',) + uid(pv))] if pv is not None else []) + dma_unit(False, nD - 16, vQ2, sl); nD += 1
        if i >= OPT['M2B'] and nM < npre and nM - 16 < min(i, NB3): f += evM(nM); nM += 1
        fills[i] = fills.get(i, []) + f
        if i == NB3: assert npre <= 22 or nM >= npre
    lowbar = npre > 22
    gemm34(True, 16, fills, first)
    a.stamp()
    reduce_rd()
    a(f's_mul_i32 s{sT0}, s{sDT}, {56*4096}')
    a(f's_lshl_b32 s{sT1}, s{sCT3}, 13')
    a(f's_add_u32 s{sT0}, s{sT0}, s{sT1}')
    a(f's_and_b32 s{sT1}, s{sWAVE}, 1')
    a(f's_lshl_b32 s{sT1}, s{sT1}, 12')
    a(f's_add_u32 s{sT0}, s{sT0}, s{sT1}')
    a(f's_add_u32 s{sT0}, s{sT0}, {WS_UF:#x}')
    f3 = [f's_lshl_b32 s{sT2}, s{sDT}, 7', f's_bfe_u32 s{sT1}, s2, {1 | (2 << 16)}', f's_add_u32 s{sT2}, s{sT2}, s{sT1}', f's_lshl_b32 s{sT2}, s{sT2}, 5', f's_add_u32 s{sT2}, s{sT2}, s{sZ}',
          f's_lshl_b32 s{sT2}, s{sT2}, 2', f's_add_u32 s{sT2}, s{sT2}, {WS_F3:#x}']
    a.run(f3)
    C1 = -2.0 * 0.7978845608028654 * 1.4426950408889634
    GC = ST + 8
    a(f'v_mov_b32 v{GC}, {f2h(C1 * 0.044715)}')
    a(f'v_mov_b32 v{GC+1}, {f2h(C1)}')
    T = H
    PK = H + 16
    ep = []
    for k in range(4): ep += reduce_sum(k, lambda k, h: vr(BF + 4 * (k & 1) + 2 * h, 2))
    nred = len(ep)
    ep += [f'v_pk_mul_f32 {vr(T+2*j,2)}, {vr(OWN+2*j,2)}, {vr(OWN+2*j,2)}' for j in range(8)]
    ep += [f'v_pk_fma_f32 {vr(T+2*j,2)}, {vr(T+2*j,2)}, {vr(GC,2)}, {vr(GC,2)} op_sel:[0,0,1] op_sel_hi:[1,0,1]' for j in range(8)]
    ep += [f'v_pk_mul_f32 {vr(T+2*j,2)}, {vr(T+2*j,2)}, {vr(OWN+2*j,2)}' for j in range(8)]
    ep += [f'v_exp_f32 v{T+j}, v{T+j}' for j in range(16)]
    ep += [f'v_pk_add_f32 {vr(T+2*j,2)}, {vr(T+2*j,2)}, 1.0 op_sel_hi:[1,0]' for j in range(8)]
    ep += [f'v_rcp_f32 v{T+j}, v{T+j}' for j in range(16)]
    ep += [f'v_pk_mul_f32 {vr(OWN+2*j,2)}, {vr(T+2*j,2)}, {vr(OWN+2*j,2)}' for j in range(8)]
    ep += [f'v_cvt_pk_bf16_f32 v{PK+j}, v{OWN+2*j}, v{OWN+2*j+1}' for j in range(8)]
    a.run(ep)
    for b in range(2):
        a.vm('ust', f'buffer_store_dwordx4 {vr(PK+4*b,4)}, v{vA0}, {srd(sWS)}, s{sT0} offen offset:{1024*b} sc1')
    flag(sT2)
    a.stamp()
    while nM < 30:
        while nD < 30:
            sl, pv = free_slot(nD, nM - 1 if nM < nD else nM)
            if sl is None: break
            if pv is not None: a.wait(ds=[('t',) + uid(pv)])
            a.run(dma_unit(False, nD - 16, vQ2, sl)); nD += 1
        a.run(evM(nM)); nM += 1
    cut0 = len(a.items)
    a.label('L_skip3')
    vq, dq = a.vmq, a.dsq
    a.vmq, a.dsq = save[0], save[1]; slot_of.clear(); slot_of.update(save[3])
    a.run(f3)
    flag(sT2, barrier=False)
    a.wait_all(vm=False)
    nD = min([e[1] for e in save[2] if e[0] == 'D' and e[1] >= 16] + [22])
    assert nD <= 22 and all(sl < NSL for (k3, i_), sl in slot_of.items())
    for n in range(nD, 22): a.run(dma_unit(False, n - 16, vQ2, n % NSL))
    for n in range(16, 30):
        a.run(evM(n))
        if n > 16 and n + 5 < 30:
            a.wait(ds=[('t',) + uid(n - 1)])
            a.run(dma_unit(False, n + 5 - 16, vQ2, (n + 5) % NSL))
    a.run(red_addr)
    if OPT['SKT']:
        a(f's_and_b32 s{sT0}, s{sDT}, 3')
        a(f's_lshl2_add_u32 s{sT0}, s{sT0}, s{sWAVE}')
        a(f's_mul_i32 s{sT0}, s{sT0}, {112 * 8}')
        a(f's_and_b32 s{sT1}, s2, 7')
        a(f's_add_u32 s{sT0}, s{sT0}, s{sT1}')
        a(f's_lshl_b32 s{sT0}, s{sT0}, 9')
        a(f'v_lshrrev_b32 v{vT0}, 2, v{vL}')
        a(f'v_and_b32 v{vT1}, 3, v{vL}')
        a(f'v_lshlrev_b32 v{vT1}, 7, v{vT1}')
        a(f'v_lshl_add_u32 v{vT0}, v{vT0}, 12, v{vT1}')
        for n in range(7):
            a(f'buffer_load_dword v{vDUM}, v{vT0}, {srd(sW2)}, s{sT0} offen{nt("NTT")}')
            a(f's_add_u32 s{sT0}, s{sT0}, {16 * 4096}')
    a.wait_all()
    a.vmq = vq; a.dsq = dq
    a('s_branch L_join3')
    skipblk = a.items[cut0:]; del a.items[cut0:]
    a.label('L_join3')
    RES, PMX, vBI = ST, BI4, BI4 + 2
    sRS = sW1A
    a(f's_mul_i32 s{sT0}, s{sWAVE}, 14')
    a(f's_add_u32 s{sT0}, s{sT0}, s{sROT4}')
    a(f's_lshl_b32 s{sHA}, s{sT0}, 12')
    a(f's_mul_i32 s{sT0}, s{sDT}, {56*4096}')
    a(f's_add_u32 s{sHA}, s{sHA}, s{sT0}')
    a(f's_add_u32 s{sHA}, s{sHA}, {WS_UF:#x}')
    a(f's_sub_u32 s{sHB}, s{sHA}, {14*4096}')
    a(f's_lshl_b32 s{sT0}, s{sCT4}, 7')
    a(f's_lshl_b32 s{sT1}, s{sWAVE}, 5')
    a(f's_add_u32 s{sT0}, s{sT0}, s{sT1}')
    a(f'v_lshlrev_b32 v{vT0}, 1, v{vC}')
    a.vm('b2', f'buffer_load_ushort v{vBI}, v{vT0}, {srd(sB2)}, s{sT0} offen')
    a(f'v_lshrrev_b32 v{vT0}, 3, v{vC}')
    a(f'v_and_b32 v{vT1}, 1, v{vC}')
    a(f'v_lshl_add_u32 v{vT0}, v{vT1}, 1, v{vT0}')
    a(f'v_bfe_u32 v{vT1}, v{vC}, 1, 1')
    a(f'v_lshlrev_b32 v{vT1}, 4, v{vT1}')
    a(f'v_mov_b32 v{vT2}, 0x3f80')
    a(f'v_lshlrev_b32 v{vT1}, v{vT1}, v{vT2}')
    a(f'v_cmp_eq_u32 vcc, v{vT0}, v{vG}')
    a(f'v_cndmask_b32 v{vT1}, 0, v{vT1}, vcc')
    a(f'v_and_b32 v{vT0}, 4, v{vC}')
    a(f'v_cmp_eq_u32 vcc, 0, v{vT0}')
    a(f'v_cndmask_b32 v{PMX}, 0, v{vT1}, vcc')
    a(f'v_cndmask_b32_e64 v{PMX+1}, v{vT1}, 0, vcc')
    a(f'v_lshrrev_b32 v{vA0}, 1, v{vG}')
    a(f'v_lshlrev_b32 v{vA0}, 17, v{vA0}')
    a(f'v_lshl_add_u32 v{vA0}, v{vC}, 4, v{vA0}')
    a(f'v_and_b32 v{vT1}, 1, v{vG}')
    a(f'v_lshl_add_u32 v{vA0}, v{vT1}, 3, v{vA0}')
    a(f's_lshl_b32 s{sRS}, s{sDT}, 18')
    a(f's_lshl_b32 s{sT2}, s{sCT4}, 12')
    a(f's_add_u32 s{sRS}, s{sRS}, s{sT2}')
    a(f's_lshl_b32 s{sT2}, s{sWAVE}, 8')
    a(f's_add_u32 s{sRS}, s{sRS}, s{sT2}')
    a(f's_add_u32 s{sRS}, s{sRS}, {WS_HF:#x}')
    a(f'v_lshlrev_b32 v{vA1}, 10, v{vC}')
    a(f'v_lshl_add_u32 v{vA1}, v{vT1}, 5, v{vA1}')
    a(f'v_lshrrev_b32 v{vT1}, 1, v{vG}')
    a(f'v_lshl_add_u32 v{vA1}, v{vT1}, 4, v{vA1}')
    a(f's_lshl_b32 s{sT0}, s{sDT}, 5')
    a(f's_add_u32 s{sT0}, s{sT0}, s{sCT4}')
    a(f's_lshl2_add_u32 s{sT0}, s{sT0}, s{sWAVE}')
    a(f's_lshl_b32 s{sT0}, s{sT0}, 7')
    a(f's_add_u32 s{sT0}, s{sT0}, {WS_F3:#x}')
    poll('L_p3', sT0)
    a.stamp()
    N4 = 14 - OPT['NQ']
    fills = {2: [('vm', 'res', f'buffer_load_dwordx2 {vr(RES+2*t,2)}, v{vA0}, {srd(sWS)}, s{sRS} offen offset:{1024*t} sc1') for t in range(4)],
             N4 + 2: [('wvm', 'res')] + [f'v_mfma_f32_16x16x16_bf16 {acc34(False,0,t)[1]}, {vr(RES+2*t,2)}, {vr(PMX,2)}, {acc34(False,0,t)[1]}' for t in range(4)],
             3: [f'v_lshlrev_b32 v{vBI}, 16, v{vBI}', f'v_mov_b32 v{vBI+1}, v{vBI}', f's_lshl_b32 s{sT0}, s{sCT4}, 16', f's_lshl_b32 s{sT1}, s{sWAVE}, 14',
                 f's_add_u32 s{sT0}, s{sT0}, s{sT1}', f's_lshl_b32 s{sT1}, s{sDT}, 7', f's_add_u32 s{sT0}, s{sT0}, s{sT1}']}
    if OPT['OPF'] >= 0:
        fills[OPT['OPF']] = fills.get(OPT['OPF'], []) + [('vm', 'opf', f'buffer_load_dword v{vDUM}, v{vA1}, {srd(sOUT)}, s{sT0} offen')]
    gemm34(False, 14, fills, [])
    a.stamp()
    reduce_rd()
    for k in range(4): a.run(reduce_sum(k, lambda k, h: vr(vBI, 2)))
    for j in range(8): a(f'v_cvt_pk_bf16_f32 v{PK+j}, v{OWN+2*j}, v{OWN+2*j+1}')
    for e in range(2):
        for h in range(2):
            a(f'v_permlane16_swap_b32 v{PK+4*e+h}, v{PK+4*e+2+h}')
    for e in range(2):
        a(f'buffer_store_dwordx4 {vr(PK+4*e,4)}, v{vA1}, {srd(sOUT)}, s{sT0} offen offset:{64*e}' + ['', ' sc1', ' nt', ' sc0 sc1'][OPT['OSC']])
    a.stamp()
    if PROF:
        a('s_waitcnt lgkmcnt(0)')
        a(f's_cmp_lg_u32 s{sWAVE}, 0')
        a('s_cbranch_scc1 L_end')
        if OPT['AMP'] >= 0:
            a(f's_cmp_lg_u32 s2, {OPT["AWG"]}')
            a('s_cbranch_scc1 L_end')
            a(f's_sub_u32 s{sT2}, s{70+2*OPT["AMP"]}, s70')
            a(f's_lshl_b32 s{sT2}, s{sT2}, 3')
            a(f's_min_u32 s{sT2}, s{sT2}, 100000')
            a(f's_memrealtime s[{sT0}:{sT1}]')
            a('s_waitcnt lgkmcnt(0)')
            a(f's_mov_b32 s{sCNT}, s{sT0}')
            a.label('L_amp')
            a(f's_memrealtime s[{sT0}:{sT1}]')
            a('s_waitcnt lgkmcnt(0)')
            a(f's_sub_u32 s{sT0}, s{sT0}, s{sCNT}')
            a(f's_cmp_lt_u32 s{sT0}, s{sT2}')
            a('s_cbranch_scc1 L_amp')
            a('s_branch L_end')
        a(f's_mul_i32 s{sT0}, s2, {NSTAMP * 8}')
        a(f's_add_u32 s{sT0}, s{sT0}, {128 * MB:#x}')
        a(f's_add_u32 s{sT0}, s{sWS}, s{sT0}')
        a(f's_addc_u32 s{sT1}, s{sWS+1}, 0')
        a(f's_sub_u32 s{sT0}, s{sT0}, {OPT["WSO"] * MB:#x}')
        a(f's_subb_u32 s{sT1}, s{sT1}, 0')
        a(f'v_mov_b32 v{vT0}, 0')
        for i in range(a.nst):
            a(f'v_mov_b32 v{H+2*i}, s{70+2*i}')
            a(f'v_mov_b32 v{H+2*i+1}, s{71+2*i}')
            a(f'global_store_dwordx2 v{vT0}, v[{H+2*i}:{H+2*i+1}], s[{sT0}:{sT1}] offset:{8*i}')
        a(f'v_mov_b32 v{H}, s{sBUD}')
        a(f'v_mov_b32 v{H+1}, 0')
        a(f'global_store_dwordx2 v{vT0}, v[{H}:{H+1}], s[{sT0}:{sT1}] offset:{8*19}')
    a.label('L_end')
    a('s_endpgm')
    a.items += skipblk
    for blk in tail:
        for ln in blk: a(ln)
    a.raw('.p2align 8, 0')
    a.label('L_last')
    a.raw('.fill 64, 4, 0xbf810000')
    return a, name, LDS

HEADER = open('cdna_kernels/' + NAME + '.s.ref').read().split('; Override launch')[0]

def hops(body):
    import subprocess, re, tempfile, os
    lines = body.split('\n')
    d = tempfile.mkdtemp()
    src = '.amdgcn_target "amdgcn-amd-amdhsa--gfx950"\n.text\n' + body + ''.join(f'L_pg{k}:\n' for k in range(1, 9))
    open(d + '/t.s', 'w').write(src)
    subprocess.run(['clang', '-x', 'assembler', '-target', 'amdgcn-amd-amdhsa', '-mcpu=gfx950', '-c', d + '/t.s', '-o', d + '/t.o'], check=True)
    dis = subprocess.run(['llvm-objdump', '-d', d + '/t.o'], capture_output=True, text=True).stdout
    addr = [int(m.group(1), 16) for m in re.finditer(r'// ([0-9A-F]{12}):', dis)]
    out = []; k = 0; pg = 1; shift = 0; done = False
    for ln in lines:
        if ln.startswith('.p2align 8, 0'): done = True
        if ln.startswith('    ') and not done:
            if pg <= 8 and addr[k] + shift >= 4096 * pg:
                tg = ("L_pgb" if pg % 2 == 0 else f"L_pg{pg+1}") if OPT['HOP'] == 1 else ('L_pgb' if pg <= 4 else 'L_pgc')
                out += [f'L_pg{pg}:', f'    s_cbranch_execz {tg}']
                pg += 1; shift += 4
            k += 1
        if ln.startswith('.p2align 8, 0'):
            while pg <= 8:
                out += [f'L_pg{pg}:']; pg += 1
            out += ['    s_branch ' + ('L_pgb' if OPT['HOP'] == 1 else 'L_pgc')]
        out.append(ln)
    return '\n'.join(out)

def main():
    a, name, lds = gen()
    body = a.finalize()
    if OPT['HOP']: body = hops(body)
    out = HEADER + f'; @launch grid=(256,1,1) block=(256,1,1) lds={lds}\n'
    out += '.amdgcn_target "amdgcn-amd-amdhsa--gfx950"\n.text\n' + body
    out += f""".section .rodata,"a"
.p2align 6
.amdhsa_kernel {name}
  .amdhsa_next_free_vgpr 512
  .amdhsa_next_free_sgpr 102
  .amdhsa_accum_offset 256
  .amdhsa_group_segment_fixed_size 0
  .amdhsa_kernarg_size 88
  .amdhsa_user_sgpr_count 2
  .amdhsa_user_sgpr_kernarg_segment_ptr 1
  .amdhsa_system_sgpr_workgroup_id_x 1
.end_amdhsa_kernel
"""
    open(sys.argv[1], 'w').write(out)
    print('nops inserted', a.nops_inserted, 'lines', out.count('\n'), 'stamps', a.nst)

if __name__ == '__main__':
    main()
```

```python
import sys, struct
from asmgen import Asm

NAME = "sequential_preLN__sliding_local_dilated__mixer_token_mlp__prompt"
PROF = '--prof' in sys.argv
OPT = dict(SXR=0, PW1=0, PW2=0, PW3=0, PR=0, SXL=1, SXS=1, HFL=0, SXW=8, SKW=0, CLW=0, OPS=-1, CO=3, CH=5, CU=7, CS=9, CD=0, XP=0, TWW=0, TWX=0, TWP=0, W2L=0, MF=0, SA3=1, SA4=1, SO=1, A3=0, A4=0, ZD3=0, SXP=0, SXD=4, OPF=-1, SXI=1, HOP=0, CLX=2, WSO=0, CLF=0, CW=1, ALN=12, XS=3, TWB=9, PB1=-1, PB2=-1, WOB=10, SKZ=1, NT1=0, NT2=0, NTT=0, NTX=0, NTW=0, NTO=0, EA=5, AEV=11, EB1=7, EB2=9, EC=11, ED=15, EE=15, EF=25, EG=25, NLOW=4, M2B=1, PG=0, TWO=1, NQ=3, D0=4, PRE1=14, PRE2=25, ZS3=0, AMP=-1, AWG=0,
           W2B=11, OSC=1, SKT=0, CLB=3, CLS=2, CLP=2, KPM=4,
           TN1=64, TB1=-1, TS1=2, DX=0, TW3=0, R3M=3, R4M=3, KP3=7, TN2=64, TB2=-1, TS2=1)
for a_ in sys.argv[2:]:
    if '=' in a_:
        k_, v_ = a_.split('='); assert k_ in OPT, k_; OPT[k_] = int(v_)
NSTAMP = 20
def ntu(K3, i): return ' nt' if i < OPT['NT1' if K3 else 'NT2'] else ''
SCF = ['', ' sc1', ' sc0', ' nt', ' sc0 sc1', ' sc1 nt', ' sc0 sc1 nt']
def nt(k): return ' nt' if OPT[k] else ''
MB = 1 << 20
KB = 1024
WS_OF, WS_HN, WS_HF, WS_UF, WS_SX = 0, 2 * MB, 4 * MB, 6 * MB, 8 * MB
WS_F1, WS_DUM = 8 * MB + 256 * KB, 9 * MB
WS_F2, WS_F3 = WS_F1 + 128 * KB, WS_F1 + 256 * KB
NEGBIG = 0xF149F2CA
SPIN = 1 << 17

def vr(b, n=1): return f'v{b}' if n == 1 else f'v[{b}:{b+n-1}]'
def ar(b, n=1): return f'a{b}' if n == 1 else f'a[{b}:{b+n-1}]'
def srd(b): return f's[{b}:{b+3}]'
def f2h(x): return '%#x' % struct.unpack('<I', struct.pack('<f', x))[0]

class Em(Asm):
    def __init__(self):
        super().__init__()
        self.vmq = []; self.dsq = []; self.nst = 0
        self.inj = []; self.every = 1; self.cnt = 0
    def __call__(self, text):
        super().__call__(text)
        if self.inj and text.startswith('v_'):
            self.cnt += 1
            if self.cnt >= self.every:
                self.cnt = 0
                q = self.inj; op = q.pop(0); self.inj = []
                self.run([op]); self.inj = q
    def inject(self, ops, every): self.inj = list(ops); self.every = every; self.cnt = 0
    def flush(self):
        q = self.inj; self.inj = []; self.run(q)
    def vm(self, tag, text):
        self(text); self.vmq.append(tag)
        assert len(self.vmq) <= 63, ('vm overflow', tag)
    def ds(self, tag, text):
        self(text); self.dsq.append(tag)
    @staticmethod
    def _n(q, tags):
        idx = -1
        for k, t in enumerate(q):
            if t in tags: idx = k
        return idx
    def wait(self, vm=(), ds=()):
        s = []
        i = self._n(self.vmq, list(vm))
        if i >= 0:
            s.append(f'vmcnt({len(self.vmq) - 1 - i})'); self.vmq = self.vmq[i + 1:]
        i = self._n(self.dsq, list(ds))
        if i >= 0:
            n = len(self.dsq) - 1 - i
            if n > 15: n = 15
            s.append(f'lgkmcnt({n})'); self.dsq = self.dsq[len(self.dsq) - n:] if n else []
        if s: self('s_waitcnt ' + ' '.join(s))
    def wait_all(self, vm=True, ds=True):
        s = []
        if vm: s.append('vmcnt(0)'); self.vmq = []
        if ds: s.append('lgkmcnt(0)'); self.dsq = []
        self('s_waitcnt ' + ' '.join(s))
    def run(self, ops):
        for op in ops:
            if isinstance(op, str): self(op)
            elif op[0] == 'vm': self.vm(op[1], op[2])
            elif op[0] == 'ds': self.ds(op[1], op[2])
            elif op[0] == 'wvm': self.wait(vm=[op[1]])
            elif op[0] == 'wds': self.wait(ds=[op[1]])
            elif op[0] == 'grp': self.run(op[1])
            elif op[0] == 'label': self.label(op[1])
            else: raise ValueError(op)
    def stamp(self, *grps):
        if not PROF: return
        if not grps: grps = (0,)
        if OPT['PG'] not in grps and -1 not in grps: return
        assert self.nst < 15
        self(f's_memrealtime s[{70 + 2*self.nst}:{71 + 2*self.nst}]')
        self.nst += 1

def flat(ops):
    out = []
    for op in ops:
        if not isinstance(op, str) and op[0] == 'grp': out += flat(op[1])
        else: out.append(op)
    return out

def weave(prim, fill, lead=0):
    out = []
    n, m = len(prim), len(fill)
    k = 0
    for i, p in enumerate(prim):
        out.append(p)
        tgt = min(m, (m * (i + 1) + n - 1) // n + lead) if n else m
        while k < tgt:
            out.append(fill[k]); k += 1
    out += fill[k:]
    return out
def mix(a, b): return weave(a, b) if len(a) >= len(b) else weave(b, a)

sX, sWQ, sWO, sW1, sB1, sW2, sB2, sOUT, sDBG, sWS = 4, 8, 12, 16, 20, 24, 28, 32, 36, 40
sPOLL = 4
sWAVE, sBUD, sT0, sT1, sT2, sCNT = 44, 45, 46, 47, 48, 49
sXB, sWB, sWOB, sLW, sRT, sDT = 50, 51, 52, 53, 54, 55
sCT3, sCT4, sROT3, sROT4 = 56, 57, 58, 59
sW1A, sW1B, sW2A, sW2B, sPR, sLIM1 = 60, 61, 62, 63, 64, 65
sSTP1, sZ = 66, 67
sNON = 68
sD3 = 100
vL, vG, vC, vT0, vT1, vT2, vT3, vL16 = 1, 2, 3, 4, 5, 6, 7, 8
vDUM, vCK = 252, 253

def gen():
    a = Em()
    tail = []
    name = NAME + '_kernel'
    a.raw(f'.globl {name}\n.p2align {OPT["ALN"]}\n.type {name},@function')
    a.label(name)
    a.stamp(-1)
    NW = 6
    L_X = NW * 12288
    L_H = L_X + 64 * KB
    L_NM = L_H + 8 * KB
    L_HP = L_NM + 2560
    L_PR = 64 * KB
    NSL = 6
    LDS = 160 * KB
    assert L_HP + 2048 <= LDS
    for s, off in ((sX, 0), (sWQ, 8), (sWS, 80), (sDBG, 72), (sWO, 16), (sW1, 32), (sB1, 40), (sW2, 48), (sB2, 56), (sOUT, 64)):
        a(f's_load_dwordx2 s[{s}:{s+1}], s[0:1], {off}')
    a('s_cmp_ge_u32 s2, 256')
    a('s_cbranch_scc1 L_end')
    a(f'v_lshrrev_b32 v{vG}, 6, v0')
    a(f'v_and_b32 v{vL}, 63, v0')
    a(f'v_readfirstlane_b32 s{sWAVE}, v{vG}')
    if OPT['CW']:
        a(f's_getpc_b64 s[{sT0}:{sT1}]')
        a(f's_and_b32 s{sT0}, s{sT0}, 0xffffff00')
        a(f's_lshr_b32 s{sT2}, s2, 3')
        a(f's_lshl2_add_u32 s{sT2}, s{sT2}, s{sWAVE}')
        a(f's_lshl_b32 s{sT2}, s{sT2}, 8')
        a(f's_min_u32 s{sT2}, s{sT2}, (L_last-{name})&0xffffff00')
        a(f'v_and_b32 v{vT0}, 1, v0')
        a(f'v_lshl_add_u32 v{vT0}, v{vT0}, 7, s{sT2}')
        a.vm('cw', f'global_load_dword v{vDUM}, v{vT0}, s[{sT0}:{sT1}]')
    a(f'v_lshrrev_b32 v{vG}, 4, v{vL}')
    a(f'v_and_b32 v{vC}, 15, v{vL}')
    a(f'v_lshlrev_b32 v{vL16}, 4, v{vL}')
    for s, n in ((sX, 2048 * 1024), (sWQ, 512 * 3072), (sWS, 16 * MB), (sDBG, 256), (sWO, 512 * 1024), (sW1, 2048 * 3584),
                 (sB1, 3584), (sW2, 1792 * 4096), (sB2, 4096), (sOUT, 2048 * 1024)):
        a(f's_mov_b32 s{s+2}, {n:#x}')
        a(f's_mov_b32 s{s+3}, 0x20000')
    vXD, vWD, vWOD, vXR, vHR, vTR, vSR, vHS = 9, 10, 11, 12, 13, 14, 16, 17
    vXD1, vE0 = 18, 19
    WB, XB, ACC, SB, GS, GO, GH, CST, STC = 20, 44, 104, 164, 180, 184, 188, 192, 212
    QP, KP, VP = 222, 230, 20
    vXR1, vSR1, vRA = 240, 241, 242
    vQ1, vR1 = 244, 248
    SEN = QP
    sXL, sHL, sHB, sKP = sW2A, sW2B, sROT4, sPR
    a(f's_lshr_b32 s{sZ}, s2, 5')
    a(f's_bfe_u32 s{sT0}, s2, {1 | (2 << 16)}')
    a(f's_lshr_b32 s{sT1}, s2, 6')
    a(f's_lshl2_add_u32 s{sT0}, s{sT0}, s{sT1}')
    a(f's_and_b32 s{sT1}, s{sZ}, 1')
    a(f's_lshl4_add_u32 s{sRT}, s{sT1}, s{sT0}')
    a(f's_lshl_b32 s{sT1}, s{sT1}, 10')
    a(f's_bfe_u32 s{sT2}, s2, {3 | (2 << 16)}')
    if OPT['DX'] & 3: a(f's_xor_b32 s{sT2}, s{sT2}, {OPT["DX"] & 3}')
    a(f's_and_b32 s{sDT}, s2, 1')
    if OPT['DX'] & 4: a(f's_xor_b32 s{sDT}, s{sDT}, 1')
    a(f's_lshl2_add_u32 s{sDT}, s{sDT}, s{sT2}')
    a(f's_lshl_b32 s{sT2}, s{sT2}, 1')
    a(f's_xor_b32 s{sKP}, s{sT2}, s{sZ}')
    a(f's_cmp_eq_u32 s{sDT}, 3')
    a(f's_cselect_b32 s{sWB}, {OPT["KP3"]}, {OPT["KPM"]}')
    a(f's_and_b32 s{sKP}, s{sKP}, s{sWB}')
    a(f's_lshl_b32 s{sWB}, s{sKP}, 1')
    a(f's_lshl2_add_u32 s{sXB}, s{sT0}, s{sWAVE}')
    a(f's_lshl_b32 s{sXB}, s{sXB}, 15')
    a(f's_add_u32 s{sXB}, s{sXB}, s{sT1}')
    a(f's_lshl_b32 s{sT2}, s{sKP}, 7')
    a(f's_add_u32 s{sXB}, s{sXB}, s{sT2}')
    a(f's_lshl_b32 s{sT0}, s{sT0}, 17')
    a(f's_sub_u32 s{sT0}, s{sT0}, 16384')
    a(f's_max_i32 s{sT0}, s{sT0}, 0')
    a(f's_add_u32 s{sT0}, s{sT0}, s{sT1}')
    a(f's_xor_b32 s{sT2}, s{sKP}, s{sWAVE}')
    a(f's_lshl_b32 s{sT2}, s{sT2}, 7')
    a(f's_add_u32 s{sHB}, s{sT0}, s{sT2}')
    a(f's_lshl_b32 s{sXL}, s{sWAVE}, 14')
    a(f's_add_u32 s{sXL}, s{sXL}, {L_X}')
    a(f's_lshl_b32 s{sHL}, s{sWAVE}, 10')
    a(f's_add_u32 s{sHL}, s{sHL}, {L_H}')
    a(f's_mul_i32 s{sLW}, s{sWAVE}, 3072')
    a(f'v_lshrrev_b32 v{vT0}, 3, v{vL}')
    a(f'v_and_b32 v{vT1}, 7, v{vL}')
    a(f'v_xor_b32 v{vT1}, v{vT1}, v{vG}')
    a(f'v_lshlrev_b32 v{vT1}, 4, v{vT1}')
    a(f'v_lshl_add_u32 v{vXD}, v{vT0}, 11, v{vT1}')
    a(f'v_xor_b32 v{vXD1}, 64, v{vXD}')
    a(f'v_add_u32 v{vXD1}, {16384 - 1024}, v{vXD1}')
    a(f's_lshl_b32 s{sT0}, s{sDT}, 7')
    a(f's_lshl3_add_u32 s{sT0}, s{sLW}, s{sT0}')
    a(f'v_mov_b32 v{vT1}, 3072')
    a(f'v_mad_u32_u24 v{vWD}, v{vT0}, v{vT1}, s{sT0}')
    a(f'v_lshrrev_b32 v{vT0}, 1, v{vL}')
    a(f'v_and_b32 v{vT1}, 1, v{vG}')
    a(f's_lshl_b32 s3, s{sWAVE}, 1')
    a(f'v_xor_b32 v{vT0}, v{vT0}, v{vT1}')
    a(f'v_xor_b32 v{vT0}, s3, v{vT0}')
    a(f'v_and_b32 v{vT0}, 3, v{vT0}')
    a(f'v_lshl_add_u32 v{vWD}, v{vT0}, 5, v{vWD}')
    a(f'v_and_b32 v{vT0}, 1, v{vL}')
    a(f'v_lshl_add_u32 v{vWD}, v{vT0}, 4, v{vWD}')
    vTWW, vTWX = 254, 255
    if OPT['TWW'] or OPT['TWX']:
        a(f's_lshr_b32 s{sT0}, s2, 3')
        a(f's_lshl2_add_u32 s{sT0}, s{sT0}, s{sWAVE}')
    if OPT['TWW']:
        a(f's_mul_i32 s{sT1}, s{sT0}, {4 * 3072}')
        a(f's_and_b32 s{sT2}, s2, 1')
        a(f's_lshl_b32 s{sT2}, s{sT2}, 9')
        a(f's_add_u32 s{sT1}, s{sT1}, s{sT2}')
        a(f'v_mul_u32_u24 v{vTWW}, 3072, v{vG}')
        a(f'v_lshrrev_b32 v{vT0}, 2, v{vC}')
        a(f'v_min_u32 v{vT0}, 2, v{vT0}')
        a(f'v_lshl_add_u32 v{vTWW}, v{vT0}, 10, v{vTWW}')
        a(f'v_and_b32 v{vT0}, 3, v{vC}')
        a(f'v_lshlrev_b32 v{vT0}, 7, v{vT0}')
        a(f'v_add3_u32 v{vTWW}, v{vTWW}, v{vT0}, s{sT1}')
    if OPT['TWX']:
        a(f's_bfe_u32 s{sT1}, s2, {1 | (2 << 16)}')
        a(f's_lshl_b32 s{sT1}, s{sT1}, 7')
        a(f's_add_u32 s{sT1}, s{sT1}, s{sT0}')
        a(f's_lshl_b32 s{sT1}, s{sT1}, 12')
        a(f'v_and_b32 v{vT0}, 31, v{vL}')
        a(f'v_lshl_add_u32 v{vTWX}, v{vT0}, 7, s{sT1}')
    def hop(first, back):
        a('s_mov_b64 exec, 0')
        for w in range(1, 4):
            a(f's_cmp_eq_u32 s{sWAVE}, {w}')
            a(f's_cbranch_scc1 L_pg{first+w}')
        a(f's_branch L_pg{first}')
        a.label(back)
        a('s_mov_b64 exec, -1')
    if OPT['HOP'] == 2: hop(1, 'L_pgb')
    a('s_waitcnt lgkmcnt(0)')
    a.stamp(1)
    wso = [f's_add_u32 s{sWS}, s{sWS}, {OPT["WSO"] * MB:#x}', f's_addc_u32 s{sWS+1}, s{sWS+1}, 0'] if OPT['WSO'] else []
    def xloads(p):
        return [('grp', [f's_add_u32 m0, s{sXL}, {p * 2048}', f's_xor_b32 s3, s{sXB}, {p * 128}',
                         ('vm', ('x', p), f'buffer_load_dwordx4 v{vXD}, {srd(sX)}, s3 offen{nt("NTX")} lds')]),
                ('vm', ('x', p), f'buffer_load_dwordx4 v{vXD1}, {srd(sX)}, s3 offen offset:1024{nt("NTX")} lds')]
    def hloads(j):
        return [('grp', [f's_add_u32 m0, s{sHL}, {j * 4096}', f's_xor_b32 s3, s{sHB}, {j * 512}', 's_mov_b32 exec_lo, 0xffffff00',
                         ('vm', ('h', j), f'buffer_load_dwordx4 v{vXD}, {srd(sX)}, s3 offen{nt("NTX")} lds'), 's_mov_b32 exec_lo, -1'])]
    def wloads(k):
        slot = k % NW
        if k < 16:
            return [('grp', [f's_add_u32 m0, s{sLW}, {slot * 12288}', f's_xor_b32 s3, s{sWB}, {k}', f's_mul_i32 s3, s3, {32 * 3072}',
                             ('vm', ('w', k), f'buffer_load_dwordx4 v{vWD}, {srd(sWQ)}, s3 offen{nt("NTW")} lds')])] + \
                   [('vm', ('w', k), f'buffer_load_dwordx4 v{vWD}, {srd(sWQ)}, s3 offen offset:{1024*R}{nt("NTW")} lds') for R in (1, 2)]
        ops = []
        for j in range(3 if slot < 5 else 1):
            i = 3 * slot + j
            ops.append(('grp', [f's_add_u32 m0, s{sLW}, {i * 4096}', f's_add_u32 s3, s{sWOB}, {i * 32768}',
                                ('vm', 'wo', f'buffer_load_dwordx4 v{vWOD}, {srd(sWO)}, s3 offen{nt("NTO")} lds')]))
        return ops
    seq = [xloads(0), hloads(0), wloads(0), wloads(1), xloads(1), wloads(2), wloads(3), xloads(2), wloads(4), wloads(5)]
    def take(n):
        while seq and len(a.vmq) - OPT["CW"] + len(seq[0]) <= n: a.run(seq.pop(0))
    def tw3():
        a(f's_lshr_b32 s{sT0}, s2, 3')
        a(f's_lshl2_add_u32 s{sT0}, s{sT0}, s{sWAVE}')
        a(f's_mul_i32 s{sT0}, s{sT0}, 12')
        a(f's_lshr_b32 s{sT1}, s{sDT}, 2')
        a(f's_lshl_b32 s{sT1}, s{sT1}, 11')
        a(f's_add_u32 s{sT0}, s{sT0}, s{sT1}')
        a(f'v_min_u32 v{vT3}, 11, v{vC}')
        a(f'v_add_lshl_u32 v{vT3}, v{vT3}, s{sT0}, 10')
        a.vm('tw', f'buffer_load_dword v{vDUM}, v{vT3}, {srd(sWQ)}, 0 offen offset:384')
    ntw = 0
    if OPT['TWW'] or OPT['TWX']:
        take(OPT['TWP'])
        if OPT['TWX'] == 2: a.vm('tw', f'buffer_load_dword v{vDUM}, v{vTWX}, {srd(sX)}, 0 offen')
        if OPT['TWW']: a.vm('tw', f'buffer_load_dword v{vDUM}, v{vTWW}, {srd(sWQ)}, 0 offen')
        if OPT['TWX'] == 1: a.vm('tw', f'buffer_load_dword v{vDUM}, v{vTWX}, {srd(sX)}, 0 offen')
    if OPT['TW3'] == 1: tw3()
    if OPT['TW3'] == 2: take(6); tw3()
    take(OPT['PRE1'])
    if OPT['TW3'] == 3: tw3()
    a.run(wso)
    a.stamp(1)
    a(f's_or_b32 s{sT0}, s2, s{sWAVE}')
    a(f's_cmp_lg_u32 s{sT0}, 0')
    a('s_cbranch_scc1 L_nononce')
    a(f's_memrealtime s[{sT0}:{sT1}]')
    a(f'v_mov_b32 v{vT1}, 0')
    a('s_waitcnt lgkmcnt(0)')
    a(f's_or_b32 s{sT0}, s{sT0}, 1')
    a(f'v_mov_b32 v{vT0}, s{sT0}')
    a('s_mov_b64 exec, 1')
    a(f'buffer_store_dword v{vT0}, v{vT1}, {srd(sDBG)}, 0 offen sc1')
    a('s_mov_b64 exec, -1')
    a.label('L_nononce')
    BC, BP, BP0, MC, MP, ONE = CST, CST + 4, CST + 8, CST + 12, CST + 14, CST + 16
    for k in range(4): a(f'v_mov_b32 v{ONE+k}, 0x3f803f80')
    a(f'v_lshrrev_b32 v{vT0}, 3, v{vL}')
    a(f'v_and_b32 v{vT1}, 7, v{vL}')
    a(f'v_lshlrev_b32 v{vT1}, 4, v{vT1}')
    a(f'v_lshl_add_u32 v{vT0}, v{vT0}, 10, v{vT1}')
    a(f'v_add_u32 v{vT0}, {L_H}, v{vT0}')
    a(f'ds_write_b128 v{vT0}, {vr(ONE,4)}')
    a(f'v_lshrrev_b32 v{vT0}, 1, v{vC}')
    a(f'v_xor_b32 v{vT0}, v{vT0}, v{vG}')
    a(f'v_lshlrev_b32 v{vT0}, 4, v{vT0}')
    a(f'v_lshl_add_u32 v{vT0}, v{vC}, 7, v{vT0}')
    a(f'v_add_u32 v{vSR}, s{sXL}, v{vT0}')
    a(f'v_add_u32 v{vXR}, {L_X}, v{vT0}')
    a(f'v_xor_b32 v{vSR1}, 64, v{vSR}')
    a(f'v_xor_b32 v{vXR1}, 64, v{vXR}')
    a(f'v_and_b32 v{vT0}, {0x3bf}, v{vT0}')
    a(f'v_add_u32 v{vHR}, {L_H}, v{vT0}')
    a(f'v_add_u32 v{vHS}, s{sHL}, v{vT0}')
    a(f's_xor_b32 s{sT0}, s{sDT}, s{sKP}')
    a(f's_lshl_b32 s{sT0}, s{sT0}, 11')
    a(f'v_add_u32 v{vRA}, s{sT0}, v{vSR}')
    a(f'v_add_u32 v{vRA+1}, s{sT0}, v{vSR1}')
    a(f'v_mul_u32_u24 v{vTR}, 3072, v{vG}')
    a(f'v_bfe_u32 v{vT0}, v{vL}, 2, 2')
    a(f'v_lshl_add_u32 v{vTR}, v{vT0}, 7, v{vTR}')
    a(f'v_bfe_u32 v{vT0}, v{vL}, 3, 2')
    a(f'v_xor_b32 v{vT0}, s{sWAVE}, v{vT0}')
    a(f'v_lshl_add_u32 v{vTR}, v{vT0}, 5, v{vTR}')
    a(f'v_and_b32 v{vT0}, 3, v{vL}')
    a(f'v_lshl_add_u32 v{vTR}, v{vT0}, 3, v{vTR}')
    a(f'v_add_u32 v{vTR+1}, {3 * 12288}, v{vTR}')
    for k in range(4): a(f'v_mov_b32 v{SEN+k}, -1')
    a(f's_mov_b32 s{sBUD}, {SPIN}')
    if PROF: a('s_mov_b32 s101, 0')
    a(f's_bfe_u32 s{sD3}, s2, {3 | (3 << 16)}')
    a(f's_and_b32 s{sT1}, s2, 1')
    a(f's_lshr_b32 s{sT2}, s2, 6')
    a(f's_lshr_b32 s{sT0}, s{sD3}, 2')
    a(f's_cmp_eq_u32 s{sT0}, s{sT1}')
    a(f's_cselect_b32 s{sT0}, 3, 7')
    a(f's_lshl2_add_u32 s{sZ}, s{sT1}, s{sT2}')
    a(f's_cmp_lt_u32 s{sT2}, 3')
    a(f's_cselect_b32 s{sZ}, s{sZ}, s{sT0}')
    a(f's_bfe_u32 s{sT0}, s2, {1 | (2 << 16)}')
    a(f's_mul_i32 s{sCT3}, s{sT0}, 7')
    a(f's_cmp_lt_u32 s{sZ}, 7')
    a(f's_cselect_b32 s{sT0}, s{sZ}, 3')
    a(f's_add_u32 s{sCT3}, s{sCT3}, s{sT0}')
    a(f's_add_u32 s{sT0}, s{sT2}, 1')
    a(f's_and_b32 s{sT0}, s{sT0}, 3')
    a(f's_and_b32 s{sCT4}, s2, 7')
    a(f's_lshl2_add_u32 s{sCT4}, s{sCT4}, s{sT0}')
    if OPT['R3M'] == 0: a(f's_mov_b32 s{sROT3}, 0')
    elif OPT['R3M'] == 1:
        a(f's_and_b32 s{sROT3}, s{sT2}, 1')
        a(f's_lshl_b32 s{sROT3}, s{sROT3}, 3')
    elif OPT['R3M'] == 2: a(f's_lshl_b32 s{sROT3}, s{sT2}, 2')
    elif OPT['R3M'] == 3:
        a(f's_lshl_b32 s{sROT3}, s{sD3}, 1')
        if OPT['A3']:
            a(f's_mul_i32 s{sT0}, s{sT2}, {OPT["A3"]}')
            a(f's_add_u32 s{sROT3}, s{sROT3}, s{sT0}')
            a(f's_and_b32 s{sROT3}, s{sROT3}, 15')
    elif OPT['R3M'] == 4:
        a(f's_and_b32 s{sROT3}, s{sD3}, 3')
        a(f's_lshl_b32 s{sROT3}, s{sROT3}, 2')
    else:
        a(f's_and_b32 s{sROT3}, s{sD3}, 1')
        a(f's_lshl_b32 s{sROT3}, s{sROT3}, 3')
    a(f's_mov_b32 s{sSTP1}, {64 * 3584}')
    a(f's_sub_u32 s{sLIM1}, 16, s{sROT3}')
    a(f's_and_b32 s{sT0}, s{sWAVE}, 1')
    a(f's_lshl_b32 s{sT0}, s{sT0}, 4')
    a(f's_add_u32 s{sT0}, s{sT0}, s{sROT3}')
    a(f's_lshl_b32 s{sT0}, s{sT0}, 6')
    a(f's_lshr_b32 s{sT1}, s{sWAVE}, 1')
    a(f's_add_u32 s{sT0}, s{sT0}, s{sT1}')
    a(f's_mul_i32 s{sW1A}, s{sT0}, 3584')
    a(f's_lshl_b32 s{sT0}, s{sCT3}, 7')
    a(f's_add_u32 s{sW1A}, s{sW1A}, s{sT0}')
    a(f's_sub_u32 s{sW1B}, s{sW1A}, {16 * 64 * 3584}')
    a(f's_mul_i32 s{sPR}, s{sWAVE}, {NSL * 4096}')
    a(f's_add_u32 s{sPR}, s{sPR}, {L_PR}')
    a(f's_lshl_b32 s{sWOB}, s{sWAVE}, 13')
    a(f's_lshl_b32 s{sT0}, s{sDT}, 7')
    a(f's_add_u32 s{sWOB}, s{sWOB}, s{sT0}')
    if OPT['CLX'] & 4:
        a(f's_lshl_b32 s{sT0}, s{sDT}, 5')
        a(f's_add_u32 s{sT0}, s{sT0}, s{sRT}')
        a(f's_bfe_u32 s{sT1}, s2, {1 | (2 << 16)}')
        a(f's_lshl2_add_u32 s{sT1}, s{sD3}, s{sT1}')
        a(f's_lshl3_add_u32 s{sT1}, s{sT1}, s{sZ}')
        a(f's_lshl_b32 s{sT2}, s{sD3}, 5')
        a(f's_add_u32 s{sT2}, s{sT2}, s{sCT4}')
        for r_, b_ in ((sT0, WS_F1), (sT1, WS_F2), (sT2, WS_F3)):
            a(f's_lshl2_add_u32 s{r_}, s{r_}, s{sWAVE}')
            a(f's_lshl_b32 s{r_}, s{r_}, 7')
            a(f's_add_u32 s{r_}, s{r_}, {b_:#x}')
            a(f's_load_dword s{sNON}, s[{sWS}:{sWS+1}], s{r_} glc')
    def w2_scalars(A, B, rot):
        r = [[f's_mov_b32 s{rot}, 0'], [f's_bfe_u32 s{sT1}, s2, {6 | (1 << 16)}', f's_mul_i32 s{rot}, s{sT1}, 7'],
             [f's_lshr_b32 s{sT1}, s2, 6', f's_mul_i32 s{rot}, s{sT1}, 7', f's_add_u32 s{rot}, s{rot}, 1', f's_lshr_b32 s{rot}, s{rot}, 1'],
             [f's_mul_i32 s{rot}, s{sD3}, 7', f's_lshr_b32 s{rot}, s{rot}, 2'] +
             ([f's_lshr_b32 s{sT1}, s2, 6', f's_mul_i32 s{sT1}, s{sT1}, {OPT["A4"]}', f's_lshr_b32 s{sT1}, s{sT1}, 1', f's_add_u32 s{rot}, s{rot}, s{sT1}',
               f's_sub_u32 s{sT1}, s{rot}, 14', f's_cselect_b32 s{rot}, s{rot}, s{sT1}'] if OPT['A4'] else []),
             [f's_and_b32 s{sT1}, s{sD3}, 3', f's_mul_i32 s{rot}, s{sT1}, 7', f's_add_u32 s{rot}, s{rot}, 1', f's_lshr_b32 s{rot}, s{rot}, 1'],
             [f's_and_b32 s{sT1}, s{sD3}, 1', f's_mul_i32 s{rot}, s{sT1}, 7']][OPT['R4M']]
        return r + [
                f's_mul_i32 s{sT0}, s{sWAVE}, 14', f's_add_u32 s{sT0}, s{sT0}, s{rot}', f's_lshl_b32 s{A}, s{sT0}, 17',
                f's_lshl_b32 s{sT0}, s{sCT4}, 7', f's_add_u32 s{A}, s{A}, s{sT0}', f's_sub_u32 s{B}, s{A}, {14 << 17}']
    a(f'v_mov_b32 v{vT1}, {NEGBIG:#x}')
    a(f's_and_b32 s{sT0}, s{sRT}, 15')
    a(f's_cmp_eq_u32 s{sT0}, 0')
    a(f's_cselect_b32 s{sT0}, {NEGBIG:#x}, 0')
    for r in range(4):
        a(f'v_lshl_add_u32 v{vT0}, v{vG}, 2, {r}')
        a(f'v_sub_u32 v{vT0}, v{vC}, v{vT0}')
        a(f'v_cmp_gt_u32 vcc, 8, v{vT0}')
        a(f'v_cndmask_b32_e64 v{BC+r}, v{vT1}, 0, vcc')
        a(f'v_cmp_gt_i32 vcc, -8, v{vT0}')
        a(f'v_cndmask_b32_e64 v{BP+r}, v{vT1}, 0, vcc')
        a(f'v_min_f32 v{BP0+r}, s{sT0}, v{BP+r}')
        a(f'v_cmp_le_i32 vcc, 0, v{vT0}')
        if r % 2 == 0:
            a(f'v_cndmask_b32_e64 v{MC+r//2}, 0, -1, vcc')
            a(f'v_and_b32 v{MC+r//2}, 0xffff, v{MC+r//2}')
        else:
            a(f'v_cndmask_b32_e64 v{vT0}, 0, -1, vcc')
            a(f'v_and_b32 v{vT0}, 0xffff0000, v{vT0}')
            a(f'v_or_b32 v{MC+r//2}, v{MC+r//2}, v{vT0}')
            a(f'v_not_b32 v{MP+r//2}, v{MC+r//2}')
    a(f'v_lshrrev_b32 v{vT0}, 1, v{vL}')
    a(f'v_xor_b32 v{vT0}, v{vT0}, v{vG}')
    a(f'v_and_b32 v{vT0}, 3, v{vT0}')
    a(f'v_lshrrev_b32 v{vT1}, 3, v{vL}')
    a(f'v_lshlrev_b32 v{vWOD}, 10, v{vT1}')
    a(f'v_lshl_add_u32 v{vWOD}, v{vT0}, 5, v{vWOD}')
    a(f'v_and_b32 v{vT0}, 1, v{vL}')
    a(f'v_lshl_add_u32 v{vWOD}, v{vT0}, 4, v{vWOD}')
    def mk_q(base, K3):
        if K3:
            ops = [f'v_lshrrev_b32 v{base+1}, 3, v{vL}', f'v_mul_u32_u24 v{base}, 7168, v{base+1}']
            st = 8 * 7168 - 1024
        else:
            ops = [f'v_bfe_u32 v{base+1}, v{vL}, 3, 2', f'v_lshrrev_b32 v{base}, 5, v{vL}', f'v_lshl_add_u32 v{base}, v{base}, 4, v{base+1}',
                   f'v_lshlrev_b32 v{base}, 12, v{base}']
            st = 4 * 4096 - 1024
        ops += [f'v_lshrrev_b32 v{base+1}, 1, v{vL}', f'v_and_b32 v{base+2}, 1, v{vG}', f'v_xor_b32 v{base+1}, v{base+1}, v{base+2}',
                f'v_and_b32 v{base+1}, 3, v{base+1}', f'v_lshl_add_u32 v{base}, v{base+1}, 5, v{base}',
                f'v_and_b32 v{base+1}, 1, v{vL}', f'v_lshl_add_u32 v{base}, v{base+1}, 4, v{base}',
                f'v_xor_b32 v{base+1}, 64, v{base}', f'v_add_u32 v{base+2}, {2*st}, v{base}', f'v_add_u32 v{base+3}, {3*st}, v{base+1}', f'v_add_u32 v{base+1}, {st}, v{base+1}']
        return ops
    def mk_r(base, K3):
        ops = [f'v_bfe_u32 v{base+1}, v{vL}, 2, 2', f'v_lshl_add_u32 v{base+1}, v{vG}, 3, v{base+1}']
        ops += [f's_and_b32 s3, s{sWAVE}, 1', 's_lshl_b32 s3, s3, 1'] if K3 else [f's_mov_b32 s3, s{sWAVE}']
        ops += [f'v_lshlrev_b32 v{base}, 7, v{base+1}', f'v_bfe_u32 v{base+1}, v{vL}, 3, 2', f'v_xor_b32 v{base+1}, s3, v{base+1}',
                f'v_lshl_add_u32 v{base}, v{base+1}, 5, v{base}', f'v_and_b32 v{base+1}, 3, v{vL}', f'v_lshl_add_u32 v{base}, v{base+1}, 3, v{base}',
                f'v_add_u32 v{base}, s{sPR}, v{base}']
        ops += [f'v_xor_b32 v{base+t}, {32*t}, v{base}' for t in range(1, 4)]
        return ops
    slot_of = {}
    vQ2, vR2, vR2L = 240, 28, 244
    sPL = sWOB
    def dma_unit(K3, i, q, slot):
        slot_of[(K3, i)] = slot
        tag = ('u', K3, i)
        m0 = f's_add_u32 m0, s{sPR}, {slot*4096}' if slot < NSL else f's_add_u32 m0, s{sPL}, {(slot-NSL)*4096}'
        if K3:
            S = sW1
            pre = [f's_mul_i32 s3, s{sSTP1}, {i}', f's_cmp_gt_u32 s{sLIM1}, {i}', f's_cselect_b32 m0, s{sW1A}, s{sW1B}', 's_add_u32 s3, s3, m0', m0]
        else:
            S = sW2
            pre = [f's_cmp_lt_u32 s{sROT4}, {14 - i}', f's_cselect_b32 s3, s{sW2A}, s{sW2B}', m0, f's_add_u32 s3, s3, {i << 17}']
        ops = [('grp', pre + [('vm', tag, f'buffer_load_dwordx4 v{q}, {srd(S)}, s3 offen{ntu(K3, i)} lds')])]
        for k in range(1, 4):
            ops.append(('vm', tag, f'buffer_load_dwordx4 v{q+k}, {srd(S)}, s3 offen offset:{1024*k}{ntu(K3, i)} lds'))
        return ops
    def tr_unit(K3, i):
        slot = slot_of[(K3, i)]
        r = vR1 if K3 else vR2
        if slot >= NSL: r = vR2L; slot -= NSL; assert not K3
        return [('ds', ('t', K3, i), f'ds_read_b64_tr_b16 {ar(16*i+4*t+2*h, 2)}, v{r+t} offset:{slot*4096 + 512*h}') for t in range(4) for h in range(2)]
    NLOW = OPT['NLOW']
    def uid(n): return (True, n) if n < 16 else (False, n - 16)
    nofetch = [('grp', [f's_cmp_lt_u32 s{sZ}, 7', f's_cselect_b32 s{sW1+2}, s{sW1+2}, 0'])]
    def evD(n):
        K3, i = uid(n)
        if n < 22: slot, prev = n % NSL, n - NSL
        elif n < 22 + NLOW: slot, prev = NSL + n - 22, -1
        else: raise ValueError
        w = [('wds', ('t',) + uid(prev))] if prev >= 0 else []
        return w + dma_unit(K3, i, vQ1 if K3 else vQ2, slot) + (nofetch if n == OPT['NT1'] - 1 else [])
    def evM(n): return [('wvm', ('u',) + uid(n))] + tr_unit(*uid(n))
    EV = [('D', n) for n in range(6)] + [('M', 0)]
    if OPT['W2L']:
        for n in range(1, 16): EV += [('M', n)] + ([('D', n + 5)] if n + 5 < 16 else [])
        EV += [('D', n) for n in range(16, 22 + NLOW)]
    else:
        for n in range(1, 16): EV += [('M', n), ('D', n + 5)]
        EV += [('D', n) for n in range(21, 22 + NLOW)]
    EV0 = list(EV)
    def events(upto):
        ops = []
        while EV and any(e[0] == 'D' and e[1] <= upto for e in EV):
            e = EV.pop(0)
            ops += evD(e[1]) if e[0] == 'D' else evM(e[1])
        return ops
    a.run(mk_q(vQ1, True))
    a.run(mk_r(vR1, True))
    if OPT['SKW']:
        a(f's_cmp_lt_u32 s{sZ}, 7')
        a('s_cbranch_scc0 L_skw')
        a.label('L_skwb')
        tail.append(['L_skw:', f's_mov_b64 s[{sW1}:{sW1+1}], s[{sW2}:{sW2+1}]', f's_mov_b32 s{sW1+2}, {1792 * 4096:#x}',
                     f'v_lshrrev_b32 v{vQ1}, 5, v{vL}', f'v_mul_u32_u24 v{vQ1}, {4096 - 512}, v{vQ1}', f'v_add_u32 v{vQ1}, v{vQ1}, v{vL16}'] +
                    [f'v_add_u32 v{vQ1+k}, {k * (8192 - 1024)}, v{vQ1}' for k in range(1, 4)] +
                    [f's_mov_b32 s{sSTP1}, 32768', f's_mov_b32 s{sLIM1}, 14', f's_and_b32 s{sT0}, s{sD3}, 3', f's_lshl2_add_u32 s{sT0}, s{sT0}, s{sWAVE}',
                     f's_mul_i32 s{sW1A}, s{sT0}, {112 * 4096}', f's_and_b32 s{sT0}, s2, 7', f's_lshl_b32 s{sT0}, s{sT0}, 9', f's_add_u32 s{sW1A}, s{sW1A}, s{sT0}',
                     f's_sub_u32 s{sW1B}, s{sW1A}, {14 * 32768}', 's_branch L_skwb'])
    vmx0 = {}
    clr = [[f's_lshl2_add_u32 s3, s{sRT}, s{sWAVE}', 's_lshl_b32 s3, s3, 3', f's_add_u32 s3, s3, s{sDT}', 's_lshl_b32 s3, s3, 11'],
           [f's_lshl_b32 s3, s{sDT}, 5', f's_add_u32 s3, s3, s{sRT}', f's_lshl2_add_u32 s3, s3, s{sWAVE}', 's_lshl_b32 s3, s3, 11', f's_add_u32 s3, s3, {WS_HN:#x}'],
           [f's_mul_i32 s3, s{sD3}, 28', f's_add_u32 s3, s3, s{sCT3}', f's_lshl2_add_u32 s3, s3, s{sWAVE}', 's_lshl_b32 s3, s3, 11', f's_add_u32 s3, s3, {WS_UF:#x}',
            f's_cmp_lt_u32 s{sZ}, 7', f's_cselect_b32 s{sCNT}, 0, {WS_DUM - WS_UF:#x}', f's_add_u32 s3, s3, s{sCNT}']]
    if OPT['CLB'] >= 0:
        for k, nm in enumerate(('CO', 'CH', 'CU')):
            if OPT[nm] > 16: continue
            for h in range(2):
                vmx0.setdefault(min(16, OPT[nm] + h * OPT['CD']), []).append(('grp', clr[k] + [('vm', 'clr' if k else 'clro', (f'buffer_store_dword v{SEN}' if OPT['CLW'] else f'buffer_store_dwordx4 {vr(SEN,4)}') + f', v{vL16}, {srd(sWS)}, s3 offen offset:{1024*h} ' + ['sc1', 'sc1 nt', 'sc0 sc1', 'sc0 sc1 nt', '', 'nt'][OPT['CLF']])]))
        if OPT['CLX'] & 2:
            vmx0.setdefault(OPT['CS'], []).append(('grp', clr[0][:3] + ['s_lshl_b32 s3, s3, 8', f's_add_u32 s3, s3, {WS_SX:#x}', f'v_lshlrev_b32 v{vT3}, 2, v{vL}',
                                                        ('vm', 'clr', f'buffer_store_dword v{SEN}, v{vT3}, {srd(sWS)}, s3 offen sc1')]))
    a.stamp(1)
    n0 = len(a.vmq)
    a.run(vmx0.get(-2, []))
    take(OPT['PRE2'] + len(a.vmq) - n0)
    a.run(vmx0.get(-1, []))
    def xb(i, s): return XB + 20 * (i % 3) + 4 * s
    def wb(i, R): return WB + 12 * (i % 2) + 4 * R
    def acc(R, s): return ACC + 20 * R + 4 * s
    def xreads(i):
        return [('ds', ('xr', i), f'ds_read_b128 {vr(xb(i,s),4)}, v{vXR1 if i & 1 else vXR} offset:{2048*(i>>1) + 16384*(s-1)}') for s in range(1, 3 if OPT['XP'] & 8 else 5)] + \
               ([] if OPT['XP'] & 4 else [('ds', ('xr', i), f'ds_read_b128 {vr(xb(i,0),4)}, v{vHR} offset:{1024*(i>>1) + 64*(i&1)}')])
    def trreads(i):
        slot = i % NW
        return [('ds', ('wr', i), f'ds_read_b64_tr_b16 {vr(wb(i,R)+2*h,2)}, v{vTR + slot//3} offset:{(slot%3)*12288 + R*1024 + 512*h}') for R in range(3) for h in range(2)]
    def mfmas(i):
        ops = []
        for R in range(3):
            for s in (1, 2, 3, 4, 0):
                x = vr(xb(i, s), 4); d = vr(acc(R, s), 4); w = vr(wb(i, R), 4)
                cin = '0' if i == 0 else d
                ops.append(f'v_mfma_f32_16x16x32_bf16 {d}, {w}, {x}, {cin}' if R < 2 else f'v_mfma_f32_16x16x32_bf16 {d}, {x}, {w}, {cin}')
        return ops
    jobs = {1: ('s', 0), 2: ('s', 1), 4: ('h', 0), 5: ('s', 2), 6: ('s', 3), 7: ('h', 1), 8: ('s', 4), 9: ('s', 5), 10: ('s', 6), 11: ('s', 7)}
    def job_reads(b):
        if b not in jobs or OPT['XP'] & 1: return []
        kind, p = jobs[b]
        if kind == 's':
            return [('ds', ('jr', b), f'ds_read_b128 {vr(SB+8*(b&1)+4*k,4)}, v{vSR1 if k else vSR} offset:{2048*p}') for k in range(2)]
        return [('ds', ('jr', b), f'ds_read_b128 {vr(SB+8*(b&1)+4*k,4)}, v{vHS} offset:{4096*p + 64*k}') for k in range(2)]
    def job_mfmas(b):
        if b not in jobs or OPT['XP'] & 2: return []
        kind, p = jobs[b]
        ops = []
        for k in range(2):
            x = vr(SB + 8 * (b & 1) + 4 * k, 4)
            first = p == 0 and k == 0
            if kind == 's':
                ops.append(f'v_mfma_f32_16x16x32_bf16 {vr(GS,4)}, {x}, {x}, {"0" if first else vr(GS,4)}')
                ops.append(f'v_mfma_f32_16x16x32_bf16 {vr(GO,4)}, {vr(ONE,4)}, {x}, {"0" if first else vr(GO,4)}')
            else:
                ops.append(f'v_mfma_f32_16x16x32_bf16 {vr(GH,4)}, {x}, {x}, {"0" if first else vr(GH,4)}')
        return ops
    def stat_finalize(s, q, tmp):
        return [f'v_mul_f32 v{s}, 0xbb000000, v{s}',
                f'v_mul_f32 v{tmp}, v{s}, v{s}',
                f'v_mul_f32 v{q}, 0x3b000000, v{q}',
                f'v_sub_f32 v{q}, v{q}, v{tmp}',
                f'v_max_f32 v{q}, 0, v{q}',
                f'v_add_f32 v{q}, 0x3727c5ac, v{q}',
                f'v_rsq_f32 v{q}, v{q}']
    def diag(G, dst):
        ops = []
        for k in range(1, 4):
            m = 0x11111111 << k
            ops.append(('grp', [f's_mov_b32 vcc_lo, {m:#x}', f's_mov_b32 vcc_hi, {m:#x}', f'v_cndmask_b32 v{dst}, v{G if k == 1 else dst}, v{G+k}, vcc']))
        return ops
    NM4, RS4, XR = XB + 20, XB + 40, SB
    HT = STC
    extra = {b: [] for b in range(16)}
    L4 = vE0
    extra[5] += [f'v_lshlrev_b32 v{L4}, 2, v{vL}', f's_lshl_b32 s{sT0}, s{sWAVE}, 9', f's_add_u32 s{sT0}, s{sT0}, {L_HP}', f'v_add_u32 v{vT0}, s{sT0}, v{L4}',
                 f'v_lshrrev_b32 v{vT1}, 2, v{vC}', f'v_lshl_add_u32 v{vT1}, v{vT1}, 4, v{vC}', f'v_lshlrev_b32 v{vT1}, 2, v{vT1}',
                 f'v_add_u32 v{vT1}, {L_NM}, v{vT1}', f'v_lshlrev_b32 v{vT2}, 2, v{vC}', f'v_add_u32 v{vT2}, {L_NM}, v{vT2}']
    extra[8] += diag(GH, GH + 1) + [('ds', 'hp', f'ds_write2st64_b32 v{vT0}, v{GH}, v{GH+1} offset0:0 offset1:1')]
    o0 = (L_HP - L_NM) // 256
    extra[9] += [('ds', 'hq', f'ds_read2st64_b32 {vr(HT+2*k,2)}, v{vT2} offset0:{o0+4*k} offset1:{o0+4*k+2}') for k in range(2)] + \
                [('ds', 'hq', f'ds_read2st64_b32 {vr(HT+4+2*k,2)}, v{vT1} offset0:{o0+4*k+1} offset1:{o0+4*k+3}') for k in range(2)]
    extra[10] += [f'v_add_f32 v{HT}, v{HT}, v{HT+1}', f'v_add_f32 v{HT+2}, v{HT+2}, v{HT+3}', f'v_add_f32 v{HT+4}, v{HT+4}, v{HT+5}', f'v_add_f32 v{HT+6}, v{HT+6}, v{HT+7}',
                  f'v_add_f32 v{HT}, v{HT}, v{HT+2}', f'v_add_f32 v{HT+4}, v{HT+4}, v{HT+6}']
    extra[11] += stat_finalize(HT, HT + 4, HT + 1) + [f'v_add_u32 v{vT0}, {L_NM}, v{L4}', ('ds', 'hw', f'ds_write2st64_b32 v{vT0}, v{HT}, v{HT+4} offset0:0 offset1:5')]
    extra[12] += diag(GS, GS + 1) + stat_finalize(GO, GS + 1, GS) + [f's_lshl_b32 s{sT0}, s{sWAVE}, 8', f'v_add_u32 v{vT0}, s{sT0}, v{vT0}',
                                                                    ('ds', 'hw', f'ds_write2st64_b32 v{vT0}, v{GO}, v{GS+1} offset0:1 offset1:6')]
    extra[13] += [('ds', 'st', f'ds_read2st64_b32 {vr(STC+2*s,2)}, v{vT1} offset0:{s} offset1:{5+s}') for s in range(5)] + \
                 [f'v_mul_u32_u24 v{vT0}, 80, v{vG}', f'v_add_u32 v{vT0}, {L_NM}, v{vT0}']
    extra[14] += [('ds', 'st', f'ds_read_b128 {vr(NM4+4*s,4)}, v{vT0} offset:{256*s}') for s in range(5)] + \
                 [('ds', 'st', f'ds_read_b128 {vr(XR+4*e,4)}, v{vRA+e}') for e in range(2)]
    extra[15] += [('ds', 'st', f'ds_read_b128 {vr(RS4+4*s,4)}, v{vT0} offset:{1280+256*s}') for s in range(5)]
    vmx = {b: [] for b in range(17)}
    b0 = 0
    for it in seq:
        vmx[b0] += it; b0 = 0
    vmx[0] += xloads(3)
    vmx[2] += hloads(1)
    for p in range(4, 8): vmx[p - 4 + OPT['XS']] += xloads(p)
    if OPT['TWO']:
        vmx[OPT['TWB']] += [('grp', [f'v_lshlrev_b32 v{vT3}, 10, v{vC}', 's_lshr_b32 s3, s2, 5', f's_lshl2_add_u32 s3, s3, s{sWAVE}', f's_lshl_b32 s3, s3, 14', f's_lshl_b32 s{sCNT}, s{sDT}, 7', f's_add_u32 s3, s3, s{sCNT}',
                            ('vm', 'tw', f'buffer_load_dword v{vDUM}, v{vT3}, {srd(sWO)}, s3 offen{nt("NTO")}')])]
    for b in range(17): vmx[b] += vmx0.get(b, [])
    def opre(R, T):
        return [f's_lshl2_add_u32 s3, s{sCT4}, s{sWAVE}', 's_lshl_b32 s3, s3, 7', f's_add_u32 s3, s3, s{sD3}', 's_lshl_b32 s3, s3, 7',
                f'v_lshrrev_b32 v{T}, 3, v{vL}', f'v_mul_u32_u24 v{T}, {1024 - 128}, v{T}', f'v_add_u32 v{T}, v{T}, v{vL16}',
                ('vm', 'clr', f'buffer_store_dwordx4 {vr(R,4)}, v{T}, {srd(sOUT)}, s3 offen sc1'), 's_add_u32 s3, s3, 8192',
                ('vm', 'clr', f'buffer_store_dwordx4 {vr(R,4)}, v{T}, {srd(sOUT)}, s3 offen sc1')]
    if 0 <= OPT['OPS'] <= 16: vmx[OPT['OPS']].append(('grp', opre(SEN, vT3)))
    vTC1, vTC2 = 254, 16
    late = {}
    def place(b, op):
        if b <= 16: vmx[b].append(op)
        else: late.setdefault(b, []).append(op)
    if OPT['TB1'] >= 0:
        TN = OPT['TN1']
        for k in range(64 // TN):
            if k == 0:
                pre = [f'v_bfe_u32 v{vTC1}, v{vL}, 2, {TN.bit_length() - 3}', 's_lshr_b32 s3, s2, 3', f's_lshl2_add_u32 s3, s3, s{sWAVE}', f'v_lshl_add_u32 v{vTC1}, s3, 4, v{vTC1}',
                       f'v_mul_u32_u24 v{vTC1}, 28, v{vTC1}', f's_and_b32 s3, s2, 7', 's_mul_i32 s3, s3, 7', 's_lshr_b32 s3, s3, 1', f'v_and_b32 v{vT3}, 3, v{vL}',
                       f'v_add3_u32 v{vTC1}, v{vTC1}, v{vT3}, s3', f'v_lshlrev_b32 v{vTC1}, 7, v{vTC1}']
            else:
                pre = [f'v_add_u32 v{vTC1}, {TN * 896}, v{vTC1}']
            place(min(16, OPT['TB1'] + k * OPT['TS1']), ('grp', pre + [('vm', 'tw', f'buffer_load_dword v{vDUM}, v{vTC1}, {srd(sW1)}, 0 offen{nt("NTT")}')]))
    if OPT['TB2'] >= 0:
        TN = OPT['TN2']
        pre = [f'v_bfe_u32 v{vTC2}, v{vL}, 2, {TN.bit_length() - 3}', f'v_min_u32 v{vTC2}, 13, v{vTC2}', 's_lshr_b32 s3, s2, 3', f's_lshl2_add_u32 s3, s3, s{sWAVE}', f's_mul_i32 s3, s3, {14 * 8}',
               f's_and_b32 s{sCNT}, s2, 7', f's_add_u32 s3, s3, s{sCNT}', 's_lshl_b32 s3, s3, 9',
               f'v_lshl_add_u32 v{vTC2}, v{vTC2}, 12, s3', f'v_and_b32 v{vT3}, 3, v{vL}', f'v_lshl_add_u32 v{vTC2}, v{vT3}, 7, v{vTC2}']
        vmx[min(16, OPT['TB2'])].append(('grp', pre))
        for k in range(56 // TN + (56 % TN > 0)):
            pre = [f'v_add_u32 v{vTC2}, {min(TN, 56 - TN * k) * 1024}, v{vTC2}'] if k else []
            b = OPT['TB2'] + k * OPT['TS2']
            place(b if OPT['TB2'] > 16 else min(16, b), ('grp', pre + [('vm', 'tw', f'buffer_load_dword v{vDUM}, v{vTC2}, {srd(sW2)}, 0 offen{nt("NTT")}')]))
    if OPT['PB1'] >= 0:
        assert OPT['TN1'] == 64
        place(OPT['PB1'], ('vm', 'tw', f'buffer_load_dword v{vDUM}, v{vTC1}, {srd(sW1)}, 0 offen sc1'))
    if OPT['PB2'] >= 0:
        assert OPT['TN2'] == 64
        place(OPT['PB2'], ('vm', 'tw', f'buffer_load_dword v{vDUM}, v{vTC2}, {srd(sW2)}, 0 offen sc1'))
    need_x = {2: [('x', 2)], 4: [('x', 3)], 6: [('x', 4), ('h', 1)], 8: [('x', 5)], 9: [('x', 6)], 10: [('x', 7)]}
    if OPT['HOP'] == 1:
        a('s_mov_b64 exec, 0')
        for w in range(1, 4):
            a(f's_cmp_eq_u32 s{sWAVE}, {w}')
            a(f's_cbranch_scc1 L_pg{2*w+1}')
        a('s_branch L_pg1')
        a.label('L_pgb')
        a('s_mov_b64 exec, -1')
    a.stamp(1)
    a.wait(vm=[('w', 1), ('x', 1)])
    a('s_waitcnt lgkmcnt(0)')
    a('s_barrier')
    a.stamp(0, 1)
    a.run(trreads(0) + xreads(0) + xreads(1))
    a.wait(ds=[('xr', 0)])
    wop = []
    for i in range(16):
        rd = []
        if i + 1 < 16: rd += trreads(i + 1) + job_reads(i + 1)
        if i + 2 < 16: rd += xreads(i + 2)
        ld = []
        if i == 1: ld += wloads(NW)
        if i == 10: ld += [f's_lshl_b32 s{sLW}, s{sWAVE}, 10']
        if i >= 1:
            if i + NW < 16: ld += wloads(i + NW)
            else: wop += wloads(i + NW)
            if i >= OPT['WOB']: ld += wop; wop = []
        ld += vmx[i]
        ex = extra[i]
        mm = weave(mfmas(i)[:8 if OPT['XP'] & 32 else 15], job_mfmas(i))
        fill = weave(rd, ld) if rd else ld
        fill = mix(fill, ex)
        fl = []
        for o in fill:
            if not isinstance(o, str) and o[0] == 'grp' and any(isinstance(x, str) and ('exec' in x or 's_cselect' in x) for x in o[1]): fl.append(o)
            else: fl += flat([o])
        a.run(weave(mm, fl, lead=1))
        if i < 15:
            wv = [('w', i + 2)] if i + 2 < 16 else []
            wv += need_x.get(i + 1, [])
            a.wait(vm=wv, ds=[('wr', i + 1), ('jr', i + 1), ('xr', i + 1), 'hp', 'hq', 'hw'])
            if not (OPT['XP'] & 16 and i & 1): a('s_barrier')
            if i in (1, 3, 5, 7, 9, 11, 13): a.stamp(1)
    a.wait(vm=['clro'])
    a.wait_all(vm=False)
    a('s_barrier')
    a.stamp(-1)
    a.run(vmx[16])
    if OPT['NT1'] == 0 and not OPT['SKW']: a.run(nofetch)
    a(f's_load_dword s{sNON}, s[{sDBG}:{sDBG+1}], 0')
    if OPT['WOB'] == 16: a.inject(wop + events(OPT['EA']), OPT['AEV']); wop = []
    else: a.inject(events(OPT['EA']), OPT['AEV'])
    SC, SP, MX, MT, PM, PB, OUT = XB, SB + 8, ACC, ACC + 4, ACC + 8, ACC + 20, ACC + 36
    CW, CWV = 32, 40
    for r in range(4):
        a(f'v_mov_b32_dpp v{CW+4+r}, v{acc(1,0)+r} row_newbcast:0 row_mask:0xf bank_mask:0xf')
    for r in range(4):
        a(f'v_mov_b32_dpp v{CW+r}, v{acc(0,0)+r} row_newbcast:0 row_mask:0xf bank_mask:0xf')
    def epi_k(s):
        src, st, dst = acc(1, s), STC + 2 * s, KP + 2 * s
        return [[f'v_pk_fma_f32 {vr(src+2*h,2)}, {vr(CW+4+2*h,2)}, {vr(st,2)}, {vr(src+2*h,2)} op_sel_hi:[1,0,1]' for h in range(2)],
                [f'v_pk_mul_f32 {vr(src+2*h,2)}, {vr(src+2*h,2)}, {vr(st,2)} op_sel:[0,1] op_sel_hi:[1,1]' for h in range(2)],
                [f'v_cvt_pk_bf16_f32 v{dst+h}, v{src+2*h}, v{src+2*h+1}' for h in range(2)]]
    def epi_q(s):
        src, st, dst = acc(0, s), STC + 2 * s, QP + 2 * (s - 1)
        return [[f'v_pk_fma_f32 {vr(src+2*h,2)}, {vr(CW+2*h,2)}, {vr(st,2)}, {vr(src+2*h,2)} op_sel_hi:[1,0,1]' for h in range(2)],
                [],
                [f'v_cvt_pk_bf16_f32 v{dst+h}, v{src+2*h}, v{src+2*h+1}' for h in range(2)]]
    def epi_v(s):
        src, dst = acc(2, s), VP + 2 * s
        return [[f'v_pk_fma_f32 {vr(src+2*h,2)}, {vr(NM4+4*s+2*h,2)}, {vr(CWV,2)}, {vr(src+2*h,2)} op_sel_hi:[1,0,1]' for h in range(2)],
                [f'v_pk_mul_f32 {vr(src+2*h,2)}, {vr(src+2*h,2)}, {vr(RS4+4*s+2*h,2)}' for h in range(2)],
                [f'v_cvt_pk_bf16_f32 v{dst+h}, v{src+2*h}, v{src+2*h+1}' for h in range(2)]]
    E = [epi_k(s) for s in range(5)] + [epi_q(s) for s in range(1, 5)]
    for ph in range(3):
        for e in E: a.run(e[ph])
    a(f'v_mov_b32 v{CWV}, v{acc(2,0)}')
    a(f'v_mov_b32 v{CWV+1}, v{acc(2,0)}')
    smm = []
    for u in range(4):
        q = vr(QP + 2 * u, 2)
        smm.append(f'v_mfma_f32_16x16x16_bf16 {vr(SC+4*u,4)}, {vr(KP+2*(u+1),2)}, {q}, {vr(BC,4)}')
        smm.append(f'v_mfma_f32_16x16x16_bf16 {vr(SP+4*u,4)}, {vr(KP+2*u,2)}, {q}, {vr(BP0 if u == 0 else BP,4)}')
    vv = [f'v_permlane16_swap_b32 v{CWV}, v{CWV+1}', f's_mov_b32 s{sT0}, {f2h(0.25 * 1.4426950408889634)}']
    vv += [f'v_mul_f32 v{STC+2*s+1}, s{sT0}, v{STC+2*s+1}' for s in range(1, 5)]
    E = [epi_v(s) for s in range(5)]
    for ph in range(3):
        for e in E: vv += e[ph]
    a.run(weave(smm, vv[:16]) + vv[16:])
    for u in range(4):
        for r in range(4):
            a(f'v_max_f32 v{SC+4*u+r}, v{SC+4*u+r}, v{SP+4*u+r}')
    for u in range(4):
        a(f'v_max3_f32 v{MX+u}, v{SC+4*u}, v{SC+4*u+1}, v{SC+4*u+2}')
    for u in range(4):
        a(f'v_max_f32 v{MX+u}, v{MX+u}, v{SC+4*u+3}')
    for sw in ('v_permlane16_swap_b32', 'v_permlane32_swap_b32'):
        for u in range(4): a(f'v_mov_b32 v{MT+u}, v{MX+u}')
        for u in range(4): a(f'{sw} v{MX+u}, v{MT+u}')
        for u in range(4): a(f'v_max_f32 v{MX+u}, v{MX+u}, v{MT+u}')
    for u in range(4):
        a(f'v_mul_f32 v{MX+u}, v{STC+2*u+3}, v{MX+u}')
    for u in range(4):
        for r in range(4):
            a(f'v_fma_f32 v{SC+4*u+r}, v{SC+4*u+r}, v{STC+2*u+3}, -v{MX+u}')
    for u in range(4):
        for r in range(4):
            a(f'v_exp_f32 v{SC+4*u+r}, v{SC+4*u+r}')
    for u in range(4):
        for h in range(2):
            a(f'v_cvt_pk_bf16_f32 v{PM+2*u+h}, v{SC+4*u+2*h}, v{SC+4*u+2*h+1}')
        for h in range(2):
            a(f'v_and_b32 v{PB+4*u+h}, v{PM+2*u+h}, v{MP+h}')
            a(f'v_and_b32 v{PB+4*u+2+h}, v{PM+2*u+h}, v{MC+h}')
    pm = []
    for u in range(4):
        pm.append(f'v_mfma_f32_16x16x16_bf16 {vr(SP+4*u,4)}, {vr(ONE,2)}, {vr(PM+2*u,2)}, 0')
    for u in range(4):
        pm.append(f'v_mfma_f32_16x16x32_bf16 {vr(SC+4*u,4)}, {vr(VP+2*u,4)}, {vr(PB+4*u,4)}, 0')
    sa = [f's_lshl2_add_u32 s{sT0}, s{sDT}, s{sWAVE}', f's_lshl_b32 s{sT2}, s{sRT}, 7', f's_add_u32 s{sT2}, s{sT2}, s{sDT}', f's_lshl_b32 s{sT2}, s{sT2}, 2',
          f's_add_u32 s{sT2}, s{sT2}, {WS_F1:#x}', f's_lshl_b32 s{sT0}, s{sT0}, 9', f's_lshl_b32 s{sT1}, s{sRT}, 16', f's_add_u32 s{sT0}, s{sT0}, s{sT1}',
          f's_add_u32 s{sT1}, s{sT0}, 32768', f'v_lshrrev_b32 v{vT0}, 5, v{vL}', f'v_mul_u32_u24 v{vT0}, {16384 - 512}, v{vT0}', f'v_add_u32 v{vT0}, v{vT0}, v{vL16}',
          f'v_lshrrev_b32 v{vT3}, 2, v{vL}', f'v_and_b32 v{vT1}, 3, v{vL}', f'v_lshlrev_b32 v{vT1}, 7, v{vT1}', f'v_lshl_add_u32 v{vT3}, v{vT3}, 14, v{vT1}']
    a.run(weave(pm, sa))
    a.wait_all(vm=False)
    a(f's_cmp_lg_u32 s{sNON}, 0')
    a('s_cbranch_scc0 L_non')
    a.label('L_nonok')
    tail.append(['L_non:', f's_load_dword s{sNON}, s[{sDBG}:{sDBG+1}], 0 glc', 's_waitcnt lgkmcnt(0)', f's_cmp_lg_u32 s{sNON}, 0', 's_cbranch_scc1 L_nonok',
                 f's_sub_u32 s{sBUD}, s{sBUD}, 1', 's_cbranch_scc0 L_non', f's_mov_b32 s{sBUD}, 0', 's_branch L_nonok'])
    a(f's_mov_b32 s{sNON+1}, s{sNON}')
    a(f'v_mov_b32 v{vT2}, s{sNON}')
    for u in range(4):
        a(f'v_rcp_f32 v{SP+4*u}, v{SP+4*u}')
    for u in range(4):
        for h in range(2):
            a(f'v_pk_mul_f32 {vr(SC+4*u+2*h,2)}, {vr(SC+4*u+2*h,2)}, {vr(SP+4*u,2)} op_sel_hi:[1,0]')
    for u in range(4):
        for h in range(2):
            a(f'v_cvt_pk_bf16_f32 v{OUT+2*u+h}, v{SC+4*u+2*h}, v{SC+4*u+2*h+1}')
    for e in range(2):
        for h in range(2):
            a(f'v_permlane32_swap_b32 v{OUT+4*e+h}, v{OUT+4*e+2+h}')
    left = a.inj; a.inj = []
    for e in range(2):
        a.vm('ost', f'buffer_store_dwordx4 {vr(OUT+4*e,4)}, v{vT0}, {srd(sWS)}, s{[sT0,sT1][e]} offen sc1')
    assert not any(o[0] == 'vm' and o[1] == 'wo' for o in flat(left) if not isinstance(o, str))
    a.wait(vm=['wo', 'clr'])
    nflag = [0]
    def flag(soff, barrier=True):
        nflag[0] += 1
        if barrier: a('s_barrier')
        a(f's_cmp_lg_u32 s{sWAVE}, 0')
        a(f's_cbranch_scc1 L_nf{nflag[0]}')
        a('s_mov_b32 exec_hi, 0')
        a(f'buffer_store_dword v{vT2}, v{vT3}, {srd(sWS)}, s{soff} offen sc1')
        a('s_mov_b32 exec_hi, -1')
        a.label(f'L_nf{nflag[0]}')
    flag(sT2)
    a.run(late.get(17, []))
    a.stamp(0, 1, 3)
    a.run(wop)
    a.run(left)
    ID, O, ACC2, S2, PK2 = 20, 64, 128, 144, 152
    vHO, vSO, vTW = 9, 10, 12
    cst = [f'v_bfe_u32 v{vT0}, v{vL}, 2, 3', f'v_lshrrev_b32 v{vT1}, 5, v{vL}', f'v_lshl_add_u32 v{vT0}, v{vT1}, 4, v{vT0}', f'v_lshlrev_b32 v{vTW}, 7, v{vT0}',
           f'v_bfe_u32 v{vT0}, v{vL}, 3, 2', f'v_lshl_add_u32 v{vTW}, v{vT0}, 5, v{vTW}', f'v_and_b32 v{vT0}, 3, v{vL}', f'v_lshl_add_u32 v{vTW}, v{vT0}, 3, v{vTW}']
    cst += [f'v_xor_b32 v{vTW+t}, {32*t}, v{vTW}' for t in range(1, 4)]
    cst += [f'v_and_b32 v{vT0}, 1, v{vC}', f'v_lshlrev_b32 v{vT0}, 4, v{vT0}', f'v_mov_b32 v{vT1}, 0x3f80', f'v_lshlrev_b32 v{vT0}, v{vT0}, v{vT1}',
            f'v_lshrrev_b32 v{vT1}, 1, v{vC}', f'v_lshlrev_b32 v{vE0}, 2, v{vG}', f'v_sub_u32 v{vT1}, v{vT1}, v{vE0}']
    for b in range(2):
        for k in range(4):
            cst += [f'v_cmp_eq_i32 vcc, {k - 8*b}, v{vT1}', f'v_cndmask_b32 v{ID+4*b+k}, 0, v{vT0}, vcc']
    cst += [f'v_and_b32 v{vT0}, 1, v{vG}', f'v_lshlrev_b32 v{vHO}, 10, v{vT0}', f'v_lshrrev_b32 v{vT0}, 1, v{vG}', f'v_lshl_add_u32 v{vHO}, v{vT0}, 8, v{vHO}',
            f'v_lshl_add_u32 v{vHO}, v{vC}, 4, v{vHO}',
            f'v_lshrrev_b32 v{vT0}, 2, v{vC}', f'v_lshlrev_b32 v{vSO}, 8, v{vT0}', f'v_lshl_add_u32 v{vSO}, v{vG}, 6, v{vSO}', f'v_and_b32 v{vT0}, 3, v{vC}',
            f'v_lshl_add_u32 v{vSO}, v{vT0}, 4, v{vSO}']
    cst += [f'v_mfma_f32_16x16x32_bf16 {vr(ACC2+4*t,4)}, {vr(XR+4*(t>>1),4)}, {vr(ID+4*(t&1),4)}, 0' for t in range(4)]
    sBLK = sXB
    sFL = sLW
    cst += [f's_lshl_b32 s{sFL}, s{sDT}, 5', f's_add_u32 s{sFL}, s{sFL}, s{sRT}', f's_lshl2_add_u32 s{sFL}, s{sFL}, s{sWAVE}', f's_lshl_b32 s{sFL}, s{sFL}, 7',
            f's_add_u32 s{sFL}, s{sFL}, {WS_F1:#x}', f'v_lshlrev_b32 v{vT3}, 9, v{vL}', f's_lshl2_add_u32 s{sBLK}, s{sRT}, s{sWAVE}', f's_lshl_b32 s{sT1}, s{sBLK}, 14']
    cst0 = w2_scalars(sW2A, sW2B, sROT4) + [f's_lshl_b32 s{sPL}, s{sWAVE}, 14'] + mk_q(vQ2, False) + mk_r(vR2, False)
    a.run(cst0 + cst)
    hadr = [f's_lshl_b32 s{sT0}, s{sDT}, 18', f's_lshr_b32 s3, s{sBLK}, 1', f's_lshl_b32 s3, s3, 12', f's_add_u32 s{sT0}, s{sT0}, s3', f's_and_b32 s3, s{sBLK}, 1',
            f's_lshl_b32 s3, s3, 9', f's_add_u32 s{sT0}, s{sT0}, s3', f's_add_u32 s{sT0}, s{sT0}, {WS_HF:#x}']
    def uclr(R): return clr[2] + [('vm', 'clr', f'buffer_store_dwordx4 {vr(R,4)}, v{vL16}, {srd(sWS)}, s3 offen offset:{1024*h} sc1') for h in range(2)]
    if OPT['CH'] == 17 or OPT['CU'] == 17:
        a.run([f'v_mov_b32 v{S2+k}, -1' for k in range(4)])
    if OPT['CH'] == 17:
        a.run(hadr + [f's_sub_u32 s3, s{sT0}, {WS_HF - WS_HN:#x}']); hadr = []
        for e in range(2): a.vm('clr', f'buffer_store_dwordx4 {vr(S2,4)}, v{vHO}, {srd(sWS)}, s3 offen offset:{2048*e} sc1')
        if OPT['CLX'] & 8:
            for e in range(2): a.vm('clr', f'buffer_store_dwordx4 {vr(S2,4)}, v{vHO}, {srd(sWS)}, s{sT0} offen offset:{2048*e} sc1')
    if OPT['CU'] == 17: a.run(uclr(S2))
    def wf2(i): return [32, 48, 176, 192, 208, 224][i % 6]
    def tr2(i):
        return [('ds', ('w2r', i), f'ds_read_b64_tr_b16 {vr(wf2(i)+4*t+2*h,2)}, v{vTW+t} offset:{4096*i+1024*h}') for t in range(4) for h in range(2)]
    if wop:
        a.run(events(OPT['EB1']))
        a.wait(vm=['wo'])
        a('s_barrier')
    for i in range(5): a.run(tr2(i))
    a.run(events(OPT['EB1']))
    def poll(lbl, soff):
        a.stamp(3)
        if OPT['PW' + lbl[-1]]: a(f's_sleep {OPT["PW" + lbl[-1]]}')
        a.label(lbl)
        a(f's_load_dwordx8 s[{sPOLL}:{sPOLL+7}], s[{sWS}:{sWS+1}], s{soff} glc')
        a.wait_all(vm=False)
        for k in range(4): a(f's_xor_b64 s[{sPOLL+2*k}:{sPOLL+2*k+1}], s[{sPOLL+2*k}:{sPOLL+2*k+1}], s[{sNON}:{sNON+1}]')
        a(f's_or_b64 s[{sPOLL}:{sPOLL+1}], s[{sPOLL}:{sPOLL+1}], s[{sPOLL+2}:{sPOLL+3}]')
        a(f's_or_b64 s[{sPOLL+4}:{sPOLL+5}], s[{sPOLL+4}:{sPOLL+5}], s[{sPOLL+6}:{sPOLL+7}]')
        a(f's_or_b64 s[{sPOLL}:{sPOLL+1}], s[{sPOLL}:{sPOLL+1}], s[{sPOLL+4}:{sPOLL+5}]')
        a(f's_cbranch_scc0 {lbl}_ok')
        if OPT['PR']: a(f's_sleep {OPT["PR"]}')
        a(f's_sub_u32 s{sBUD}, s{sBUD}, 1')
        a(f's_cbranch_scc0 {lbl}')
        a(f's_mov_b32 s{sBUD}, 0')
        a.label(lbl + '_ok')
    def check(lbl, regs, reload):
        ck = [f'v_max3_u32 v{vCK}, v{regs[0]}, v{regs[1]}, v{regs[2]}', f'v_max_u32 v{vCK}, v{vCK}, v{regs[3]}', f'v_cmp_eq_u32 vcc, -1, v{vCK}']
        tail.append([lbl + ':'] + ([f's_add_u32 s101, s101, {1 if "ro" in lbl else 0x100 if "ra1" in lbl else 0x10000}'] if PROF else []) + [f's_sub_u32 s{sBUD}, s{sBUD}, 1', f's_cbranch_scc1 {lbl}_x'] + reload + ['s_waitcnt vmcnt(0)'] + ck +
                    [f's_cbranch_vccnz {lbl}', f's_branch {lbl}_b', lbl + '_x:', f's_mov_b32 s{sBUD}, 0', f's_branch {lbl}_b'])
        return ck + [('grp', [f's_cbranch_vccnz {lbl}', ('label', lbl + '_b')])]
    if OPT['HOP'] == 2: hop(5, 'L_pgc')
    poll('L_p1', sFL)
    a.stamp(0, 3)
    if PROF: a(f'v_mov_b32 v252, s{sBUD}')
    sOB = sWB
    a(f's_mov_b32 s{sOB}, s{sT1}')
    def oload(i, so, f=1): return f'buffer_load_dwordx4 {vr(O+4*i,4)}, v{vL16}, {srd(sWS)}, s{so} offen offset:{1024*(i&3)}' + SCF[f]
    for c in range(4):
        if c: a(f's_add_u32 s{sT1}, s{sT1}, 4096')
        for i in range(4): a.vm(('o', 4*c+i), oload(4*c+i, sT1, OPT['SO']))
    a.run(late.get(20, []))
    a.run(hadr)
    a(f's_lshl_b32 s{sT1}, s{sBLK}, 11')
    a(f's_add_u32 s{sT1}, s{sT1}, {WS_SX:#x}')
    a(f's_lshl_b32 s{sT2}, s{sDT}, 8')
    a(f's_add_u32 s{sT2}, s{sT2}, s{sT1}')
    a(f'v_lshlrev_b32 v{vT0}, 2, v{vL}')
    def ocheck(c):
        return [('wvm', ('o', 4*c+3))] + check(f'L_ro{c}', [O + 16*c + 4*i for i in range(4)], [f's_add_u32 s{sCNT}, s{sOB}, {4096*c}'] + [oload(4*c+i, sCNT) for i in range(4)])
    a.run(events(OPT['EB2']))
    a.run(ocheck(0))
    ec = events(OPT['EC'])
    for i in range(16):
        a.wait(ds=[('w2r', i)])
        mm = [f'v_mfma_f32_16x16x32_bf16 {vr(ACC2+4*t,4)}, {vr(O+4*i,4)}, {vr(wf2(i)+4*t,4)}, {vr(ACC2+4*t,4)}' for t in range(4)]
        f = tr2(i + 5) if i + 5 < 16 else []
        wgt = [1] * 11 + [3] * 5
        lo, hi = (len(ec) * sum(wgt[:i])) // sum(wgt), (len(ec) * sum(wgt[:i + 1])) // sum(wgt)
        f = mix(f, ec[lo:hi])
        if i % 4 == 3 and i < 12: f = f + ocheck(i // 4 + 1)
        a.run(weave(mm, f))
    a.run(late.get(22, []))
    a.stamp(0, 3)
    S = S2
    for r in range(4):
        a(f'v_add_f32 v{S+r}, v{ACC2+r}, v{ACC2+4+r}')
        a(f'v_mul_f32 v{S+4+r}, v{ACC2+r}, v{ACC2+r}')
    for t in range(1, 4):
        for r in range(4):
            if t > 1: a(f'v_add_f32 v{S+r}, v{S+r}, v{ACC2+4*t+r}')
            a(f'v_fmac_f32 v{S+4+r}, v{ACC2+4*t+r}, v{ACC2+4*t+r}')
    for base in (S, S + 4):
        for i in range(2):
            a(f'v_add_f32_dpp v{base+i}, v{base+i}, v{base+i} row_ror:8 row_mask:0xf bank_mask:0x3')
    for base in (S, S + 4):
        for i in range(2):
            a(f'v_add_f32_dpp v{base+i}, v{base+i+2}, v{base+i+2} row_ror:8 row_mask:0xf bank_mask:0xc')
    for base in (S, S + 4):
        a(f'v_add_f32_dpp v{base}, v{base}, v{base} row_half_mirror row_mask:0xf bank_mask:0x5')
    for base in (S, S + 4):
        a(f'v_add_f32_dpp v{base}, v{base+1}, v{base+1} row_half_mirror row_mask:0xf bank_mask:0xa')
    for qp in ('[1,0,3,2]', '[2,3,0,1]'):
        for base in (S, S + 4):
            a(f'v_add_f32_dpp v{base}, v{base}, v{base} quad_perm:{qp} row_mask:0xf bank_mask:0xf')
    a('s_mov_b32 vcc_lo, 0xaaaaaaaa')
    a('s_mov_b32 vcc_hi, 0xaaaaaaaa')
    a(f'v_cndmask_b32 v{S}, v{S}, v{S+4}, vcc')
    a('s_mov_b32 vcc_lo, 0xcccccccc')
    a('s_mov_b32 vcc_hi, 0xcccccccc')
    a(f'v_cndmask_b32 v{S}, v{S}, v{vT2}, vcc')
    a.vm('sx', f'buffer_store_dword v{S}, v{vT0}, {srd(sWS)}, s{sT2} offen' + SCF[OPT['SXS']])
    def pack_store(tag, soff, defer=False):
        for t in range(4):
            for h in range(2):
                a(f'v_cvt_pk_bf16_f32 v{PK2+2*t+h}, v{ACC2+4*t+2*h}, v{ACC2+4*t+2*h+1}')
        for e in range(2):
            for h in range(2):
                a(f'v_permlane16_swap_b32 v{PK2+4*e+h}, v{PK2+4*e+2+h}')
        st = [('vm', tag, f'buffer_store_dwordx4 {vr(PK2+4*e,4)}, v{vHO}, {srd(sWS)}, s{soff} offen offset:{2048*e} sc1') for e in range(2)]
        if defer: return st
        a.run(st); return []
    hfs = pack_store('hf', sT0, OPT['HFL'])
    PK2 = PK2 + 8
    hfs += [f's_sub_u32 s{sT0}, s{sT0}, {WS_HF - WS_HN:#x}']
    if not OPT['HFL']: a.run(hfs); hfs = []
    a(f's_lshl_b32 s{sT2}, s{sDT}, 7')
    a(f's_lshr_b32 s{sCNT}, s{sRT}, 3')
    a(f's_add_u32 s{sT2}, s{sT2}, s{sCNT}')
    a(f's_lshl_b32 s{sT2}, s{sT2}, 5')
    a(f's_and_b32 s{sCNT}, s{sRT}, 7')
    a(f's_add_u32 s{sT2}, s{sT2}, s{sCNT}')
    a(f's_lshl_b32 s{sT2}, s{sT2}, 2')
    a(f's_add_u32 s{sT2}, s{sT2}, {WS_F2:#x}')
    a([f's_mov_b32 s{sDT}, s{sD3}', f's_mov_b32 s{sDT}, 0', f's_and_b32 s{sDT}, s{sD3}, 1', f's_and_b32 s{sDT}, s{sD3}, 3'][OPT['ZD3']])
    a.run(late.get(24, []))
    a.run(events(OPT['ED']))
    a.run(late.get(25, []))
    a.stamp(0, 3)
    if PROF: a(f'v_mov_b32 v254, s{sBUD}')
    R0 = O
    sxl = [f'buffer_load_dwordx4 {vr(R0+4*e,4)}, v{vSO}, {srd(sWS)}, s{sT1} offen offset:{1024*e}' + SCF[OPT['SXL']] for e in range(2)]
    sxc = [f'v_xor_b32 v{R0+2}, s{sNON}, v{R0+2}', f'v_xor_b32 v{R0+6}, s{sNON}, v{R0+6}', f'v_add_f32 v{R0}, v{R0}, v{R0+4}', f'v_or_b32 v{R0+2}, v{R0+2}, v{R0+6}',
           f'v_add_f32 v{R0+1}, v{R0+1}, v{R0+5}', f'v_cmp_ne_u32 vcc, 0, v{R0+2}']
    if OPT['SXP']:
        NR = OPT['SXP']
        R0 = 176
        a.run(events(OPT['EE']))
        def sxl_(r): return [f'buffer_load_dwordx4 {vr(O+8*r+4*e,4)}, v{vSO}, {srd(sWS)}, s{sT1} offen offset:{1024*e} sc1' for e in range(2)]
        for r in range(NR):
            if r: a(f's_sleep {OPT["SXD"]}')
            for t_ in sxl_(r): a.vm('sxl', t_)
        a.label('L_sx')
        for r in range(NR):
            P = O + 8 * r
            a(f's_waitcnt vmcnt({2 * (NR - 1)})')
            a.run([f'v_xor_b32 v{R0+2}, s{sNON}, v{P+2}', f'v_xor_b32 v{R0+3}, s{sNON}, v{P+6}', f'v_add_f32 v{R0}, v{P}, v{P+4}', f'v_or_b32 v{R0+2}, v{R0+2}, v{R0+3}',
                   f'v_add_f32 v{R0+1}, v{P+1}, v{P+5}', f'v_cmp_ne_u32 vcc, 0, v{R0+2}', 's_cbranch_vccz L_sx_ok'] + sxl_(r))
        a(f's_sub_u32 s{sBUD}, s{sBUD}, 1')
        a('s_cbranch_scc0 L_sx')
        a(f's_mov_b32 s{sBUD}, 0')
        a.vmq = ['sxq'] * (2 * NR - 1) + ['sxp']
    else:
        if OPT['SXW']: a(f's_sleep {OPT["SXW"]}')
        for t_ in sxl: a.vm('sxl', t_)
        a.run(hfs)
        a.run(events(OPT['EE']))
        a.wait(vm=['sxl'])
        a.run(sxc)
        if OPT['SXI']:
            a('s_cbranch_vccz L_sx_ok')
            for t_ in ['L_sx:', f's_sub_u32 s{sBUD}, s{sBUD}, 1', 's_cbranch_scc1 L_sx_x'] + ([f's_sleep {OPT["SXR"]}'] if OPT['SXR'] else []) + sxl + ['s_waitcnt vmcnt(0)'] + sxc + ['s_cbranch_vccnz L_sx']: a(t_)
            tail.append(['L_sx_x:', f's_mov_b32 s{sBUD}, 0', 's_branch L_sx_ok'])
        else:
            a('s_cbranch_vccnz L_sx')
            tail.append(['L_sx:', f's_sub_u32 s{sBUD}, s{sBUD}, 1', 's_cbranch_scc1 L_sx_x'] + sxl + ['s_waitcnt vmcnt(0)'] + sxc +
                        ['s_cbranch_vccnz L_sx', 's_branch L_sx_ok', 'L_sx_x:', f's_mov_b32 s{sBUD}, 0', 's_branch L_sx_ok'])
    a.label('L_sx_ok')
    a.run(late.get(21, []))
    a.stamp(0, 3)
    if PROF: a(f'v_mov_b32 v255, s{sBUD}')
    for ror in (4, 8):
        for k in range(2):
            a(f'v_add_f32_dpp v{R0+k}, v{R0+k}, v{R0+k} row_ror:{ror} row_mask:0xf bank_mask:0xf')
    s_, q_, t_ = R0, R0 + 1, R0 + 2
    a(f's_mov_b32 s{sT1}, 0x3727c5ac')
    a(f'v_mul_f32 v{s_}, 0xbb000000, v{s_}')
    a(f'v_mul_f32 v{q_}, 0x3b000000, v{q_}')
    a(f'v_fma_f32 v{q_}, -v{s_}, v{s_}, v{q_}')
    a(f'v_max_f32 v{q_}, 0, v{q_}')
    a(f'v_add_f32 v{t_}, s{sT1}, v{q_}')
    a(f'v_rsq_f32 v{t_}, v{t_}')
    a(f'v_mul_f32 v{q_}, v{q_}, v{t_}')
    a(f'v_fma_f32 v{q_}, v{q_}, v{t_}, s{sT1}')
    a(f'v_rsq_f32 v{q_}, v{q_}')
    a(f'v_mul_f32 v{t_}, v{t_}, v{q_}')
    a(f'v_mul_f32 v{s_}, v{s_}, v{t_}')
    RR, BB = R0 + 4, R0 + 8
    for r in range(4):
        a(f'v_mov_b32_dpp v{RR+r}, v{t_} quad_perm:[{r},{r},{r},{r}] row_mask:0xf bank_mask:0xf')
    for r in range(4):
        a(f'v_mov_b32_dpp v{BB+r}, v{s_} quad_perm:[{r},{r},{r},{r}] row_mask:0xf bank_mask:0xf')
    for t in range(4):
        for h in range(2):
            a(f'v_pk_fma_f32 {vr(ACC2+4*t+2*h,2)}, {vr(ACC2+4*t+2*h,2)}, {vr(RR+2*h,2)}, {vr(BB+2*h,2)}')
    pack_store('hst', sT0)
    a.wait(vm=['hf'])
    a.wait_all(vm=False)
    flag(sT2)
    a.run(late.get(23, []))
    if OPT['OPS'] == 23: a.run(opre(PK2, vT0))
    if OPT['CU'] == 23: a.run([f'v_mov_b32 v{112+k}, -1' for k in range(4)] + uclr(112))
    a.wait(vm=['sxq'])
    a.stamp(0, 3)
    vA0, vA1 = 17, 18
    BI4 = 20
    OWN, OTH, ST, H = 32, 48, 96, 128
    a(f's_cmp_ge_u32 s{sZ}, 7')
    a('s_cbranch_scc1 L_skip3')
    save = (list(a.vmq), list(a.dsq), list(EV), dict(slot_of))
    a.run(events(OPT['EF']))
    while OPT['MF'] and EV and EV[0][0] == 'M': a.run(evM(EV.pop(0)[1]))
    a(f's_lshr_b32 s{sT0}, s{sWAVE}, 1')
    a(f's_lshl_b32 s{sT0}, s{sT0}, 11')
    a(f'v_or_b32 v{vA0}, s{sT0}, v{vL16}')
    a(f'v_xor_b32 v{vA1}, 2048, v{vA0}')
    a(f's_lshl_b32 s{sT0}, s{sCT3}, 7')
    a(f's_and_b32 s{sT1}, s{sWAVE}, 1')
    a(f's_lshl_b32 s{sT1}, s{sT1}, 6')
    a(f's_add_u32 s{sT0}, s{sT0}, s{sT1}')
    a(f'v_lshlrev_b32 v{vT0}, 3, v{vG}')
    for i in range(2):
        a.vm('b1', f'buffer_load_dwordx2 {vr(BI4+2*i,2)}, v{vT0}, {srd(sB1)}, s{sT0} offen offset:{32*i}')
    sHA, sHB = sXB, sWB
    a(f's_lshl4_add_u32 s{sT0}, s{sWAVE}, s{sROT3}')
    a(f's_lshl_b32 s{sHA}, s{sT0}, 12')
    a(f's_lshl_b32 s{sT0}, s{sDT}, 18')
    a(f's_add_u32 s{sHA}, s{sHA}, s{sT0}')
    a(f's_add_u32 s{sHA}, s{sHA}, {WS_HN:#x}')
    a(f's_sub_u32 s{sHB}, s{sHA}, 65536')
    vRD = 9
    red_addr = [f's_mul_i32 s{sT0}, s{sWAVE}, 12288']
    for q in range(1, 4):
        red_addr += [f's_xor_b32 s{sT1}, s{sWAVE}, {q}', f's_mul_i32 s{sT1}, s{sT1}, 12288', f'v_add_u32 v{vRD+q-1}, s{sT1}, v{vL16}']
    red_addr += [f'v_add_u32 v{vRD+3}, s{sT0}, v{vL16}']
    a.run(red_addr)
    a(f's_bfe_u32 s{sT0}, s2, {1 | (2 << 16)}')
    a(f's_lshl2_add_u32 s{sT0}, s{sDT}, s{sT0}')
    a(f's_lshl3_add_u32 s{sT0}, s{sT0}, s{sZ}')
    a(f's_lshl2_add_u32 s{sT0}, s{sT0}, s{sWAVE}')
    a(f's_lshl_b32 s{sT0}, s{sT0}, 7')
    a(f's_add_u32 s{sT0}, s{sT0}, {WS_F2:#x}')
    poll('L_p2', sT0)
    a.stamp(0, 2, 3)
    def hreg(i, t): return H + 16 * (i % 7) + 4 * t
    def aload_txt(K3, i, t, so, f=1):
        if K3: return f'buffer_load_dwordx4 {vr(hreg(i,t),4)}, v{vA1 if t >> 1 else vA0}, {srd(sWS)}, s{so} offen offset:{1024*(t&1)}' + SCF[f]
        return f'buffer_load_dwordx4 {vr(hreg(i,t),4)}, v{vL16}, {srd(sWS)}, s{so} offen offset:{1024*t}' + SCF[f]
    def aaddr(K3, i, so):
        N = 16 if K3 else 14
        rot = sROT3 if K3 else sROT4
        return [f's_cmp_lt_u32 s{rot}, {N - i}', f's_cselect_b32 s{so}, s{sHA}, s{sHB}', f's_add_u32 s{so}, s{so}, {i*4096}']
    def aloads(K3, i):
        return [('grp', (aaddr(K3, i, sCNT) if t == 0 else []) + [('vm', ('a', K3, i), aload_txt(K3, i, t, sCNT, OPT['SA3' if K3 else 'SA4']))]) for t in range(4)]
    def acheck(K3, i):
        return [('wvm', ('a', K3, i))] + check(f'L_ra{int(K3)}_{i}', [hreg(i, t) for t in range(4)], aaddr(K3, i, sPOLL) + [aload_txt(K3, i, t, sPOLL) for t in range(4)])
    def acc34(K3, tw, ta):
        q, k = ((tw >> 1) + 2 * (ta >> 1), (tw & 1) + 2 * (ta & 1)) if K3 else (tw, ta)
        return q, vr(OWN + 16 * q + 4 * k, 4)
    def mm34(K3, i, quad=None):
        mm = []
        for ta in range(4):
            for tw in range(4):
                q, d = acc34(K3, tw, ta)
                if quad is not None and q != quad: continue
                A, B = (ar(16*i+4*tw, 4), vr(hreg(i, ta), 4)) if K3 else (vr(hreg(i, ta), 4), ar(16*i+4*tw, 4))
                mm.append(f'v_mfma_f32_16x16x32_bf16 {d}, {A}, {B}, {"0" if i == 0 else d}')
        return mm
    def red_w(q): return [('ds', 'rw', f'ds_write_b128 v{vRD+q-1}, {vr(OWN+16*q+4*k,4)} offset:{4096*(q-1)+1024*k}') for k in range(4)]
    def gemm34(K3, N, fills, first):
        NQ, D0 = OPT['NQ'], OPT['D0']
        for i in range(D0): a.run(aloads(K3, i))
        a.run(first)
        rest = [o for i in range(D0, N) for o in aloads(K3, i)]
        nb = N - NQ - 1
        a.run(acheck(K3, 0))
        a.stamp(2)
        done = 0
        for i in range(N - NQ):
            tgt = min(len(rest), ((i + 1) * len(rest) + nb - 1) // nb, 4 * (i + 6 - D0 + 1))
            ld = rest[done:tgt]; done = tgt
            f = mix(ld, fills.get(i, []))
            mm = mm34(K3, i)
            a.run(weave(mm[:11], f) + weave(mm[11:], acheck(K3, i + 1)))
            if i in ((3, 7, 12) if K3 else (4, 10)): a.stamp(2)
        assert done == len(rest)
        prev = None
        for j, q in enumerate((1, 2, 3, 0)):
            if j == 1 and K3 and lowbar:
                a.wait(ds=[('t',) + uid(npre - 1)])
                a('s_barrier')
            f = fills.get(N - NQ + j, [])
            if j == 0:
                for i in range(N - NQ, N):
                    a.run(weave(mm34(K3, i, q), acheck(K3, i + 1) if i + 1 < N else f))
                    if i == N - 2: a.stamp(2)
            else:
                mm = []
                for i in range(N - NQ, N): mm += mm34(K3, i, q)
                a.run(mm[:3] + weave(mm[3:], mix(f, red_w(prev))))
            prev = q
    def reduce_rd():
        a.wait_all(vm=False)
        a('s_barrier')
        for k in range(4):
            for q in range(3):
                a.ds(('rr', k), f'ds_read_b128 {vr(OTH+16*q+4*k,4)}, v{vRD+3} offset:{4096*q+1024*k}')
    def reduce_sum(k, bias):
        o = OWN + 4 * k
        ops = [('wds', ('rr', k))]
        for h in range(2):
            ops += [f'v_pk_add_f32 {vr(o+2*h,2)}, {vr(o+2*h,2)}, {bias(k, h)}', f'v_pk_add_f32 {vr(OTH+4*k+2*h,2)}, {vr(OTH+4*k+2*h,2)}, {vr(OTH+16+4*k+2*h,2)}']
        ops += [f'v_pk_add_f32 {vr(o+2*h,2)}, {vr(o+2*h,2)}, {vr(OTH+32+4*k+2*h,2)}' for h in range(2)]
        ops += [f'v_pk_add_f32 {vr(o+2*h,2)}, {vr(o+2*h,2)}, {vr(OTH+4*k+2*h,2)}' for h in range(2)]
        return ops
    first = events(OPT['EG'])
    while any(e[0] == 'M' for e in EV):
        e = EV.pop(0); first += evD(e[1]) if e[0] == 'D' else evM(e[1])
    first += [f's_sub_u32 s{sT0}, s{sPR}, s{sPL}'] + [f'v_subrev_u32 v{vR2L+t}, s{sT0}, v{vR2+t}' for t in range(4)] + [('wds', ('t', True, 15))]
    BF = ST
    fills = {8: [x for i in range(4) for x in (f'v_lshlrev_b32 v{BF+2*i}, 16, v{BI4+i}', f'v_and_b32 v{BF+2*i+1}, 0xffff0000, v{BI4+i}')]}
    nD = EV[0][1] if EV else 22 + NLOW
    npre = nD
    nM = 16
    NB3 = 16 - OPT['NQ']
    def free_slot(n, moved):
        if n < 22: return n % NSL, None
        last = {}
        for k in range(16, n): last[slot_of[uid(k)]] = k
        c = sorted(k for sl, k in last.items() if sl < NSL and k < moved)
        return (slot_of[uid(c[0])], c[0]) if c else (None, None)
    for i in range(1, NB3 + 4):
        f = []
        if i >= OPT['W2B'] and nD < 30:
            sl, pv = free_slot(nD, nM)
            if sl is not None:
                f += ([('wds', ('t',) + uid(pv))] if pv is not None else []) + dma_unit(False, nD - 16, vQ2, sl); nD += 1
        if i >= OPT['M2B'] and nM < npre and nM - 16 < min(i, NB3): f += evM(nM); nM += 1
        fills[i] = fills.get(i, []) + f
        if i == NB3: assert npre <= 22 or nM >= npre
    lowbar = npre > 22
    gemm34(True, 16, fills, first)
    a.stamp(0, 2, 3)
    reduce_rd()
    a(f's_mul_i32 s{sT0}, s{sDT}, {56*4096}')
    a(f's_lshl_b32 s{sT1}, s{sCT3}, 13')
    a(f's_add_u32 s{sT0}, s{sT0}, s{sT1}')
    a(f's_and_b32 s{sT1}, s{sWAVE}, 1')
    a(f's_lshl_b32 s{sT1}, s{sT1}, 12')
    a(f's_add_u32 s{sT0}, s{sT0}, s{sT1}')
    a(f's_add_u32 s{sT0}, s{sT0}, {WS_UF:#x}')
    f3 = [f's_lshl_b32 s{sT2}, s{sDT}, 7', f's_bfe_u32 s{sT1}, s2, {1 | (2 << 16)}', f's_add_u32 s{sT2}, s{sT2}, s{sT1}', f's_lshl_b32 s{sT2}, s{sT2}, 5', f's_add_u32 s{sT2}, s{sT2}, s{sZ}',
          f's_lshl_b32 s{sT2}, s{sT2}, 2', f's_add_u32 s{sT2}, s{sT2}, {WS_F3:#x}']
    a.run(f3)
    C1 = -2.0 * 0.7978845608028654 * 1.4426950408889634
    GC = ST + 8
    a(f'v_mov_b32 v{GC}, {f2h(C1 * 0.044715)}')
    a(f'v_mov_b32 v{GC+1}, {f2h(C1)}')
    T = H
    PK = H + 16
    ep = []
    for k in range(4): ep += reduce_sum(k, lambda k, h: vr(BF + 4 * (k & 1) + 2 * h, 2))
    nred = len(ep)
    ep += [f'v_pk_mul_f32 {vr(T+2*j,2)}, {vr(OWN+2*j,2)}, {vr(OWN+2*j,2)}' for j in range(8)]
    ep += [f'v_pk_fma_f32 {vr(T+2*j,2)}, {vr(T+2*j,2)}, {vr(GC,2)}, {vr(GC,2)} op_sel:[0,0,1] op_sel_hi:[1,0,1]' for j in range(8)]
    ep += [f'v_pk_mul_f32 {vr(T+2*j,2)}, {vr(T+2*j,2)}, {vr(OWN+2*j,2)}' for j in range(8)]
    ep += [f'v_exp_f32 v{T+j}, v{T+j}' for j in range(16)]
    ep += [f'v_pk_add_f32 {vr(T+2*j,2)}, {vr(T+2*j,2)}, 1.0 op_sel_hi:[1,0]' for j in range(8)]
    ep += [f'v_rcp_f32 v{T+j}, v{T+j}' for j in range(16)]
    ep += [f'v_pk_mul_f32 {vr(OWN+2*j,2)}, {vr(T+2*j,2)}, {vr(OWN+2*j,2)}' for j in range(8)]
    ep += [f'v_cvt_pk_bf16_f32 v{PK+j}, v{OWN+2*j}, v{OWN+2*j+1}' for j in range(8)]
    a.run(ep)
    for b in range(2):
        a.vm('ust', f'buffer_store_dwordx4 {vr(PK+4*b,4)}, v{vA0}, {srd(sWS)}, s{sT0} offen offset:{1024*b} sc1')
    flag(sT2)
    a.stamp(0, 3)
    if OPT['OPS'] == 30: a.run(opre(PK, vT0))
    while nM < 30:
        while nD < 30:
            sl, pv = free_slot(nD, nM - 1 if nM < nD else nM)
            if sl is None: break
            if pv is not None: a.wait(ds=[('t',) + uid(pv)])
            a.run(dma_unit(False, nD - 16, vQ2, sl)); nD += 1
        a.run(evM(nM)); nM += 1
    cut0 = len(a.items)
    a.label('L_skip3')
    vq, dq = a.vmq, a.dsq
    a.vmq, a.dsq = save[0], save[1]; slot_of.clear(); slot_of.update(save[3])
    a.run(f3)
    flag(sT2, barrier=False)
    a.wait_all(vm=False)
    nD = min([e[1] for e in save[2] if e[0] == 'D' and e[1] >= 16] + [22])
    assert nD <= 22 and all(sl < NSL for (k3, i_), sl in slot_of.items())
    for n in range(nD, 22): a.run(dma_unit(False, n - 16, vQ2, n % NSL))
    for n in range(16, 30):
        a.run(evM(n))
        if n > 16 and n + 5 < 30:
            a.wait(ds=[('t',) + uid(n - 1)])
            a.run(dma_unit(False, n + 5 - 16, vQ2, (n + 5) % NSL))
    a.run(red_addr)
    if OPT['SKT']:
        a(f's_and_b32 s{sT0}, s{sDT}, 3')
        a(f's_lshl2_add_u32 s{sT0}, s{sT0}, s{sWAVE}')
        a(f's_mul_i32 s{sT0}, s{sT0}, {112 * 8}')
        a(f's_and_b32 s{sT1}, s2, 7')
        a(f's_add_u32 s{sT0}, s{sT0}, s{sT1}')
        a(f's_lshl_b32 s{sT0}, s{sT0}, 9')
        a(f'v_lshrrev_b32 v{vT0}, 2, v{vL}')
        a(f'v_and_b32 v{vT1}, 3, v{vL}')
        a(f'v_lshlrev_b32 v{vT1}, 7, v{vT1}')
        a(f'v_lshl_add_u32 v{vT0}, v{vT0}, 12, v{vT1}')
        for n in range(7):
            a(f'buffer_load_dword v{vDUM}, v{vT0}, {srd(sW2)}, s{sT0} offen{nt("NTT")}')
            a(f's_add_u32 s{sT0}, s{sT0}, {16 * 4096}')
    a.wait_all()
    a.vmq = vq; a.dsq = dq
    a('s_branch L_join3')
    skipblk = a.items[cut0:]; del a.items[cut0:]
    a.label('L_join3')
    RES, PMX, vBI = ST, BI4, BI4 + 2
    sRS = sW1A
    a(f's_mul_i32 s{sT0}, s{sWAVE}, 14')
    a(f's_add_u32 s{sT0}, s{sT0}, s{sROT4}')
    a(f's_lshl_b32 s{sHA}, s{sT0}, 12')
    a(f's_mul_i32 s{sT0}, s{sDT}, {56*4096}')
    a(f's_add_u32 s{sHA}, s{sHA}, s{sT0}')
    a(f's_add_u32 s{sHA}, s{sHA}, {WS_UF:#x}')
    a(f's_sub_u32 s{sHB}, s{sHA}, {14*4096}')
    a(f's_lshl_b32 s{sT0}, s{sCT4}, 7')
    a(f's_lshl_b32 s{sT1}, s{sWAVE}, 5')
    a(f's_add_u32 s{sT0}, s{sT0}, s{sT1}')
    a(f'v_lshlrev_b32 v{vT0}, 1, v{vC}')
    a.vm('b2', f'buffer_load_ushort v{vBI}, v{vT0}, {srd(sB2)}, s{sT0} offen')
    a(f'v_lshrrev_b32 v{vT0}, 3, v{vC}')
    a(f'v_and_b32 v{vT1}, 1, v{vC}')
    a(f'v_lshl_add_u32 v{vT0}, v{vT1}, 1, v{vT0}')
    a(f'v_bfe_u32 v{vT1}, v{vC}, 1, 1')
    a(f'v_lshlrev_b32 v{vT1}, 4, v{vT1}')
    a(f'v_mov_b32 v{vT2}, 0x3f80')
    a(f'v_lshlrev_b32 v{vT1}, v{vT1}, v{vT2}')
    a(f'v_cmp_eq_u32 vcc, v{vT0}, v{vG}')
    a(f'v_cndmask_b32 v{vT1}, 0, v{vT1}, vcc')
    a(f'v_and_b32 v{vT0}, 4, v{vC}')
    a(f'v_cmp_eq_u32 vcc, 0, v{vT0}')
    a(f'v_cndmask_b32 v{PMX}, 0, v{vT1}, vcc')
    a(f'v_cndmask_b32_e64 v{PMX+1}, v{vT1}, 0, vcc')
    a(f'v_lshrrev_b32 v{vA0}, 1, v{vG}')
    a(f'v_lshlrev_b32 v{vA0}, 17, v{vA0}')
    a(f'v_lshl_add_u32 v{vA0}, v{vC}, 4, v{vA0}')
    a(f'v_and_b32 v{vT1}, 1, v{vG}')
    a(f'v_lshl_add_u32 v{vA0}, v{vT1}, 3, v{vA0}')
    a(f's_lshl_b32 s{sRS}, s{sDT}, 18')
    a(f's_lshl_b32 s{sT2}, s{sCT4}, 12')
    a(f's_add_u32 s{sRS}, s{sRS}, s{sT2}')
    a(f's_lshl_b32 s{sT2}, s{sWAVE}, 8')
    a(f's_add_u32 s{sRS}, s{sRS}, s{sT2}')
    a(f's_add_u32 s{sRS}, s{sRS}, {WS_HF:#x}')
    a(f'v_lshlrev_b32 v{vA1}, 10, v{vC}')
    a(f'v_lshl_add_u32 v{vA1}, v{vT1}, 5, v{vA1}')
    a(f'v_lshrrev_b32 v{vT1}, 1, v{vG}')
    a(f'v_lshl_add_u32 v{vA1}, v{vT1}, 4, v{vA1}')
    a(f's_lshl_b32 s{sT0}, s{sDT}, 5')
    a(f's_add_u32 s{sT0}, s{sT0}, s{sCT4}')
    a(f's_lshl2_add_u32 s{sT0}, s{sT0}, s{sWAVE}')
    a(f's_lshl_b32 s{sT0}, s{sT0}, 7')
    a(f's_add_u32 s{sT0}, s{sT0}, {WS_F3:#x}')
    poll('L_p3', sT0)
    a.stamp(0, 2, 3)
    N4 = 14 - OPT['NQ']
    fills = {2: [('vm', 'res', f'buffer_load_dwordx2 {vr(RES+2*t,2)}, v{vA0}, {srd(sWS)}, s{sRS} offen offset:{1024*t} sc1') for t in range(4)],
             N4 + 2: [('wvm', 'res')] + [f'v_mfma_f32_16x16x16_bf16 {acc34(False,0,t)[1]}, {vr(RES+2*t,2)}, {vr(PMX,2)}, {acc34(False,0,t)[1]}' for t in range(4)],
             3: [f'v_lshlrev_b32 v{vBI}, 16, v{vBI}', f'v_mov_b32 v{vBI+1}, v{vBI}', f's_lshl_b32 s{sT0}, s{sCT4}, 16', f's_lshl_b32 s{sT1}, s{sWAVE}, 14',
                 f's_add_u32 s{sT0}, s{sT0}, s{sT1}', f's_lshl_b32 s{sT1}, s{sDT}, 7', f's_add_u32 s{sT0}, s{sT0}, s{sT1}']}
    if OPT['OPF'] >= 0:
        fills[OPT['OPF']] = fills.get(OPT['OPF'], []) + [('vm', 'opf', f'buffer_load_dword v{vDUM}, v{vA1}, {srd(sOUT)}, s{sT0} offen')]
    gemm34(False, 14, fills, [])
    a.stamp(0, 2)
    reduce_rd()
    for k in range(4): a.run(reduce_sum(k, lambda k, h: vr(vBI, 2)))
    for j in range(8): a(f'v_cvt_pk_bf16_f32 v{PK+j}, v{OWN+2*j}, v{OWN+2*j+1}')
    for e in range(2):
        for h in range(2):
            a(f'v_permlane16_swap_b32 v{PK+4*e+h}, v{PK+4*e+2+h}')
    for e in range(2):
        a(f'buffer_store_dwordx4 {vr(PK+4*e,4)}, v{vA1}, {srd(sOUT)}, s{sT0} offen offset:{64*e}' + ['', ' sc1', ' nt', ' sc0 sc1'][OPT['OSC']])
    a.stamp()
    if PROF:
        a('s_waitcnt lgkmcnt(0)')
        a(f's_cmp_lg_u32 s{sWAVE}, 0')
        a('s_cbranch_scc1 L_end')
        if OPT['AMP'] >= 0:
            a(f's_cmp_lg_u32 s2, {OPT["AWG"]}')
            a('s_cbranch_scc1 L_end')
            a(f's_sub_u32 s{sT2}, s{70+2*OPT["AMP"]}, s70')
            a(f's_lshl_b32 s{sT2}, s{sT2}, 3')
            a(f's_min_u32 s{sT2}, s{sT2}, 100000')
            a(f's_memrealtime s[{sT0}:{sT1}]')
            a('s_waitcnt lgkmcnt(0)')
            a(f's_mov_b32 s{sCNT}, s{sT0}')
            a.label('L_amp')
            a(f's_memrealtime s[{sT0}:{sT1}]')
            a('s_waitcnt lgkmcnt(0)')
            a(f's_sub_u32 s{sT0}, s{sT0}, s{sCNT}')
            a(f's_cmp_lt_u32 s{sT0}, s{sT2}')
            a('s_cbranch_scc1 L_amp')
            a('s_branch L_end')
        a(f's_mul_i32 s{sT0}, s2, {NSTAMP * 8}')
        a(f's_add_u32 s{sT0}, s{sT0}, {128 * MB:#x}')
        a(f's_add_u32 s{sT0}, s{sWS}, s{sT0}')
        a(f's_addc_u32 s{sT1}, s{sWS+1}, 0')
        a(f's_sub_u32 s{sT0}, s{sT0}, {OPT["WSO"] * MB:#x}')
        a(f's_subb_u32 s{sT1}, s{sT1}, 0')
        a(f'v_mov_b32 v{vT0}, 0')
        for i in range(a.nst):
            a(f'v_mov_b32 v{H+2*i}, s{70+2*i}')
            a(f'v_mov_b32 v{H+2*i+1}, s{71+2*i}')
            a(f'global_store_dwordx2 v{vT0}, v[{H+2*i}:{H+2*i+1}], s[{sT0}:{sT1}] offset:{8*i}')
        a(f'v_mov_b32 v{H}, s{sBUD}')
        a(f'v_mov_b32 v{H+1}, 0')
        a(f'global_store_dwordx2 v{vT0}, v[{H}:{H+1}], s[{sT0}:{sT1}] offset:{8*19}')
        a(f'v_mov_b32 v{H+10}, s101')
        a(f'v_mov_b32 v{H+11}, 0')
        a(f'global_store_dwordx2 v{vT0}, v[{H+10}:{H+11}], s[{sT0}:{sT1}] offset:{8*15}')
        for k, r in enumerate((252, 254, 255)):
            a(f'v_mov_b32 v{H+2+2*k}, v{r}')
            a(f'v_mov_b32 v{H+3+2*k}, 0')
            a(f'global_store_dwordx2 v{vT0}, v[{H+2+2*k}:{H+3+2*k}], s[{sT0}:{sT1}] offset:{8*(16+k)}')
    a.label('L_end')
    a('s_endpgm')
    a.items += skipblk
    for blk in tail:
        for ln in blk: a(ln)
    a.raw('.p2align 8, 0')
    a.label('L_last')
    a.raw('.fill 64, 4, 0xbf810000')
    return a, name, LDS

HEADER = open('cdna_kernels/' + NAME + '.s.ref').read().split('; Override launch')[0]

def hops(body):
    import subprocess, re, tempfile, os
    lines = body.split('\n')
    d = tempfile.mkdtemp()
    src = '.amdgcn_target "amdgcn-amd-amdhsa--gfx950"\n.text\n' + body + ''.join(f'L_pg{k}:\n' for k in range(1, 9))
    open(d + '/t.s', 'w').write(src)
    subprocess.run(['clang', '-x', 'assembler', '-target', 'amdgcn-amd-amdhsa', '-mcpu=gfx950', '-c', d + '/t.s', '-o', d + '/t.o'], check=True)
    dis = subprocess.run(['llvm-objdump', '-d', d + '/t.o'], capture_output=True, text=True).stdout
    addr = [int(m.group(1), 16) for m in re.finditer(r'// ([0-9A-F]{12}):', dis)]
    out = []; k = 0; pg = 1; shift = 0; done = False
    for ln in lines:
        if ln.startswith('.p2align 8, 0'): done = True
        if ln.startswith('    ') and not done:
            if pg <= 8 and addr[k] + shift >= 4096 * pg:
                tg = ("L_pgb" if pg % 2 == 0 else f"L_pg{pg+1}") if OPT['HOP'] == 1 else ('L_pgb' if pg <= 4 else 'L_pgc')
                out += [f'L_pg{pg}:', f'    s_cbranch_execz {tg}']
                pg += 1; shift += 4
            k += 1
        if ln.startswith('.p2align 8, 0'):
            while pg <= 8:
                out += [f'L_pg{pg}:']; pg += 1
            out += ['    s_branch ' + ('L_pgb' if OPT['HOP'] == 1 else 'L_pgc')]
        out.append(ln)
    return '\n'.join(out)

def main():
    a, name, lds = gen()
    body = a.finalize()
    if OPT['HOP']: body = hops(body)
    out = HEADER + f'; @launch grid=(256,1,1) block=(256,1,1) lds={lds}\n'
    out += '.amdgcn_target "amdgcn-amd-amdhsa--gfx950"\n.text\n' + body
    out += f""".section .rodata,"a"
.p2align 6
.amdhsa_kernel {name}
  .amdhsa_next_free_vgpr 512
  .amdhsa_next_free_sgpr 102
  .amdhsa_accum_offset 256
  .amdhsa_group_segment_fixed_size 0
  .amdhsa_kernarg_size 88
  .amdhsa_user_sgpr_count 2
  .amdhsa_user_sgpr_kernarg_segment_ptr 1
  .amdhsa_system_sgpr_workgroup_id_x 1
.end_amdhsa_kernel
"""
    open(sys.argv[1], 'w').write(out)
    print('nops inserted', a.nops_inserted, 'lines', out.count('\n'), 'stamps', a.nst)

if __name__ == '__main__':
    main()
```

```python
import sys, struct
from asmgen import Asm

NAME = "sequential_preLN__sliding_local_dilated__mixer_token_mlp__prompt"
PROF = '--prof' in sys.argv
OPT = dict(OFS=0, TLF=0, TLW=0, KX=7, PRO=1, MAP=0, C4M=0, SXR=0, PW1=0, PW2=0, PW3=0, PR=0, SXL=1, SXS=1, HFL=0, SXW=8, SKW=0, CLW=0, OPS=-1, CO=3, CH=5, CU=7, CS=9, CD=0, XP=0, TWW=0, TWX=0, TWP=0, W2L=0, MF=0, SA3=1, SA4=1, SO=1, A3=0, A4=0, ZD3=0, SXP=0, SXD=4, OPF=-1, SXI=1, HOP=0, CLX=2, WSO=0, CLF=0, CW=1, ALN=12, XS=3, TWB=9, PB1=-1, PB2=-1, WOB=10, SKZ=1, NT1=0, NT2=0, NTT=0, NTX=0, NTW=0, NTO=0, EA=5, AEV=11, EB1=7, EB2=9, EC=11, ED=15, EE=15, EF=25, EG=25, NLOW=4, M2B=1, PG=0, TWO=1, NQ=3, D0=4, PRE1=14, PRE2=25, ZS3=0, AMP=-1, AWG=0,
           W2B=11, OSC=1, SKT=0, CLB=3, CLS=2, CLP=2, KPM=4,
           TN1=64, TB1=-1, TS1=2, DX=0, TW3=0, R3M=3, R4M=3, KP3=7, TN2=64, TB2=-1, TS2=1)
for a_ in sys.argv[2:]:
    if '=' in a_:
        k_, v_ = a_.split('='); assert k_ in OPT, k_; OPT[k_] = int(v_)
NSTAMP = 20
def ntu(K3, i): return ' nt' if i < OPT['NT1' if K3 else 'NT2'] else ''
SCF = ['', ' sc1', ' sc0', ' nt', ' sc0 sc1', ' sc1 nt', ' sc0 sc1 nt']
def nt(k): return ' nt' if OPT[k] else ''
MB = 1 << 20
KB = 1024
WS_OF, WS_HN, WS_HF, WS_UF, WS_SX = 0, 2 * MB, 4 * MB, 6 * MB, 8 * MB
WS_F1, WS_DUM = 8 * MB + 256 * KB, 9 * MB
WS_F2, WS_F3 = WS_F1 + 128 * KB, WS_F1 + 256 * KB
NEGBIG = 0xF149F2CA
SPIN = 1 << 17

def vr(b, n=1): return f'v{b}' if n == 1 else f'v[{b}:{b+n-1}]'
def ar(b, n=1): return f'a{b}' if n == 1 else f'a[{b}:{b+n-1}]'
def srd(b): return f's[{b}:{b+3}]'
def f2h(x): return '%#x' % struct.unpack('<I', struct.pack('<f', x))[0]

class Em(Asm):
    def __init__(self):
        super().__init__()
        self.vmq = []; self.dsq = []; self.nst = 0
        self.inj = []; self.every = 1; self.cnt = 0
    def __call__(self, text):
        super().__call__(text)
        if self.inj and text.startswith('v_'):
            self.cnt += 1
            if self.cnt >= self.every:
                self.cnt = 0
                q = self.inj; op = q.pop(0); self.inj = []
                self.run([op]); self.inj = q
    def inject(self, ops, every): self.inj = list(ops); self.every = every; self.cnt = 0
    def flush(self):
        q = self.inj; self.inj = []; self.run(q)
    def vm(self, tag, text):
        self(text); self.vmq.append(tag)
        assert len(self.vmq) <= 63, ('vm overflow', tag)
    def ds(self, tag, text):
        self(text); self.dsq.append(tag)
    @staticmethod
    def _n(q, tags):
        idx = -1
        for k, t in enumerate(q):
            if t in tags: idx = k
        return idx
    def wait(self, vm=(), ds=()):
        s = []
        i = self._n(self.vmq, list(vm))
        if i >= 0:
            s.append(f'vmcnt({len(self.vmq) - 1 - i})'); self.vmq = self.vmq[i + 1:]
        i = self._n(self.dsq, list(ds))
        if i >= 0:
            n = len(self.dsq) - 1 - i
            if n > 15: n = 15
            s.append(f'lgkmcnt({n})'); self.dsq = self.dsq[len(self.dsq) - n:] if n else []
        if s: self('s_waitcnt ' + ' '.join(s))
    def wait_all(self, vm=True, ds=True):
        s = []
        if vm: s.append('vmcnt(0)'); self.vmq = []
        if ds: s.append('lgkmcnt(0)'); self.dsq = []
        self('s_waitcnt ' + ' '.join(s))
    def run(self, ops):
        for op in ops:
            if isinstance(op, str): self(op)
            elif op[0] == 'vm': self.vm(op[1], op[2])
            elif op[0] == 'ds': self.ds(op[1], op[2])
            elif op[0] == 'wvm': self.wait(vm=[op[1]])
            elif op[0] == 'wds': self.wait(ds=[op[1]])
            elif op[0] == 'grp': self.run(op[1])
            elif op[0] == 'label': self.label(op[1])
            else: raise ValueError(op)
    def stamp(self, *grps):
        if not PROF: return
        if not grps: grps = (0,)
        if OPT['PG'] not in grps and -1 not in grps: return
        assert self.nst < 15
        self(f's_memrealtime s[{70 + 2*self.nst}:{71 + 2*self.nst}]')
        self.nst += 1

def flat(ops):
    out = []
    for op in ops:
        if not isinstance(op, str) and op[0] == 'grp': out += flat(op[1])
        else: out.append(op)
    return out

def weave(prim, fill, lead=0):
    out = []
    n, m = len(prim), len(fill)
    k = 0
    for i, p in enumerate(prim):
        out.append(p)
        tgt = min(m, (m * (i + 1) + n - 1) // n + lead) if n else m
        while k < tgt:
            out.append(fill[k]); k += 1
    out += fill[k:]
    return out
def mix(a, b): return weave(a, b) if len(a) >= len(b) else weave(b, a)

sX, sWQ, sWO, sW1, sB1, sW2, sB2, sOUT, sDBG, sWS = 4, 8, 12, 16, 20, 24, 28, 32, 36, 40
sPOLL = 4
sWAVE, sBUD, sT0, sT1, sT2, sCNT = 44, 45, 46, 47, 48, 49
sXB, sWB, sWOB, sLW, sRT, sDT = 50, 51, 52, 53, 54, 55
sCT3, sCT4, sROT3, sROT4 = 56, 57, 58, 59
sW1A, sW1B, sW2A, sW2B, sPR, sLIM1 = 60, 61, 62, 63, 64, 65
sSTP1, sZ = 66, 67
sNON = 68
sD3 = 100
vL, vG, vC, vT0, vT1, vT2, vT3, vL16 = 1, 2, 3, 4, 5, 6, 7, 8
vDUM, vCK = 252, 253

def gen():
    a = Em()
    tail = []
    name = NAME + '_kernel'
    a.raw(f'.globl {name}\n.p2align {OPT["ALN"]}\n' + (f'.fill {OPT["OFS"] * 64}, 4, 0xbf810000\n' if OPT['OFS'] else '') + f'.type {name},@function')
    a.label(name)
    a.stamp(-1)
    NW = 6
    L_X = NW * 12288
    L_H = L_X + 64 * KB
    L_NM = L_H + 8 * KB
    L_HP = L_NM + 2560
    L_PR = 64 * KB
    NSL = 6
    LDS = 160 * KB
    assert L_HP + 2048 <= LDS
    later = []
    for k_, (s, off) in enumerate(((sX, 0), (sWQ, 8), (sWS, 80), (sDBG, 72), (sWO, 16), (sW1, 32), (sB1, 40), (sW2, 48), (sB2, 56), (sOUT, 64))):
        t_ = f's_load_dwordx2 s[{s}:{s+1}], s[0:1], {off}'
        if OPT['PRO'] and k_ >= 2: later.append(t_)
        else: a(t_)
    a('s_cmp_ge_u32 s2, 256')
    a('s_cbranch_scc1 L_end')
    a(f'v_lshrrev_b32 v{vG}, 6, v0')
    a(f'v_and_b32 v{vL}, 63, v0')
    a(f'v_readfirstlane_b32 s{sWAVE}, v{vG}')
    if OPT['CW']:
        a(f's_getpc_b64 s[{sT0}:{sT1}]')
        a(f's_and_b32 s{sT0}, s{sT0}, 0xffffff00')
        a(f's_lshr_b32 s{sT2}, s2, 3')
        a(f's_lshl2_add_u32 s{sT2}, s{sT2}, s{sWAVE}')
        a(f's_lshl_b32 s{sT2}, s{sT2}, 8')
        a(f's_min_u32 s{sT2}, s{sT2}, (L_last-{name})&0xffffff00')
        a(f'v_and_b32 v{vT0}, 1, v0')
        a(f'v_lshl_add_u32 v{vT0}, v{vT0}, 7, s{sT2}')
        a.vm('cw', f'global_load_dword v{vDUM}, v{vT0}, s[{sT0}:{sT1}]')
    a(f'v_lshrrev_b32 v{vG}, 4, v{vL}')
    a(f'v_and_b32 v{vC}, 15, v{vL}')
    a(f'v_lshlrev_b32 v{vL16}, 4, v{vL}')
    for s, n in ((sX, 2048 * 1024), (sWQ, 512 * 3072), (sWS, 16 * MB), (sDBG, 256), (sWO, 512 * 1024), (sW1, 2048 * 3584),
                 (sB1, 3584), (sW2, 1792 * 4096), (sB2, 4096), (sOUT, 2048 * 1024)):
        t_ = [f's_mov_b32 s{s+2}, {n:#x}', f's_mov_b32 s{s+3}, 0x20000']
        if OPT['PRO'] and s not in (sX, sWQ): later += t_
        else: a.run(t_)
    vXD, vWD, vWOD, vXR, vHR, vTR, vSR, vHS = 9, 10, 11, 12, 13, 14, 16, 17
    vXD1, vE0 = 18, 19
    WB, XB, ACC, SB, GS, GO, GH, CST, STC = 20, 44, 104, 164, 180, 184, 188, 192, 212
    QP, KP, VP = 222, 230, 20
    vXR1, vSR1, vRA = 240, 241, 242
    vQ1, vR1 = 244, 248
    SEN = QP
    sXL, sHL, sHB, sKP = sW2A, sW2B, sROT4, sPR
    if OPT['MAP'] == 0:
        a(f's_lshr_b32 s{sZ}, s2, 5')
        a(f's_bfe_u32 s{sT0}, s2, {1 | (2 << 16)}')
        a(f's_lshr_b32 s{sT1}, s2, 6')
        a(f's_lshl2_add_u32 s{sT0}, s{sT0}, s{sT1}')
        a(f's_and_b32 s{sT1}, s{sZ}, 1')
        a(f's_lshl4_add_u32 s{sRT}, s{sT1}, s{sT0}')
        a(f's_lshl_b32 s{sT1}, s{sT1}, 10')
        a(f's_bfe_u32 s{sT2}, s2, {3 | (2 << 16)}')
        if OPT['DX'] & 3: a(f's_xor_b32 s{sT2}, s{sT2}, {OPT["DX"] & 3}')
        a(f's_and_b32 s{sDT}, s2, 1')
        if OPT['DX'] & 4: a(f's_xor_b32 s{sDT}, s{sDT}, 1')
        a(f's_lshl2_add_u32 s{sDT}, s{sDT}, s{sT2}')
        a(f's_lshl_b32 s{sT2}, s{sT2}, 1')
        a(f's_xor_b32 s{sKP}, s{sT2}, s{sZ}')
    else:
        a(f's_lshr_b32 s{sZ}, s2, 6')
        a(f's_and_b32 s{sT0}, s2, 7')
        a(f's_lshr_b32 s{sT1}, s2, 7')
        a(f's_lshl1_add_u32 s{sT0}, s{sT0}, s{sT1}')
        a(f's_and_b32 s{sT1}, s{sZ}, 1')
        a(f's_lshl4_add_u32 s{sRT}, s{sT1}, s{sT0}')
        a(f's_lshl_b32 s{sT1}, s{sT1}, 10')
        a(f's_bfe_u32 s{sDT}, s2, {3 | (3 << 16)}')
        a(f's_lshl_b32 s{sT2}, s{sZ}, 1')
        a(f's_xor_b32 s{sKP}, s{sT2}, s{sDT}')
    a(f's_cmp_eq_u32 s{sDT}, 3')
    a(f's_cselect_b32 s{sWB}, {OPT["KP3"]}, {OPT["KPM"]}')
    a(f's_and_b32 s{sKP}, s{sKP}, s{sWB}')
    if OPT['KX']:
        a(f's_lshr_b32 s{sWB}, s2, 1')
        if OPT['KX'] & 4:
            a(f's_lshl_b32 s{sT2}, s2, 1')
            a(f's_xor_b32 s{sWB}, s{sWB}, s{sT2}')
        a(f's_and_b32 s{sWB}, s{sWB}, {OPT["KX"] & 3}')
        a(f's_xor_b32 s{sKP}, s{sKP}, s{sWB}')
    a(f's_lshl_b32 s{sWB}, s{sKP}, 1')
    a(f's_lshl2_add_u32 s{sXB}, s{sT0}, s{sWAVE}')
    a(f's_lshl_b32 s{sXB}, s{sXB}, 15')
    a(f's_add_u32 s{sXB}, s{sXB}, s{sT1}')
    a(f's_lshl_b32 s{sT2}, s{sKP}, 7')
    a(f's_add_u32 s{sXB}, s{sXB}, s{sT2}')
    a(f's_lshl_b32 s{sT0}, s{sT0}, 17')
    a(f's_sub_u32 s{sT0}, s{sT0}, 16384')
    a(f's_max_i32 s{sT0}, s{sT0}, 0')
    a(f's_add_u32 s{sT0}, s{sT0}, s{sT1}')
    a(f's_xor_b32 s{sT2}, s{sKP}, s{sWAVE}')
    a(f's_lshl_b32 s{sT2}, s{sT2}, 7')
    a(f's_add_u32 s{sHB}, s{sT0}, s{sT2}')
    a(f's_lshl_b32 s{sXL}, s{sWAVE}, 14')
    a(f's_add_u32 s{sXL}, s{sXL}, {L_X}')
    a(f's_lshl_b32 s{sHL}, s{sWAVE}, 10')
    a(f's_add_u32 s{sHL}, s{sHL}, {L_H}')
    a(f's_mul_i32 s{sLW}, s{sWAVE}, 3072')
    a(f'v_lshrrev_b32 v{vT0}, 3, v{vL}')
    a(f'v_and_b32 v{vT1}, 7, v{vL}')
    a(f'v_xor_b32 v{vT1}, v{vT1}, v{vG}')
    a(f'v_lshlrev_b32 v{vT1}, 4, v{vT1}')
    a(f'v_lshl_add_u32 v{vXD}, v{vT0}, 11, v{vT1}')
    a(f'v_xor_b32 v{vXD1}, 64, v{vXD}')
    a(f'v_add_u32 v{vXD1}, {16384 - 1024}, v{vXD1}')
    a(f's_lshl_b32 s{sT0}, s{sDT}, 7')
    a(f's_lshl3_add_u32 s{sT0}, s{sLW}, s{sT0}')
    a(f'v_mov_b32 v{vT1}, 3072')
    a(f'v_mad_u32_u24 v{vWD}, v{vT0}, v{vT1}, s{sT0}')
    a(f'v_lshrrev_b32 v{vT0}, 1, v{vL}')
    a(f'v_and_b32 v{vT1}, 1, v{vG}')
    a(f's_lshl_b32 s3, s{sWAVE}, 1')
    a(f'v_xor_b32 v{vT0}, v{vT0}, v{vT1}')
    a(f'v_xor_b32 v{vT0}, s3, v{vT0}')
    a(f'v_and_b32 v{vT0}, 3, v{vT0}')
    a(f'v_lshl_add_u32 v{vWD}, v{vT0}, 5, v{vWD}')
    a(f'v_and_b32 v{vT0}, 1, v{vL}')
    a(f'v_lshl_add_u32 v{vWD}, v{vT0}, 4, v{vWD}')
    vTWW, vTWX = 254, 255
    if OPT['TWW'] or OPT['TWX']:
        a(f's_lshr_b32 s{sT0}, s2, 3')
        a(f's_lshl2_add_u32 s{sT0}, s{sT0}, s{sWAVE}')
    if OPT['TWW']:
        a(f's_mul_i32 s{sT1}, s{sT0}, {4 * 3072}')
        a(f's_and_b32 s{sT2}, s2, 1')
        a(f's_lshl_b32 s{sT2}, s{sT2}, 9')
        a(f's_add_u32 s{sT1}, s{sT1}, s{sT2}')
        a(f'v_mul_u32_u24 v{vTWW}, 3072, v{vG}')
        a(f'v_lshrrev_b32 v{vT0}, 2, v{vC}')
        a(f'v_min_u32 v{vT0}, 2, v{vT0}')
        a(f'v_lshl_add_u32 v{vTWW}, v{vT0}, 10, v{vTWW}')
        a(f'v_and_b32 v{vT0}, 3, v{vC}')
        a(f'v_lshlrev_b32 v{vT0}, 7, v{vT0}')
        a(f'v_add3_u32 v{vTWW}, v{vTWW}, v{vT0}, s{sT1}')
    if OPT['TWX']:
        a(f's_bfe_u32 s{sT1}, s2, {1 | (2 << 16)}')
        a(f's_lshl_b32 s{sT1}, s{sT1}, 7')
        a(f's_add_u32 s{sT1}, s{sT1}, s{sT0}')
        a(f's_lshl_b32 s{sT1}, s{sT1}, 12')
        a(f'v_and_b32 v{vT0}, 31, v{vL}')
        a(f'v_lshl_add_u32 v{vTWX}, v{vT0}, 7, s{sT1}')
    def hop(first, back):
        a('s_mov_b64 exec, 0')
        for w in range(1, 4):
            a(f's_cmp_eq_u32 s{sWAVE}, {w}')
            a(f's_cbranch_scc1 L_pg{first+w}')
        a(f's_branch L_pg{first}')
        a.label(back)
        a('s_mov_b64 exec, -1')
    if OPT['HOP'] == 2: hop(1, 'L_pgb')
    a('s_waitcnt lgkmcnt(0)')
    a.stamp(1)
    wso = [f's_add_u32 s{sWS}, s{sWS}, {OPT["WSO"] * MB:#x}', f's_addc_u32 s{sWS+1}, s{sWS+1}, 0'] if OPT['WSO'] else []
    def xloads(p):
        return [('grp', [f's_add_u32 m0, s{sXL}, {p * 2048}', f's_xor_b32 s3, s{sXB}, {p * 128}',
                         ('vm', ('x', p), f'buffer_load_dwordx4 v{vXD}, {srd(sX)}, s3 offen{nt("NTX")} lds')]),
                ('vm', ('x', p), f'buffer_load_dwordx4 v{vXD1}, {srd(sX)}, s3 offen offset:1024{nt("NTX")} lds')]
    def hloads(j):
        return [('grp', [f's_add_u32 m0, s{sHL}, {j * 4096}', f's_xor_b32 s3, s{sHB}, {j * 512}', 's_mov_b32 exec_lo, 0xffffff00',
                         ('vm', ('h', j), f'buffer_load_dwordx4 v{vXD}, {srd(sX)}, s3 offen{nt("NTX")} lds'), 's_mov_b32 exec_lo, -1'])]
    def wloads(k):
        slot = k % NW
        if k < 16:
            return [('grp', [f's_add_u32 m0, s{sLW}, {slot * 12288}', f's_xor_b32 s3, s{sWB}, {k}', f's_mul_i32 s3, s3, {32 * 3072}',
                             ('vm', ('w', k), f'buffer_load_dwordx4 v{vWD}, {srd(sWQ)}, s3 offen{nt("NTW")} lds')])] + \
                   [('vm', ('w', k), f'buffer_load_dwordx4 v{vWD}, {srd(sWQ)}, s3 offen offset:{1024*R}{nt("NTW")} lds') for R in (1, 2)]
        ops = []
        for j in range(3 if slot < 5 else 1):
            i = 3 * slot + j
            ops.append(('grp', [f's_add_u32 m0, s{sLW}, {i * 4096}', f's_add_u32 s3, s{sWOB}, {i * 32768}',
                                ('vm', 'wo', f'buffer_load_dwordx4 v{vWOD}, {srd(sWO)}, s3 offen{nt("NTO")} lds')]))
        return ops
    seq = [xloads(0), hloads(0), wloads(0), wloads(1), xloads(1), wloads(2), wloads(3), xloads(2), wloads(4), wloads(5)]
    def take(n):
        while seq and len(a.vmq) - OPT["CW"] + len(seq[0]) <= n: a.run(seq.pop(0))
    def tw3():
        a(f's_lshr_b32 s{sT0}, s2, 3')
        a(f's_lshl2_add_u32 s{sT0}, s{sT0}, s{sWAVE}')
        a(f's_mul_i32 s{sT0}, s{sT0}, 12')
        a(f's_lshr_b32 s{sT1}, s{sDT}, 2')
        a(f's_lshl_b32 s{sT1}, s{sT1}, 11')
        a(f's_add_u32 s{sT0}, s{sT0}, s{sT1}')
        a(f'v_min_u32 v{vT3}, 11, v{vC}')
        a(f'v_add_lshl_u32 v{vT3}, v{vT3}, s{sT0}, 10')
        a.vm('tw', f'buffer_load_dword v{vDUM}, v{vT3}, {srd(sWQ)}, 0 offen offset:384')
    ntw = 0
    if OPT['TWW'] or OPT['TWX']:
        take(OPT['TWP'])
        if OPT['TWX'] == 2: a.vm('tw', f'buffer_load_dword v{vDUM}, v{vTWX}, {srd(sX)}, 0 offen')
        if OPT['TWW']: a.vm('tw', f'buffer_load_dword v{vDUM}, v{vTWW}, {srd(sWQ)}, 0 offen')
        if OPT['TWX'] == 1: a.vm('tw', f'buffer_load_dword v{vDUM}, v{vTWX}, {srd(sX)}, 0 offen')
    if OPT['TW3'] == 1: tw3()
    if OPT['TW3'] == 2: take(6); tw3()
    take(OPT['PRE1'])
    if OPT['TW3'] == 3: tw3()
    a.run(later)
    assert not (wso and later)
    a.run(wso)
    a.stamp(1)
    a(f's_or_b32 s{sT0}, s2, s{sWAVE}')
    a(f's_cmp_lg_u32 s{sT0}, 0')
    a('s_cbranch_scc1 L_nononce')
    a(f's_memrealtime s[{sT0}:{sT1}]')
    a(f'v_mov_b32 v{vT1}, 0')
    a('s_waitcnt lgkmcnt(0)')
    a(f's_or_b32 s{sT0}, s{sT0}, 1')
    a(f'v_mov_b32 v{vT0}, s{sT0}')
    a('s_mov_b64 exec, 1')
    a(f'buffer_store_dword v{vT0}, v{vT1}, {srd(sDBG)}, 0 offen sc1')
    a('s_mov_b64 exec, -1')
    a.label('L_nononce')
    BC, BP, BP0, MC, MP, ONE = CST, CST + 4, CST + 8, CST + 12, CST + 14, CST + 16
    for k in range(4): a(f'v_mov_b32 v{ONE+k}, 0x3f803f80')
    a(f'v_lshrrev_b32 v{vT0}, 3, v{vL}')
    a(f'v_and_b32 v{vT1}, 7, v{vL}')
    a(f'v_lshlrev_b32 v{vT1}, 4, v{vT1}')
    a(f'v_lshl_add_u32 v{vT0}, v{vT0}, 10, v{vT1}')
    a(f'v_add_u32 v{vT0}, {L_H}, v{vT0}')
    a(f'ds_write_b128 v{vT0}, {vr(ONE,4)}')
    a(f'v_lshrrev_b32 v{vT0}, 1, v{vC}')
    a(f'v_xor_b32 v{vT0}, v{vT0}, v{vG}')
    a(f'v_lshlrev_b32 v{vT0}, 4, v{vT0}')
    a(f'v_lshl_add_u32 v{vT0}, v{vC}, 7, v{vT0}')
    a(f'v_add_u32 v{vSR}, s{sXL}, v{vT0}')
    a(f'v_add_u32 v{vXR}, {L_X}, v{vT0}')
    a(f'v_xor_b32 v{vSR1}, 64, v{vSR}')
    a(f'v_xor_b32 v{vXR1}, 64, v{vXR}')
    a(f'v_and_b32 v{vT0}, {0x3bf}, v{vT0}')
    a(f'v_add_u32 v{vHR}, {L_H}, v{vT0}')
    a(f'v_add_u32 v{vHS}, s{sHL}, v{vT0}')
    a(f's_xor_b32 s{sT0}, s{sDT}, s{sKP}')
    a(f's_lshl_b32 s{sT0}, s{sT0}, 11')
    a(f'v_add_u32 v{vRA}, s{sT0}, v{vSR}')
    a(f'v_add_u32 v{vRA+1}, s{sT0}, v{vSR1}')
    a(f'v_mul_u32_u24 v{vTR}, 3072, v{vG}')
    a(f'v_bfe_u32 v{vT0}, v{vL}, 2, 2')
    a(f'v_lshl_add_u32 v{vTR}, v{vT0}, 7, v{vTR}')
    a(f'v_bfe_u32 v{vT0}, v{vL}, 3, 2')
    a(f'v_xor_b32 v{vT0}, s{sWAVE}, v{vT0}')
    a(f'v_lshl_add_u32 v{vTR}, v{vT0}, 5, v{vTR}')
    a(f'v_and_b32 v{vT0}, 3, v{vL}')
    a(f'v_lshl_add_u32 v{vTR}, v{vT0}, 3, v{vTR}')
    a(f'v_add_u32 v{vTR+1}, {3 * 12288}, v{vTR}')
    for k in range(4): a(f'v_mov_b32 v{SEN+k}, -1')
    a(f's_mov_b32 s{sBUD}, {SPIN}')
    if OPT['TLW']:
        a('s_waitcnt lgkmcnt(0)')
        a(f's_lshr_b32 s{sT0}, s2, 3')
        a(f's_lshl2_add_u32 s{sT0}, s{sT0}, s{sWAVE}')
        a(f's_lshl_b32 s{sT1}, s{sT0}, 16')
        if OPT['TLW'] & 1: a(f's_load_dword s{sNON}, s[{sWS}:{sWS+1}], s{sT1} glc')
        a(f's_min_u32 s{sT2}, s{sT1}, {111 << 16:#x}')
        if OPT['TLW'] & 2:
            a(f's_load_dword s{sNON}, s[{sW1}:{sW1+1}], s{sT2}')
            a(f's_load_dword s{sNON}, s[{sW2}:{sW2+1}], s{sT2}')
        if OPT['TLW'] & 4:
            a(f's_and_b32 s{sT2}, s{sT1}, {31 << 16:#x}')
            a(f's_load_dword s{sNON}, s[{sOUT}:{sOUT+1}], s{sT2} glc')
            a(f's_and_b32 s{sT2}, s{sT1}, {7 << 16:#x}')
            a(f's_load_dword s{sNON}, s[{sWO}:{sWO+1}], s{sT2}')
        if OPT['TLW'] & 8:
            a(f's_and_b32 s{sT2}, s{sT1}, {15 << 16:#x}')
            a(f's_add_u32 s{sT2}, s{sT2}, {8 * MB:#x}')
            a(f's_load_dword s{sNON}, s[{sWS}:{sWS+1}], s{sT2} glc')
            a(f's_load_dword s{sNON}, s[{sB1}:{sB1+1}], 0')
            a(f's_load_dword s{sNON}, s[{sB2}:{sB2+1}], 0')
    if PROF: a('s_mov_b32 s101, 0')
    a(f's_bfe_u32 s{sD3}, s2, {3 | (3 << 16)}')
    a(f's_and_b32 s{sT1}, s2, 1')
    a(f's_lshr_b32 s{sT2}, s2, 6')
    a(f's_lshr_b32 s{sT0}, s{sD3}, 2')
    a(f's_cmp_eq_u32 s{sT0}, s{sT1}')
    a(f's_cselect_b32 s{sT0}, 3, 7')
    a(f's_lshl2_add_u32 s{sZ}, s{sT1}, s{sT2}')
    a(f's_cmp_lt_u32 s{sT2}, 3')
    a(f's_cselect_b32 s{sZ}, s{sZ}, s{sT0}')
    a(f's_bfe_u32 s{sT0}, s2, {1 | (2 << 16)}')
    a(f's_mul_i32 s{sCT3}, s{sT0}, 7')
    a(f's_cmp_lt_u32 s{sZ}, 7')
    a(f's_cselect_b32 s{sT0}, s{sZ}, 3')
    a(f's_add_u32 s{sCT3}, s{sCT3}, s{sT0}')
    if OPT['C4M'] == 0:
        a(f's_add_u32 s{sT0}, s{sT2}, 1')
        a(f's_and_b32 s{sT0}, s{sT0}, 3')
        a(f's_and_b32 s{sCT4}, s2, 7')
        a(f's_lshl2_add_u32 s{sCT4}, s{sCT4}, s{sT0}')
    else:
        a(f's_cmp_lt_u32 s{sT2}, 3')
        a(f's_cselect_b32 s{sT0}, 0, 4')
        a(f's_xor_b32 s{sT0}, s{sT0}, s{sZ}')
        a(f's_and_b32 s{sCT4}, s2, 6')
        a(f's_lshl2_add_u32 s{sCT4}, s{sCT4}, s{sT0}')
    if OPT['R3M'] == 0: a(f's_mov_b32 s{sROT3}, 0')
    elif OPT['R3M'] == 1:
        a(f's_and_b32 s{sROT3}, s{sT2}, 1')
        a(f's_lshl_b32 s{sROT3}, s{sROT3}, 3')
    elif OPT['R3M'] == 2: a(f's_lshl_b32 s{sROT3}, s{sT2}, 2')
    elif OPT['R3M'] == 3:
        a(f's_lshl_b32 s{sROT3}, s{sD3}, 1')
        if OPT['A3']:
            a(f's_mul_i32 s{sT0}, s{sT2}, {OPT["A3"]}')
            a(f's_add_u32 s{sROT3}, s{sROT3}, s{sT0}')
            a(f's_and_b32 s{sROT3}, s{sROT3}, 15')
    elif OPT['R3M'] == 4:
        a(f's_and_b32 s{sROT3}, s{sD3}, 3')
        a(f's_lshl_b32 s{sROT3}, s{sROT3}, 2')
    else:
        a(f's_and_b32 s{sROT3}, s{sD3}, 1')
        a(f's_lshl_b32 s{sROT3}, s{sROT3}, 3')
    a(f's_mov_b32 s{sSTP1}, {64 * 3584}')
    a(f's_sub_u32 s{sLIM1}, 16, s{sROT3}')
    a(f's_and_b32 s{sT0}, s{sWAVE}, 1')
    a(f's_lshl_b32 s{sT0}, s{sT0}, 4')
    a(f's_add_u32 s{sT0}, s{sT0}, s{sROT3}')
    a(f's_lshl_b32 s{sT0}, s{sT0}, 6')
    a(f's_lshr_b32 s{sT1}, s{sWAVE}, 1')
    a(f's_add_u32 s{sT0}, s{sT0}, s{sT1}')
    a(f's_mul_i32 s{sW1A}, s{sT0}, 3584')
    a(f's_lshl_b32 s{sT0}, s{sCT3}, 7')
    a(f's_add_u32 s{sW1A}, s{sW1A}, s{sT0}')
    a(f's_sub_u32 s{sW1B}, s{sW1A}, {16 * 64 * 3584}')
    a(f's_mul_i32 s{sPR}, s{sWAVE}, {NSL * 4096}')
    a(f's_add_u32 s{sPR}, s{sPR}, {L_PR}')
    a(f's_lshl_b32 s{sWOB}, s{sWAVE}, 13')
    a(f's_lshl_b32 s{sT0}, s{sDT}, 7')
    a(f's_add_u32 s{sWOB}, s{sWOB}, s{sT0}')
    if OPT['CLX'] & 4:
        a(f's_lshl_b32 s{sT0}, s{sDT}, 5')
        a(f's_add_u32 s{sT0}, s{sT0}, s{sRT}')
        a(f's_bfe_u32 s{sT1}, s2, {1 | (2 << 16)}')
        a(f's_lshl2_add_u32 s{sT1}, s{sD3}, s{sT1}')
        a(f's_lshl3_add_u32 s{sT1}, s{sT1}, s{sZ}')
        a(f's_lshl_b32 s{sT2}, s{sD3}, 5')
        a(f's_add_u32 s{sT2}, s{sT2}, s{sCT4}')
        for r_, b_ in ((sT0, WS_F1), (sT1, WS_F2), (sT2, WS_F3)):
            a(f's_lshl2_add_u32 s{r_}, s{r_}, s{sWAVE}')
            a(f's_lshl_b32 s{r_}, s{r_}, 7')
            a(f's_add_u32 s{r_}, s{r_}, {b_:#x}')
            a(f's_load_dword s{sNON}, s[{sWS}:{sWS+1}], s{r_} glc')
    def w2_scalars(A, B, rot):
        r = [[f's_mov_b32 s{rot}, 0'], [f's_bfe_u32 s{sT1}, s2, {6 | (1 << 16)}', f's_mul_i32 s{rot}, s{sT1}, 7'],
             [f's_lshr_b32 s{sT1}, s2, 6', f's_mul_i32 s{rot}, s{sT1}, 7', f's_add_u32 s{rot}, s{rot}, 1', f's_lshr_b32 s{rot}, s{rot}, 1'],
             [f's_mul_i32 s{rot}, s{sD3}, 7', f's_lshr_b32 s{rot}, s{rot}, 2'] +
             ([f's_lshr_b32 s{sT1}, s2, 6', f's_mul_i32 s{sT1}, s{sT1}, {OPT["A4"]}', f's_lshr_b32 s{sT1}, s{sT1}, 1', f's_add_u32 s{rot}, s{rot}, s{sT1}',
               f's_sub_u32 s{sT1}, s{rot}, 14', f's_cselect_b32 s{rot}, s{rot}, s{sT1}'] if OPT['A4'] else []),
             [f's_and_b32 s{sT1}, s{sD3}, 3', f's_mul_i32 s{rot}, s{sT1}, 7', f's_add_u32 s{rot}, s{rot}, 1', f's_lshr_b32 s{rot}, s{rot}, 1'],
             [f's_and_b32 s{sT1}, s{sD3}, 1', f's_mul_i32 s{rot}, s{sT1}, 7']][OPT['R4M']]
        return r + [
                f's_mul_i32 s{sT0}, s{sWAVE}, 14', f's_add_u32 s{sT0}, s{sT0}, s{rot}', f's_lshl_b32 s{A}, s{sT0}, 17',
                f's_lshl_b32 s{sT0}, s{sCT4}, 7', f's_add_u32 s{A}, s{A}, s{sT0}', f's_sub_u32 s{B}, s{A}, {14 << 17}']
    a(f'v_mov_b32 v{vT1}, {NEGBIG:#x}')
    a(f's_and_b32 s{sT0}, s{sRT}, 15')
    a(f's_cmp_eq_u32 s{sT0}, 0')
    a(f's_cselect_b32 s{sT0}, {NEGBIG:#x}, 0')
    for r in range(4):
        a(f'v_lshl_add_u32 v{vT0}, v{vG}, 2, {r}')
        a(f'v_sub_u32 v{vT0}, v{vC}, v{vT0}')
        a(f'v_cmp_gt_u32 vcc, 8, v{vT0}')
        a(f'v_cndmask_b32_e64 v{BC+r}, v{vT1}, 0, vcc')
        a(f'v_cmp_gt_i32 vcc, -8, v{vT0}')
        a(f'v_cndmask_b32_e64 v{BP+r}, v{vT1}, 0, vcc')
        a(f'v_min_f32 v{BP0+r}, s{sT0}, v{BP+r}')
        a(f'v_cmp_le_i32 vcc, 0, v{vT0}')
        if r % 2 == 0:
            a(f'v_cndmask_b32_e64 v{MC+r//2}, 0, -1, vcc')
            a(f'v_and_b32 v{MC+r//2}, 0xffff, v{MC+r//2}')
        else:
            a(f'v_cndmask_b32_e64 v{vT0}, 0, -1, vcc')
            a(f'v_and_b32 v{vT0}, 0xffff0000, v{vT0}')
            a(f'v_or_b32 v{MC+r//2}, v{MC+r//2}, v{vT0}')
            a(f'v_not_b32 v{MP+r//2}, v{MC+r//2}')
    a(f'v_lshrrev_b32 v{vT0}, 1, v{vL}')
    a(f'v_xor_b32 v{vT0}, v{vT0}, v{vG}')
    a(f'v_and_b32 v{vT0}, 3, v{vT0}')
    a(f'v_lshrrev_b32 v{vT1}, 3, v{vL}')
    a(f'v_lshlrev_b32 v{vWOD}, 10, v{vT1}')
    a(f'v_lshl_add_u32 v{vWOD}, v{vT0}, 5, v{vWOD}')
    a(f'v_and_b32 v{vT0}, 1, v{vL}')
    a(f'v_lshl_add_u32 v{vWOD}, v{vT0}, 4, v{vWOD}')
    def mk_q(base, K3):
        if K3:
            ops = [f'v_lshrrev_b32 v{base+1}, 3, v{vL}', f'v_mul_u32_u24 v{base}, 7168, v{base+1}']
            st = 8 * 7168 - 1024
        else:
            ops = [f'v_bfe_u32 v{base+1}, v{vL}, 3, 2', f'v_lshrrev_b32 v{base}, 5, v{vL}', f'v_lshl_add_u32 v{base}, v{base}, 4, v{base+1}',
                   f'v_lshlrev_b32 v{base}, 12, v{base}']
            st = 4 * 4096 - 1024
        ops += [f'v_lshrrev_b32 v{base+1}, 1, v{vL}', f'v_and_b32 v{base+2}, 1, v{vG}', f'v_xor_b32 v{base+1}, v{base+1}, v{base+2}',
                f'v_and_b32 v{base+1}, 3, v{base+1}', f'v_lshl_add_u32 v{base}, v{base+1}, 5, v{base}',
                f'v_and_b32 v{base+1}, 1, v{vL}', f'v_lshl_add_u32 v{base}, v{base+1}, 4, v{base}',
                f'v_xor_b32 v{base+1}, 64, v{base}', f'v_add_u32 v{base+2}, {2*st}, v{base}', f'v_add_u32 v{base+3}, {3*st}, v{base+1}', f'v_add_u32 v{base+1}, {st}, v{base+1}']
        return ops
    def mk_r(base, K3):
        ops = [f'v_bfe_u32 v{base+1}, v{vL}, 2, 2', f'v_lshl_add_u32 v{base+1}, v{vG}, 3, v{base+1}']
        ops += [f's_and_b32 s3, s{sWAVE}, 1', 's_lshl_b32 s3, s3, 1'] if K3 else [f's_mov_b32 s3, s{sWAVE}']
        ops += [f'v_lshlrev_b32 v{base}, 7, v{base+1}', f'v_bfe_u32 v{base+1}, v{vL}, 3, 2', f'v_xor_b32 v{base+1}, s3, v{base+1}',
                f'v_lshl_add_u32 v{base}, v{base+1}, 5, v{base}', f'v_and_b32 v{base+1}, 3, v{vL}', f'v_lshl_add_u32 v{base}, v{base+1}, 3, v{base}',
                f'v_add_u32 v{base}, s{sPR}, v{base}']
        ops += [f'v_xor_b32 v{base+t}, {32*t}, v{base}' for t in range(1, 4)]
        return ops
    slot_of = {}
    vQ2, vR2, vR2L = 240, 28, 244
    sPL = sWOB
    def dma_unit(K3, i, q, slot):
        slot_of[(K3, i)] = slot
        tag = ('u', K3, i)
        m0 = f's_add_u32 m0, s{sPR}, {slot*4096}' if slot < NSL else f's_add_u32 m0, s{sPL}, {(slot-NSL)*4096}'
        if K3:
            S = sW1
            pre = [f's_mul_i32 s3, s{sSTP1}, {i}', f's_cmp_gt_u32 s{sLIM1}, {i}', f's_cselect_b32 m0, s{sW1A}, s{sW1B}', 's_add_u32 s3, s3, m0', m0]
        else:
            S = sW2
            pre = [f's_cmp_lt_u32 s{sROT4}, {14 - i}', f's_cselect_b32 s3, s{sW2A}, s{sW2B}', m0, f's_add_u32 s3, s3, {i << 17}']
        ops = [('grp', pre + [('vm', tag, f'buffer_load_dwordx4 v{q}, {srd(S)}, s3 offen{ntu(K3, i)} lds')])]
        for k in range(1, 4):
            ops.append(('vm', tag, f'buffer_load_dwordx4 v{q+k}, {srd(S)}, s3 offen offset:{1024*k}{ntu(K3, i)} lds'))
        return ops
    def tr_unit(K3, i):
        slot = slot_of[(K3, i)]
        r = vR1 if K3 else vR2
        if slot >= NSL: r = vR2L; slot -= NSL; assert not K3
        return [('ds', ('t', K3, i), f'ds_read_b64_tr_b16 {ar(16*i+4*t+2*h, 2)}, v{r+t} offset:{slot*4096 + 512*h}') for t in range(4) for h in range(2)]
    NLOW = OPT['NLOW']
    def uid(n): return (True, n) if n < 16 else (False, n - 16)
    nofetch = [('grp', [f's_cmp_lt_u32 s{sZ}, 7', f's_cselect_b32 s{sW1+2}, s{sW1+2}, 0'])]
    def evD(n):
        K3, i = uid(n)
        if n < 22: slot, prev = n % NSL, n - NSL
        elif n < 22 + NLOW: slot, prev = NSL + n - 22, -1
        else: raise ValueError
        w = [('wds', ('t',) + uid(prev))] if prev >= 0 else []
        return w + dma_unit(K3, i, vQ1 if K3 else vQ2, slot) + (nofetch if n == OPT['NT1'] - 1 else [])
    def evM(n): return [('wvm', ('u',) + uid(n))] + tr_unit(*uid(n))
    EV = [('D', n) for n in range(6)] + [('M', 0)]
    if OPT['W2L']:
        for n in range(1, 16): EV += [('M', n)] + ([('D', n + 5)] if n + 5 < 16 else [])
        EV += [('D', n) for n in range(16, 22 + NLOW)]
    else:
        for n in range(1, 16): EV += [('M', n), ('D', n + 5)]
        EV += [('D', n) for n in range(21, 22 + NLOW)]
    EV0 = list(EV)
    def events(upto):
        ops = []
        while EV and any(e[0] == 'D' and e[1] <= upto for e in EV):
            e = EV.pop(0)
            ops += evD(e[1]) if e[0] == 'D' else evM(e[1])
        return ops
    a.run(mk_q(vQ1, True))
    a.run(mk_r(vR1, True))
    if OPT['SKW']:
        a(f's_cmp_lt_u32 s{sZ}, 7')
        a('s_cbranch_scc0 L_skw')
        a.label('L_skwb')
        tail.append(['L_skw:', f's_mov_b64 s[{sW1}:{sW1+1}], s[{sW2}:{sW2+1}]', f's_mov_b32 s{sW1+2}, {1792 * 4096:#x}',
                     f'v_lshrrev_b32 v{vQ1}, 5, v{vL}', f'v_mul_u32_u24 v{vQ1}, {4096 - 512}, v{vQ1}', f'v_add_u32 v{vQ1}, v{vQ1}, v{vL16}'] +
                    [f'v_add_u32 v{vQ1+k}, {k * (8192 - 1024)}, v{vQ1}' for k in range(1, 4)] +
                    [f's_mov_b32 s{sSTP1}, 32768', f's_mov_b32 s{sLIM1}, 14', f's_and_b32 s{sT0}, s{sD3}, 3', f's_lshl2_add_u32 s{sT0}, s{sT0}, s{sWAVE}',
                     f's_mul_i32 s{sW1A}, s{sT0}, {112 * 4096}', f's_and_b32 s{sT0}, s2, 7', f's_lshl_b32 s{sT0}, s{sT0}, 9', f's_add_u32 s{sW1A}, s{sW1A}, s{sT0}',
                     f's_sub_u32 s{sW1B}, s{sW1A}, {14 * 32768}', 's_branch L_skwb'])
    vmx0 = {}
    clr = [[f's_lshl2_add_u32 s3, s{sRT}, s{sWAVE}', 's_lshl_b32 s3, s3, 3', f's_add_u32 s3, s3, s{sDT}', 's_lshl_b32 s3, s3, 11'],
           [f's_lshl_b32 s3, s{sDT}, 5', f's_add_u32 s3, s3, s{sRT}', f's_lshl2_add_u32 s3, s3, s{sWAVE}', 's_lshl_b32 s3, s3, 11', f's_add_u32 s3, s3, {WS_HN:#x}'],
           [f's_mul_i32 s3, s{sD3}, 28', f's_add_u32 s3, s3, s{sCT3}', f's_lshl2_add_u32 s3, s3, s{sWAVE}', 's_lshl_b32 s3, s3, 11', f's_add_u32 s3, s3, {WS_UF:#x}',
            f's_cmp_lt_u32 s{sZ}, 7', f's_cselect_b32 s{sCNT}, 0, {WS_DUM - WS_UF:#x}', f's_add_u32 s3, s3, s{sCNT}']]
    if OPT['CLB'] >= 0:
        for k, nm in enumerate(('CO', 'CH', 'CU')):
            if OPT[nm] > 16: continue
            for h in range(2):
                vmx0.setdefault(min(16, OPT[nm] + h * OPT['CD']), []).append(('grp', clr[k] + [('vm', 'clr' if k else 'clro', (f'buffer_store_dword v{SEN}' if OPT['CLW'] else f'buffer_store_dwordx4 {vr(SEN,4)}') + f', v{vL16}, {srd(sWS)}, s3 offen offset:{1024*h} ' + ['sc1', 'sc1 nt', 'sc0 sc1', 'sc0 sc1 nt', '', 'nt'][OPT['CLF']])]))
        if OPT['CLX'] & 2:
            vmx0.setdefault(OPT['CS'], []).append(('grp', clr[0][:3] + ['s_lshl_b32 s3, s3, 8', f's_add_u32 s3, s3, {WS_SX:#x}', f'v_lshlrev_b32 v{vT3}, 2, v{vL}',
                                                        ('vm', 'clr', f'buffer_store_dword v{SEN}, v{vT3}, {srd(sWS)}, s3 offen sc1')]))
    a.stamp(1)
    n0 = len(a.vmq)
    a.run(vmx0.get(-2, []))
    take(OPT['PRE2'] + len(a.vmq) - n0)
    a.run(vmx0.get(-1, []))
    def xb(i, s): return XB + 20 * (i % 3) + 4 * s
    def wb(i, R): return WB + 12 * (i % 2) + 4 * R
    def acc(R, s): return ACC + 20 * R + 4 * s
    def xreads(i):
        return [('ds', ('xr', i), f'ds_read_b128 {vr(xb(i,s),4)}, v{vXR1 if i & 1 else vXR} offset:{2048*(i>>1) + 16384*(s-1)}') for s in range(1, 3 if OPT['XP'] & 8 else 5)] + \
               ([] if OPT['XP'] & 4 else [('ds', ('xr', i), f'ds_read_b128 {vr(xb(i,0),4)}, v{vHR} offset:{1024*(i>>1) + 64*(i&1)}')])
    def trreads(i):
        slot = i % NW
        return [('ds', ('wr', i), f'ds_read_b64_tr_b16 {vr(wb(i,R)+2*h,2)}, v{vTR + slot//3} offset:{(slot%3)*12288 + R*1024 + 512*h}') for R in range(3) for h in range(2)]
    def mfmas(i):
        ops = []
        for R in range(3):
            for s in (1, 2, 3, 4, 0):
                x = vr(xb(i, s), 4); d = vr(acc(R, s), 4); w = vr(wb(i, R), 4)
                cin = '0' if i == 0 else d
                ops.append(f'v_mfma_f32_16x16x32_bf16 {d}, {w}, {x}, {cin}' if R < 2 else f'v_mfma_f32_16x16x32_bf16 {d}, {x}, {w}, {cin}')
        return ops
    jobs = {1: ('s', 0), 2: ('s', 1), 4: ('h', 0), 5: ('s', 2), 6: ('s', 3), 7: ('h', 1), 8: ('s', 4), 9: ('s', 5), 10: ('s', 6), 11: ('s', 7)}
    def job_reads(b):
        if b not in jobs or OPT['XP'] & 1: return []
        kind, p = jobs[b]
        if kind == 's':
            return [('ds', ('jr', b), f'ds_read_b128 {vr(SB+8*(b&1)+4*k,4)}, v{vSR1 if k else vSR} offset:{2048*p}') for k in range(2)]
        return [('ds', ('jr', b), f'ds_read_b128 {vr(SB+8*(b&1)+4*k,4)}, v{vHS} offset:{4096*p + 64*k}') for k in range(2)]
    def job_mfmas(b):
        if b not in jobs or OPT['XP'] & 2: return []
        kind, p = jobs[b]
        ops = []
        for k in range(2):
            x = vr(SB + 8 * (b & 1) + 4 * k, 4)
            first = p == 0 and k == 0
            if kind == 's':
                ops.append(f'v_mfma_f32_16x16x32_bf16 {vr(GS,4)}, {x}, {x}, {"0" if first else vr(GS,4)}')
                ops.append(f'v_mfma_f32_16x16x32_bf16 {vr(GO,4)}, {vr(ONE,4)}, {x}, {"0" if first else vr(GO,4)}')
            else:
                ops.append(f'v_mfma_f32_16x16x32_bf16 {vr(GH,4)}, {x}, {x}, {"0" if first else vr(GH,4)}')
        return ops
    def stat_finalize(s, q, tmp):
        return [f'v_mul_f32 v{s}, 0xbb000000, v{s}',
                f'v_mul_f32 v{tmp}, v{s}, v{s}',
                f'v_mul_f32 v{q}, 0x3b000000, v{q}',
                f'v_sub_f32 v{q}, v{q}, v{tmp}',
                f'v_max_f32 v{q}, 0, v{q}',
                f'v_add_f32 v{q}, 0x3727c5ac, v{q}',
                f'v_rsq_f32 v{q}, v{q}']
    def diag(G, dst):
        ops = []
        for k in range(1, 4):
            m = 0x11111111 << k
            ops.append(('grp', [f's_mov_b32 vcc_lo, {m:#x}', f's_mov_b32 vcc_hi, {m:#x}', f'v_cndmask_b32 v{dst}, v{G if k == 1 else dst}, v{G+k}, vcc']))
        return ops
    NM4, RS4, XR = XB + 20, XB + 40, SB
    HT = STC
    extra = {b: [] for b in range(16)}
    L4 = vE0
    extra[5] += [f'v_lshlrev_b32 v{L4}, 2, v{vL}', f's_lshl_b32 s{sT0}, s{sWAVE}, 9', f's_add_u32 s{sT0}, s{sT0}, {L_HP}', f'v_add_u32 v{vT0}, s{sT0}, v{L4}',
                 f'v_lshrrev_b32 v{vT1}, 2, v{vC}', f'v_lshl_add_u32 v{vT1}, v{vT1}, 4, v{vC}', f'v_lshlrev_b32 v{vT1}, 2, v{vT1}',
                 f'v_add_u32 v{vT1}, {L_NM}, v{vT1}', f'v_lshlrev_b32 v{vT2}, 2, v{vC}', f'v_add_u32 v{vT2}, {L_NM}, v{vT2}']
    extra[8] += diag(GH, GH + 1) + [('ds', 'hp', f'ds_write2st64_b32 v{vT0}, v{GH}, v{GH+1} offset0:0 offset1:1')]
    o0 = (L_HP - L_NM) // 256
    extra[9] += [('ds', 'hq', f'ds_read2st64_b32 {vr(HT+2*k,2)}, v{vT2} offset0:{o0+4*k} offset1:{o0+4*k+2}') for k in range(2)] + \
                [('ds', 'hq', f'ds_read2st64_b32 {vr(HT+4+2*k,2)}, v{vT1} offset0:{o0+4*k+1} offset1:{o0+4*k+3}') for k in range(2)]
    extra[10] += [f'v_add_f32 v{HT}, v{HT}, v{HT+1}', f'v_add_f32 v{HT+2}, v{HT+2}, v{HT+3}', f'v_add_f32 v{HT+4}, v{HT+4}, v{HT+5}', f'v_add_f32 v{HT+6}, v{HT+6}, v{HT+7}',
                  f'v_add_f32 v{HT}, v{HT}, v{HT+2}', f'v_add_f32 v{HT+4}, v{HT+4}, v{HT+6}']
    extra[11] += stat_finalize(HT, HT + 4, HT + 1) + [f'v_add_u32 v{vT0}, {L_NM}, v{L4}', ('ds', 'hw', f'ds_write2st64_b32 v{vT0}, v{HT}, v{HT+4} offset0:0 offset1:5')]
    extra[12] += diag(GS, GS + 1) + stat_finalize(GO, GS + 1, GS) + [f's_lshl_b32 s{sT0}, s{sWAVE}, 8', f'v_add_u32 v{vT0}, s{sT0}, v{vT0}',
                                                                    ('ds', 'hw', f'ds_write2st64_b32 v{vT0}, v{GO}, v{GS+1} offset0:1 offset1:6')]
    extra[13] += [('ds', 'st', f'ds_read2st64_b32 {vr(STC+2*s,2)}, v{vT1} offset0:{s} offset1:{5+s}') for s in range(5)] + \
                 [f'v_mul_u32_u24 v{vT0}, 80, v{vG}', f'v_add_u32 v{vT0}, {L_NM}, v{vT0}']
    extra[14] += [('ds', 'st', f'ds_read_b128 {vr(NM4+4*s,4)}, v{vT0} offset:{256*s}') for s in range(5)] + \
                 [('ds', 'st', f'ds_read_b128 {vr(XR+4*e,4)}, v{vRA+e}') for e in range(2)]
    extra[15] += [('ds', 'st', f'ds_read_b128 {vr(RS4+4*s,4)}, v{vT0} offset:{1280+256*s}') for s in range(5)]
    vmx = {b: [] for b in range(17)}
    b0 = 0
    for it in seq:
        vmx[b0] += it; b0 = 0
    vmx[0] += xloads(3)
    vmx[2] += hloads(1)
    for p in range(4, 8): vmx[p - 4 + OPT['XS']] += xloads(p)
    if OPT['TWO']:
        vmx[OPT['TWB']] += [('grp', ([f'v_lshlrev_b32 v{vT3}, 10, v{vC}', 's_lshr_b32 s3, s2, 5', f's_lshl2_add_u32 s3, s3, s{sWAVE}', f's_lshl_b32 s3, s3, 14'] if OPT['MAP'] == 0 else
                                     [f'v_and_b32 v{vT3}, 31, v{vL}', f'v_lshlrev_b32 v{vT3}, 10, v{vT3}', 's_lshr_b32 s3, s2, 6', f's_lshl2_add_u32 s3, s3, s{sWAVE}', f's_lshl_b32 s3, s3, 15']) + [ f's_lshl_b32 s{sCNT}, s{sDT}, 7', f's_add_u32 s3, s3, s{sCNT}',
                            ('vm', 'tw', f'buffer_load_dword v{vDUM}, v{vT3}, {srd(sWO)}, s3 offen{nt("NTO")}')])]
    for b in range(17): vmx[b] += vmx0.get(b, [])
    def opre(R, T):
        return [f's_lshl2_add_u32 s3, s{sCT4}, s{sWAVE}', 's_lshl_b32 s3, s3, 7', f's_add_u32 s3, s3, s{sD3}', 's_lshl_b32 s3, s3, 7',
                f'v_lshrrev_b32 v{T}, 3, v{vL}', f'v_mul_u32_u24 v{T}, {1024 - 128}, v{T}', f'v_add_u32 v{T}, v{T}, v{vL16}',
                ('vm', 'clr', f'buffer_store_dwordx4 {vr(R,4)}, v{T}, {srd(sOUT)}, s3 offen sc1'), 's_add_u32 s3, s3, 8192',
                ('vm', 'clr', f'buffer_store_dwordx4 {vr(R,4)}, v{T}, {srd(sOUT)}, s3 offen sc1')]
    if 0 <= OPT['OPS'] <= 16: vmx[OPT['OPS']].append(('grp', opre(SEN, vT3)))
    vTC1, vTC2 = 254, 16
    late = {}
    def place(b, op):
        if b <= 16: vmx[b].append(op)
        else: late.setdefault(b, []).append(op)
    if OPT['TB1'] >= 0:
        TN = OPT['TN1']
        for k in range(64 // TN):
            if k == 0:
                pre = [f'v_bfe_u32 v{vTC1}, v{vL}, 2, {TN.bit_length() - 3}', 's_lshr_b32 s3, s2, 3', f's_lshl2_add_u32 s3, s3, s{sWAVE}', f'v_lshl_add_u32 v{vTC1}, s3, 4, v{vTC1}',
                       f'v_mul_u32_u24 v{vTC1}, 28, v{vTC1}', f's_and_b32 s3, s2, 7', 's_mul_i32 s3, s3, 7', 's_lshr_b32 s3, s3, 1', f'v_and_b32 v{vT3}, 3, v{vL}',
                       f'v_add3_u32 v{vTC1}, v{vTC1}, v{vT3}, s3', f'v_lshlrev_b32 v{vTC1}, 7, v{vTC1}']
            else:
                pre = [f'v_add_u32 v{vTC1}, {TN * 896}, v{vTC1}']
            place(min(16, OPT['TB1'] + k * OPT['TS1']), ('grp', pre + [('vm', 'tw', f'buffer_load_dword v{vDUM}, v{vTC1}, {srd(sW1)}, 0 offen{nt("NTT")}')]))
    if OPT['TB2'] >= 0:
        TN = OPT['TN2']
        pre = [f'v_bfe_u32 v{vTC2}, v{vL}, 2, {TN.bit_length() - 3}', f'v_min_u32 v{vTC2}, 13, v{vTC2}', 's_lshr_b32 s3, s2, 3', f's_lshl2_add_u32 s3, s3, s{sWAVE}', f's_mul_i32 s3, s3, {14 * 8}',
               f's_and_b32 s{sCNT}, s2, 7', f's_add_u32 s3, s3, s{sCNT}', 's_lshl_b32 s3, s3, 9',
               f'v_lshl_add_u32 v{vTC2}, v{vTC2}, 12, s3', f'v_and_b32 v{vT3}, 3, v{vL}', f'v_lshl_add_u32 v{vTC2}, v{vT3}, 7, v{vTC2}']
        vmx[min(16, OPT['TB2'])].append(('grp', pre))
        for k in range(56 // TN + (56 % TN > 0)):
            pre = [f'v_add_u32 v{vTC2}, {min(TN, 56 - TN * k) * 1024}, v{vTC2}'] if k else []
            b = OPT['TB2'] + k * OPT['TS2']
            place(b if OPT['TB2'] > 16 else min(16, b), ('grp', pre + [('vm', 'tw', f'buffer_load_dword v{vDUM}, v{vTC2}, {srd(sW2)}, 0 offen{nt("NTT")}')]))
    if OPT['PB1'] >= 0:
        assert OPT['TN1'] == 64
        place(OPT['PB1'], ('vm', 'tw', f'buffer_load_dword v{vDUM}, v{vTC1}, {srd(sW1)}, 0 offen sc1'))
    if OPT['PB2'] >= 0:
        assert OPT['TN2'] == 64
        place(OPT['PB2'], ('vm', 'tw', f'buffer_load_dword v{vDUM}, v{vTC2}, {srd(sW2)}, 0 offen sc1'))
    need_x = {2: [('x', 2)], 4: [('x', 3)], 6: [('x', 4), ('h', 1)], 8: [('x', 5)], 9: [('x', 6)], 10: [('x', 7)]}
    if OPT['HOP'] == 1:
        a('s_mov_b64 exec, 0')
        for w in range(1, 4):
            a(f's_cmp_eq_u32 s{sWAVE}, {w}')
            a(f's_cbranch_scc1 L_pg{2*w+1}')
        a('s_branch L_pg1')
        a.label('L_pgb')
        a('s_mov_b64 exec, -1')
    a.stamp(1)
    a.wait(vm=[('w', 1), ('x', 1)])
    a('s_waitcnt lgkmcnt(0)')
    a('s_barrier')
    a.stamp(0, 1)
    a.run(trreads(0) + xreads(0) + xreads(1))
    a.wait(ds=[('xr', 0)])
    wop = []
    for i in range(16):
        rd = []
        if i + 1 < 16: rd += trreads(i + 1) + job_reads(i + 1)
        if i + 2 < 16: rd += xreads(i + 2)
        ld = []
        if i == 1: ld += wloads(NW)
        if i == 10: ld += [f's_lshl_b32 s{sLW}, s{sWAVE}, 10']
        if i >= 1:
            if i + NW < 16: ld += wloads(i + NW)
            else: wop += wloads(i + NW)
            if i >= OPT['WOB']: ld += wop; wop = []
        ld += vmx[i]
        ex = extra[i]
        mm = weave(mfmas(i)[:8 if OPT['XP'] & 32 else 15], job_mfmas(i))
        fill = weave(rd, ld) if rd else ld
        fill = mix(fill, ex)
        fl = []
        for o in fill:
            if not isinstance(o, str) and o[0] == 'grp' and any(isinstance(x, str) and ('exec' in x or 's_cselect' in x) for x in o[1]): fl.append(o)
            else: fl += flat([o])
        a.run(weave(mm, fl, lead=1))
        if i < 15:
            wv = [('w', i + 2)] if i + 2 < 16 else []
            wv += need_x.get(i + 1, [])
            a.wait(vm=wv, ds=[('wr', i + 1), ('jr', i + 1), ('xr', i + 1), 'hp', 'hq', 'hw'])
            if not (OPT['XP'] & 16 and i & 1): a('s_barrier')
            if i in (1, 3, 5, 7, 9, 11, 13): a.stamp(1)
    a.wait(vm=['clro'])
    a.wait_all(vm=False)
    a('s_barrier')
    a.stamp(-1)
    a.run(vmx[16])
    if OPT['NT1'] == 0 and not OPT['SKW']: a.run(nofetch)
    a(f's_load_dword s{sNON}, s[{sDBG}:{sDBG+1}], 0')
    if OPT['TLF']:
        a(f's_lshl2_add_u32 s{sT2}, s2, s{sWAVE}')
        a(f's_lshl_b32 s{sT2}, s{sT2}, 7')
        a(f's_add_u32 s{sT2}, s{sT2}, {WS_F1 + 384 * KB:#x}')
        a(f's_load_dword s{sPOLL}, s[{sWS}:{sWS+1}], s{sT2} glc')
    if OPT['WOB'] == 16: a.inject(wop + events(OPT['EA']), OPT['AEV']); wop = []
    else: a.inject(events(OPT['EA']), OPT['AEV'])
    SC, SP, MX, MT, PM, PB, OUT = XB, SB + 8, ACC, ACC + 4, ACC + 8, ACC + 20, ACC + 36
    CW, CWV = 32, 40
    for r in range(4):
        a(f'v_mov_b32_dpp v{CW+4+r}, v{acc(1,0)+r} row_newbcast:0 row_mask:0xf bank_mask:0xf')
    for r in range(4):
        a(f'v_mov_b32_dpp v{CW+r}, v{acc(0,0)+r} row_newbcast:0 row_mask:0xf bank_mask:0xf')
    def epi_k(s):
        src, st, dst = acc(1, s), STC + 2 * s, KP + 2 * s
        return [[f'v_pk_fma_f32 {vr(src+2*h,2)}, {vr(CW+4+2*h,2)}, {vr(st,2)}, {vr(src+2*h,2)} op_sel_hi:[1,0,1]' for h in range(2)],
                [f'v_pk_mul_f32 {vr(src+2*h,2)}, {vr(src+2*h,2)}, {vr(st,2)} op_sel:[0,1] op_sel_hi:[1,1]' for h in range(2)],
                [f'v_cvt_pk_bf16_f32 v{dst+h}, v{src+2*h}, v{src+2*h+1}' for h in range(2)]]
    def epi_q(s):
        src, st, dst = acc(0, s), STC + 2 * s, QP + 2 * (s - 1)
        return [[f'v_pk_fma_f32 {vr(src+2*h,2)}, {vr(CW+2*h,2)}, {vr(st,2)}, {vr(src+2*h,2)} op_sel_hi:[1,0,1]' for h in range(2)],
                [],
                [f'v_cvt_pk_bf16_f32 v{dst+h}, v{src+2*h}, v{src+2*h+1}' for h in range(2)]]
    def epi_v(s):
        src, dst = acc(2, s), VP + 2 * s
        return [[f'v_pk_fma_f32 {vr(src+2*h,2)}, {vr(NM4+4*s+2*h,2)}, {vr(CWV,2)}, {vr(src+2*h,2)} op_sel_hi:[1,0,1]' for h in range(2)],
                [f'v_pk_mul_f32 {vr(src+2*h,2)}, {vr(src+2*h,2)}, {vr(RS4+4*s+2*h,2)}' for h in range(2)],
                [f'v_cvt_pk_bf16_f32 v{dst+h}, v{src+2*h}, v{src+2*h+1}' for h in range(2)]]
    E = [epi_k(s) for s in range(5)] + [epi_q(s) for s in range(1, 5)]
    for ph in range(3):
        for e in E: a.run(e[ph])
    a(f'v_mov_b32 v{CWV}, v{acc(2,0)}')
    a(f'v_mov_b32 v{CWV+1}, v{acc(2,0)}')
    smm = []
    for u in range(4):
        q = vr(QP + 2 * u, 2)
        smm.append(f'v_mfma_f32_16x16x16_bf16 {vr(SC+4*u,4)}, {vr(KP+2*(u+1),2)}, {q}, {vr(BC,4)}')
        smm.append(f'v_mfma_f32_16x16x16_bf16 {vr(SP+4*u,4)}, {vr(KP+2*u,2)}, {q}, {vr(BP0 if u == 0 else BP,4)}')
    vv = [f'v_permlane16_swap_b32 v{CWV}, v{CWV+1}', f's_mov_b32 s{sT0}, {f2h(0.25 * 1.4426950408889634)}']
    vv += [f'v_mul_f32 v{STC+2*s+1}, s{sT0}, v{STC+2*s+1}' for s in range(1, 5)]
    E = [epi_v(s) for s in range(5)]
    for ph in range(3):
        for e in E: vv += e[ph]
    a.run(weave(smm, vv[:16]) + vv[16:])
    for u in range(4):
        for r in range(4):
            a(f'v_max_f32 v{SC+4*u+r}, v{SC+4*u+r}, v{SP+4*u+r}')
    for u in range(4):
        a(f'v_max3_f32 v{MX+u}, v{SC+4*u}, v{SC+4*u+1}, v{SC+4*u+2}')
    for u in range(4):
        a(f'v_max_f32 v{MX+u}, v{MX+u}, v{SC+4*u+3}')
    for sw in ('v_permlane16_swap_b32', 'v_permlane32_swap_b32'):
        for u in range(4): a(f'v_mov_b32 v{MT+u}, v{MX+u}')
        for u in range(4): a(f'{sw} v{MX+u}, v{MT+u}')
        for u in range(4): a(f'v_max_f32 v{MX+u}, v{MX+u}, v{MT+u}')
    for u in range(4):
        a(f'v_mul_f32 v{MX+u}, v{STC+2*u+3}, v{MX+u}')
    for u in range(4):
        for r in range(4):
            a(f'v_fma_f32 v{SC+4*u+r}, v{SC+4*u+r}, v{STC+2*u+3}, -v{MX+u}')
    for u in range(4):
        for r in range(4):
            a(f'v_exp_f32 v{SC+4*u+r}, v{SC+4*u+r}')
    for u in range(4):
        for h in range(2):
            a(f'v_cvt_pk_bf16_f32 v{PM+2*u+h}, v{SC+4*u+2*h}, v{SC+4*u+2*h+1}')
        for h in range(2):
            a(f'v_and_b32 v{PB+4*u+h}, v{PM+2*u+h}, v{MP+h}')
            a(f'v_and_b32 v{PB+4*u+2+h}, v{PM+2*u+h}, v{MC+h}')
    pm = []
    for u in range(4):
        pm.append(f'v_mfma_f32_16x16x16_bf16 {vr(SP+4*u,4)}, {vr(ONE,2)}, {vr(PM+2*u,2)}, 0')
    for u in range(4):
        pm.append(f'v_mfma_f32_16x16x32_bf16 {vr(SC+4*u,4)}, {vr(VP+2*u,4)}, {vr(PB+4*u,4)}, 0')
    sa = [f's_lshl2_add_u32 s{sT0}, s{sDT}, s{sWAVE}', f's_lshl_b32 s{sT2}, s{sRT}, 7', f's_add_u32 s{sT2}, s{sT2}, s{sDT}', f's_lshl_b32 s{sT2}, s{sT2}, 2',
          f's_add_u32 s{sT2}, s{sT2}, {WS_F1:#x}', f's_lshl_b32 s{sT0}, s{sT0}, 9', f's_lshl_b32 s{sT1}, s{sRT}, 16', f's_add_u32 s{sT0}, s{sT0}, s{sT1}',
          f's_add_u32 s{sT1}, s{sT0}, 32768', f'v_lshrrev_b32 v{vT0}, 5, v{vL}', f'v_mul_u32_u24 v{vT0}, {16384 - 512}, v{vT0}', f'v_add_u32 v{vT0}, v{vT0}, v{vL16}',
          f'v_lshrrev_b32 v{vT3}, 2, v{vL}', f'v_and_b32 v{vT1}, 3, v{vL}', f'v_lshlrev_b32 v{vT1}, 7, v{vT1}', f'v_lshl_add_u32 v{vT3}, v{vT3}, 14, v{vT1}']
    a.run(weave(pm, sa))
    a.wait_all(vm=False)
    a(f's_cmp_lg_u32 s{sNON}, 0')
    a('s_cbranch_scc0 L_non')
    a.label('L_nonok')
    tail.append(['L_non:', f's_load_dword s{sNON}, s[{sDBG}:{sDBG+1}], 0 glc', 's_waitcnt lgkmcnt(0)', f's_cmp_lg_u32 s{sNON}, 0', 's_cbranch_scc1 L_nonok',
                 f's_sub_u32 s{sBUD}, s{sBUD}, 1', 's_cbranch_scc0 L_non', f's_mov_b32 s{sBUD}, 0', 's_branch L_nonok'])
    a(f's_mov_b32 s{sNON+1}, s{sNON}')
    a(f'v_mov_b32 v{vT2}, s{sNON}')
    for u in range(4):
        a(f'v_rcp_f32 v{SP+4*u}, v{SP+4*u}')
    for u in range(4):
        for h in range(2):
            a(f'v_pk_mul_f32 {vr(SC+4*u+2*h,2)}, {vr(SC+4*u+2*h,2)}, {vr(SP+4*u,2)} op_sel_hi:[1,0]')
    for u in range(4):
        for h in range(2):
            a(f'v_cvt_pk_bf16_f32 v{OUT+2*u+h}, v{SC+4*u+2*h}, v{SC+4*u+2*h+1}')
    for e in range(2):
        for h in range(2):
            a(f'v_permlane32_swap_b32 v{OUT+4*e+h}, v{OUT+4*e+2+h}')
    left = a.inj; a.inj = []
    for e in range(2):
        a.vm('ost', f'buffer_store_dwordx4 {vr(OUT+4*e,4)}, v{vT0}, {srd(sWS)}, s{[sT0,sT1][e]} offen sc1')
    assert not any(o[0] == 'vm' and o[1] == 'wo' for o in flat(left) if not isinstance(o, str))
    a.wait(vm=['wo', 'clr'])
    nflag = [0]
    def flag(soff, barrier=True):
        nflag[0] += 1
        if barrier: a('s_barrier')
        a(f's_cmp_lg_u32 s{sWAVE}, 0')
        a(f's_cbranch_scc1 L_nf{nflag[0]}')
        a('s_mov_b32 exec_hi, 0')
        a(f'buffer_store_dword v{vT2}, v{vT3}, {srd(sWS)}, s{soff} offen sc1')
        a('s_mov_b32 exec_hi, -1')
        a.label(f'L_nf{nflag[0]}')
    flag(sT2)
    a.run(late.get(17, []))
    a.stamp(0, 1, 3)
    a.run(wop)
    a.run(left)
    ID, O, ACC2, S2, PK2 = 20, 64, 128, 144, 152
    vHO, vSO, vTW = 9, 10, 12
    cst = [f'v_bfe_u32 v{vT0}, v{vL}, 2, 3', f'v_lshrrev_b32 v{vT1}, 5, v{vL}', f'v_lshl_add_u32 v{vT0}, v{vT1}, 4, v{vT0}', f'v_lshlrev_b32 v{vTW}, 7, v{vT0}',
           f'v_bfe_u32 v{vT0}, v{vL}, 3, 2', f'v_lshl_add_u32 v{vTW}, v{vT0}, 5, v{vTW}', f'v_and_b32 v{vT0}, 3, v{vL}', f'v_lshl_add_u32 v{vTW}, v{vT0}, 3, v{vTW}']
    cst += [f'v_xor_b32 v{vTW+t}, {32*t}, v{vTW}' for t in range(1, 4)]
    cst += [f'v_and_b32 v{vT0}, 1, v{vC}', f'v_lshlrev_b32 v{vT0}, 4, v{vT0}', f'v_mov_b32 v{vT1}, 0x3f80', f'v_lshlrev_b32 v{vT0}, v{vT0}, v{vT1}',
            f'v_lshrrev_b32 v{vT1}, 1, v{vC}', f'v_lshlrev_b32 v{vE0}, 2, v{vG}', f'v_sub_u32 v{vT1}, v{vT1}, v{vE0}']
    for b in range(2):
        for k in range(4):
            cst += [f'v_cmp_eq_i32 vcc, {k - 8*b}, v{vT1}', f'v_cndmask_b32 v{ID+4*b+k}, 0, v{vT0}, vcc']
    cst += [f'v_and_b32 v{vT0}, 1, v{vG}', f'v_lshlrev_b32 v{vHO}, 10, v{vT0}', f'v_lshrrev_b32 v{vT0}, 1, v{vG}', f'v_lshl_add_u32 v{vHO}, v{vT0}, 8, v{vHO}',
            f'v_lshl_add_u32 v{vHO}, v{vC}, 4, v{vHO}',
            f'v_lshrrev_b32 v{vT0}, 2, v{vC}', f'v_lshlrev_b32 v{vSO}, 8, v{vT0}', f'v_lshl_add_u32 v{vSO}, v{vG}, 6, v{vSO}', f'v_and_b32 v{vT0}, 3, v{vC}',
            f'v_lshl_add_u32 v{vSO}, v{vT0}, 4, v{vSO}']
    cst += [f'v_mfma_f32_16x16x32_bf16 {vr(ACC2+4*t,4)}, {vr(XR+4*(t>>1),4)}, {vr(ID+4*(t&1),4)}, 0' for t in range(4)]
    sBLK = sXB
    sFL = sLW
    cst += [f's_lshl_b32 s{sFL}, s{sDT}, 5', f's_add_u32 s{sFL}, s{sFL}, s{sRT}', f's_lshl2_add_u32 s{sFL}, s{sFL}, s{sWAVE}', f's_lshl_b32 s{sFL}, s{sFL}, 7',
            f's_add_u32 s{sFL}, s{sFL}, {WS_F1:#x}', f'v_lshlrev_b32 v{vT3}, 9, v{vL}', f's_lshl2_add_u32 s{sBLK}, s{sRT}, s{sWAVE}', f's_lshl_b32 s{sT1}, s{sBLK}, 14']
    cst0 = w2_scalars(sW2A, sW2B, sROT4) + [f's_lshl_b32 s{sPL}, s{sWAVE}, 14'] + mk_q(vQ2, False) + mk_r(vR2, False)
    a.run(cst0 + cst)
    hadr = [f's_lshl_b32 s{sT0}, s{sDT}, 18', f's_lshr_b32 s3, s{sBLK}, 1', f's_lshl_b32 s3, s3, 12', f's_add_u32 s{sT0}, s{sT0}, s3', f's_and_b32 s3, s{sBLK}, 1',
            f's_lshl_b32 s3, s3, 9', f's_add_u32 s{sT0}, s{sT0}, s3', f's_add_u32 s{sT0}, s{sT0}, {WS_HF:#x}']
    def uclr(R): return clr[2] + [('vm', 'clr', f'buffer_store_dwordx4 {vr(R,4)}, v{vL16}, {srd(sWS)}, s3 offen offset:{1024*h} sc1') for h in range(2)]
    if OPT['CH'] == 17 or OPT['CU'] == 17:
        a.run([f'v_mov_b32 v{S2+k}, -1' for k in range(4)])
    if OPT['CH'] == 17:
        a.run(hadr + [f's_sub_u32 s3, s{sT0}, {WS_HF - WS_HN:#x}']); hadr = []
        for e in range(2): a.vm('clr', f'buffer_store_dwordx4 {vr(S2,4)}, v{vHO}, {srd(sWS)}, s3 offen offset:{2048*e} sc1')
        if OPT['CLX'] & 8:
            for e in range(2): a.vm('clr', f'buffer_store_dwordx4 {vr(S2,4)}, v{vHO}, {srd(sWS)}, s{sT0} offen offset:{2048*e} sc1')
    if OPT['CU'] == 17: a.run(uclr(S2))
    def wf2(i): return [32, 48, 176, 192, 208, 224][i % 6]
    def tr2(i):
        return [('ds', ('w2r', i), f'ds_read_b64_tr_b16 {vr(wf2(i)+4*t+2*h,2)}, v{vTW+t} offset:{4096*i+1024*h}') for t in range(4) for h in range(2)]
    if wop:
        a.run(events(OPT['EB1']))
        a.wait(vm=['wo'])
        a('s_barrier')
    for i in range(5): a.run(tr2(i))
    a.run(events(OPT['EB1']))
    def poll(lbl, soff):
        a.stamp(3)
        if OPT['PW' + lbl[-1]]: a(f's_sleep {OPT["PW" + lbl[-1]]}')
        a.label(lbl)
        a(f's_load_dwordx8 s[{sPOLL}:{sPOLL+7}], s[{sWS}:{sWS+1}], s{soff} glc')
        a.wait_all(vm=False)
        for k in range(4): a(f's_xor_b64 s[{sPOLL+2*k}:{sPOLL+2*k+1}], s[{sPOLL+2*k}:{sPOLL+2*k+1}], s[{sNON}:{sNON+1}]')
        a(f's_or_b64 s[{sPOLL}:{sPOLL+1}], s[{sPOLL}:{sPOLL+1}], s[{sPOLL+2}:{sPOLL+3}]')
        a(f's_or_b64 s[{sPOLL+4}:{sPOLL+5}], s[{sPOLL+4}:{sPOLL+5}], s[{sPOLL+6}:{sPOLL+7}]')
        a(f's_or_b64 s[{sPOLL}:{sPOLL+1}], s[{sPOLL}:{sPOLL+1}], s[{sPOLL+4}:{sPOLL+5}]')
        a(f's_cbranch_scc0 {lbl}_ok')
        if OPT['PR']: a(f's_sleep {OPT["PR"]}')
        a(f's_sub_u32 s{sBUD}, s{sBUD}, 1')
        a(f's_cbranch_scc0 {lbl}')
        a(f's_mov_b32 s{sBUD}, 0')
        a.label(lbl + '_ok')
    def check(lbl, regs, reload):
        ck = [f'v_max3_u32 v{vCK}, v{regs[0]}, v{regs[1]}, v{regs[2]}', f'v_max_u32 v{vCK}, v{vCK}, v{regs[3]}', f'v_cmp_eq_u32 vcc, -1, v{vCK}']
        tail.append([lbl + ':'] + ([f's_add_u32 s101, s101, {1 if "ro" in lbl else 0x100 if "ra1" in lbl else 0x10000}'] if PROF else []) + [f's_sub_u32 s{sBUD}, s{sBUD}, 1', f's_cbranch_scc1 {lbl}_x'] + reload + ['s_waitcnt vmcnt(0)'] + ck +
                    [f's_cbranch_vccnz {lbl}', f's_branch {lbl}_b', lbl + '_x:', f's_mov_b32 s{sBUD}, 0', f's_branch {lbl}_b'])
        return ck + [('grp', [f's_cbranch_vccnz {lbl}', ('label', lbl + '_b')])]
    if OPT['HOP'] == 2: hop(5, 'L_pgc')
    poll('L_p1', sFL)
    a.stamp(0, 3)
    if PROF: a(f'v_mov_b32 v252, s{sBUD}')
    sOB = sWB
    a(f's_mov_b32 s{sOB}, s{sT1}')
    def oload(i, so, f=1): return f'buffer_load_dwordx4 {vr(O+4*i,4)}, v{vL16}, {srd(sWS)}, s{so} offen offset:{1024*(i&3)}' + SCF[f]
    for c in range(4):
        if c: a(f's_add_u32 s{sT1}, s{sT1}, 4096')
        for i in range(4): a.vm(('o', 4*c+i), oload(4*c+i, sT1, OPT['SO']))
    a.run(late.get(20, []))
    a.run(hadr)
    a(f's_lshl_b32 s{sT1}, s{sBLK}, 11')
    a(f's_add_u32 s{sT1}, s{sT1}, {WS_SX:#x}')
    a(f's_lshl_b32 s{sT2}, s{sDT}, 8')
    a(f's_add_u32 s{sT2}, s{sT2}, s{sT1}')
    a(f'v_lshlrev_b32 v{vT0}, 2, v{vL}')
    def ocheck(c):
        return [('wvm', ('o', 4*c+3))] + check(f'L_ro{c}', [O + 16*c + 4*i for i in range(4)], [f's_add_u32 s{sCNT}, s{sOB}, {4096*c}'] + [oload(4*c+i, sCNT) for i in range(4)])
    a.run(events(OPT['EB2']))
    a.run(ocheck(0))
    ec = events(OPT['EC'])
    for i in range(16):
        a.wait(ds=[('w2r', i)])
        mm = [f'v_mfma_f32_16x16x32_bf16 {vr(ACC2+4*t,4)}, {vr(O+4*i,4)}, {vr(wf2(i)+4*t,4)}, {vr(ACC2+4*t,4)}' for t in range(4)]
        f = tr2(i + 5) if i + 5 < 16 else []
        wgt = [1] * 11 + [3] * 5
        lo, hi = (len(ec) * sum(wgt[:i])) // sum(wgt), (len(ec) * sum(wgt[:i + 1])) // sum(wgt)
        f = mix(f, ec[lo:hi])
        if i % 4 == 3 and i < 12: f = f + ocheck(i // 4 + 1)
        a.run(weave(mm, f))
    a.run(late.get(22, []))
    a.stamp(0, 3)
    S = S2
    for r in range(4):
        a(f'v_add_f32 v{S+r}, v{ACC2+r}, v{ACC2+4+r}')
        a(f'v_mul_f32 v{S+4+r}, v{ACC2+r}, v{ACC2+r}')
    for t in range(1, 4):
        for r in range(4):
            if t > 1: a(f'v_add_f32 v{S+r}, v{S+r}, v{ACC2+4*t+r}')
            a(f'v_fmac_f32 v{S+4+r}, v{ACC2+4*t+r}, v{ACC2+4*t+r}')
    for base in (S, S + 4):
        for i in range(2):
            a(f'v_add_f32_dpp v{base+i}, v{base+i}, v{base+i} row_ror:8 row_mask:0xf bank_mask:0x3')
    for base in (S, S + 4):
        for i in range(2):
            a(f'v_add_f32_dpp v{base+i}, v{base+i+2}, v{base+i+2} row_ror:8 row_mask:0xf bank_mask:0xc')
    for base in (S, S + 4):
        a(f'v_add_f32_dpp v{base}, v{base}, v{base} row_half_mirror row_mask:0xf bank_mask:0x5')
    for base in (S, S + 4):
        a(f'v_add_f32_dpp v{base}, v{base+1}, v{base+1} row_half_mirror row_mask:0xf bank_mask:0xa')
    for qp in ('[1,0,3,2]', '[2,3,0,1]'):
        for base in (S, S + 4):
            a(f'v_add_f32_dpp v{base}, v{base}, v{base} quad_perm:{qp} row_mask:0xf bank_mask:0xf')
    a('s_mov_b32 vcc_lo, 0xaaaaaaaa')
    a('s_mov_b32 vcc_hi, 0xaaaaaaaa')
    a(f'v_cndmask_b32 v{S}, v{S}, v{S+4}, vcc')
    a('s_mov_b32 vcc_lo, 0xcccccccc')
    a('s_mov_b32 vcc_hi, 0xcccccccc')
    a(f'v_cndmask_b32 v{S}, v{S}, v{vT2}, vcc')
    a.vm('sx', f'buffer_store_dword v{S}, v{vT0}, {srd(sWS)}, s{sT2} offen' + SCF[OPT['SXS']])
    def pack_store(tag, soff, defer=False):
        for t in range(4):
            for h in range(2):
                a(f'v_cvt_pk_bf16_f32 v{PK2+2*t+h}, v{ACC2+4*t+2*h}, v{ACC2+4*t+2*h+1}')
        for e in range(2):
            for h in range(2):
                a(f'v_permlane16_swap_b32 v{PK2+4*e+h}, v{PK2+4*e+2+h}')
        st = [('vm', tag, f'buffer_store_dwordx4 {vr(PK2+4*e,4)}, v{vHO}, {srd(sWS)}, s{soff} offen offset:{2048*e} sc1') for e in range(2)]
        if defer: return st
        a.run(st); return []
    hfs = pack_store('hf', sT0, OPT['HFL'])
    PK2 = PK2 + 8
    hfs += [f's_sub_u32 s{sT0}, s{sT0}, {WS_HF - WS_HN:#x}']
    if not OPT['HFL']: a.run(hfs); hfs = []
    a(f's_lshl_b32 s{sT2}, s{sDT}, 7')
    a(f's_lshr_b32 s{sCNT}, s{sRT}, 3')
    a(f's_add_u32 s{sT2}, s{sT2}, s{sCNT}')
    a(f's_lshl_b32 s{sT2}, s{sT2}, 5')
    a(f's_and_b32 s{sCNT}, s{sRT}, 7')
    a(f's_add_u32 s{sT2}, s{sT2}, s{sCNT}')
    a(f's_lshl_b32 s{sT2}, s{sT2}, 2')
    a(f's_add_u32 s{sT2}, s{sT2}, {WS_F2:#x}')
    a([f's_mov_b32 s{sDT}, s{sD3}', f's_mov_b32 s{sDT}, 0', f's_and_b32 s{sDT}, s{sD3}, 1', f's_and_b32 s{sDT}, s{sD3}, 3'][OPT['ZD3']])
    a.run(late.get(24, []))
    a.run(events(OPT['ED']))
    a.run(late.get(25, []))
    a.stamp(0, 3)
    if PROF: a(f'v_mov_b32 v254, s{sBUD}')
    R0 = O
    sxl = [f'buffer_load_dwordx4 {vr(R0+4*e,4)}, v{vSO}, {srd(sWS)}, s{sT1} offen offset:{1024*e}' + SCF[OPT['SXL']] for e in range(2)]
    sxc = [f'v_xor_b32 v{R0+2}, s{sNON}, v{R0+2}', f'v_xor_b32 v{R0+6}, s{sNON}, v{R0+6}', f'v_add_f32 v{R0}, v{R0}, v{R0+4}', f'v_or_b32 v{R0+2}, v{R0+2}, v{R0+6}',
           f'v_add_f32 v{R0+1}, v{R0+1}, v{R0+5}', f'v_cmp_ne_u32 vcc, 0, v{R0+2}']
    if OPT['SXP']:
        NR = OPT['SXP']
        R0 = 176
        a.run(events(OPT['EE']))
        def sxl_(r): return [f'buffer_load_dwordx4 {vr(O+8*r+4*e,4)}, v{vSO}, {srd(sWS)}, s{sT1} offen offset:{1024*e} sc1' for e in range(2)]
        for r in range(NR):
            if r: a(f's_sleep {OPT["SXD"]}')
            for t_ in sxl_(r): a.vm('sxl', t_)
        a.label('L_sx')
        for r in range(NR):
            P = O + 8 * r
            a(f's_waitcnt vmcnt({2 * (NR - 1)})')
            a.run([f'v_xor_b32 v{R0+2}, s{sNON}, v{P+2}', f'v_xor_b32 v{R0+3}, s{sNON}, v{P+6}', f'v_add_f32 v{R0}, v{P}, v{P+4}', f'v_or_b32 v{R0+2}, v{R0+2}, v{R0+3}',
                   f'v_add_f32 v{R0+1}, v{P+1}, v{P+5}', f'v_cmp_ne_u32 vcc, 0, v{R0+2}', 's_cbranch_vccz L_sx_ok'] + sxl_(r))
        a(f's_sub_u32 s{sBUD}, s{sBUD}, 1')
        a('s_cbranch_scc0 L_sx')
        a(f's_mov_b32 s{sBUD}, 0')
        a.vmq = ['sxq'] * (2 * NR - 1) + ['sxp']
    else:
        if OPT['SXW']: a(f's_sleep {OPT["SXW"]}')
        for t_ in sxl: a.vm('sxl', t_)
        a.run(hfs)
        a.run(events(OPT['EE']))
        a.wait(vm=['sxl'])
        a.run(sxc)
        if OPT['SXI']:
            a('s_cbranch_vccz L_sx_ok')
            for t_ in ['L_sx:', f's_sub_u32 s{sBUD}, s{sBUD}, 1', 's_cbranch_scc1 L_sx_x'] + ([f's_sleep {OPT["SXR"]}'] if OPT['SXR'] else []) + sxl + ['s_waitcnt vmcnt(0)'] + sxc + ['s_cbranch_vccnz L_sx']: a(t_)
            tail.append(['L_sx_x:', f's_mov_b32 s{sBUD}, 0', 's_branch L_sx_ok'])
        else:
            a('s_cbranch_vccnz L_sx')
            tail.append(['L_sx:', f's_sub_u32 s{sBUD}, s{sBUD}, 1', 's_cbranch_scc1 L_sx_x'] + sxl + ['s_waitcnt vmcnt(0)'] + sxc +
                        ['s_cbranch_vccnz L_sx', 's_branch L_sx_ok', 'L_sx_x:', f's_mov_b32 s{sBUD}, 0', 's_branch L_sx_ok'])
    a.label('L_sx_ok')
    a.run(late.get(21, []))
    a.stamp(0, 3)
    if PROF: a(f'v_mov_b32 v255, s{sBUD}')
    for ror in (4, 8):
        for k in range(2):
            a(f'v_add_f32_dpp v{R0+k}, v{R0+k}, v{R0+k} row_ror:{ror} row_mask:0xf bank_mask:0xf')
    s_, q_, t_ = R0, R0 + 1, R0 + 2
    a(f's_mov_b32 s{sT1}, 0x3727c5ac')
    a(f'v_mul_f32 v{s_}, 0xbb000000, v{s_}')
    a(f'v_mul_f32 v{q_}, 0x3b000000, v{q_}')
    a(f'v_fma_f32 v{q_}, -v{s_}, v{s_}, v{q_}')
    a(f'v_max_f32 v{q_}, 0, v{q_}')
    a(f'v_add_f32 v{t_}, s{sT1}, v{q_}')
    a(f'v_rsq_f32 v{t_}, v{t_}')
    a(f'v_mul_f32 v{q_}, v{q_}, v{t_}')
    a(f'v_fma_f32 v{q_}, v{q_}, v{t_}, s{sT1}')
    a(f'v_rsq_f32 v{q_}, v{q_}')
    a(f'v_mul_f32 v{t_}, v{t_}, v{q_}')
    a(f'v_mul_f32 v{s_}, v{s_}, v{t_}')
    RR, BB = R0 + 4, R0 + 8
    for r in range(4):
        a(f'v_mov_b32_dpp v{RR+r}, v{t_} quad_perm:[{r},{r},{r},{r}] row_mask:0xf bank_mask:0xf')
    for r in range(4):
        a(f'v_mov_b32_dpp v{BB+r}, v{s_} quad_perm:[{r},{r},{r},{r}] row_mask:0xf bank_mask:0xf')
    for t in range(4):
        for h in range(2):
            a(f'v_pk_fma_f32 {vr(ACC2+4*t+2*h,2)}, {vr(ACC2+4*t+2*h,2)}, {vr(RR+2*h,2)}, {vr(BB+2*h,2)}')
    pack_store('hst', sT0)
    a.wait(vm=['hf'])
    a.wait_all(vm=False)
    flag(sT2)
    a.run(late.get(23, []))
    if OPT['OPS'] == 23: a.run(opre(PK2, vT0))
    if OPT['CU'] == 23: a.run([f'v_mov_b32 v{112+k}, -1' for k in range(4)] + uclr(112))
    a.wait(vm=['sxq'])
    a.stamp(0, 3)
    vA0, vA1 = 17, 18
    BI4 = 20
    OWN, OTH, ST, H = 32, 48, 96, 128
    a(f's_cmp_ge_u32 s{sZ}, 7')
    a('s_cbranch_scc1 L_skip3')
    save = (list(a.vmq), list(a.dsq), list(EV), dict(slot_of))
    a.run(events(OPT['EF']))
    while OPT['MF'] and EV and EV[0][0] == 'M': a.run(evM(EV.pop(0)[1]))
    a(f's_lshr_b32 s{sT0}, s{sWAVE}, 1')
    a(f's_lshl_b32 s{sT0}, s{sT0}, 11')
    a(f'v_or_b32 v{vA0}, s{sT0}, v{vL16}')
    a(f'v_xor_b32 v{vA1}, 2048, v{vA0}')
    a(f's_lshl_b32 s{sT0}, s{sCT3}, 7')
    a(f's_and_b32 s{sT1}, s{sWAVE}, 1')
    a(f's_lshl_b32 s{sT1}, s{sT1}, 6')
    a(f's_add_u32 s{sT0}, s{sT0}, s{sT1}')
    a(f'v_lshlrev_b32 v{vT0}, 3, v{vG}')
    for i in range(2):
        a.vm('b1', f'buffer_load_dwordx2 {vr(BI4+2*i,2)}, v{vT0}, {srd(sB1)}, s{sT0} offen offset:{32*i}')
    sHA, sHB = sXB, sWB
    a(f's_lshl4_add_u32 s{sT0}, s{sWAVE}, s{sROT3}')
    a(f's_lshl_b32 s{sHA}, s{sT0}, 12')
    a(f's_lshl_b32 s{sT0}, s{sDT}, 18')
    a(f's_add_u32 s{sHA}, s{sHA}, s{sT0}')
    a(f's_add_u32 s{sHA}, s{sHA}, {WS_HN:#x}')
    a(f's_sub_u32 s{sHB}, s{sHA}, 65536')
    vRD = 9
    red_addr = [f's_mul_i32 s{sT0}, s{sWAVE}, 12288']
    for q in range(1, 4):
        red_addr += [f's_xor_b32 s{sT1}, s{sWAVE}, {q}', f's_mul_i32 s{sT1}, s{sT1}, 12288', f'v_add_u32 v{vRD+q-1}, s{sT1}, v{vL16}']
    red_addr += [f'v_add_u32 v{vRD+3}, s{sT0}, v{vL16}']
    a.run(red_addr)
    a(f's_bfe_u32 s{sT0}, s2, {1 | (2 << 16)}')
    a(f's_lshl2_add_u32 s{sT0}, s{sDT}, s{sT0}')
    a(f's_lshl3_add_u32 s{sT0}, s{sT0}, s{sZ}')
    a(f's_lshl2_add_u32 s{sT0}, s{sT0}, s{sWAVE}')
    a(f's_lshl_b32 s{sT0}, s{sT0}, 7')
    a(f's_add_u32 s{sT0}, s{sT0}, {WS_F2:#x}')
    poll('L_p2', sT0)
    a.stamp(0, 2, 3)
    def hreg(i, t): return H + 16 * (i % 7) + 4 * t
    def aload_txt(K3, i, t, so, f=1):
        if K3: return f'buffer_load_dwordx4 {vr(hreg(i,t),4)}, v{vA1 if t >> 1 else vA0}, {srd(sWS)}, s{so} offen offset:{1024*(t&1)}' + SCF[f]
        return f'buffer_load_dwordx4 {vr(hreg(i,t),4)}, v{vL16}, {srd(sWS)}, s{so} offen offset:{1024*t}' + SCF[f]
    def aaddr(K3, i, so):
        N = 16 if K3 else 14
        rot = sROT3 if K3 else sROT4
        return [f's_cmp_lt_u32 s{rot}, {N - i}', f's_cselect_b32 s{so}, s{sHA}, s{sHB}', f's_add_u32 s{so}, s{so}, {i*4096}']
    def aloads(K3, i):
        return [('grp', (aaddr(K3, i, sCNT) if t == 0 else []) + [('vm', ('a', K3, i), aload_txt(K3, i, t, sCNT, OPT['SA3' if K3 else 'SA4']))]) for t in range(4)]
    def acheck(K3, i):
        return [('wvm', ('a', K3, i))] + check(f'L_ra{int(K3)}_{i}', [hreg(i, t) for t in range(4)], aaddr(K3, i, sPOLL) + [aload_txt(K3, i, t, sPOLL) for t in range(4)])
    def acc34(K3, tw, ta):
        q, k = ((tw >> 1) + 2 * (ta >> 1), (tw & 1) + 2 * (ta & 1)) if K3 else (tw, ta)
        return q, vr(OWN + 16 * q + 4 * k, 4)
    def mm34(K3, i, quad=None):
        mm = []
        for ta in range(4):
            for tw in range(4):
                q, d = acc34(K3, tw, ta)
                if quad is not None and q != quad: continue
                A, B = (ar(16*i+4*tw, 4), vr(hreg(i, ta), 4)) if K3 else (vr(hreg(i, ta), 4), ar(16*i+4*tw, 4))
                mm.append(f'v_mfma_f32_16x16x32_bf16 {d}, {A}, {B}, {"0" if i == 0 else d}')
        return mm
    def red_w(q): return [('ds', 'rw', f'ds_write_b128 v{vRD+q-1}, {vr(OWN+16*q+4*k,4)} offset:{4096*(q-1)+1024*k}') for k in range(4)]
    def gemm34(K3, N, fills, first):
        NQ, D0 = OPT['NQ'], OPT['D0']
        for i in range(D0): a.run(aloads(K3, i))
        a.run(first)
        rest = [o for i in range(D0, N) for o in aloads(K3, i)]
        nb = N - NQ - 1
        a.run(acheck(K3, 0))
        a.stamp(2)
        done = 0
        for i in range(N - NQ):
            tgt = min(len(rest), ((i + 1) * len(rest) + nb - 1) // nb, 4 * (i + 6 - D0 + 1))
            ld = rest[done:tgt]; done = tgt
            f = mix(ld, fills.get(i, []))
            mm = mm34(K3, i)
            a.run(weave(mm[:11], f) + weave(mm[11:], acheck(K3, i + 1)))
            if i in ((3, 7, 12) if K3 else (4, 10)): a.stamp(2)
        assert done == len(rest)
        prev = None
        for j, q in enumerate((1, 2, 3, 0)):
            if j == 1 and K3 and lowbar:
                a.wait(ds=[('t',) + uid(npre - 1)])
                a('s_barrier')
            f = fills.get(N - NQ + j, [])
            if j == 0:
                for i in range(N - NQ, N):
                    a.run(weave(mm34(K3, i, q), acheck(K3, i + 1) if i + 1 < N else f))
                    if i == N - 2: a.stamp(2)
            else:
                mm = []
                for i in range(N - NQ, N): mm += mm34(K3, i, q)
                a.run(mm[:3] + weave(mm[3:], mix(f, red_w(prev))))
            prev = q
    def reduce_rd():
        a.wait_all(vm=False)
        a('s_barrier')
        for k in range(4):
            for q in range(3):
                a.ds(('rr', k), f'ds_read_b128 {vr(OTH+16*q+4*k,4)}, v{vRD+3} offset:{4096*q+1024*k}')
    def reduce_sum(k, bias):
        o = OWN + 4 * k
        ops = [('wds', ('rr', k))]
        for h in range(2):
            ops += [f'v_pk_add_f32 {vr(o+2*h,2)}, {vr(o+2*h,2)}, {bias(k, h)}', f'v_pk_add_f32 {vr(OTH+4*k+2*h,2)}, {vr(OTH+4*k+2*h,2)}, {vr(OTH+16+4*k+2*h,2)}']
        ops += [f'v_pk_add_f32 {vr(o+2*h,2)}, {vr(o+2*h,2)}, {vr(OTH+32+4*k+2*h,2)}' for h in range(2)]
        ops += [f'v_pk_add_f32 {vr(o+2*h,2)}, {vr(o+2*h,2)}, {vr(OTH+4*k+2*h,2)}' for h in range(2)]
        return ops
    first = events(OPT['EG'])
    while any(e[0] == 'M' for e in EV):
        e = EV.pop(0); first += evD(e[1]) if e[0] == 'D' else evM(e[1])
    first += [f's_sub_u32 s{sT0}, s{sPR}, s{sPL}'] + [f'v_subrev_u32 v{vR2L+t}, s{sT0}, v{vR2+t}' for t in range(4)] + [('wds', ('t', True, 15))]
    BF = ST
    fills = {8: [x for i in range(4) for x in (f'v_lshlrev_b32 v{BF+2*i}, 16, v{BI4+i}', f'v_and_b32 v{BF+2*i+1}, 0xffff0000, v{BI4+i}')]}
    nD = EV[0][1] if EV else 22 + NLOW
    npre = nD
    nM = 16
    NB3 = 16 - OPT['NQ']
    def free_slot(n, moved):
        if n < 22: return n % NSL, None
        last = {}
        for k in range(16, n): last[slot_of[uid(k)]] = k
        c = sorted(k for sl, k in last.items() if sl < NSL and k < moved)
        return (slot_of[uid(c[0])], c[0]) if c else (None, None)
    for i in range(1, NB3 + 4):
        f = []
        if i >= OPT['W2B'] and nD < 30:
            sl, pv = free_slot(nD, nM)
            if sl is not None:
                f += ([('wds', ('t',) + uid(pv))] if pv is not None else []) + dma_unit(False, nD - 16, vQ2, sl); nD += 1
        if i >= OPT['M2B'] and nM < npre and nM - 16 < min(i, NB3): f += evM(nM); nM += 1
        fills[i] = fills.get(i, []) + f
        if i == NB3: assert npre <= 22 or nM >= npre
    lowbar = npre > 22
    gemm34(True, 16, fills, first)
    a.stamp(0, 2, 3)
    reduce_rd()
    a(f's_mul_i32 s{sT0}, s{sDT}, {56*4096}')
    a(f's_lshl_b32 s{sT1}, s{sCT3}, 13')
    a(f's_add_u32 s{sT0}, s{sT0}, s{sT1}')
    a(f's_and_b32 s{sT1}, s{sWAVE}, 1')
    a(f's_lshl_b32 s{sT1}, s{sT1}, 12')
    a(f's_add_u32 s{sT0}, s{sT0}, s{sT1}')
    a(f's_add_u32 s{sT0}, s{sT0}, {WS_UF:#x}')
    f3 = [f's_lshl_b32 s{sT2}, s{sDT}, 7', f's_bfe_u32 s{sT1}, s2, {1 | (2 << 16)}', f's_add_u32 s{sT2}, s{sT2}, s{sT1}', f's_lshl_b32 s{sT2}, s{sT2}, 5', f's_add_u32 s{sT2}, s{sT2}, s{sZ}',
          f's_lshl_b32 s{sT2}, s{sT2}, 2', f's_add_u32 s{sT2}, s{sT2}, {WS_F3:#x}']
    a.run(f3)
    C1 = -2.0 * 0.7978845608028654 * 1.4426950408889634
    GC = ST + 8
    a(f'v_mov_b32 v{GC}, {f2h(C1 * 0.044715)}')
    a(f'v_mov_b32 v{GC+1}, {f2h(C1)}')
    T = H
    PK = H + 16
    ep = []
    for k in range(4): ep += reduce_sum(k, lambda k, h: vr(BF + 4 * (k & 1) + 2 * h, 2))
    nred = len(ep)
    ep += [f'v_pk_mul_f32 {vr(T+2*j,2)}, {vr(OWN+2*j,2)}, {vr(OWN+2*j,2)}' for j in range(8)]
    ep += [f'v_pk_fma_f32 {vr(T+2*j,2)}, {vr(T+2*j,2)}, {vr(GC,2)}, {vr(GC,2)} op_sel:[0,0,1] op_sel_hi:[1,0,1]' for j in range(8)]
    ep += [f'v_pk_mul_f32 {vr(T+2*j,2)}, {vr(T+2*j,2)}, {vr(OWN+2*j,2)}' for j in range(8)]
    ep += [f'v_exp_f32 v{T+j}, v{T+j}' for j in range(16)]
    ep += [f'v_pk_add_f32 {vr(T+2*j,2)}, {vr(T+2*j,2)}, 1.0 op_sel_hi:[1,0]' for j in range(8)]
    ep += [f'v_rcp_f32 v{T+j}, v{T+j}' for j in range(16)]
    ep += [f'v_pk_mul_f32 {vr(OWN+2*j,2)}, {vr(T+2*j,2)}, {vr(OWN+2*j,2)}' for j in range(8)]
    ep += [f'v_cvt_pk_bf16_f32 v{PK+j}, v{OWN+2*j}, v{OWN+2*j+1}' for j in range(8)]
    a.run(ep)
    for b in range(2):
        a.vm('ust', f'buffer_store_dwordx4 {vr(PK+4*b,4)}, v{vA0}, {srd(sWS)}, s{sT0} offen offset:{1024*b} sc1')
    flag(sT2)
    a.stamp(0, 3)
    if OPT['OPS'] == 30: a.run(opre(PK, vT0))
    while nM < 30:
        while nD < 30:
            sl, pv = free_slot(nD, nM - 1 if nM < nD else nM)
            if sl is None: break
            if pv is not None: a.wait(ds=[('t',) + uid(pv)])
            a.run(dma_unit(False, nD - 16, vQ2, sl)); nD += 1
        a.run(evM(nM)); nM += 1
    cut0 = len(a.items)
    a.label('L_skip3')
    vq, dq = a.vmq, a.dsq
    a.vmq, a.dsq = save[0], save[1]; slot_of.clear(); slot_of.update(save[3])
    a.run(f3)
    flag(sT2, barrier=False)
    a.wait_all(vm=False)
    nD = min([e[1] for e in save[2] if e[0] == 'D' and e[1] >= 16] + [22])
    assert nD <= 22 and all(sl < NSL for (k3, i_), sl in slot_of.items())
    for n in range(nD, 22): a.run(dma_unit(False, n - 16, vQ2, n % NSL))
    for n in range(16, 30):
        a.run(evM(n))
        if n > 16 and n + 5 < 30:
            a.wait(ds=[('t',) + uid(n - 1)])
            a.run(dma_unit(False, n + 5 - 16, vQ2, (n + 5) % NSL))
    a.run(red_addr)
    if OPT['SKT']:
        a(f's_and_b32 s{sT0}, s{sDT}, 3')
        a(f's_lshl2_add_u32 s{sT0}, s{sT0}, s{sWAVE}')
        a(f's_mul_i32 s{sT0}, s{sT0}, {112 * 8}')
        a(f's_and_b32 s{sT1}, s2, 7')
        a(f's_add_u32 s{sT0}, s{sT0}, s{sT1}')
        a(f's_lshl_b32 s{sT0}, s{sT0}, 9')
        a(f'v_lshrrev_b32 v{vT0}, 2, v{vL}')
        a(f'v_and_b32 v{vT1}, 3, v{vL}')
        a(f'v_lshlrev_b32 v{vT1}, 7, v{vT1}')
        a(f'v_lshl_add_u32 v{vT0}, v{vT0}, 12, v{vT1}')
        for n in range(7):
            a(f'buffer_load_dword v{vDUM}, v{vT0}, {srd(sW2)}, s{sT0} offen{nt("NTT")}')
            a(f's_add_u32 s{sT0}, s{sT0}, {16 * 4096}')
    a.wait_all()
    a.vmq = vq; a.dsq = dq
    a('s_branch L_join3')
    skipblk = a.items[cut0:]; del a.items[cut0:]
    a.label('L_join3')
    RES, PMX, vBI = ST, BI4, BI4 + 2
    sRS = sW1A
    a(f's_mul_i32 s{sT0}, s{sWAVE}, 14')
    a(f's_add_u32 s{sT0}, s{sT0}, s{sROT4}')
    a(f's_lshl_b32 s{sHA}, s{sT0}, 12')
    a(f's_mul_i32 s{sT0}, s{sDT}, {56*4096}')
    a(f's_add_u32 s{sHA}, s{sHA}, s{sT0}')
    a(f's_add_u32 s{sHA}, s{sHA}, {WS_UF:#x}')
    a(f's_sub_u32 s{sHB}, s{sHA}, {14*4096}')
    a(f's_lshl_b32 s{sT0}, s{sCT4}, 7')
    a(f's_lshl_b32 s{sT1}, s{sWAVE}, 5')
    a(f's_add_u32 s{sT0}, s{sT0}, s{sT1}')
    a(f'v_lshlrev_b32 v{vT0}, 1, v{vC}')
    a.vm('b2', f'buffer_load_ushort v{vBI}, v{vT0}, {srd(sB2)}, s{sT0} offen')
    a(f'v_lshrrev_b32 v{vT0}, 3, v{vC}')
    a(f'v_and_b32 v{vT1}, 1, v{vC}')
    a(f'v_lshl_add_u32 v{vT0}, v{vT1}, 1, v{vT0}')
    a(f'v_bfe_u32 v{vT1}, v{vC}, 1, 1')
    a(f'v_lshlrev_b32 v{vT1}, 4, v{vT1}')
    a(f'v_mov_b32 v{vT2}, 0x3f80')
    a(f'v_lshlrev_b32 v{vT1}, v{vT1}, v{vT2}')
    a(f'v_cmp_eq_u32 vcc, v{vT0}, v{vG}')
    a(f'v_cndmask_b32 v{vT1}, 0, v{vT1}, vcc')
    a(f'v_and_b32 v{vT0}, 4, v{vC}')
    a(f'v_cmp_eq_u32 vcc, 0, v{vT0}')
    a(f'v_cndmask_b32 v{PMX}, 0, v{vT1}, vcc')
    a(f'v_cndmask_b32_e64 v{PMX+1}, v{vT1}, 0, vcc')
    a(f'v_lshrrev_b32 v{vA0}, 1, v{vG}')
    a(f'v_lshlrev_b32 v{vA0}, 17, v{vA0}')
    a(f'v_lshl_add_u32 v{vA0}, v{vC}, 4, v{vA0}')
    a(f'v_and_b32 v{vT1}, 1, v{vG}')
    a(f'v_lshl_add_u32 v{vA0}, v{vT1}, 3, v{vA0}')
    a(f's_lshl_b32 s{sRS}, s{sDT}, 18')
    a(f's_lshl_b32 s{sT2}, s{sCT4}, 12')
    a(f's_add_u32 s{sRS}, s{sRS}, s{sT2}')
    a(f's_lshl_b32 s{sT2}, s{sWAVE}, 8')
    a(f's_add_u32 s{sRS}, s{sRS}, s{sT2}')
    a(f's_add_u32 s{sRS}, s{sRS}, {WS_HF:#x}')
    a(f'v_lshlrev_b32 v{vA1}, 10, v{vC}')
    a(f'v_lshl_add_u32 v{vA1}, v{vT1}, 5, v{vA1}')
    a(f'v_lshrrev_b32 v{vT1}, 1, v{vG}')
    a(f'v_lshl_add_u32 v{vA1}, v{vT1}, 4, v{vA1}')
    a(f's_lshl_b32 s{sT0}, s{sDT}, 5')
    a(f's_add_u32 s{sT0}, s{sT0}, s{sCT4}')
    a(f's_lshl2_add_u32 s{sT0}, s{sT0}, s{sWAVE}')
    a(f's_lshl_b32 s{sT0}, s{sT0}, 7')
    a(f's_add_u32 s{sT0}, s{sT0}, {WS_F3:#x}')
    poll('L_p3', sT0)
    a.stamp(0, 2, 3)
    N4 = 14 - OPT['NQ']
    fills = {2: [('vm', 'res', f'buffer_load_dwordx2 {vr(RES+2*t,2)}, v{vA0}, {srd(sWS)}, s{sRS} offen offset:{1024*t} sc1') for t in range(4)],
             N4 + 2: [('wvm', 'res')] + [f'v_mfma_f32_16x16x16_bf16 {acc34(False,0,t)[1]}, {vr(RES+2*t,2)}, {vr(PMX,2)}, {acc34(False,0,t)[1]}' for t in range(4)],
             3: [f'v_lshlrev_b32 v{vBI}, 16, v{vBI}', f'v_mov_b32 v{vBI+1}, v{vBI}', f's_lshl_b32 s{sT0}, s{sCT4}, 16', f's_lshl_b32 s{sT1}, s{sWAVE}, 14',
                 f's_add_u32 s{sT0}, s{sT0}, s{sT1}', f's_lshl_b32 s{sT1}, s{sDT}, 7', f's_add_u32 s{sT0}, s{sT0}, s{sT1}']}
    if OPT['OPF'] >= 0:
        fills[OPT['OPF']] = fills.get(OPT['OPF'], []) + [('vm', 'opf', f'buffer_load_dword v{vDUM}, v{vA1}, {srd(sOUT)}, s{sT0} offen')]
    gemm34(False, 14, fills, [])
    a.stamp(0, 2)
    reduce_rd()
    for k in range(4): a.run(reduce_sum(k, lambda k, h: vr(vBI, 2)))
    for j in range(8): a(f'v_cvt_pk_bf16_f32 v{PK+j}, v{OWN+2*j}, v{OWN+2*j+1}')
    for e in range(2):
        for h in range(2):
            a(f'v_permlane16_swap_b32 v{PK+4*e+h}, v{PK+4*e+2+h}')
    for e in range(2):
        a(f'buffer_store_dwordx4 {vr(PK+4*e,4)}, v{vA1}, {srd(sOUT)}, s{sT0} offen offset:{64*e}' + ['', ' sc1', ' nt', ' sc0 sc1'][OPT['OSC']])
    a.stamp()
    if PROF:
        a('s_waitcnt lgkmcnt(0)')
        a(f's_cmp_lg_u32 s{sWAVE}, 0')
        a('s_cbranch_scc1 L_end')
        if OPT['AMP'] >= 0:
            a(f's_cmp_lg_u32 s2, {OPT["AWG"]}')
            a('s_cbranch_scc1 L_end')
            a(f's_sub_u32 s{sT2}, s{70+2*OPT["AMP"]}, s70')
            a(f's_lshl_b32 s{sT2}, s{sT2}, 3')
            a(f's_min_u32 s{sT2}, s{sT2}, 100000')
            a(f's_memrealtime s[{sT0}:{sT1}]')
            a('s_waitcnt lgkmcnt(0)')
            a(f's_mov_b32 s{sCNT}, s{sT0}')
            a.label('L_amp')
            a(f's_memrealtime s[{sT0}:{sT1}]')
            a('s_waitcnt lgkmcnt(0)')
            a(f's_sub_u32 s{sT0}, s{sT0}, s{sCNT}')
            a(f's_cmp_lt_u32 s{sT0}, s{sT2}')
            a('s_cbranch_scc1 L_amp')
            a('s_branch L_end')
        a(f's_mul_i32 s{sT0}, s2, {NSTAMP * 8}')
        a(f's_add_u32 s{sT0}, s{sT0}, {128 * MB:#x}')
        a(f's_add_u32 s{sT0}, s{sWS}, s{sT0}')
        a(f's_addc_u32 s{sT1}, s{sWS+1}, 0')
        a(f's_sub_u32 s{sT0}, s{sT0}, {OPT["WSO"] * MB:#x}')
        a(f's_subb_u32 s{sT1}, s{sT1}, 0')
        a(f'v_mov_b32 v{vT0}, 0')
        for i in range(a.nst):
            a(f'v_mov_b32 v{H+2*i}, s{70+2*i}')
            a(f'v_mov_b32 v{H+2*i+1}, s{71+2*i}')
            a(f'global_store_dwordx2 v{vT0}, v[{H+2*i}:{H+2*i+1}], s[{sT0}:{sT1}] offset:{8*i}')
        a(f'v_mov_b32 v{H}, s{sBUD}')
        a(f'v_mov_b32 v{H+1}, 0')
        a(f'global_store_dwordx2 v{vT0}, v[{H}:{H+1}], s[{sT0}:{sT1}] offset:{8*19}')
        a(f'v_mov_b32 v{H+10}, s101')
        a(f'v_mov_b32 v{H+11}, 0')
        a(f'global_store_dwordx2 v{vT0}, v[{H+10}:{H+11}], s[{sT0}:{sT1}] offset:{8*15}')
        for k, r in enumerate((252, 254, 255)):
            a(f'v_mov_b32 v{H+2+2*k}, v{r}')
            a(f'v_mov_b32 v{H+3+2*k}, 0')
            a(f'global_store_dwordx2 v{vT0}, v[{H+2+2*k}:{H+3+2*k}], s[{sT0}:{sT1}] offset:{8*(16+k)}')
    a.label('L_end')
    a('s_endpgm')
    a.items += skipblk
    for blk in tail:
        for ln in blk: a(ln)
    a.raw('.p2align 8, 0')
    a.label('L_last')
    a.raw('.fill 64, 4, 0xbf810000')
    return a, name, LDS

HEADER = open('cdna_kernels/' + NAME + '.s.ref').read().split('; Override launch')[0]

def hops(body):
    import subprocess, re, tempfile, os
    lines = body.split('\n')
    d = tempfile.mkdtemp()
    src = '.amdgcn_target "amdgcn-amd-amdhsa--gfx950"\n.text\n' + body + ''.join(f'L_pg{k}:\n' for k in range(1, 9))
    open(d + '/t.s', 'w').write(src)
    subprocess.run(['clang', '-x', 'assembler', '-target', 'amdgcn-amd-amdhsa', '-mcpu=gfx950', '-c', d + '/t.s', '-o', d + '/t.o'], check=True)
    dis = subprocess.run(['llvm-objdump', '-d', d + '/t.o'], capture_output=True, text=True).stdout
    addr = [int(m.group(1), 16) for m in re.finditer(r'// ([0-9A-F]{12}):', dis)]
    out = []; k = 0; pg = 1; shift = 0; done = False
    for ln in lines:
        if ln.startswith('.p2align 8, 0'): done = True
        if ln.startswith('    ') and not done:
            if pg <= 8 and addr[k] + shift >= 4096 * pg:
                tg = ("L_pgb" if pg % 2 == 0 else f"L_pg{pg+1}") if OPT['HOP'] == 1 else ('L_pgb' if pg <= 4 else 'L_pgc')
                out += [f'L_pg{pg}:', f'    s_cbranch_execz {tg}']
                pg += 1; shift += 4
            k += 1
        if ln.startswith('.p2align 8, 0'):
            while pg <= 8:
                out += [f'L_pg{pg}:']; pg += 1
            out += ['    s_branch ' + ('L_pgb' if OPT['HOP'] == 1 else 'L_pgc')]
        out.append(ln)
    return '\n'.join(out)

def main():
    a, name, lds = gen()
    body = a.finalize()
    if OPT['HOP']: body = hops(body)
    out = HEADER + f'; @launch grid=(256,1,1) block=(256,1,1) lds={lds}\n'
    out += '.amdgcn_target "amdgcn-amd-amdhsa--gfx950"\n.text\n' + body
    out += f""".section .rodata,"a"
.p2align 6
.amdhsa_kernel {name}
  .amdhsa_next_free_vgpr 512
  .amdhsa_next_free_sgpr 102
  .amdhsa_accum_offset 256
  .amdhsa_group_segment_fixed_size 0
  .amdhsa_kernarg_size 88
  .amdhsa_user_sgpr_count 2
  .amdhsa_user_sgpr_kernarg_segment_ptr 1
  .amdhsa_system_sgpr_workgroup_id_x 1
.end_amdhsa_kernel
"""
    open(sys.argv[1], 'w').write(out)
    print('nops inserted', a.nops_inserted, 'lines', out.count('\n'), 'stamps', a.nst)

if __name__ == '__main__':
    main()
```

```python
import sys, struct
from asmgen import Asm

NAME = "sequential_preLN__sliding_local_dilated__mixer_token_mlp__prompt"
PROF = '--prof' in sys.argv
OPT = dict(JS=0, TL=0, LD=1, LDB=0, NB=0, PAD1=0, SKE=0, TM=0, HW=0, CP=8, NF1=0, NF2=0, NF3=0, NNB=9, RM=4, RL=4, HA=0, X2=0, X3=0, X4=0, EP1=0, DF=1, DPS=4, DPT=3, DPE=8, DPL=10, MH=16, ML=3, EP3=1, EP2=4, NW=6, M34=1, SPA=0, SPB=0, SPC=0, SPF=0, OFS=12, TLF=0, TLW=0, KX=7, PRO=1, MAP=0, C4M=0, SXR=0, PW1=0, PW2=0, PW3=0, PR=0, SXL=1, SXS=1, HFL=0, SXW=8, SKW=0, CLW=0, OPS=-1, CO=3, CH=5, CU=7, CS=9, CD=0, XP=0, TWW=0, TWX=0, TWP=0, W2L=0, MF=0, SA3=1, SA4=1, SO=1, A3=0, A4=0, ZD3=0, SXP=0, SXD=4, OPF=-1, SXI=1, HOP=0, CLX=2, WSO=0, CLF=0, CW=1, ALN=12, XS=3, TWB=9, PB1=-1, PB2=-1, WOB=10, SKZ=1, NT1=0, NT2=0, NTT=0, NTX=0, NTW=0, NTO=0, EA=4, AEV=14, EB1=7, EB2=9, EC=11, ED=15, EE=15, EF=20, EG=20, NLOW=0, M2B=1, PG=0, TWO=1, NQ=3, D0=4, PRE1=14, PRE2=25, ZS3=0, AMP=-1, AWG=0,
           W2B=12, OSC=1, SKT=0, CLB=3, CLS=2, CLP=2, KPM=4,
           TN1=64, TB1=-1, TS1=2, DX=0, TW3=0, R3M=3, R4M=3, KP3=7, TN2=64, TB2=-1, TS2=1)
for a_ in sys.argv[2:]:
    if '=' in a_:
        k_, v_ = a_.split('='); assert k_ in OPT, k_; OPT[k_] = int(v_)
NSTAMP = 20
def ntu(K3, i): return ' nt' if i < OPT['NT1' if K3 else 'NT2'] else ''
SCF = ['', ' sc1', ' sc0', ' nt', ' sc0 sc1', ' sc1 nt', ' sc0 sc1 nt']
def nt(k): return ' nt' if OPT[k] else ''
MB = 1 << 20
KB = 1024
WS_OF, WS_HN, WS_HF, WS_UF, WS_SX = 0, 2 * MB, 4 * MB, 6 * MB, 8 * MB
WS_F1, WS_DUM = 8 * MB + 256 * KB, 9 * MB
WS_F2, WS_F3 = WS_F1 + 128 * KB, WS_F1 + 256 * KB
NEGBIG = 0xF149F2CA
SPIN = 1 << 17

def vr(b, n=1): return f'v{b}' if n == 1 else f'v[{b}:{b+n-1}]'
def ar(b, n=1): return f'a{b}' if n == 1 else f'a[{b}:{b+n-1}]'
def srd(b): return f's[{b}:{b+3}]'
def f2h(x): return '%#x' % struct.unpack('<I', struct.pack('<f', x))[0]

class Em(Asm):
    def __init__(self):
        super().__init__()
        self.vmq = []; self.dsq = []; self.nst = 0
        self.inj = []; self.every = 1; self.cnt = 0
    def __call__(self, text):
        super().__call__(text)
        if self.inj and text.startswith('v_'):
            self.cnt += 1
            if self.cnt >= self.every:
                self.cnt = 0
                q = self.inj; op = q.pop(0); self.inj = []
                self.run([op]); self.inj = q
    def inject(self, ops, every): self.inj = list(ops); self.every = every; self.cnt = 0
    def flush(self):
        q = self.inj; self.inj = []; self.run(q)
    def vm(self, tag, text):
        self(text); self.vmq.append(tag)
        assert len(self.vmq) <= 63, ('vm overflow', tag)
    def ds(self, tag, text):
        self(text); self.dsq.append(tag)
    @staticmethod
    def _n(q, tags):
        idx = -1
        for k, t in enumerate(q):
            if t in tags: idx = k
        return idx
    def wait(self, vm=(), ds=()):
        s = []
        i = self._n(self.vmq, list(vm))
        if i >= 0:
            s.append(f'vmcnt({len(self.vmq) - 1 - i})'); self.vmq = self.vmq[i + 1:]
        i = self._n(self.dsq, list(ds))
        if i >= 0:
            n = len(self.dsq) - 1 - i
            if n > 15: n = 15
            s.append(f'lgkmcnt({n})'); self.dsq = self.dsq[len(self.dsq) - n:] if n else []
        if s: self('s_waitcnt ' + ' '.join(s))
    def wait_all(self, vm=True, ds=True):
        s = []
        if vm: s.append('vmcnt(0)'); self.vmq = []
        if ds: s.append('lgkmcnt(0)'); self.dsq = []
        self('s_waitcnt ' + ' '.join(s))
    def run(self, ops):
        for op in ops:
            if isinstance(op, str): self(op)
            elif op[0] == 'vm': self.vm(op[1], op[2])
            elif op[0] == 'ds': self.ds(op[1], op[2])
            elif op[0] == 'wvm': self.wait(vm=[op[1]])
            elif op[0] == 'wds': self.wait(ds=[op[1]])
            elif op[0] == 'grp': self.run(op[1])
            elif op[0] == 'label': self.label(op[1])
            else: raise ValueError(op)
    def stamp(self, *grps):
        if not PROF: return
        if not grps: grps = (0,)
        if OPT['PG'] not in grps and -1 not in grps: return
        assert self.nst < 15
        self(f's_memrealtime s[{70 + 2*self.nst}:{71 + 2*self.nst}]')
        self.nst += 1

def flat(ops):
    out = []
    for op in ops:
        if not isinstance(op, str) and op[0] == 'grp': out += flat(op[1])
        else: out.append(op)
    return out

def weave(prim, fill, lead=0):
    out = []
    n, m = len(prim), len(fill)
    k = 0
    for i, p in enumerate(prim):
        out.append(p)
        tgt = min(m, (m * (i + 1) + n - 1) // n + lead) if n else m
        while k < tgt:
            out.append(fill[k]); k += 1
    out += fill[k:]
    return out
def mix(a, b): return weave(a, b) if len(a) >= len(b) else weave(b, a)

sX, sWQ, sWO, sW1, sB1, sW2, sB2, sOUT, sDBG, sWS = 4, 8, 12, 16, 20, 24, 28, 32, 36, 40
sPOLL = 4
sWAVE, sBUD, sT0, sT1, sT2, sCNT = 44, 45, 46, 47, 48, 49
sXB, sWB, sWOB, sLW, sRT, sDT = 50, 51, 52, 53, 54, 55
sCT3, sCT4, sROT3, sROT4 = 56, 57, 58, 59
sW1A, sW1B, sW2A, sW2B, sPR, sLIM1 = 60, 61, 62, 63, 64, 65
sSTP1, sZ = 66, 67
sNON = 68
sD3 = 100
vL, vG, vC, vT0, vT1, vT2, vT3, vL16 = 1, 2, 3, 4, 5, 6, 7, 8
vDUM, vCK = 252, 253

def gen():
    a = Em()
    tail = []
    name = NAME + '_kernel'
    a.raw(f'.globl {name}\n.p2align {OPT["ALN"]}\n' + (f'.fill {OPT["OFS"] * 64}, 4, 0xbf810000\n' if OPT['OFS'] else '') + f'.type {name},@function')
    a.label(name)
    a.stamp(-1)
    NW = OPT['NW']
    L_X = NW * 12288
    L_H = L_X + 64 * KB
    L_NM = L_H + 8 * KB
    L_HP = L_NM + 2560
    if NW == 7: L_NM, L_HP = L_H + 2 * KB, L_H + 8 * KB
    L_PR = 64 * KB
    NSL = 6
    LDS = 160 * KB
    assert L_HP + 2048 <= LDS
    later = []
    for k_, (s, off) in enumerate(((sX, 0), (sWQ, 8), (sWS, 80), (sDBG, 72), (sWO, 16), (sW1, 32), (sB1, 40), (sW2, 48), (sB2, 56), (sOUT, 64))):
        t_ = f's_load_dwordx2 s[{s}:{s+1}], s[0:1], {off}'
        if OPT['PRO'] and k_ >= 2: later.append(t_)
        else: a(t_)
    a('s_cmp_ge_u32 s2, 256')
    a('s_cbranch_scc1 L_end')
    a(f'v_lshrrev_b32 v{vG}, 6, v0')
    a(f'v_and_b32 v{vL}, 63, v0')
    a(f'v_readfirstlane_b32 s{sWAVE}, v{vG}')
    if OPT['CW']:
        a(f's_getpc_b64 s[{sT0}:{sT1}]')
        a(f's_and_b32 s{sT0}, s{sT0}, 0xffffff00')
        a(f's_lshr_b32 s{sT2}, s2, 3')
        a(f's_lshl2_add_u32 s{sT2}, s{sT2}, s{sWAVE}')
        a(f's_lshl_b32 s{sT2}, s{sT2}, 8')
        a(f's_min_u32 s{sT2}, s{sT2}, (L_last-{name})&0xffffff00')
        a(f'v_and_b32 v{vT0}, 1, v0')
        a(f'v_lshl_add_u32 v{vT0}, v{vT0}, 7, s{sT2}')
        a.vm('cw', f'global_load_dword v{vDUM}, v{vT0}, s[{sT0}:{sT1}]')
    a(f'v_lshrrev_b32 v{vG}, 4, v{vL}')
    a(f'v_and_b32 v{vC}, 15, v{vL}')
    a(f'v_lshlrev_b32 v{vL16}, 4, v{vL}')
    for s, n in ((sX, 2048 * 1024), (sWQ, 512 * 3072), (sWS, 16 * MB), (sDBG, 256), (sWO, 512 * 1024), (sW1, 2048 * 3584),
                 (sB1, 3584), (sW2, 1792 * 4096), (sB2, 4096), (sOUT, 2048 * 1024)):
        t_ = [f's_mov_b32 s{s+2}, {n:#x}', f's_mov_b32 s{s+3}, 0x20000']
        if OPT['PRO'] and s not in (sX, sWQ): later += t_
        else: a.run(t_)
    vXD, vWD, vWOD, vXR, vHR, vTR, vSR, vHS = 9, 10, 11, 12, 13, 14, 16, 17
    vXD1, vE0 = 18, 19
    WB, XB, ACC, SB, GS, GO, GH, CST, STC = 20, 44, 104, 164, 180, 184, 188, 192, 212
    QP, KP, VP = 222, 230, 20
    vXR1, vSR1, vRA = 240, 241, 242
    vQ1, vR1 = 244, 248
    SEN = QP
    sXL, sHL, sHB, sKP = sW2A, sW2B, sROT4, sPR
    if OPT['MAP'] == 0:
        a(f's_lshr_b32 s{sZ}, s2, 5')
        a(f's_bfe_u32 s{sT0}, s2, {1 | (2 << 16)}')
        a(f's_lshr_b32 s{sT1}, s2, 6')
        a(f's_lshl2_add_u32 s{sT0}, s{sT0}, s{sT1}')
        a(f's_and_b32 s{sT1}, s{sZ}, 1')
        a(f's_lshl4_add_u32 s{sRT}, s{sT1}, s{sT0}')
        a(f's_lshl_b32 s{sT1}, s{sT1}, 10')
        a(f's_bfe_u32 s{sT2}, s2, {3 | (2 << 16)}')
        if OPT['DX'] & 3: a(f's_xor_b32 s{sT2}, s{sT2}, {OPT["DX"] & 3}')
        a(f's_and_b32 s{sDT}, s2, 1')
        if OPT['DX'] & 4: a(f's_xor_b32 s{sDT}, s{sDT}, 1')
        a(f's_lshl2_add_u32 s{sDT}, s{sDT}, s{sT2}')
        a(f's_lshl_b32 s{sT2}, s{sT2}, 1')
        a(f's_xor_b32 s{sKP}, s{sT2}, s{sZ}')
    else:
        a(f's_lshr_b32 s{sZ}, s2, 6')
        a(f's_and_b32 s{sT0}, s2, 7')
        a(f's_lshr_b32 s{sT1}, s2, 7')
        a(f's_lshl1_add_u32 s{sT0}, s{sT0}, s{sT1}')
        a(f's_and_b32 s{sT1}, s{sZ}, 1')
        a(f's_lshl4_add_u32 s{sRT}, s{sT1}, s{sT0}')
        a(f's_lshl_b32 s{sT1}, s{sT1}, 10')
        a(f's_bfe_u32 s{sDT}, s2, {3 | (3 << 16)}')
        a(f's_lshl_b32 s{sT2}, s{sZ}, 1')
        a(f's_xor_b32 s{sKP}, s{sT2}, s{sDT}')
    a(f's_cmp_eq_u32 s{sDT}, 3')
    a(f's_cselect_b32 s{sWB}, {OPT["KP3"]}, {OPT["KPM"]}')
    a(f's_and_b32 s{sKP}, s{sKP}, s{sWB}')
    if OPT['KX']:
        a(f's_lshr_b32 s{sWB}, s2, 1')
        if OPT['KX'] & 4:
            a(f's_lshl_b32 s{sT2}, s2, 1')
            a(f's_xor_b32 s{sWB}, s{sWB}, s{sT2}')
        a(f's_and_b32 s{sWB}, s{sWB}, {OPT["KX"] & 3}')
        a(f's_xor_b32 s{sKP}, s{sKP}, s{sWB}')
    a(f's_lshl_b32 s{sWB}, s{sKP}, 1')
    a(f's_lshl2_add_u32 s{sXB}, s{sT0}, s{sWAVE}')
    a(f's_lshl_b32 s{sXB}, s{sXB}, 15')
    a(f's_add_u32 s{sXB}, s{sXB}, s{sT1}')
    a(f's_lshl_b32 s{sT2}, s{sKP}, 7')
    a(f's_add_u32 s{sXB}, s{sXB}, s{sT2}')
    a(f's_lshl_b32 s{sT0}, s{sT0}, 17')
    a(f's_sub_u32 s{sT0}, s{sT0}, 16384')
    a(f's_max_i32 s{sT0}, s{sT0}, 0')
    a(f's_add_u32 s{sT0}, s{sT0}, s{sT1}')
    a(f's_xor_b32 s{sT2}, s{sKP}, s{sWAVE}')
    a(f's_lshl_b32 s{sT2}, s{sT2}, 7')
    a(f's_add_u32 s{sHB}, s{sT0}, s{sT2}')
    a(f's_lshl_b32 s{sXL}, s{sWAVE}, 14')
    a(f's_add_u32 s{sXL}, s{sXL}, {L_X}')
    a(f's_lshl_b32 s{sHL}, s{sWAVE}, 10')
    a(f's_add_u32 s{sHL}, s{sHL}, {L_H}')
    a(f's_mul_i32 s{sLW}, s{sWAVE}, 3072')
    a(f'v_lshrrev_b32 v{vT0}, 3, v{vL}')
    a(f'v_and_b32 v{vT1}, 7, v{vL}')
    a(f'v_xor_b32 v{vT1}, v{vT1}, v{vG}')
    a(f'v_lshlrev_b32 v{vT1}, 4, v{vT1}')
    a(f'v_lshl_add_u32 v{vXD}, v{vT0}, 11, v{vT1}')
    a(f'v_xor_b32 v{vXD1}, 64, v{vXD}')
    a(f'v_add_u32 v{vXD1}, {16384 - 1024}, v{vXD1}')
    a(f's_lshl_b32 s{sT0}, s{sDT}, 7')
    a(f's_lshl3_add_u32 s{sT0}, s{sLW}, s{sT0}')
    a(f'v_mov_b32 v{vT1}, 3072')
    a(f'v_mad_u32_u24 v{vWD}, v{vT0}, v{vT1}, s{sT0}')
    a(f'v_lshrrev_b32 v{vT0}, 1, v{vL}')
    a(f'v_and_b32 v{vT1}, 1, v{vG}')
    a(f's_lshl_b32 s3, s{sWAVE}, 1')
    a(f'v_xor_b32 v{vT0}, v{vT0}, v{vT1}')
    a(f'v_xor_b32 v{vT0}, s3, v{vT0}')
    a(f'v_and_b32 v{vT0}, 3, v{vT0}')
    a(f'v_lshl_add_u32 v{vWD}, v{vT0}, 5, v{vWD}')
    a(f'v_and_b32 v{vT0}, 1, v{vL}')
    a(f'v_lshl_add_u32 v{vWD}, v{vT0}, 4, v{vWD}')
    vTWW, vTWX = 254, 255
    if OPT['TWW'] or OPT['TWX']:
        a(f's_lshr_b32 s{sT0}, s2, 3')
        a(f's_lshl2_add_u32 s{sT0}, s{sT0}, s{sWAVE}')
    if OPT['TWW']:
        a(f's_mul_i32 s{sT1}, s{sT0}, {4 * 3072}')
        a(f's_and_b32 s{sT2}, s2, 1')
        a(f's_lshl_b32 s{sT2}, s{sT2}, 9')
        a(f's_add_u32 s{sT1}, s{sT1}, s{sT2}')
        a(f'v_mul_u32_u24 v{vTWW}, 3072, v{vG}')
        a(f'v_lshrrev_b32 v{vT0}, 2, v{vC}')
        a(f'v_min_u32 v{vT0}, 2, v{vT0}')
        a(f'v_lshl_add_u32 v{vTWW}, v{vT0}, 10, v{vTWW}')
        a(f'v_and_b32 v{vT0}, 3, v{vC}')
        a(f'v_lshlrev_b32 v{vT0}, 7, v{vT0}')
        a(f'v_add3_u32 v{vTWW}, v{vTWW}, v{vT0}, s{sT1}')
    if OPT['TWX']:
        a(f's_bfe_u32 s{sT1}, s2, {1 | (2 << 16)}')
        a(f's_lshl_b32 s{sT1}, s{sT1}, 7')
        a(f's_add_u32 s{sT1}, s{sT1}, s{sT0}')
        a(f's_lshl_b32 s{sT1}, s{sT1}, 12')
        a(f'v_and_b32 v{vT0}, 31, v{vL}')
        a(f'v_lshl_add_u32 v{vTWX}, v{vT0}, 7, s{sT1}')
    def hop(first, back):
        a('s_mov_b64 exec, 0')
        for w in range(1, 4):
            a(f's_cmp_eq_u32 s{sWAVE}, {w}')
            a(f's_cbranch_scc1 L_pg{first+w}')
        a(f's_branch L_pg{first}')
        a.label(back)
        a('s_mov_b64 exec, -1')
    if OPT['HOP'] == 2: hop(1, 'L_pgb')
    a('s_waitcnt lgkmcnt(0)')
    a.stamp(1)
    wso = [f's_add_u32 s{sWS}, s{sWS}, {OPT["WSO"] * MB:#x}', f's_addc_u32 s{sWS+1}, s{sWS+1}, 0'] if OPT['WSO'] else []
    def xloads(p):
        return [('grp', [f's_add_u32 m0, s{sXL}, {p * 2048}', f's_xor_b32 s3, s{sXB}, {p * 128}',
                         ('vm', ('x', p), f'buffer_load_dwordx4 v{vXD}, {srd(sX)}, s3 offen{nt("NTX")} lds')]),
                ('vm', ('x', p), f'buffer_load_dwordx4 v{vXD1}, {srd(sX)}, s3 offen offset:1024{nt("NTX")} lds')]
    def hloads(j):
        return [('grp', [f's_add_u32 m0, s{sHL}, {j * 4096}', f's_xor_b32 s3, s{sHB}, {j * 512}', 's_mov_b32 exec_lo, 0xffffff00',
                         ('vm', ('h', j), f'buffer_load_dwordx4 v{vXD}, {srd(sX)}, s3 offen{nt("NTX")} lds'), 's_mov_b32 exec_lo, -1'])]
    def wloads(k):
        slot = k % NW
        if k < 16:
            return [('grp', [f's_add_u32 m0, s{sLW}, {slot * 12288}', f's_xor_b32 s3, s{sWB}, {k}', f's_mul_i32 s3, s3, {32 * 3072}',
                             ('vm', ('w', k), f'buffer_load_dwordx4 v{vWD}, {srd(sWQ)}, s3 offen{nt("NTW")} lds')])] + \
                   [('vm', ('w', k), f'buffer_load_dwordx4 v{vWD}, {srd(sWQ)}, s3 offen offset:{1024*R}{nt("NTW")} lds') for R in (1, 2)]
        ops = []
        if OPT['XP'] & 64: return ops
        for j in range(3 if slot < 5 else 1 if slot == 5 else 0):
            i = 3 * slot + j
            ops.append(('grp', [f's_add_u32 m0, s{sLW}, {i * 4096}', f's_add_u32 s3, s{sWOB}, {i * 32768}',
                                ('vm', 'wo', f'buffer_load_dwordx4 v{vWOD}, {srd(sWO)}, s3 offen{nt("NTO")} lds')]))
        return ops
    seq = [xloads(0), hloads(0), wloads(0), wloads(1), xloads(1), wloads(2), wloads(3), xloads(2), wloads(4), wloads(5)] + [wloads(k) for k in range(6, NW)]
    def take(n):
        while seq and len(a.vmq) - OPT["CW"] + len(seq[0]) <= n: a.run(seq.pop(0))
    def tw3():
        a(f's_lshr_b32 s{sT0}, s2, 3')
        a(f's_lshl2_add_u32 s{sT0}, s{sT0}, s{sWAVE}')
        a(f's_mul_i32 s{sT0}, s{sT0}, 12')
        a(f's_lshr_b32 s{sT1}, s{sDT}, 2')
        a(f's_lshl_b32 s{sT1}, s{sT1}, 11')
        a(f's_add_u32 s{sT0}, s{sT0}, s{sT1}')
        a(f'v_min_u32 v{vT3}, 11, v{vC}')
        a(f'v_add_lshl_u32 v{vT3}, v{vT3}, s{sT0}, 10')
        a.vm('tw', f'buffer_load_dword v{vDUM}, v{vT3}, {srd(sWQ)}, 0 offen offset:384')
    ntw = 0
    if OPT['TWW'] or OPT['TWX']:
        take(OPT['TWP'])
        if OPT['TWX'] == 2: a.vm('tw', f'buffer_load_dword v{vDUM}, v{vTWX}, {srd(sX)}, 0 offen')
        if OPT['TWW']: a.vm('tw', f'buffer_load_dword v{vDUM}, v{vTWW}, {srd(sWQ)}, 0 offen')
        if OPT['TWX'] == 1: a.vm('tw', f'buffer_load_dword v{vDUM}, v{vTWX}, {srd(sX)}, 0 offen')
    if OPT['TW3'] == 1: tw3()
    if OPT['TW3'] == 2: take(6); tw3()
    take(OPT['PRE1'])
    if OPT['TW3'] == 3: tw3()
    a.run(later)
    assert not (wso and later)
    a.run(wso)
    a.stamp(1)
    a(f's_or_b32 s{sT0}, s2, s{sWAVE}')
    a(f's_cmp_lg_u32 s{sT0}, 0')
    a('s_cbranch_scc1 L_nononce')
    a(f's_memrealtime s[{sT0}:{sT1}]')
    a(f'v_mov_b32 v{vT1}, 0')
    a('s_waitcnt lgkmcnt(0)')
    a(f's_or_b32 s{sT0}, s{sT0}, 1')
    a(f'v_mov_b32 v{vT0}, s{sT0}')
    a('s_mov_b64 exec, 1')
    a(f'buffer_store_dword v{vT0}, v{vT1}, {srd(sDBG)}, 0 offen sc1')
    a('s_mov_b64 exec, -1')
    a.label('L_nononce')
    BC, BP, BP0, MC, MP, ONE = CST, CST + 4, CST + 8, CST + 12, CST + 14, CST + 16
    for k in range(4): a(f'v_mov_b32 v{ONE+k}, 0x3f803f80')
    a(f'v_lshrrev_b32 v{vT0}, 3, v{vL}')
    a(f'v_and_b32 v{vT1}, 7, v{vL}')
    a(f'v_lshlrev_b32 v{vT1}, 4, v{vT1}')
    a(f'v_lshl_add_u32 v{vT0}, v{vT0}, 10, v{vT1}')
    a(f'v_add_u32 v{vT0}, {L_H}, v{vT0}')
    a(f'ds_write_b128 v{vT0}, {vr(ONE,4)}')
    a(f'v_lshrrev_b32 v{vT0}, 1, v{vC}')
    a(f'v_xor_b32 v{vT0}, v{vT0}, v{vG}')
    a(f'v_lshlrev_b32 v{vT0}, 4, v{vT0}')
    a(f'v_lshl_add_u32 v{vT0}, v{vC}, 7, v{vT0}')
    a(f'v_add_u32 v{vSR}, s{sXL}, v{vT0}')
    a(f'v_add_u32 v{vXR}, {L_X}, v{vT0}')
    a(f'v_xor_b32 v{vSR1}, 64, v{vSR}')
    a(f'v_xor_b32 v{vXR1}, 64, v{vXR}')
    a(f'v_and_b32 v{vT0}, {0x3bf}, v{vT0}')
    a(f'v_add_u32 v{vHR}, {L_H}, v{vT0}')
    a(f'v_add_u32 v{vHS}, s{sHL}, v{vT0}')
    a(f's_xor_b32 s{sT0}, s{sDT}, s{sKP}')
    a(f's_lshl_b32 s{sT0}, s{sT0}, 11')
    a(f'v_add_u32 v{vRA}, s{sT0}, v{vSR}')
    a(f'v_add_u32 v{vRA+1}, s{sT0}, v{vSR1}')
    a(f'v_mul_u32_u24 v{vTR}, 3072, v{vG}')
    a(f'v_bfe_u32 v{vT0}, v{vL}, 2, 2')
    a(f'v_lshl_add_u32 v{vTR}, v{vT0}, 7, v{vTR}')
    a(f'v_bfe_u32 v{vT0}, v{vL}, 3, 2')
    a(f'v_xor_b32 v{vT0}, s{sWAVE}, v{vT0}')
    a(f'v_lshl_add_u32 v{vTR}, v{vT0}, 5, v{vTR}')
    a(f'v_and_b32 v{vT0}, 3, v{vL}')
    a(f'v_lshl_add_u32 v{vTR}, v{vT0}, 3, v{vTR}')
    a(f'v_add_u32 v{vTR+1}, {4 * 12288}, v{vTR}')
    for k in range(4): a(f'v_mov_b32 v{SEN+k}, -1')
    a(f's_mov_b32 s{sBUD}, {SPIN}')
    if OPT['TLW']:
        a('s_waitcnt lgkmcnt(0)')
        a(f's_lshr_b32 s{sT0}, s2, 3')
        a(f's_lshl2_add_u32 s{sT0}, s{sT0}, s{sWAVE}')
        a(f's_lshl_b32 s{sT1}, s{sT0}, 16')
        if OPT['TLW'] & 1: a(f's_load_dword s{sNON}, s[{sWS}:{sWS+1}], s{sT1} glc')
        a(f's_min_u32 s{sT2}, s{sT1}, {111 << 16:#x}')
        if OPT['TLW'] & 2:
            a(f's_load_dword s{sNON}, s[{sW1}:{sW1+1}], s{sT2}')
            a(f's_load_dword s{sNON}, s[{sW2}:{sW2+1}], s{sT2}')
        if OPT['TLW'] & 4:
            a(f's_and_b32 s{sT2}, s{sT1}, {31 << 16:#x}')
            a(f's_load_dword s{sNON}, s[{sOUT}:{sOUT+1}], s{sT2} glc')
            a(f's_and_b32 s{sT2}, s{sT1}, {7 << 16:#x}')
            a(f's_load_dword s{sNON}, s[{sWO}:{sWO+1}], s{sT2}')
        if OPT['TLW'] & 8:
            a(f's_and_b32 s{sT2}, s{sT1}, {15 << 16:#x}')
            a(f's_add_u32 s{sT2}, s{sT2}, {8 * MB:#x}')
            a(f's_load_dword s{sNON}, s[{sWS}:{sWS+1}], s{sT2} glc')
            a(f's_load_dword s{sNON}, s[{sB1}:{sB1+1}], 0')
            a(f's_load_dword s{sNON}, s[{sB2}:{sB2+1}], 0')
    if PROF: a('s_mov_b32 s101, 0')
    if OPT['M34'] == 0:
        a(f's_bfe_u32 s{sD3}, s2, {3 | (3 << 16)}')
        a(f's_and_b32 s{sT1}, s2, 1')
        a(f's_lshr_b32 s{sT2}, s2, 6')
        a(f's_lshr_b32 s{sT0}, s{sD3}, 2')
        a(f's_cmp_eq_u32 s{sT0}, s{sT1}')
        a(f's_cselect_b32 s{sT0}, 3, 7')
        a(f's_lshl2_add_u32 s{sZ}, s{sT1}, s{sT2}')
        a(f's_cmp_lt_u32 s{sT2}, 3')
        a(f's_cselect_b32 s{sZ}, s{sZ}, s{sT0}')
    else:
        a(f's_lshr_b32 s{sD3}, s2, 5')
        a(f's_and_b32 s{sT1}, s2, 1')
        a(f's_sub_u32 s{sZ}, s{sDT}, s{sT1}')
        a(f's_cmp_eq_u32 s{sDT}, 3')
        a(f's_cselect_b32 s{sZ}, 7, s{sZ}')
    a(f's_bfe_u32 s{sT0}, s2, {1 | (2 << 16)}')
    a(f's_mul_i32 s{sCT3}, s{sT0}, 7')
    a(f's_cmp_lt_u32 s{sZ}, 7')
    a(f's_cselect_b32 s{sT0}, s{sZ}, 3')
    a(f's_add_u32 s{sCT3}, s{sCT3}, s{sT0}')
    if OPT['M34']:
        a(f's_and_b32 s{sCT4}, s2, 6')
        a(f's_lshl2_add_u32 s{sCT4}, s{sCT4}, s{sDT}')
    elif OPT['C4M'] == 0:
        a(f's_add_u32 s{sT0}, s{sT2}, 1')
        a(f's_and_b32 s{sT0}, s{sT0}, 3')
        a(f's_and_b32 s{sCT4}, s2, 7')
        a(f's_lshl2_add_u32 s{sCT4}, s{sCT4}, s{sT0}')
    else:
        a(f's_cmp_lt_u32 s{sT2}, 3')
        a(f's_cselect_b32 s{sT0}, 0, 4')
        a(f's_xor_b32 s{sT0}, s{sT0}, s{sZ}')
        a(f's_and_b32 s{sCT4}, s2, 6')
        a(f's_lshl2_add_u32 s{sCT4}, s{sCT4}, s{sT0}')
    if OPT['R3M'] == 0: a(f's_mov_b32 s{sROT3}, 0')
    elif OPT['R3M'] == 1:
        a(f's_and_b32 s{sROT3}, s{sT2}, 1')
        a(f's_lshl_b32 s{sROT3}, s{sROT3}, 3')
    elif OPT['R3M'] == 2: a(f's_lshl_b32 s{sROT3}, s{sT2}, 2')
    elif OPT['R3M'] == 3:
        a(f's_lshl_b32 s{sROT3}, s{sD3}, 1')
        if OPT['A3']:
            a(f's_mul_i32 s{sT0}, s{sT2}, {OPT["A3"]}')
            a(f's_add_u32 s{sROT3}, s{sROT3}, s{sT0}')
            a(f's_and_b32 s{sROT3}, s{sROT3}, 15')
    elif OPT['R3M'] == 4:
        a(f's_and_b32 s{sROT3}, s{sD3}, 3')
        a(f's_lshl_b32 s{sROT3}, s{sROT3}, 2')
    else:
        a(f's_and_b32 s{sROT3}, s{sD3}, 1')
        a(f's_lshl_b32 s{sROT3}, s{sROT3}, 3')
    if OPT['X3']:
        a(f's_bfe_u32 s{sT0}, s2, {3 | (2 << 16)}')
        a(f's_mul_i32 s{sT0}, s{sT0}, {OPT["X3"] & 15}')
        a(f's_xor_b32 s{sROT3}, s{sROT3}, s{sT0}')
    else:
        a(f's_mov_b32 s{sSTP1}, {64 * 3584}')
        a(f's_sub_u32 s{sLIM1}, 16, s{sROT3}')
    a(f's_and_b32 s{sT0}, s{sWAVE}, 1')
    a(f's_lshl_b32 s{sT0}, s{sT0}, 4')
    if not OPT['X3']: a(f's_add_u32 s{sT0}, s{sT0}, s{sROT3}')
    a(f's_lshl_b32 s{sT0}, s{sT0}, 6')
    a(f's_lshr_b32 s{sT1}, s{sWAVE}, 1')
    a(f's_add_u32 s{sT0}, s{sT0}, s{sT1}')
    a(f's_mul_i32 s{sW1A}, s{sT0}, 3584')
    a(f's_lshl_b32 s{sT0}, s{sCT3}, 7')
    a(f's_add_u32 s{sW1A}, s{sW1A}, s{sT0}')
    if not OPT['X3']: a(f's_sub_u32 s{sW1B}, s{sW1A}, {16 * 64 * 3584}')
    a(f's_mul_i32 s{sPR}, s{sWAVE}, {NSL * 4096}')
    a(f's_add_u32 s{sPR}, s{sPR}, {L_PR}')
    a(f's_lshl_b32 s{sWOB}, s{sWAVE}, 13')
    a(f's_lshl_b32 s{sT0}, s{sDT}, 7')
    a(f's_add_u32 s{sWOB}, s{sWOB}, s{sT0}')
    if OPT['CLX'] & 4:
        a(f's_lshl_b32 s{sT0}, s{sDT}, 5')
        a(f's_add_u32 s{sT0}, s{sT0}, s{sRT}')
        a(f's_bfe_u32 s{sT1}, s2, {1 | (2 << 16)}')
        a(f's_lshl2_add_u32 s{sT1}, s{sD3}, s{sT1}')
        a(f's_lshl3_add_u32 s{sT1}, s{sT1}, s{sZ}')
        a(f's_lshl_b32 s{sT2}, s{sD3}, 5')
        a(f's_add_u32 s{sT2}, s{sT2}, s{sCT4}')
        for r_, b_ in ((sT0, WS_F1), (sT1, WS_F2), (sT2, WS_F3)):
            a(f's_lshl2_add_u32 s{r_}, s{r_}, s{sWAVE}')
            a(f's_lshl_b32 s{r_}, s{r_}, 7')
            a(f's_add_u32 s{r_}, s{r_}, {b_:#x}')
            a(f's_load_dword s{sNON}, s[{sWS}:{sWS+1}], s{r_} glc')
    def w2_scalars(A, B, rot):
        r = [[f's_mov_b32 s{rot}, 0'], [f's_bfe_u32 s{sT1}, s2, {6 | (1 << 16)}', f's_mul_i32 s{rot}, s{sT1}, 7'],
             [f's_lshr_b32 s{sT1}, s2, 6', f's_mul_i32 s{rot}, s{sT1}, 7', f's_add_u32 s{rot}, s{rot}, 1', f's_lshr_b32 s{rot}, s{rot}, 1'],
             [f's_mul_i32 s{rot}, s{sD3}, 7', f's_lshr_b32 s{rot}, s{rot}, 2'] +
             ([f's_lshr_b32 s{sT1}, s2, 6', f's_mul_i32 s{sT1}, s{sT1}, {OPT["A4"]}', f's_lshr_b32 s{sT1}, s{sT1}, 1', f's_add_u32 s{rot}, s{rot}, s{sT1}',
               f's_sub_u32 s{sT1}, s{rot}, 14', f's_cselect_b32 s{rot}, s{rot}, s{sT1}'] if OPT['A4'] else []),
             [f's_and_b32 s{sT1}, s{sD3}, 3', f's_mul_i32 s{rot}, s{sT1}, 7', f's_add_u32 s{rot}, s{rot}, 1', f's_lshr_b32 s{rot}, s{rot}, 1'],
             [f's_and_b32 s{sT1}, s{sD3}, 1', f's_mul_i32 s{rot}, s{sT1}, 7']][OPT['R4M']]
        return r + [
                f's_mul_i32 s{sT0}, s{sWAVE}, 14', f's_add_u32 s{sT0}, s{sT0}, s{rot}', f's_lshl_b32 s{A}, s{sT0}, 17',
                f's_lshl_b32 s{sT0}, s{sCT4}, 7', f's_add_u32 s{A}, s{A}, s{sT0}', f's_sub_u32 s{B}, s{A}, {14 << 17}']
    vF0, vNON = 254, 253
    if OPT['NF1'] or OPT['NF2']:
        assert OPT['TB1'] < 0 and not OPT['TWW'] and OPT['NF1']
        a(f's_lshl_b32 s{sT0}, s{sRT}, 7')
        a(f's_add_u32 s{sT0}, s{sT0}, s{sDT}')
        a(f's_lshl2_add_u32 s{sT0}, s{sT0}, {WS_F1:#x}')
        a(f'v_lshrrev_b32 v{vF0}, 2, v{vL}')
        a(f'v_and_b32 v{vT1}, 3, v{vL}')
        a(f'v_lshlrev_b32 v{vT1}, 7, v{vT1}')
        a(f'v_lshl_add_u32 v{vF0}, v{vF0}, 14, v{vT1}')
        a(f'v_add_u32 v{vF0}, s{sT0}, v{vF0}')
        if OPT['NF2']:
            a(f's_lshl_b32 s{sT2}, s{sDT}, 7')
            a(f's_lshr_b32 s{sT1}, s{sRT}, 3')
            a(f's_add_u32 s{sT2}, s{sT2}, s{sT1}')
            a(f's_lshl_b32 s{sT2}, s{sT2}, 5')
            a(f's_and_b32 s{sT1}, s{sRT}, 7')
            a(f's_add_u32 s{sT2}, s{sT2}, s{sT1}')
            a(f's_lshl2_add_u32 s{sT2}, s{sT2}, {WS_F2 - 32 * 512:#x}')
            a('s_mov_b32 exec_lo, 0')
            a(f'v_lshl_add_u32 v{vF0}, v{vL}, 9, s{sT2}')
            a('s_mov_b32 exec_lo, -1')
    a(f'v_mov_b32 v{vT1}, {NEGBIG:#x}')
    a(f's_and_b32 s{sT0}, s{sRT}, 15')
    a(f's_cmp_eq_u32 s{sT0}, 0')
    a(f's_cselect_b32 s{sT0}, {NEGBIG:#x}, 0')
    for r in range(4):
        a(f'v_lshl_add_u32 v{vT0}, v{vG}, 2, {r}')
        a(f'v_sub_u32 v{vT0}, v{vC}, v{vT0}')
        a(f'v_cmp_gt_u32 vcc, 8, v{vT0}')
        a(f'v_cndmask_b32_e64 v{BC+r}, v{vT1}, 0, vcc')
        a(f'v_cmp_gt_i32 vcc, -8, v{vT0}')
        a(f'v_cndmask_b32_e64 v{BP+r}, v{vT1}, 0, vcc')
        a(f'v_min_f32 v{BP0+r}, s{sT0}, v{BP+r}')
        a(f'v_cmp_le_i32 vcc, 0, v{vT0}')
        if r % 2 == 0:
            a(f'v_cndmask_b32_e64 v{MC+r//2}, 0, -1, vcc')
            a(f'v_and_b32 v{MC+r//2}, 0xffff, v{MC+r//2}')
        else:
            a(f'v_cndmask_b32_e64 v{vT0}, 0, -1, vcc')
            a(f'v_and_b32 v{vT0}, 0xffff0000, v{vT0}')
            a(f'v_or_b32 v{MC+r//2}, v{MC+r//2}, v{vT0}')
            a(f'v_not_b32 v{MP+r//2}, v{MC+r//2}')
    a(f'v_lshrrev_b32 v{vT0}, 1, v{vL}')
    a(f'v_xor_b32 v{vT0}, v{vT0}, v{vG}')
    a(f'v_and_b32 v{vT0}, 3, v{vT0}')
    a(f'v_lshrrev_b32 v{vT1}, 3, v{vL}')
    a(f'v_lshlrev_b32 v{vWOD}, 10, v{vT1}')
    a(f'v_lshl_add_u32 v{vWOD}, v{vT0}, 5, v{vWOD}')
    a(f'v_and_b32 v{vT0}, 1, v{vL}')
    a(f'v_lshl_add_u32 v{vWOD}, v{vT0}, 4, v{vWOD}')
    def mk_q(base, K3):
        if K3:
            ops = [f'v_lshrrev_b32 v{base+1}, 3, v{vL}', f'v_mul_u32_u24 v{base}, 7168, v{base+1}']
            st = 8 * 7168 - 1024
        else:
            ops = [f'v_bfe_u32 v{base+1}, v{vL}, 3, 2', f'v_lshrrev_b32 v{base}, 5, v{vL}', f'v_lshl_add_u32 v{base}, v{base}, 4, v{base+1}',
                   f'v_lshlrev_b32 v{base}, 12, v{base}']
            st = 4 * 4096 - 1024
        ops += [f'v_lshrrev_b32 v{base+1}, 1, v{vL}', f'v_and_b32 v{base+2}, 1, v{vG}', f'v_xor_b32 v{base+1}, v{base+1}, v{base+2}',
                f'v_and_b32 v{base+1}, 3, v{base+1}', f'v_lshl_add_u32 v{base}, v{base+1}, 5, v{base}',
                f'v_and_b32 v{base+1}, 1, v{vL}', f'v_lshl_add_u32 v{base}, v{base+1}, 4, v{base}',
                f'v_xor_b32 v{base+1}, 64, v{base}', f'v_add_u32 v{base+2}, {2*st}, v{base}', f'v_add_u32 v{base+3}, {3*st}, v{base+1}', f'v_add_u32 v{base+1}, {st}, v{base+1}']
        return ops
    def mk_r(base, K3):
        ops = [f'v_bfe_u32 v{base+1}, v{vL}, 2, 2', f'v_lshl_add_u32 v{base+1}, v{vG}, 3, v{base+1}']
        ops += [f's_and_b32 s3, s{sWAVE}, 1', 's_lshl_b32 s3, s3, 1'] if K3 else [f's_mov_b32 s3, s{sWAVE}']
        ops += [f'v_lshlrev_b32 v{base}, 7, v{base+1}', f'v_bfe_u32 v{base+1}, v{vL}, 3, 2', f'v_xor_b32 v{base+1}, s3, v{base+1}',
                f'v_lshl_add_u32 v{base}, v{base+1}, 5, v{base}', f'v_and_b32 v{base+1}, 3, v{vL}', f'v_lshl_add_u32 v{base}, v{base+1}, 3, v{base}',
                f'v_add_u32 v{base}, s{sPR}, v{base}']
        ops += [f'v_xor_b32 v{base+t}, {32*t}, v{base}' for t in range(1, 4)]
        return ops
    slot_of = {}
    vQ2, vR2, vR2L = 240, 28, 244
    sPL = sWOB
    LST = 16384 if OPT['DF'] else 4096
    sJ4, sLIM4 = sLIM1, sSTP1
    def sig4(d, i, sh):
        full = 3 * OPT['X4']
        m = full
        while (i | m) >= 14: m &= m >> 1 if OPT['X4'] == 1 else (m & -m if m & (m - 1) else 0) | 0
        ops = [f's_xor_b32 {d}, s{sJ4}, {i << sh:#x}'] if m == full else [f's_and_b32 {d}, s{sJ4}, {m << sh:#x}', f's_xor_b32 {d}, {d}, {i << sh:#x}']
        return ops + [f's_cmp_lt_u32 {d}, s{sLIM4}']
    def dma_unit(K3, i, q, slot):
        slot_of[(K3, i)] = slot
        tag = ('u', K3, i)
        m0 = f's_add_u32 m0, s{sPR}, {slot*4096}' if slot < NSL else f's_add_u32 m0, s{sPL}, {(slot-NSL)*LST}'
        if K3:
            S = sW1
            pre = [f's_mul_i32 s3, s{sSTP1}, {i}', f's_cmp_gt_u32 s{sLIM1}, {i}', f's_cselect_b32 m0, s{sW1A}, s{sW1B}', 's_add_u32 s3, s3, m0', m0]
            if OPT['X3']: pre = [f's_xor_b32 s3, s{sROT3}, {i}', f's_mul_i32 s3, s3, {64 * 3584}', m0, f's_add_u32 s3, s3, s{sW1A}']
        else:
            S = sW2
            pre = [f's_cmp_lt_u32 s{sROT4}, {14 - i}', f's_cselect_b32 s3, s{sW2A}, s{sW2B}', m0, f's_add_u32 s3, s3, {i << 17}']
            if OPT['X4']: pre = sig4('s3', i, 17) + [f's_cselect_b32 m0, s{sW2A}, s{sW2B}', 's_add_u32 s3, s3, m0', m0]
        ops = [('grp', pre + [('vm', tag, f'buffer_load_dwordx4 v{q}, {srd(S)}, s3 offen{ntu(K3, i)} lds')])]
        for k in range(1, 4):
            ops.append(('vm', tag, f'buffer_load_dwordx4 v{q+k}, {srd(S)}, s3 offen offset:{1024*k}{ntu(K3, i)} lds'))
        return ops
    def tr_unit(K3, i):
        slot = slot_of[(K3, i)]
        r = vR1 if K3 else vR2
        so = slot * 4096
        if slot >= NSL: r = vR2L; so = (slot - NSL) * LST; assert not K3
        return [('ds', ('t', K3, i), f'ds_read_b64_tr_b16 {ar(abase(K3, i)+4*t+2*h, 2)}, v{r+t} offset:{so + 512*h}') for t in range(4) for h in range(2)]
    def abase(K3, i):
        if OPT['HW']: return 16 * (i % 8) if K3 else 128 + 16 * (i % 7)
        return 16 * i
    NLOW = OPT['NLOW']
    def uid(n):
        if OPT['HW']:
            cp = OPT['CP']
            return ([(True, k) for k in range(cp)] + [(False, 0), (False, 1)] + [(True, k) for k in range(cp, 8)] + [(False, k) for k in range(2, 7)])[n]
        return (True, n) if n < 16 else (False, n - 16)
    nofetch = [('grp', [f's_cmp_lt_u32 s{sZ}, 7', f's_cselect_b32 s{sW1+2}, s{sW1+2}, 0'])]
    def evD(n):
        K3, i = uid(n)
        if n < 22: slot, prev = n % NSL, n - NSL
        elif n < 22 + NLOW: slot, prev = NSL + n - 22, -1
        else: raise ValueError
        w = [('wds', ('t',) + uid(prev))] if prev >= 0 else []
        return w + dma_unit(K3, i, vQ1 if K3 else vQ2, slot) + (nofetch if n == OPT['NT1'] - 1 else [])
    def evM(n): return [('wvm', ('u',) + uid(n))] + tr_unit(*uid(n))
    EV = [('D', n) for n in range(6)] + [('M', 0)]
    if OPT['W2L']:
        for n in range(1, 16): EV += [('M', n)] + ([('D', n + 5)] if n + 5 < 16 else [])
        EV += [('D', n) for n in range(16, 22 + NLOW)]
    else:
        for n in range(1, 16): EV += [('M', n), ('D', n + 5)]
        EV += [('D', n) for n in range(21, 22 + NLOW)]
    if OPT['HW']:
        EV = [('D', n) for n in range(6)] + [('M', 0)]
        for n in range(1, 15): EV += [('M', n)] + ([('D', n + 5)] if n + 5 < 15 else [])
        if OPT['W2L']:
            EV = [('D', n) for n in range(6)] + [('M', 0), ('M', 1), ('D', 6), ('M', 2), ('D', 7)] + [('M', n) for n in range(3, 8)] + [('D', n) for n in range(8, 14)] +                  [('M', 8), ('M', 9), ('D', 14)] + [('M', n) for n in range(10, 15)]
    EV0 = list(EV)
    def events(upto):
        ops = []
        while EV and any(e[0] == 'D' and e[1] <= upto for e in EV):
            e = EV.pop(0)
            ops += evD(e[1]) if e[0] == 'D' else evM(e[1])
        return ops
    sEX = sDBG + 2
    def lean(ops):
        if not OPT['SKE'] or not ops: return ops
        assert all(o[1][1] for o in flat(ops) if not isinstance(o, str) and o[0] in ('vm', 'ds'))
        return [f's_mov_b64 exec, s[{sEX}:{sEX+1}]'] + ops + ['s_mov_b64 exec, -1']
    a.run(mk_q(vQ1, True))
    a.run(mk_r(vR1, True))
    if OPT['SKW']:
        a(f's_cmp_lt_u32 s{sZ}, 7')
        a('s_cbranch_scc0 L_skw')
        a.label('L_skwb')
        tail.append(['L_skw:', f's_mov_b64 s[{sW1}:{sW1+1}], s[{sW2}:{sW2+1}]', f's_mov_b32 s{sW1+2}, {1792 * 4096:#x}',
                     f'v_lshrrev_b32 v{vQ1}, 5, v{vL}', f'v_mul_u32_u24 v{vQ1}, {4096 - 512}, v{vQ1}', f'v_add_u32 v{vQ1}, v{vQ1}, v{vL16}'] +
                    [f'v_add_u32 v{vQ1+k}, {k * (8192 - 1024)}, v{vQ1}' for k in range(1, 4)] +
                    [f's_mov_b32 s{sSTP1}, 32768', f's_mov_b32 s{sLIM1}, 14', f's_and_b32 s{sT0}, s{sD3}, 3', f's_lshl2_add_u32 s{sT0}, s{sT0}, s{sWAVE}',
                     f's_mul_i32 s{sW1A}, s{sT0}, {112 * 4096}', f's_and_b32 s{sT0}, s2, 7', f's_lshl_b32 s{sT0}, s{sT0}, 9', f's_add_u32 s{sW1A}, s{sW1A}, s{sT0}',
                     f's_sub_u32 s{sW1B}, s{sW1A}, {14 * 32768}', 's_branch L_skwb'])
    vmx0 = {}
    clr = [[f's_lshl2_add_u32 s3, s{sRT}, s{sWAVE}', 's_lshl_b32 s3, s3, 3', f's_add_u32 s3, s3, s{sDT}', 's_lshl_b32 s3, s3, 11'],
           [f's_lshl_b32 s3, s{sDT}, 5', f's_add_u32 s3, s3, s{sRT}', f's_lshl2_add_u32 s3, s3, s{sWAVE}', 's_lshl_b32 s3, s3, 11', f's_add_u32 s3, s3, {WS_HN:#x}'],
           [f's_mul_i32 s3, s{sD3}, 28', f's_add_u32 s3, s3, s{sCT3}', f's_lshl2_add_u32 s3, s3, s{sWAVE}', 's_lshl_b32 s3, s3, 11', f's_add_u32 s3, s3, {WS_UF:#x}',
            f's_cmp_lt_u32 s{sZ}, 7', f's_cselect_b32 s{sCNT}, 0, {WS_DUM - WS_UF:#x}', f's_add_u32 s3, s3, s{sCNT}']]
    if OPT['CLB'] >= 0:
        for k, nm in enumerate(('CO', 'CH', 'CU')):
            if OPT[nm] > 16: continue
            for h in range(2):
                vmx0.setdefault(min(16, OPT[nm] + h * OPT['CD']), []).append(('grp', clr[k] + [('vm', 'clr' if k else 'clro', (f'buffer_store_dword v{SEN}' if OPT['CLW'] else f'buffer_store_dwordx4 {vr(SEN,4)}') + f', v{vL16}, {srd(sWS)}, s3 offen offset:{1024*h} ' + ['sc1', 'sc1 nt', 'sc0 sc1', 'sc0 sc1 nt', '', 'nt'][OPT['CLF']])]))
        if OPT['CLX'] & 2:
            vmx0.setdefault(OPT['CS'], []).append(('grp', clr[0][:3] + ['s_lshl_b32 s3, s3, 8', f's_add_u32 s3, s3, {WS_SX:#x}', f'v_lshlrev_b32 v{vT3}, 2, v{vL}',
                                                        ('vm', 'clr', f'buffer_store_dword v{SEN}, v{vT3}, {srd(sWS)}, s3 offen sc1')]))
    a.stamp(1)
    n0 = len(a.vmq)
    if -2 in vmx0 or -1 in vmx0: a('s_waitcnt lgkmcnt(0)')
    a.run(vmx0.get(-2, []))
    take(OPT['PRE2'] + len(a.vmq) - n0)
    a.run(vmx0.get(-1, []))
    def xb(i, s): return XB + 20 * (i % 3) + 4 * s
    def wb(i, R): return WB + 12 * (i % 2) + 4 * R
    def acc(R, s): return ACC + 20 * R + 4 * s
    def xreads(i):
        return [('ds', ('xr', i), f'ds_read_b128 {vr(xb(i,s),4)}, v{vXR1 if i & 1 else vXR} offset:{2048*(i>>1) + 16384*(s-1)}') for s in range(1, 3 if OPT['XP'] & 8 else 5)] + \
               ([] if OPT['XP'] & 4 else [('ds', ('xr', i), f'ds_read_b128 {vr(xb(i,0),4)}, v{vHR} offset:{1024*(i>>1) + 64*(i&1)}')])
    def trreads(i):
        slot = i % NW
        return [('ds', ('wr', i), f'ds_read_b64_tr_b16 {vr(wb(i,R)+2*h,2)}, v{vTR + slot//4} offset:{(slot%4)*12288 + R*1024 + 512*h}') for R in range(3) for h in range(2)]
    def mfmas(i):
        ops = []
        for R in range(3):
            for s in (1, 2, 3, 4, 0):
                x = vr(xb(i, s), 4); d = vr(acc(R, s), 4); w = vr(wb(i, R), 4)
                cin = '0' if i == 0 else d
                ops.append(f'v_mfma_f32_16x16x32_bf16 {d}, {w}, {x}, {cin}' if R < 2 else f'v_mfma_f32_16x16x32_bf16 {d}, {x}, {w}, {cin}')
        return ops
    jobs = {1: ('s', 0), 2: ('s', 1), 4: ('h', 0), 5: ('s', 2), 6: ('s', 3), 7: ('h', 1), 8: ('s', 4), 9: ('s', 5), 10: ('s', 6), 11: ('s', 7)}
    if OPT['JS']:
        del jobs[10]; jobs[11] = ('s', 6); jobs[12] = ('s', 7)
    def job_reads(b):
        if b not in jobs or OPT['XP'] & 1: return []
        kind, p = jobs[b]
        if kind == 's':
            return [('ds', ('jr', b), f'ds_read_b128 {vr(SB+8*(b&1)+4*k,4)}, v{vSR1 if k else vSR} offset:{2048*p}') for k in range(2)]
        return [('ds', ('jr', b), f'ds_read_b128 {vr(SB+8*(b&1)+4*k,4)}, v{vHS} offset:{4096*p + 64*k}') for k in range(2)]
    def job_mfmas(b):
        if b not in jobs or OPT['XP'] & 2: return []
        kind, p = jobs[b]
        ops = []
        for k in range(2):
            x = vr(SB + 8 * (b & 1) + 4 * k, 4)
            first = p == 0 and k == 0
            if kind == 's':
                ops.append(f'v_mfma_f32_16x16x32_bf16 {vr(GS,4)}, {x}, {x}, {"0" if first else vr(GS,4)}')
                ops.append(f'v_mfma_f32_16x16x32_bf16 {vr(GO,4)}, {vr(ONE,4)}, {x}, {"0" if first else vr(GO,4)}')
            else:
                ops.append(f'v_mfma_f32_16x16x32_bf16 {vr(GH,4)}, {x}, {x}, {"0" if first else vr(GH,4)}')
        return ops
    def stat_finalize(s, q, tmp):
        return [f'v_mul_f32 v{s}, 0xbb000000, v{s}',
                f'v_mul_f32 v{tmp}, v{s}, v{s}',
                f'v_mul_f32 v{q}, 0x3b000000, v{q}',
                f'v_sub_f32 v{q}, v{q}, v{tmp}',
                f'v_max_f32 v{q}, 0, v{q}',
                f'v_add_f32 v{q}, 0x3727c5ac, v{q}',
                f'v_rsq_f32 v{q}, v{q}']
    def diag(G, dst):
        ops = []
        for k in range(1, 4):
            m = 0x11111111 << k
            ops.append(('grp', [f's_mov_b32 vcc_lo, {m:#x}', f's_mov_b32 vcc_hi, {m:#x}', f'v_cndmask_b32 v{dst}, v{G if k == 1 else dst}, v{G+k}, vcc']))
        return ops
    NM4, RS4, XR = XB + 20, XB + 40, SB
    HT = STC
    extra = {b: [] for b in range(16)}
    L4 = vE0
    extra[5] += [f'v_lshlrev_b32 v{L4}, 2, v{vL}', f's_lshl_b32 s{sT0}, s{sWAVE}, 9', f's_add_u32 s{sT0}, s{sT0}, {L_HP}', f'v_add_u32 v{vT0}, s{sT0}, v{L4}',
                 f'v_lshrrev_b32 v{vT1}, 2, v{vC}', f'v_lshl_add_u32 v{vT1}, v{vT1}, 4, v{vC}', f'v_lshlrev_b32 v{vT1}, 2, v{vT1}',
                 f'v_add_u32 v{vT1}, {L_NM}, v{vT1}', f'v_lshlrev_b32 v{vT2}, 2, v{vC}', f'v_add_u32 v{vT2}, {L_NM}, v{vT2}']
    extra[8] += diag(GH, GH + 1) + [('ds', 'hp', f'ds_write2st64_b32 v{vT0}, v{GH}, v{GH+1} offset0:0 offset1:1')]
    o0 = (L_HP - L_NM) // 256
    extra[9] += [('ds', 'hq', f'ds_read2st64_b32 {vr(HT+2*k,2)}, v{vT2} offset0:{o0+4*k} offset1:{o0+4*k+2}') for k in range(2)] + \
                [('ds', 'hq', f'ds_read2st64_b32 {vr(HT+4+2*k,2)}, v{vT1} offset0:{o0+4*k+1} offset1:{o0+4*k+3}') for k in range(2)]
    extra[10] += [f'v_add_f32 v{HT}, v{HT}, v{HT+1}', f'v_add_f32 v{HT+2}, v{HT+2}, v{HT+3}', f'v_add_f32 v{HT+4}, v{HT+4}, v{HT+5}', f'v_add_f32 v{HT+6}, v{HT+6}, v{HT+7}',
                  f'v_add_f32 v{HT}, v{HT}, v{HT+2}', f'v_add_f32 v{HT+4}, v{HT+4}, v{HT+6}']
    extra[11] += stat_finalize(HT, HT + 4, HT + 1) + [f'v_add_u32 v{vT0}, {L_NM}, v{L4}', ('ds', 'hw', f'ds_write2st64_b32 v{vT0}, v{HT}, v{HT+4} offset0:0 offset1:5')]
    extra[12] += diag(GS, GS + 1) + stat_finalize(GO, GS + 1, GS) + [f's_lshl_b32 s{sT0}, s{sWAVE}, 8', f'v_add_u32 v{vT0}, s{sT0}, v{vT0}',
                                                                    ('ds', 'hw', f'ds_write2st64_b32 v{vT0}, v{GO}, v{GS+1} offset0:1 offset1:6')]
    extra[13] += [('ds', 'st', f'ds_read2st64_b32 {vr(STC+2*s,2)}, v{vT1} offset0:{s} offset1:{5+s}') for s in range(5)] + \
                 [f'v_mul_u32_u24 v{vT0}, 80, v{vG}', f'v_add_u32 v{vT0}, {L_NM}, v{vT0}']
    extra[14] += [('ds', 'st', f'ds_read_b128 {vr(NM4+4*s,4)}, v{vT0} offset:{256*s}') for s in range(5)] + \
                 [('ds', 'st', f'ds_read_b128 {vr(XR+4*e,4)}, v{vRA+e}') for e in range(2)]
    extra[15] += [('ds', 'st', f'ds_read_b128 {vr(RS4+4*s,4)}, v{vT0} offset:{1280+256*s}') for s in range(5)]
    if OPT['TL']:
        OPT['NB'] |= (1 << 11) | (1 << 12) | (1 << 14)
        e13, e14 = extra[13], extra[14]
        extra[13] = e14[5:] + e13[5:]
        extra[14] = e13[:5] + e14[:5]
    exj = []
    if OPT['JS']:
        assert OPT['TL']
        exj = extra[12]; extra[12] = []
    vmx = {b: [] for b in range(17)}
    b0 = 0
    for it in seq:
        vmx[b0] += it; b0 = 0
    vmx[0] += xloads(3)
    vmx[2] += hloads(1)
    for p in range(4, 8): vmx[p - 4 + OPT['XS']] += xloads(p)
    if OPT['TWO']:
        vmx[OPT['TWB']] += [('grp', ([f'v_lshlrev_b32 v{vT3}, 10, v{vC}', 's_lshr_b32 s3, s2, 5', f's_lshl2_add_u32 s3, s3, s{sWAVE}', f's_lshl_b32 s3, s3, 14'] if OPT['MAP'] == 0 else
                                     [f'v_and_b32 v{vT3}, 31, v{vL}', f'v_lshlrev_b32 v{vT3}, 10, v{vT3}', 's_lshr_b32 s3, s2, 6', f's_lshl2_add_u32 s3, s3, s{sWAVE}', f's_lshl_b32 s3, s3, 15']) + [ f's_lshl_b32 s{sCNT}, s{sDT}, 7', f's_add_u32 s3, s3, s{sCNT}',
                            ('vm', 'tw', f'buffer_load_dword v{vDUM}, v{vT3}, {srd(sWO)}, s3 offen{nt("NTO")}')])]
    for b in range(17): vmx[b] += vmx0.get(b, [])
    if OPT['NF1']: vmx[OPT['NNB']].append(('vm', 'non', f'buffer_load_dword v{vNON}, off, {srd(sDBG)}, 0 sc1'))
    def opre(R, T):
        return [f's_lshl2_add_u32 s3, s{sCT4}, s{sWAVE}', 's_lshl_b32 s3, s3, 7', f's_add_u32 s3, s3, s{sD3}', 's_lshl_b32 s3, s3, 7',
                f'v_lshrrev_b32 v{T}, 3, v{vL}', f'v_mul_u32_u24 v{T}, {1024 - 128}, v{T}', f'v_add_u32 v{T}, v{T}, v{vL16}',
                ('vm', 'clr', f'buffer_store_dwordx4 {vr(R,4)}, v{T}, {srd(sOUT)}, s3 offen sc1'), 's_add_u32 s3, s3, 8192',
                ('vm', 'clr', f'buffer_store_dwordx4 {vr(R,4)}, v{T}, {srd(sOUT)}, s3 offen sc1')]
    if 0 <= OPT['OPS'] <= 16: vmx[OPT['OPS']].append(('grp', opre(SEN, vT3)))
    vTC1, vTC2 = 254, 16
    late = {}
    def place(b, op):
        if b <= 16: vmx[b].append(op)
        else: late.setdefault(b, []).append(op)
    if OPT['TB1'] >= 0:
        TN = OPT['TN1']
        for k in range(64 // TN):
            if k == 0:
                pre = [f'v_bfe_u32 v{vTC1}, v{vL}, 2, {TN.bit_length() - 3}', 's_lshr_b32 s3, s2, 3', f's_lshl2_add_u32 s3, s3, s{sWAVE}', f'v_lshl_add_u32 v{vTC1}, s3, 4, v{vTC1}',
                       f'v_mul_u32_u24 v{vTC1}, 28, v{vTC1}', f's_and_b32 s3, s2, 7', 's_mul_i32 s3, s3, 7', 's_lshr_b32 s3, s3, 1', f'v_and_b32 v{vT3}, 3, v{vL}',
                       f'v_add3_u32 v{vTC1}, v{vTC1}, v{vT3}, s3', f'v_lshlrev_b32 v{vTC1}, 7, v{vTC1}']
                if OPT['TM'] == 1:
                    assert TN == 64 and OPT['M34']
                    pre = ['s_and_b32 s3, s2, 1', 's_add_u32 s3, s3, 3', f's_mul_i32 s{sCNT}, s3, s{sD3}', f's_sub_u32 s3, 28, s3', f'v_mov_b32 v{vT3}, s3',
                           f's_bfe_u32 s3, s2, {3 | (2 << 16)}', f's_add_u32 s{sCNT}, s{sCNT}, s3', f's_lshl2_add_u32 s{sCNT}, s{sCNT}, s{sWAVE}', f'v_lshl_add_u32 v{vTC1}, s{sCNT}, 6, v{vL}',
                           f's_sub_u32 s{sCNT}, s{sCT3}, s3', 's_bitcmp1_b32 s2, 0', 's_mov_b32 s3, 43691', 's_cmov_b32 s3, 32768', f'v_mul_u32_u24 v{vDUM+1}, s3, v{vTC1}', f'v_lshrrev_b32 v{vDUM+1}, 17, v{vDUM+1}',
                           f'v_mad_u32_u24 v{vTC1}, v{vDUM+1}, v{vT3}, v{vTC1}', f'v_add_lshl_u32 v{vTC1}, v{vTC1}, s{sCNT}, 7'] + nofetch[0][1]
                if OPT['TM'] == 2:
                    pre = [f's_lshl2_add_u32 s3, s{sD3}, s{sWAVE}', f'v_lshl_add_u32 v{vTC1}, s3, 6, v{vL}', f'v_mul_u32_u24 v{vTC1}, 28, v{vTC1}', f'v_add_lshl_u32 v{vTC1}, v{vTC1}, s{sCT3}, 7'] + nofetch[0][1]
            else:
                pre = [f'v_add_u32 v{vTC1}, {TN * 896}, v{vTC1}']
            place(min(16, OPT['TB1'] + k * OPT['TS1']), ('grp', pre + [('vm', 'tw', f'buffer_load_dword v{vDUM}, v{vTC1}, {srd(sW1)}, 0 offen{nt("NTT")}')]))
    if OPT['TB2'] >= 0:
        TN = OPT['TN2']
        pre = [f'v_bfe_u32 v{vTC2}, v{vL}, 2, {TN.bit_length() - 3}', f'v_min_u32 v{vTC2}, 13, v{vTC2}', 's_lshr_b32 s3, s2, 3', f's_lshl2_add_u32 s3, s3, s{sWAVE}', f's_mul_i32 s3, s3, {14 * 8}',
               f's_and_b32 s{sCNT}, s2, 7', f's_add_u32 s3, s3, s{sCNT}', 's_lshl_b32 s3, s3, 9',
               f'v_lshl_add_u32 v{vTC2}, v{vTC2}, 12, s3', f'v_and_b32 v{vT3}, 3, v{vL}', f'v_lshl_add_u32 v{vTC2}, v{vT3}, 7, v{vTC2}']
        vmx[min(16, OPT['TB2'])].append(('grp', pre))
        for k in range(56 // TN + (56 % TN > 0)):
            pre = [f'v_add_u32 v{vTC2}, {min(TN, 56 - TN * k) * 1024}, v{vTC2}'] if k else []
            b = OPT['TB2'] + k * OPT['TS2']
            place(b if OPT['TB2'] > 16 else min(16, b), ('grp', pre + [('vm', 'tw', f'buffer_load_dword v{vDUM}, v{vTC2}, {srd(sW2)}, 0 offen{nt("NTT")}')]))
    if OPT['PB1'] >= 0:
        assert OPT['TN1'] == 64
        place(OPT['PB1'], ('vm', 'tw', f'buffer_load_dword v{vDUM}, v{vTC1}, {srd(sW1)}, 0 offen sc1'))
    if OPT['PB2'] >= 0:
        assert OPT['TN2'] == 64
        place(OPT['PB2'], ('vm', 'tw', f'buffer_load_dword v{vDUM}, v{vTC2}, {srd(sW2)}, 0 offen sc1'))
    need_x = {2: [('x', 2)], 4: [('x', 3)], 6: [('x', 4), ('h', 1)], 8: [('x', 5)], 9: [('x', 6)], 10: [('x', 7)]}
    if OPT['JS']:
        del need_x[9]; need_x[10] = [('x', 6)]; need_x[11] = [('x', 7)]
    if OPT['HOP'] == 1:
        a('s_mov_b64 exec, 0')
        for w in range(1, 4):
            a(f's_cmp_eq_u32 s{sWAVE}, {w}')
            a(f's_cbranch_scc1 L_pg{2*w+1}')
        a('s_branch L_pg1')
        a.label('L_pgb')
        a('s_mov_b64 exec, -1')
    a.stamp(1)
    a.wait(vm=[('w', 1), ('x', 1)])
    a('s_waitcnt lgkmcnt(0)')
    a('s_barrier')
    a.stamp(0, 1)
    a.run(trreads(0) + xreads(0) + xreads(1))
    a.wait(ds=[('xr', 0)])
    wop = []
    for i in range(16):
        rd = []
        if i + 1 < 16: rd += trreads(i + 1) + job_reads(i + 1)
        if i + 2 < 16: rd += xreads(i + 2)
        ld = []
        if i == 1: ld += wloads(NW)
        if i == 16 - NW: ld += [f's_lshl_b32 s{sLW}, s{sWAVE}, 10']
        if i >= 1:
            if i + NW < 16: ld += wloads(i + NW)
            else: wop += wloads(i + NW)
            if i >= OPT['WOB']: ld += wop; wop = []
        ld += vmx[i]
        ex = extra[i]
        mm = weave(mfmas(i)[:8 if OPT['XP'] & 32 else 15], job_mfmas(i))
        fill = weave(rd, ld) if rd else ld
        if i == 13 and exj: fill = mix(fill[:6], exj) + fill[6:]
        fill = fill + ex if OPT['TL'] and i >= 13 else mix(fill, ex)
        fl = []
        for o in fill:
            if not isinstance(o, str) and o[0] == 'grp' and any(isinstance(x, str) and ('exec' in x or 's_cselect' in x) for x in o[1]): fl.append(o)
            else: fl += flat([o])
        a.run(weave(mm, fl, lead=OPT['LD'] if i >= OPT['LDB'] else 1))
        if i < 15:
            wv = [('w', i + 2)] if i + 2 < 16 else []
            wv += need_x.get(i + 1, [])
            k_ = i + 1
            while OPT['NB'] >> k_ & 1:
                assert OPT['WOB'] >= 16 and k_ >= 10 and k_ != 12 + (OPT['TL'] > 0) and k_ + 1 not in need_x
                wv += [('w', k_ + 2)]; k_ += 1
            a.wait(vm=wv, ds=[('wr', i + 1), ('jr', i + 1), ('xr', i + 1), 'hp', 'hq'] + ([] if OPT['NB'] >> i & 1 else ['hw']))
            if not (OPT['XP'] & 16 and i & 1) and not OPT['NB'] >> i & 1: a('s_barrier')
            if i in (1, 3, 5, 7, 9, 11, 13): a.stamp(1)
            if i >= 2: a.stamp(5)
    a.wait(vm=['clro', 'clr', 'non'] if OPT['NF1'] else ['clro'])
    a.wait_all(vm=False)
    if OPT['NF1']: a(f'v_readfirstlane_b32 s{sNON}, v{vNON}')
    a('s_barrier')
    a.stamp(-1)
    nontail = ['L_non:', f's_load_dword s{sNON}, s[{sDBG}:{sDBG+1}], 0 glc', 's_waitcnt lgkmcnt(0)', f'v_mov_b32 v{vNON}, s{sNON}', f's_cmp_lg_u32 s{sNON}, 0', 's_cbranch_scc1 L_nonok',
               f's_sub_u32 s{sBUD}, s{sBUD}, 1', 's_cbranch_scc0 L_non', f's_mov_b32 s{sBUD}, 0', 's_branch L_nonok']
    if OPT['NF1']:
        assert all(OPT[k] <= 15 for k in ('CO', 'CH', 'CU', 'CS'))
        a(f's_cmp_lg_u32 s{sNON}, 0')
        a('s_cbranch_scc0 L_non')
        a.label('L_nonok')
        tail.append(nontail)
        a(f's_cmp_lg_u32 s{sWAVE}, 0')
        a(f's_cbranch_scc1 L_nf0')
        if not OPT['NF2']: a('s_mov_b32 exec_hi, 0')
        a(f'buffer_store_dword v{vNON}, v{vF0}, {srd(sWS)}, 0 offen sc1')
        if not OPT['NF2']: a('s_mov_b32 exec_hi, -1')
        a.label('L_nf0')
    for _ in range(OPT['PAD1']): a('s_nop 0')
    a.run(vmx[16])
    if OPT['NT1'] == 0 and not OPT['SKW']: a.run(nofetch)
    if not OPT['NF1']: a(f's_load_dword s{sNON}, s[{sDBG}:{sDBG+1}], 0')
    if OPT['TLF']:
        a(f's_lshl2_add_u32 s{sT2}, s2, s{sWAVE}')
        a(f's_lshl_b32 s{sT2}, s{sT2}, 7')
        a(f's_add_u32 s{sT2}, s{sT2}, {WS_F1 + 384 * KB:#x}')
        a(f's_load_dword s{sPOLL}, s[{sWS}:{sWS+1}], s{sT2} glc')
    spk = [k for j in range(4) for k in range(56) if (k >> 2) % 4 == j]
    def sp(n):
        ops = [f's_load_dwordx2 s[{sPOLL}:{sPOLL+1}], s[0:1], {(k >> 2) * 4096 + (k & 3) * 128 + 60:#x}' for k in spk[:n]]
        del spk[:n]
        return ops
    if OPT['SPA'] or OPT['SPB'] or OPT['SPC']:
        a.run(['s_lshr_b32 s3, s2, 3', f's_lshl2_add_u32 s3, s3, s{sWAVE}', f's_mul_i32 s3, s3, {14 * 8}', f's_and_b32 s0, s2, 7', 's_add_u32 s3, s3, s0', 's_lshl_b32 s3, s3, 9',
               f's_add_u32 s0, s{sW2}, s3', f's_addc_u32 s1, s{sW2+1}, 0'])
    a.run(sp(OPT['SPF']))
    spa = sp(OPT['SPA'])
    if OPT['WOB'] == 16: ev_ = wop + events(OPT['EA']); wop = []
    else: ev_ = events(OPT['EA'])
    if spa:
        n_ = min(len(ev_), len(spa))
        ev_ = [('grp', [x, y]) for x, y in zip(spa, ev_)] + spa[n_:] + ev_[n_:]
    a.inject(ev_, OPT['AEV'])
    SC, SP, MX, MT, PM, PB, OUT = XB, SB + 8, ACC, ACC + 4, ACC + 8, ACC + 20, ACC + 36
    CW, CWV = 32, 40
    for r in range(4):
        a(f'v_mov_b32_dpp v{CW+4+r}, v{acc(1,0)+r} row_newbcast:0 row_mask:0xf bank_mask:0xf')
    for r in range(4):
        a(f'v_mov_b32_dpp v{CW+r}, v{acc(0,0)+r} row_newbcast:0 row_mask:0xf bank_mask:0xf')
    def epi_k(s):
        src, st, dst = acc(1, s), STC + 2 * s, KP + 2 * s
        return [[f'v_pk_fma_f32 {vr(src+2*h,2)}, {vr(CW+4+2*h,2)}, {vr(st,2)}, {vr(src+2*h,2)} op_sel_hi:[1,0,1]' for h in range(2)],
                [f'v_pk_mul_f32 {vr(src+2*h,2)}, {vr(src+2*h,2)}, {vr(st,2)} op_sel:[0,1] op_sel_hi:[1,1]' for h in range(2)],
                [f'v_cvt_pk_bf16_f32 v{dst+h}, v{src+2*h}, v{src+2*h+1}' for h in range(2)]]
    def epi_q(s):
        src, st, dst = acc(0, s), STC + 2 * s, QP + 2 * (s - 1)
        return [[f'v_pk_fma_f32 {vr(src+2*h,2)}, {vr(CW+2*h,2)}, {vr(st,2)}, {vr(src+2*h,2)} op_sel_hi:[1,0,1]' for h in range(2)],
                [],
                [f'v_cvt_pk_bf16_f32 v{dst+h}, v{src+2*h}, v{src+2*h+1}' for h in range(2)]]
    def epi_v(s):
        src, dst = acc(2, s), VP + 2 * s
        return [[f'v_pk_fma_f32 {vr(src+2*h,2)}, {vr(NM4+4*s+2*h,2)}, {vr(CWV,2)}, {vr(src+2*h,2)} op_sel_hi:[1,0,1]' for h in range(2)],
                [f'v_pk_mul_f32 {vr(src+2*h,2)}, {vr(src+2*h,2)}, {vr(RS4+4*s+2*h,2)}' for h in range(2)],
                [f'v_cvt_pk_bf16_f32 v{dst+h}, v{src+2*h}, v{src+2*h+1}' for h in range(2)]]
    E = [epi_k(s) for s in range(5)] + [epi_q(s) for s in range(1, 5)]
    for ph in range(3):
        for e in E: a.run(e[ph])
    a(f'v_mov_b32 v{CWV}, v{acc(2,0)}')
    a(f'v_mov_b32 v{CWV+1}, v{acc(2,0)}')
    smm = []
    for u in range(4):
        q = vr(QP + 2 * u, 2)
        smm.append(f'v_mfma_f32_16x16x16_bf16 {vr(SC+4*u,4)}, {vr(KP+2*(u+1),2)}, {q}, {vr(BC,4)}')
        smm.append(f'v_mfma_f32_16x16x16_bf16 {vr(SP+4*u,4)}, {vr(KP+2*u,2)}, {q}, {vr(BP0 if u == 0 else BP,4)}')
    vv = [f'v_permlane16_swap_b32 v{CWV}, v{CWV+1}', f's_mov_b32 s{sT0}, {f2h(0.25 * 1.4426950408889634)}']
    vv += [f'v_mul_f32 v{STC+2*s+1}, s{sT0}, v{STC+2*s+1}' for s in range(1, 5)]
    E = [epi_v(s) for s in range(5)]
    for ph in range(3):
        for e in E: vv += e[ph]
    a.run(weave(smm, vv[:16]) + vv[16:])
    for u in range(4):
        for r in range(4):
            a(f'v_max_f32 v{SC+4*u+r}, v{SC+4*u+r}, v{SP+4*u+r}')
    for u in range(4):
        a(f'v_max3_f32 v{MX+u}, v{SC+4*u}, v{SC+4*u+1}, v{SC+4*u+2}')
    for u in range(4):
        a(f'v_max_f32 v{MX+u}, v{MX+u}, v{SC+4*u+3}')
    for sw in ('v_permlane16_swap_b32', 'v_permlane32_swap_b32'):
        for u in range(4): a(f'v_mov_b32 v{MT+u}, v{MX+u}')
        for u in range(4): a(f'{sw} v{MX+u}, v{MT+u}')
        for u in range(4): a(f'v_max_f32 v{MX+u}, v{MX+u}, v{MT+u}')
    for u in range(4):
        a(f'v_mul_f32 v{MX+u}, v{STC+2*u+3}, v{MX+u}')
    for u in range(4):
        for r in range(4):
            a(f'v_fma_f32 v{SC+4*u+r}, v{SC+4*u+r}, v{STC+2*u+3}, -v{MX+u}')
    for u in range(4):
        for r in range(4):
            a(f'v_exp_f32 v{SC+4*u+r}, v{SC+4*u+r}')
    for u in range(4):
        for h in range(2):
            a(f'v_cvt_pk_bf16_f32 v{PM+2*u+h}, v{SC+4*u+2*h}, v{SC+4*u+2*h+1}')
        for h in range(2):
            a(f'v_and_b32 v{PB+4*u+h}, v{PM+2*u+h}, v{MP+h}')
            a(f'v_and_b32 v{PB+4*u+2+h}, v{PM+2*u+h}, v{MC+h}')
    pm = []
    for u in range(4):
        pm.append(f'v_mfma_f32_16x16x16_bf16 {vr(SP+4*u,4)}, {vr(ONE,2)}, {vr(PM+2*u,2)}, 0')
    for u in range(4):
        pm.append(f'v_mfma_f32_16x16x32_bf16 {vr(SC+4*u,4)}, {vr(VP+2*u,4)}, {vr(PB+4*u,4)}, 0')
    sa = [f's_lshl2_add_u32 s{sT0}, s{sDT}, s{sWAVE}', f's_lshl_b32 s{sT2}, s{sRT}, 7', f's_add_u32 s{sT2}, s{sT2}, s{sDT}', f's_lshl_b32 s{sT2}, s{sT2}, 2',
          f's_add_u32 s{sT2}, s{sT2}, {WS_F1:#x}', f's_lshl_b32 s{sT0}, s{sT0}, 9', f's_lshl_b32 s{sT1}, s{sRT}, 16', f's_add_u32 s{sT0}, s{sT0}, s{sT1}',
          f's_add_u32 s{sT1}, s{sT0}, 32768', f'v_lshrrev_b32 v{vT0}, 5, v{vL}', f'v_mul_u32_u24 v{vT0}, {16384 - 512}, v{vT0}', f'v_add_u32 v{vT0}, v{vT0}, v{vL16}',
          f'v_lshrrev_b32 v{vT3}, 2, v{vL}', f'v_and_b32 v{vT1}, 3, v{vL}', f'v_lshlrev_b32 v{vT1}, 7, v{vT1}', f'v_lshl_add_u32 v{vT3}, v{vT3}, 14, v{vT1}']
    if OPT['NF1']: sa = sa[:1] + sa[5:12]
    a.run(weave(pm, sa))
    if not OPT['NF1']:
        a.wait_all(vm=False)
        a(f's_cmp_lg_u32 s{sNON}, 0')
        a('s_cbranch_scc0 L_non')
        a.label('L_nonok')
        tail.append([x for x in nontail if not x.startswith('v_mov')])
    a(f's_mov_b32 s{sNON+1}, s{sNON}')
    a(f'v_mov_b32 v{vT2}, s{sNON}')
    for u in range(4):
        a(f'v_rcp_f32 v{SP+4*u}, v{SP+4*u}')
    for u in range(4):
        for h in range(2):
            a(f'v_pk_mul_f32 {vr(SC+4*u+2*h,2)}, {vr(SC+4*u+2*h,2)}, {vr(SP+4*u,2)} op_sel_hi:[1,0]')
    for u in range(4):
        for h in range(2):
            a(f'v_cvt_pk_bf16_f32 v{OUT+2*u+h}, v{SC+4*u+2*h}, v{SC+4*u+2*h+1}')
    for e in range(2):
        for h in range(2):
            a(f'v_permlane32_swap_b32 v{OUT+4*e+h}, v{OUT+4*e+2+h}')
    left = a.inj; a.inj = []
    for e in range(2):
        a.vm('ost', f'buffer_store_dwordx4 {vr(OUT+4*e,4)}, v{vT0}, {srd(sWS)}, s{[sT0,sT1][e]} offen sc1')
    assert not any(o[0] == 'vm' and o[1] == 'wo' for o in flat(left) if not isinstance(o, str))
    a.wait(vm=['wo', 'clr'])
    nflag = [0]
    def flag(soff, barrier=True):
        nflag[0] += 1
        if barrier: a('s_barrier')
        a(f's_cmp_lg_u32 s{sWAVE}, 0')
        a(f's_cbranch_scc1 L_nf{nflag[0]}')
        a('s_mov_b32 exec_hi, 0')
        a(f'buffer_store_dword v{vT2}, v{vT3}, {srd(sWS)}, s{soff} offen sc1')
        a('s_mov_b32 exec_hi, -1')
        a.label(f'L_nf{nflag[0]}')
    if OPT['NF1']: a('s_barrier')
    else: flag(sT2)
    a.run(late.get(17, []))
    a.stamp(0, 1, 3, 4)
    a.run(wop)
    if OPT['SKE']: a.run([f's_cmp_lt_u32 s{sZ}, 7', f's_cselect_b64 s[{sEX}:{sEX+1}], -1, 1'])
    a.run(lean(left))
    ID, O, ACC2, S2, PK2 = 20, 64, 128, 144, 152
    vHO, vSO, vTW = 9, 10, 12
    cst = [f'v_bfe_u32 v{vT0}, v{vL}, 2, 3', f'v_lshrrev_b32 v{vT1}, 5, v{vL}', f'v_lshl_add_u32 v{vT0}, v{vT1}, 4, v{vT0}', f'v_lshlrev_b32 v{vTW}, 7, v{vT0}',
           f'v_bfe_u32 v{vT0}, v{vL}, 3, 2', f'v_lshl_add_u32 v{vTW}, v{vT0}, 5, v{vTW}', f'v_and_b32 v{vT0}, 3, v{vL}', f'v_lshl_add_u32 v{vTW}, v{vT0}, 3, v{vTW}']
    cst += [f'v_xor_b32 v{vTW+t}, {32*t}, v{vTW}' for t in range(1, 4)]
    cst += [f'v_and_b32 v{vT0}, 1, v{vC}', f'v_lshlrev_b32 v{vT0}, 4, v{vT0}', f'v_mov_b32 v{vT1}, 0x3f80', f'v_lshlrev_b32 v{vT0}, v{vT0}, v{vT1}',
            f'v_lshrrev_b32 v{vT1}, 1, v{vC}', f'v_lshlrev_b32 v{vE0}, 2, v{vG}', f'v_sub_u32 v{vT1}, v{vT1}, v{vE0}']
    for b in range(2):
        for k in range(4):
            cst += [f'v_cmp_eq_i32 vcc, {k - 8*b}, v{vT1}', f'v_cndmask_b32 v{ID+4*b+k}, 0, v{vT0}, vcc']
    cst += [f'v_and_b32 v{vT0}, 1, v{vG}', f'v_lshlrev_b32 v{vHO}, 10, v{vT0}', f'v_lshrrev_b32 v{vT0}, 1, v{vG}', f'v_lshl_add_u32 v{vHO}, v{vT0}, 8, v{vHO}',
            f'v_lshl_add_u32 v{vHO}, v{vC}, 4, v{vHO}',
            f'v_lshrrev_b32 v{vT0}, 2, v{vC}', f'v_lshlrev_b32 v{vSO}, 8, v{vT0}', f'v_lshl_add_u32 v{vSO}, v{vG}, 6, v{vSO}', f'v_and_b32 v{vT0}, 3, v{vC}',
            f'v_lshl_add_u32 v{vSO}, v{vT0}, 4, v{vSO}']
    cst += [f'v_mfma_f32_16x16x32_bf16 {vr(ACC2+4*t,4)}, {vr(XR+4*(t>>1),4)}, {vr(ID+4*(t&1),4)}, 0' for t in range(4)]
    sBLK = sXB
    sFL = sLW
    cst += [f's_lshl_b32 s{sFL}, s{sDT}, 5', f's_add_u32 s{sFL}, s{sFL}, s{sRT}', f's_lshl2_add_u32 s{sFL}, s{sFL}, s{sWAVE}', f's_lshl_b32 s{sFL}, s{sFL}, 7',
            f's_add_u32 s{sFL}, s{sFL}, {WS_F1:#x}', f'v_lshlrev_b32 v{vT3}, 9, v{vL}', f's_lshl2_add_u32 s{sBLK}, s{sRT}, s{sWAVE}', f's_lshl_b32 s{sT1}, s{sBLK}, 14']
    cst0 = w2_scalars(sW2A, sW2B, sROT4) + ([f's_lshl_b32 s{sPL}, s{sWAVE}, 12'] if OPT['DF'] else [f's_lshl_b32 s{sPL}, s{sWAVE}, 14']) + mk_q(vQ2, False) + mk_r(vR2, False)
    if OPT['X4']:
        assert OPT['X3']
        cst0 += [f's_bfe_u32 s{sJ4}, s2, {3 | (2 << 16)}', f's_mul_i32 s{sJ4}, s{sJ4}, {OPT["X4"] << 17:#x}', f's_sub_u32 s{sLIM4}, 14, s{sROT4}', f's_lshl_b32 s{sLIM4}, s{sLIM4}, 17']
    a.run(cst0 + cst)
    hadr = [f's_lshl_b32 s{sT0}, s{sDT}, 18', f's_lshr_b32 s3, s{sBLK}, 1', f's_lshl_b32 s3, s3, 12', f's_add_u32 s{sT0}, s{sT0}, s3', f's_and_b32 s3, s{sBLK}, 1',
            f's_lshl_b32 s3, s3, 9', f's_add_u32 s{sT0}, s{sT0}, s3', f's_add_u32 s{sT0}, s{sT0}, {WS_HF:#x}']
    def uclr(R): return clr[2] + [('vm', 'clr', f'buffer_store_dwordx4 {vr(R,4)}, v{vL16}, {srd(sWS)}, s3 offen offset:{1024*h} sc1') for h in range(2)]
    if OPT['CH'] == 17 or OPT['CU'] == 17:
        a.run([f'v_mov_b32 v{S2+k}, -1' for k in range(4)])
    if OPT['CH'] == 17:
        a.run(hadr + [f's_sub_u32 s3, s{sT0}, {WS_HF - WS_HN:#x}']); hadr = []
        for e in range(2): a.vm('clr', f'buffer_store_dwordx4 {vr(S2,4)}, v{vHO}, {srd(sWS)}, s3 offen offset:{2048*e} sc1')
        if OPT['CLX'] & 8:
            for e in range(2): a.vm('clr', f'buffer_store_dwordx4 {vr(S2,4)}, v{vHO}, {srd(sWS)}, s{sT0} offen offset:{2048*e} sc1')
    if OPT['CU'] == 17: a.run(uclr(S2))
    def wf2(i): return [32, 48, 176, 192, 208, 224][i % 6]
    def tr2(i):
        return [('ds', ('w2r', i), f'ds_read_b64_tr_b16 {vr(wf2(i)+4*t+2*h,2)}, v{vTW+t} offset:{4096*i+1024*h}') for t in range(4) for h in range(2)]
    if wop:
        a.run(events(OPT['EB1']))
        a.wait(vm=['wo'])
        a('s_barrier')
    for i in range(5): a.run(tr2(i))
    eb = events(OPT['EB1'])
    def pload(soff): return f's_load_dwordx8 s[{sPOLL}:{sPOLL+7}], s[{sWS}:{sWS+1}], s{soff} glc'
    def poll(lbl, soff, early=False):
        a.stamp(3, 4 if lbl[-1] == '1' else 3)
        if OPT['PW' + lbl[-1]]: a(f's_sleep {OPT["PW" + lbl[-1]]}')
        if early:
            a.label(lbl + '_c')
            a.wait_all(vm=False)
            for k in range(4): a(f's_xor_b64 s[{sPOLL+2*k}:{sPOLL+2*k+1}], s[{sPOLL+2*k}:{sPOLL+2*k+1}], s[{sNON}:{sNON+1}]')
            a(f's_or_b64 s[{sPOLL}:{sPOLL+1}], s[{sPOLL}:{sPOLL+1}], s[{sPOLL+2}:{sPOLL+3}]')
            a(f's_or_b64 s[{sPOLL+4}:{sPOLL+5}], s[{sPOLL+4}:{sPOLL+5}], s[{sPOLL+6}:{sPOLL+7}]')
            a(f's_or_b64 s[{sPOLL}:{sPOLL+1}], s[{sPOLL}:{sPOLL+1}], s[{sPOLL+4}:{sPOLL+5}]')
            a(f's_cbranch_scc0 {lbl}_ok')
            a(pload(soff))
            a(f's_sub_u32 s{sBUD}, s{sBUD}, 1')
            a(f's_cbranch_scc0 {lbl}_c')
            a(f's_mov_b32 s{sBUD}, 0')
            a('s_waitcnt lgkmcnt(0)')
            a.label(lbl + '_ok')
            return
        a.label(lbl)
        a(pload(soff))
        a.wait_all(vm=False)
        for k in range(4): a(f's_xor_b64 s[{sPOLL+2*k}:{sPOLL+2*k+1}], s[{sPOLL+2*k}:{sPOLL+2*k+1}], s[{sNON}:{sNON+1}]')
        a(f's_or_b64 s[{sPOLL}:{sPOLL+1}], s[{sPOLL}:{sPOLL+1}], s[{sPOLL+2}:{sPOLL+3}]')
        a(f's_or_b64 s[{sPOLL+4}:{sPOLL+5}], s[{sPOLL+4}:{sPOLL+5}], s[{sPOLL+6}:{sPOLL+7}]')
        a(f's_or_b64 s[{sPOLL}:{sPOLL+1}], s[{sPOLL}:{sPOLL+1}], s[{sPOLL+4}:{sPOLL+5}]')
        a(f's_cbranch_scc0 {lbl}_ok')
        if OPT['PR']: a(f's_sleep {OPT["PR"]}')
        a(f's_sub_u32 s{sBUD}, s{sBUD}, 1')
        a(f's_cbranch_scc0 {lbl}')
        a(f's_mov_b32 s{sBUD}, 0')
        a.label(lbl + '_ok')
    def check(lbl, regs, reload):
        ck = [f'v_max3_u32 v{vCK}, v{regs[0]}, v{regs[1]}, v{regs[2]}', f'v_max_u32 v{vCK}, v{vCK}, v{regs[3]}', f'v_cmp_eq_u32 vcc, -1, v{vCK}']
        tail.append([lbl + ':'] + ([f's_add_u32 s101, s101, {1 if "ro" in lbl else 0x100 if "ra1" in lbl else 0x10000}'] if PROF else []) + [f's_sub_u32 s{sBUD}, s{sBUD}, 1', f's_cbranch_scc1 {lbl}_x'] + reload + ['s_waitcnt vmcnt(0)'] + ck +
                    [f's_cbranch_vccnz {lbl}', f's_branch {lbl}_b', lbl + '_x:', f's_mov_b32 s{sBUD}, 0', f's_branch {lbl}_b'])
        return ck + [('grp', [f's_cbranch_vccnz {lbl}', ('label', lbl + '_b')])]
    if OPT['NF1']: OPT['EP1'] = len(eb)
    if OPT['EP1']: eb = eb[:len(eb) - OPT['EP1']] + [pload(sFL)] + eb[len(eb) - OPT['EP1']:]
    a.run(lean(eb))
    if OPT['HOP'] == 2: hop(5, 'L_pgc')
    poll('L_p1', sFL, OPT['EP1'] > 0)
    a.stamp(0, 3, 4)
    if PROF: a(f'v_mov_b32 v252, s{sBUD}')
    sOB = sWB
    a(f's_mov_b32 s{sOB}, s{sT1}')
    def oload(i, so, f=1): return f'buffer_load_dwordx4 {vr(O+4*i,4)}, v{vL16}, {srd(sWS)}, s{so} offen offset:{1024*(i&3)}' + SCF[f]
    for c in range(4):
        if c: a(f's_add_u32 s{sT1}, s{sT1}, 4096')
        for i in range(4): a.vm(('o', 4*c+i), oload(4*c+i, sT1, OPT['SO']))
    a.run(late.get(20, []))
    a.run(hadr)
    a(f's_lshl_b32 s{sT1}, s{sBLK}, 11')
    a(f's_add_u32 s{sT1}, s{sT1}, {WS_SX:#x}')
    a(f's_lshl_b32 s{sT2}, s{sDT}, 8')
    a(f's_add_u32 s{sT2}, s{sT2}, s{sT1}')
    a(f'v_lshlrev_b32 v{vT0}, 2, v{vL}')
    def ocheck(c):
        return [('wvm', ('o', 4*c+3))] + check(f'L_ro{c}', [O + 16*c + 4*i for i in range(4)], [x for d in range(c, 4 if OPT['NF1'] else c + 1) for x in [f's_add_u32 s{sCNT}, s{sOB}, {4096*d}'] + [oload(4*d+i, sCNT) for i in range(4)]])
    a.stamp(4)
    a.run(lean(events(OPT['EB2'])))
    a.stamp(4)
    a.run(ocheck(0))
    a.stamp(4)
    ec = events(OPT['EC'])
    for i in range(16):
        a.wait(ds=[('w2r', i)])
        mm = [f'v_mfma_f32_16x16x32_bf16 {vr(ACC2+4*t,4)}, {vr(O+4*i,4)}, {vr(wf2(i)+4*t,4)}, {vr(ACC2+4*t,4)}' for t in range(4)]
        f = tr2(i + 5) if i + 5 < 16 else []
        wgt = [1] * 11 + [3] * 5
        lo, hi = (len(ec) * sum(wgt[:i])) // sum(wgt), (len(ec) * sum(wgt[:i + 1])) // sum(wgt)
        f = mix(f, ec[lo:hi])
        if i % 4 == 3 and i < 12: f = f + ocheck(i // 4 + 1)
        a.run(weave(mm, f))
        if i in (3, 7, 11): a.stamp(4)
    a.run(late.get(22, []))
    a.stamp(0, 3, 4)
    S = S2
    for r in range(4):
        a(f'v_add_f32 v{S+r}, v{ACC2+r}, v{ACC2+4+r}')
        a(f'v_mul_f32 v{S+4+r}, v{ACC2+r}, v{ACC2+r}')
    for t in range(1, 4):
        for r in range(4):
            if t > 1: a(f'v_add_f32 v{S+r}, v{S+r}, v{ACC2+4*t+r}')
            a(f'v_fmac_f32 v{S+4+r}, v{ACC2+4*t+r}, v{ACC2+4*t+r}')
    for base in (S, S + 4):
        for i in range(2):
            a(f'v_add_f32_dpp v{base+i}, v{base+i}, v{base+i} row_ror:8 row_mask:0xf bank_mask:0x3')
    for base in (S, S + 4):
        for i in range(2):
            a(f'v_add_f32_dpp v{base+i}, v{base+i+2}, v{base+i+2} row_ror:8 row_mask:0xf bank_mask:0xc')
    for base in (S, S + 4):
        a(f'v_add_f32_dpp v{base}, v{base}, v{base} row_half_mirror row_mask:0xf bank_mask:0x5')
    for base in (S, S + 4):
        a(f'v_add_f32_dpp v{base}, v{base+1}, v{base+1} row_half_mirror row_mask:0xf bank_mask:0xa')
    for qp in ('[1,0,3,2]', '[2,3,0,1]'):
        for base in (S, S + 4):
            a(f'v_add_f32_dpp v{base}, v{base}, v{base} quad_perm:{qp} row_mask:0xf bank_mask:0xf')
    a('s_mov_b32 vcc_lo, 0xaaaaaaaa')
    a('s_mov_b32 vcc_hi, 0xaaaaaaaa')
    a(f'v_cndmask_b32 v{S}, v{S}, v{S+4}, vcc')
    a('s_mov_b32 vcc_lo, 0xcccccccc')
    a('s_mov_b32 vcc_hi, 0xcccccccc')
    a(f'v_cndmask_b32 v{S}, v{S}, v{vT2}, vcc')
    a.vm('sx', f'buffer_store_dword v{S}, v{vT0}, {srd(sWS)}, s{sT2} offen' + SCF[OPT['SXS']])
    a.stamp(4)
    def pack_store(tag, soff, defer=False):
        for t in range(4):
            for h in range(2):
                a(f'v_cvt_pk_bf16_f32 v{PK2+2*t+h}, v{ACC2+4*t+2*h}, v{ACC2+4*t+2*h+1}')
        for e in range(2):
            for h in range(2):
                a(f'v_permlane16_swap_b32 v{PK2+4*e+h}, v{PK2+4*e+2+h}')
        st = [('vm', tag, f'buffer_store_dwordx4 {vr(PK2+4*e,4)}, v{vHO}, {srd(sWS)}, s{soff} offen offset:{2048*e} sc1') for e in range(2)]
        if defer: return st
        a.run(st); return []
    a.run(sp(OPT['SPC']))
    hfs = pack_store('hf', sT0, OPT['HFL'])
    PK2 = PK2 + 8
    hfs += [f's_sub_u32 s{sT0}, s{sT0}, {WS_HF - WS_HN:#x}']
    if not OPT['HFL']: a.run(hfs); hfs = []
    if not OPT['NF2']:
        a(f's_lshl_b32 s{sT2}, s{sDT}, 7')
        a(f's_lshr_b32 s{sCNT}, s{sRT}, 3')
        a(f's_add_u32 s{sT2}, s{sT2}, s{sCNT}')
        a(f's_lshl_b32 s{sT2}, s{sT2}, 5')
        a(f's_and_b32 s{sCNT}, s{sRT}, 7')
        a(f's_add_u32 s{sT2}, s{sT2}, s{sCNT}')
        a(f's_lshl_b32 s{sT2}, s{sT2}, 2')
        a(f's_add_u32 s{sT2}, s{sT2}, {WS_F2:#x}')
    a([f's_mov_b32 s{sDT}, s{sD3}', f's_mov_b32 s{sDT}, 0', f's_and_b32 s{sDT}, s{sD3}, 1', f's_and_b32 s{sDT}, s{sD3}, 3'][OPT['ZD3']])
    a.run(late.get(24, []))
    a.run(lean(events(OPT['ED'])))
    a.run(late.get(25, []))
    a.stamp(0, 3, 4)
    if PROF: a(f'v_mov_b32 v254, s{sBUD}')
    R0 = O
    sxl = [f'buffer_load_dwordx4 {vr(R0+4*e,4)}, v{vSO}, {srd(sWS)}, s{sT1} offen offset:{1024*e}' + SCF[OPT['SXL']] for e in range(2)]
    sxc = [f'v_xor_b32 v{R0+2}, s{sNON}, v{R0+2}', f'v_xor_b32 v{R0+6}, s{sNON}, v{R0+6}', f'v_add_f32 v{R0}, v{R0}, v{R0+4}', f'v_or_b32 v{R0+2}, v{R0+2}, v{R0+6}',
           f'v_add_f32 v{R0+1}, v{R0+1}, v{R0+5}', f'v_cmp_ne_u32 vcc, 0, v{R0+2}']
    if OPT['SXP']:
        NR = OPT['SXP']
        R0 = 176
        a.run(events(OPT['EE']))
        def sxl_(r): return [f'buffer_load_dwordx4 {vr(O+8*r+4*e,4)}, v{vSO}, {srd(sWS)}, s{sT1} offen offset:{1024*e} sc1' for e in range(2)]
        for r in range(NR):
            if r: a(f's_sleep {OPT["SXD"]}')
            for t_ in sxl_(r): a.vm('sxl', t_)
        a.label('L_sx')
        for r in range(NR):
            P = O + 8 * r
            a(f's_waitcnt vmcnt({2 * (NR - 1)})')
            a.run([f'v_xor_b32 v{R0+2}, s{sNON}, v{P+2}', f'v_xor_b32 v{R0+3}, s{sNON}, v{P+6}', f'v_add_f32 v{R0}, v{P}, v{P+4}', f'v_or_b32 v{R0+2}, v{R0+2}, v{R0+3}',
                   f'v_add_f32 v{R0+1}, v{P+1}, v{P+5}', f'v_cmp_ne_u32 vcc, 0, v{R0+2}', 's_cbranch_vccz L_sx_ok'] + sxl_(r))
        a(f's_sub_u32 s{sBUD}, s{sBUD}, 1')
        a('s_cbranch_scc0 L_sx')
        a(f's_mov_b32 s{sBUD}, 0')
        a.vmq = ['sxq'] * (2 * NR - 1) + ['sxp']
    else:
        a.run(sp(OPT['SPB']))
        if OPT['SXW']: a(f's_sleep {OPT["SXW"]}')
        for t_ in sxl: a.vm('sxl', t_)
        a.run(late.get(26, []))
        a.run(hfs)
        a.run(lean(events(OPT['EE'])))
        a.wait(vm=['sxl'])
        a.run(sxc)
        if OPT['SXI']:
            a('s_cbranch_vccz L_sx_ok')
            for t_ in ['L_sx:', f's_sub_u32 s{sBUD}, s{sBUD}, 1', 's_cbranch_scc1 L_sx_x'] + ([f's_sleep {OPT["SXR"]}'] if OPT['SXR'] else []) + sxl + ['s_waitcnt vmcnt(0)'] + sxc + ['s_cbranch_vccnz L_sx']: a(t_)
            tail.append(['L_sx_x:', f's_mov_b32 s{sBUD}, 0', 's_branch L_sx_ok'])
        else:
            a('s_cbranch_vccnz L_sx')
            tail.append(['L_sx:', f's_sub_u32 s{sBUD}, s{sBUD}, 1', 's_cbranch_scc1 L_sx_x'] + sxl + ['s_waitcnt vmcnt(0)'] + sxc +
                        ['s_cbranch_vccnz L_sx', 's_branch L_sx_ok', 'L_sx_x:', f's_mov_b32 s{sBUD}, 0', 's_branch L_sx_ok'])
    a.label('L_sx_ok')
    a.run(late.get(21, []))
    a.stamp(0, 3, 4)
    if PROF: a(f'v_mov_b32 v255, s{sBUD}')
    for ror in (4, 8):
        for k in range(2):
            a(f'v_add_f32_dpp v{R0+k}, v{R0+k}, v{R0+k} row_ror:{ror} row_mask:0xf bank_mask:0xf')
    s_, q_, t_ = R0, R0 + 1, R0 + 2
    a(f's_mov_b32 s{sT1}, 0x3727c5ac')
    a(f'v_mul_f32 v{s_}, 0xbb000000, v{s_}')
    a(f'v_mul_f32 v{q_}, 0x3b000000, v{q_}')
    a(f'v_fma_f32 v{q_}, -v{s_}, v{s_}, v{q_}')
    a(f'v_max_f32 v{q_}, 0, v{q_}')
    a(f'v_add_f32 v{t_}, s{sT1}, v{q_}')
    a(f'v_rsq_f32 v{t_}, v{t_}')
    a(f'v_mul_f32 v{q_}, v{q_}, v{t_}')
    a(f'v_fma_f32 v{q_}, v{q_}, v{t_}, s{sT1}')
    a(f'v_rsq_f32 v{q_}, v{q_}')
    a(f'v_mul_f32 v{t_}, v{t_}, v{q_}')
    a(f'v_mul_f32 v{s_}, v{s_}, v{t_}')
    RR, BB = R0 + 4, R0 + 8
    for r in range(4):
        a(f'v_mov_b32_dpp v{RR+r}, v{t_} quad_perm:[{r},{r},{r},{r}] row_mask:0xf bank_mask:0xf')
    for r in range(4):
        a(f'v_mov_b32_dpp v{BB+r}, v{s_} quad_perm:[{r},{r},{r},{r}] row_mask:0xf bank_mask:0xf')
    for t in range(4):
        for h in range(2):
            a(f'v_pk_fma_f32 {vr(ACC2+4*t+2*h,2)}, {vr(ACC2+4*t+2*h,2)}, {vr(RR+2*h,2)}, {vr(BB+2*h,2)}')
    if OPT['NF2']: assert 'hf' not in a.vmq
    pack_store('hst', sT0)
    a.wait(vm=['hf'])
    a.wait_all(vm=False)
    if OPT['NF2']:
        if OPT['NF2'] == 1: a('s_barrier')
    else: flag(sT2)
    a.run(late.get(23, []))
    if OPT['OPS'] == 23: a.run(opre(PK2, vT0))
    if OPT['CU'] == 23: a.run([f'v_mov_b32 v{112+k}, -1' for k in range(4)] + uclr(112))
    a.wait(vm=['sxq'])
    a.stamp(0, 3)
    vA0, vA1 = 17, 18
    BI4 = 20
    OWN, OTH, ST, H = 32, 48, 96, 128
    a(f's_cmp_ge_u32 s{sZ}, 7')
    a('s_cbranch_scc1 L_skip3')
    save = (list(a.vmq), list(a.dsq), list(EV), dict(slot_of))
    f2a = [f's_bfe_u32 s{sFL}, s2, {1 | (2 << 16)}', f's_lshl2_add_u32 s{sFL}, s{sDT}, s{sFL}', f's_lshl3_add_u32 s{sFL}, s{sFL}, s{sZ}',
           f's_lshl2_add_u32 s{sFL}, s{sFL}, s{sWAVE}', f's_lshl_b32 s{sFL}, s{sFL}, 7', f's_add_u32 s{sFL}, s{sFL}, {WS_F2:#x}']
    if OPT['EP2']:
        ef = events(OPT['EF'])
        if OPT['NF2']: OPT['EP2'] = len(ef)
        a.run(ef[:len(ef) - OPT['EP2']] + f2a + [pload(sFL)] + ef[len(ef) - OPT['EP2']:]); f2a = []
    a.run(events(OPT['EF']))
    while OPT['MF'] and EV and EV[0][0] == 'M': a.run(evM(EV.pop(0)[1]))
    a(f's_lshr_b32 s{sT0}, s{sWAVE}, 1')
    a(f's_lshl_b32 s{sT0}, s{sT0}, 11')
    a(f'v_or_b32 v{vA0}, s{sT0}, v{vL16}')
    a(f'v_xor_b32 v{vA1}, 2048, v{vA0}')
    a(f's_lshl_b32 s{sT0}, s{sCT3}, 7')
    a(f's_and_b32 s{sT1}, s{sWAVE}, 1')
    a(f's_lshl_b32 s{sT1}, s{sT1}, 6')
    a(f's_add_u32 s{sT0}, s{sT0}, s{sT1}')
    a(f'v_lshlrev_b32 v{vT0}, 3, v{vG}')
    for i in range(2):
        a.vm('b1', f'buffer_load_dwordx2 {vr(BI4+2*i,2)}, v{vT0}, {srd(sB1)}, s{sT0} offen offset:{32*i}')
    sHA, sHB = sXB, sWB
    a(f's_lshl4_add_u32 s{sT0}, s{sWAVE}, s{sROT3}')
    a(f's_lshl_b32 s{sHA}, s{sT0}, 12')
    a(f's_lshl_b32 s{sT0}, s{sDT}, 18')
    a(f's_add_u32 s{sHA}, s{sHA}, s{sT0}')
    a(f's_add_u32 s{sHA}, s{sHA}, {WS_HN:#x}')
    if not OPT['X3']: a(f's_sub_u32 s{sHB}, s{sHA}, 65536')
    vRD = 9
    red_addr = [f's_mul_i32 s{sT0}, s{sWAVE}, 12288']
    for q in range(1, 4):
        red_addr += [f's_xor_b32 s{sT1}, s{sWAVE}, {q}', f's_mul_i32 s{sT1}, s{sT1}, 12288', f'v_add_u32 v{vRD+q-1}, s{sT1}, v{vL16}']
    red_addr += [f'v_add_u32 v{vRD+3}, s{sT0}, v{vL16}']
    a.run(red_addr)
    a.run(f2a)
    poll('L_p2', sFL, OPT['EP2'] > 0)
    a.stamp(0, 2, 3)
    def hreg(i, t): return H + 16 * (i % 7) + 4 * t
    def aload_txt(K3, i, t, so, f=1):
        if K3: return f'buffer_load_dwordx4 {vr(hreg(i,t),4)}, v{vA1 if t >> 1 else vA0}, {srd(sWS)}, s{so} offen offset:{1024*(t&1)}' + SCF[f]
        return f'buffer_load_dwordx4 {vr(hreg(i,t),4)}, v{vL16}, {srd(sWS)}, s{so} offen offset:{1024*t}' + SCF[f]
    def aaddr(K3, i, so):
        N = 16 if K3 else 14
        rot = sROT3 if K3 else sROT4
        if K3 and OPT['X3']: return [f's_xor_b32 s{so}, s{sHA}, {i*4096}']
        if not K3 and OPT['X4']: return sig4(f's{so}', i, 12) + [f's_cselect_b32 s3, s{sHA}, s{sHB}', f's_add_u32 s{so}, s{so}, s3']
        return [f's_cmp_lt_u32 s{rot}, {N - i}', f's_cselect_b32 s{so}, s{sHA}, s{sHB}', f's_add_u32 s{so}, s{so}, {i*4096}']
    def aloads(K3, i):
        if OPT['HA'] & (1 if K3 else 2) and i >= (8 if K3 else 7): return []
        return [('grp', (aaddr(K3, i, sCNT) if t == 0 else []) + [('vm', ('a', K3, i), aload_txt(K3, i, t, sCNT, OPT['SA3' if K3 else 'SA4']))]) for t in range(4)]
    def acheck(K3, i):
        if OPT['HA'] & (1 if K3 else 2) and i >= (8 if K3 else 7): return []
        return [('wvm', ('a', K3, i))] + check(f'L_ra{int(K3)}_{i}', [hreg(i, t) for t in range(4)], [x for d in range(i, min(16 if K3 else 14, i + OPT['RL']) if OPT['NF2' if K3 else 'NF3'] and i < OPT['RM'] else i + 1)
                                                                                                       for x in aaddr(K3, d, sPOLL) + [aload_txt(K3, d, t, sPOLL) for t in range(4)]])
    def acc34(K3, tw, ta):
        q, k = ((tw >> 1) + 2 * (ta >> 1), (tw & 1) + 2 * (ta & 1)) if K3 else (tw, ta)
        return q, vr(OWN + 16 * q + 4 * k, 4)
    def mm34(K3, i, quad=None):
        mm = []
        for ta in range(4):
            for tw in range(4):
                q, d = acc34(K3, tw, ta)
                if quad is not None and q != quad: continue
                A, B = (ar(abase(K3, i)+4*tw, 4), vr(hreg(i, ta), 4)) if K3 else (vr(hreg(i, ta), 4), ar(abase(K3, i)+4*tw, 4))
                mm.append(f'v_mfma_f32_16x16x32_bf16 {d}, {A}, {B}, {"0" if i == 0 else d}')
        return mm
    def red_w(q): return [('ds', 'rw', f'ds_write_b128 v{vRD+q-1}, {vr(OWN+16*q+4*k,4)} offset:{4096*(q-1)+1024*k}') for k in range(4)]
    def gemm34(K3, N, fills, first):
        NQ, D0 = OPT['NQ'], OPT['D0']
        for i in range(D0): a.run(aloads(K3, i))
        a.run(first)
        rest = [o for i in range(D0, N) for o in aloads(K3, i)]
        nb = N - NQ - 1
        a.run(acheck(K3, 0))
        a.stamp(2)
        done = 0
        for i in range(N - NQ):
            tgt = min(len(rest), ((i + 1) * len(rest) + nb - 1) // nb, 4 * (i + 6 - D0 + 1))
            if OPT['HA'] & (1 if K3 else 2): tgt = min(len(rest), 4 * (i + 1))
            ld = rest[done:tgt]; done = tgt
            f = mix(ld, fills.get(i, []))
            mm = mm34(K3, i)
            if not K3: a.wait(ds=[('t', K3, i)])
            a.run(weave(mm[:11], f) + weave(mm[11:], acheck(K3, i + 1)))
            if i in ((3, 7, 12) if K3 else (4, 10)): a.stamp(2)
        assert done == len(rest)
        if not K3: a.wait(ds=[('t', K3, i) for i in range(N)])
        prev = None
        for j, q in enumerate((1, 2, 3, 0)):
            if j == 1 and lowbar:
                if K3: a.wait(ds=[('t',) + uid(npre - 1)])
                a('s_barrier')
            f = fills.get(N - NQ + j, [])
            if j == 0:
                for i in range(N - NQ, N):
                    a.run(weave(mm34(K3, i, q), acheck(K3, i + 1) if i + 1 < N else f))
                    if i == N - 2: a.stamp(2)
            else:
                mm = []
                for i in range(N - NQ, N): mm += mm34(K3, i, q)
                a.run(mm[:3] + weave(mm[3:], mix(f, red_w(prev))))
            prev = q
    def reduce_rd():
        a.wait_all(vm=False)
        a('s_barrier')
        for k in range(4):
            for q in range(3):
                a.ds(('rr', k), f'ds_read_b128 {vr(OTH+16*q+4*k,4)}, v{vRD+3} offset:{4096*q+1024*k}')
    def reduce_sum(k, bias):
        o = OWN + 4 * k
        ops = [('wds', ('rr', k))]
        for h in range(2):
            ops += [f'v_pk_add_f32 {vr(o+2*h,2)}, {vr(o+2*h,2)}, {bias(k, h)}', f'v_pk_add_f32 {vr(OTH+4*k+2*h,2)}, {vr(OTH+4*k+2*h,2)}, {vr(OTH+16+4*k+2*h,2)}']
        ops += [f'v_pk_add_f32 {vr(o+2*h,2)}, {vr(o+2*h,2)}, {vr(OTH+32+4*k+2*h,2)}' for h in range(2)]
        ops += [f'v_pk_add_f32 {vr(o+2*h,2)}, {vr(o+2*h,2)}, {vr(OTH+4*k+2*h,2)}' for h in range(2)]
        return ops
    first = events(OPT['EG'])
    while any(e[0] == 'M' and uid(e[1])[0] for e in EV):
        e = EV.pop(0); first += evD(e[1]) if e[0] == 'D' else evM(e[1])
    if OPT['HW']: first += [('wds', ('t', True, 7))]
    else: first += [f's_sub_u32 s{sT0}, s{sPR}, s{sPL}'] + [f'v_subrev_u32 v{vR2L+t}, s{sT0}, v{vR2+t}' for t in range(4)] + [('wds', ('t', True, 15))]
    BF = ST
    fills = {8: [x for i in range(4) for x in (f'v_lshlrev_b32 v{BF+2*i}, 16, v{BI4+i}', f'v_and_b32 v{BF+2*i+1}, 0xffff0000, v{BI4+i}')]}
    nD = EV[0][1] if EV else 22 + NLOW
    npre = nD
    nM = 16
    NB3 = 16 - OPT['NQ']
    def free_slot(n, moved):
        if n < 22: return n % NSL, None
        last = {}
        for k in range(16, n): last[slot_of[uid(k)]] = k
        c = sorted(k for sl, k in last.items() if sl < NSL and k < moved)
        return (slot_of[uid(c[0])], c[0]) if c else (None, None)
    dq = []
    if OPT['HW']:
        hq = []
        for e in EV: hq += evD(e[1]) if e[0] == 'D' else [('grp', evM(e[1]))]
        EV.clear()
        for i in range(OPT['M2B'], NB3 + 4):
            k = OPT['DPS']
            while hq and k > 0:
                o = hq.pop(0)
                if o[0] == 'grp' and o[1][0][0] == 'wvm': fills[i] = fills.get(i, []) + o[1]; k -= 4
                else: fills[i] = fills.get(i, []) + [o]; k -= o[0] != 'wds'
        dq = hq
        nD = nM = 30; npre = 0
    elif OPT['DF']:
        assert npre <= 22 and NLOW == 0 and OPT['M2B'] + npre - 16 <= OPT['W2B']
        order = [n % NSL for n in range(npre, 22)] + [n % NSL for n in range(16, npre)] + [NSL + 3]
        for sl in order:
            if nD < 30:
                u = dma_unit(False, nD - 16, vQ2, sl); nD += 1
                if not dq: u[0] = ('grp', [('wds', ('t',) + uid(npre - 1)), u[0]])
                dq += u
        for i in range(1, NB3 + 4):
            f = []
            if i >= OPT['W2B']:
                k = OPT['DPS'] if i < NB3 else OPT['DPT']
                f += dq[:k]; del dq[:k]
            if i >= OPT['M2B'] and nM < npre: f += evM(nM); nM += 1
            fills[i] = fills.get(i, []) + f
    else:
        for i in range(1, NB3 + 4):
            f = []
            if i >= OPT['W2B'] and nD < 30:
                sl, pv = free_slot(nD, nM)
                if sl is not None:
                    f += ([('wds', ('t',) + uid(pv))] if pv is not None else []) + dma_unit(False, nD - 16, vQ2, sl); nD += 1
            if i >= OPT['M2B'] and nM < npre and nM - 16 < min(i, NB3): f += evM(nM); nM += 1
            fills[i] = fills.get(i, []) + f
            if i == NB3: assert npre <= 22 or nM >= npre
    lowbar = npre > 22
    gemm34(True, 16, fills, first)
    a.stamp(0, 2, 3)
    reduce_rd()
    a(f's_mul_i32 s{sT0}, s{sDT}, {56*4096}')
    a(f's_lshl_b32 s{sT1}, s{sCT3}, 13')
    a(f's_add_u32 s{sT0}, s{sT0}, s{sT1}')
    a(f's_and_b32 s{sT1}, s{sWAVE}, 1')
    a(f's_lshl_b32 s{sT1}, s{sT1}, 12')
    a(f's_add_u32 s{sT0}, s{sT0}, s{sT1}')
    a(f's_add_u32 s{sT0}, s{sT0}, {WS_UF:#x}')
    f3 = [f's_lshl_b32 s{sT2}, s{sDT}, 7', f's_bfe_u32 s{sT1}, s2, {1 | (2 << 16)}', f's_add_u32 s{sT2}, s{sT2}, s{sT1}', f's_lshl_b32 s{sT2}, s{sT2}, 5', f's_add_u32 s{sT2}, s{sT2}, s{sZ}',
          f's_lshl_b32 s{sT2}, s{sT2}, 2', f's_add_u32 s{sT2}, s{sT2}, {WS_F3:#x}']
    a.run(f3)
    C1 = -2.0 * 0.7978845608028654 * 1.4426950408889634
    GC = ST + 8
    a(f'v_mov_b32 v{GC}, {f2h(C1 * 0.044715)}')
    a(f'v_mov_b32 v{GC+1}, {f2h(C1)}')
    T = H
    PK = H + 16
    ep = []
    for k in range(4): ep += reduce_sum(k, lambda k, h: vr(BF + 4 * (k & 1) + 2 * h, 2))
    nred = len(ep)
    ep += [f'v_pk_mul_f32 {vr(T+2*j,2)}, {vr(OWN+2*j,2)}, {vr(OWN+2*j,2)}' for j in range(8)]
    ep += [f'v_pk_fma_f32 {vr(T+2*j,2)}, {vr(T+2*j,2)}, {vr(GC,2)}, {vr(GC,2)} op_sel:[0,0,1] op_sel_hi:[1,0,1]' for j in range(8)]
    ep += [f'v_pk_mul_f32 {vr(T+2*j,2)}, {vr(T+2*j,2)}, {vr(OWN+2*j,2)}' for j in range(8)]
    ep += [f'v_exp_f32 v{T+j}, v{T+j}' for j in range(16)]
    ep += [f'v_pk_add_f32 {vr(T+2*j,2)}, {vr(T+2*j,2)}, 1.0 op_sel_hi:[1,0]' for j in range(8)]
    ep += [f'v_rcp_f32 v{T+j}, v{T+j}' for j in range(16)]
    ep += [f'v_pk_mul_f32 {vr(OWN+2*j,2)}, {vr(T+2*j,2)}, {vr(OWN+2*j,2)}' for j in range(8)]
    ep += [f'v_cvt_pk_bf16_f32 v{PK+j}, v{OWN+2*j}, v{OWN+2*j+1}' for j in range(8)]
    k = OPT['DPE']
    a.run(weave(ep[:len(ep) - OPT['DPL']], dq[:k]) + ep[len(ep) - OPT['DPL']:]); del dq[:k]
    for b in range(2):
        a.vm('ust', f'buffer_store_dwordx4 {vr(PK+4*b,4)}, v{vA0}, {srd(sWS)}, s{sT0} offen offset:{1024*b} sc1')
    flag(sT2)
    a.stamp(0, 3)
    if OPT['OPS'] == 30: a.run(opre(PK, vT0))
    f3a = [f's_lshl_b32 s{sFL}, s{sDT}, 5', f's_add_u32 s{sFL}, s{sFL}, s{sCT4}', f's_lshl2_add_u32 s{sFL}, s{sFL}, s{sWAVE}', f's_lshl_b32 s{sFL}, s{sFL}, 7',
           f's_add_u32 s{sFL}, s{sFL}, {WS_F3:#x}']
    a.run(dq)
    lowbar4 = False
    if OPT['DF'] == 2:
        for j in range(3):
            if nD < 30: a.run(dma_unit(False, nD - 16, vQ2, NSL + j)); nD += 1; lowbar4 = True
    while nM < OPT['MH'] or nD < 30:
        while nD < 30:
            sl, pv = free_slot(nD, nM - 1 if nM < nD else nM)
            if sl is None: break
            if pv is not None: a.wait(ds=[('t',) + uid(pv)])
            a.run(dma_unit(False, nD - 16, vQ2, sl)); nD += 1
        if nM >= OPT['MH'] and nD == 30: break
        a.run(evM(nM)); nM += 1
    nM4 = nM
    smap = dict(slot_of)
    cut0 = len(a.items)
    a.label('L_skip3')
    vq, dq_ = a.vmq, a.dsq
    a.vmq, a.dsq = save[0], save[1]; slot_of.clear(); slot_of.update(save[3])
    a.run(f3)
    flag(sT2, barrier=False)
    a.wait_all(vm=False)
    nD = min([e[1] for e in save[2] if e[0] == 'D' and e[1] >= 16] + [22])
    assert nD <= 22 and all(sl < NSL for (k3, i_), sl in slot_of.items())
    if OPT['HW']:
        for e in save[2]:
            if not uid(e[1])[0]: a.run(evD(e[1]) if e[0] == 'D' else evM(e[1]))
    elif OPT['DF']:
        a.run([f's_sub_u32 s{sT0}, s{sPR}, s{sPL}'] + [f'v_subrev_u32 v{vR2L+t}, s{sT0}, v{vR2+t}' for t in range(4)])
        m = 16
        for n in range(nD, 30):
            pv = [k for k in range(16, n) if smap[uid(k)] == smap[uid(n)]]
            if pv:
                while m <= min(pv[-1] + 1, n - 1, nM4 - 1): a.run(evM(m)); m += 1
                a.wait(ds=[('t',) + uid(pv[-1])])
            a.run(dma_unit(False, n - 16, vQ2, smap[uid(n)]))
        while m < nM4: a.run(evM(m)); m += 1
    else:
        for n in range(nD, 22): a.run(dma_unit(False, n - 16, vQ2, n % NSL))
        for n in range(16, 30):
            a.run(evM(n))
            if n > 16 and n + 5 < 30:
                a.wait(ds=[('t',) + uid(n - 1)])
                a.run(dma_unit(False, n + 5 - 16, vQ2, (n + 5) % NSL))
    a.run(red_addr)
    if OPT['SKT']:
        a(f's_and_b32 s{sT0}, s{sDT}, 3')
        a(f's_lshl2_add_u32 s{sT0}, s{sT0}, s{sWAVE}')
        a(f's_mul_i32 s{sT0}, s{sT0}, {112 * 8}')
        a(f's_and_b32 s{sT1}, s2, 7')
        a(f's_add_u32 s{sT0}, s{sT0}, s{sT1}')
        a(f's_lshl_b32 s{sT0}, s{sT0}, 9')
        a(f'v_lshrrev_b32 v{vT0}, 2, v{vL}')
        a(f'v_and_b32 v{vT1}, 3, v{vL}')
        a(f'v_lshlrev_b32 v{vT1}, 7, v{vT1}')
        a(f'v_lshl_add_u32 v{vT0}, v{vT0}, 12, v{vT1}')
        for n in range(7):
            a(f'buffer_load_dword v{vDUM}, v{vT0}, {srd(sW2)}, s{sT0} offen{nt("NTT")}')
            a(f's_add_u32 s{sT0}, s{sT0}, {16 * 4096}')
    a.wait_all()
    a.vmq = vq; a.dsq = dq_
    slot_of.clear(); slot_of.update(smap)
    a('s_branch L_join3')
    skipblk = a.items[cut0:]; del a.items[cut0:]
    a.label('L_join3')
    if OPT['NF3']: OPT['EP3'] = 0
    if OPT['EP3']: a.run(f3a + [pload(sFL)])
    RES, PMX, vBI = ST, BI4, BI4 + 2
    sRS = sW1A
    if OPT['X4']: a.run([f's_lshr_b32 s{sJ4}, s{sJ4}, 5', f's_lshr_b32 s{sLIM4}, s{sLIM4}, 5'])
    a(f's_mul_i32 s{sT0}, s{sWAVE}, 14')
    a(f's_add_u32 s{sT0}, s{sT0}, s{sROT4}')
    a(f's_lshl_b32 s{sHA}, s{sT0}, 12')
    a(f's_mul_i32 s{sT0}, s{sDT}, {56*4096}')
    a(f's_add_u32 s{sHA}, s{sHA}, s{sT0}')
    a(f's_add_u32 s{sHA}, s{sHA}, {WS_UF:#x}')
    a(f's_sub_u32 s{sHB}, s{sHA}, {14*4096}')
    a(f's_lshl_b32 s{sT0}, s{sCT4}, 7')
    a(f's_lshl_b32 s{sT1}, s{sWAVE}, 5')
    a(f's_add_u32 s{sT0}, s{sT0}, s{sT1}')
    a(f'v_lshlrev_b32 v{vT0}, 1, v{vC}')
    a.vm('b2', f'buffer_load_ushort v{vBI}, v{vT0}, {srd(sB2)}, s{sT0} offen')
    a(f'v_lshrrev_b32 v{vT0}, 3, v{vC}')
    a(f'v_and_b32 v{vT1}, 1, v{vC}')
    a(f'v_lshl_add_u32 v{vT0}, v{vT1}, 1, v{vT0}')
    a(f'v_bfe_u32 v{vT1}, v{vC}, 1, 1')
    a(f'v_lshlrev_b32 v{vT1}, 4, v{vT1}')
    a(f'v_mov_b32 v{vT2}, 0x3f80')
    a(f'v_lshlrev_b32 v{vT1}, v{vT1}, v{vT2}')
    a(f'v_cmp_eq_u32 vcc, v{vT0}, v{vG}')
    a(f'v_cndmask_b32 v{vT1}, 0, v{vT1}, vcc')
    a(f'v_and_b32 v{vT0}, 4, v{vC}')
    a(f'v_cmp_eq_u32 vcc, 0, v{vT0}')
    a(f'v_cndmask_b32 v{PMX}, 0, v{vT1}, vcc')
    a(f'v_cndmask_b32_e64 v{PMX+1}, v{vT1}, 0, vcc')
    a(f'v_lshrrev_b32 v{vA0}, 1, v{vG}')
    a(f'v_lshlrev_b32 v{vA0}, 17, v{vA0}')
    a(f'v_lshl_add_u32 v{vA0}, v{vC}, 4, v{vA0}')
    a(f'v_and_b32 v{vT1}, 1, v{vG}')
    a(f'v_lshl_add_u32 v{vA0}, v{vT1}, 3, v{vA0}')
    a(f's_lshl_b32 s{sRS}, s{sDT}, 18')
    a(f's_lshl_b32 s{sT2}, s{sCT4}, 12')
    a(f's_add_u32 s{sRS}, s{sRS}, s{sT2}')
    a(f's_lshl_b32 s{sT2}, s{sWAVE}, 8')
    a(f's_add_u32 s{sRS}, s{sRS}, s{sT2}')
    a(f's_add_u32 s{sRS}, s{sRS}, {WS_HF:#x}')
    a(f'v_lshlrev_b32 v{vA1}, 10, v{vC}')
    a(f'v_lshl_add_u32 v{vA1}, v{vT1}, 5, v{vA1}')
    a(f'v_lshrrev_b32 v{vT1}, 1, v{vG}')
    a(f'v_lshl_add_u32 v{vA1}, v{vT1}, 4, v{vA1}')
    if OPT['NF3']:
        a.stamp(3)
        if OPT['PW3']: a(f's_sleep {OPT["PW3"]}')
        a(f's_cmp_lt_u32 s{sZ}, 7')
        a('s_cbranch_scc0 L_p3s')
        a.label('L_p3_ok')
        tail.append(['L_p3s:'] + f3a + ['L_p3:', pload(sFL), 's_waitcnt lgkmcnt(0)'] +
                    [f's_xor_b64 s[{sPOLL+2*k}:{sPOLL+2*k+1}], s[{sPOLL+2*k}:{sPOLL+2*k+1}], s[{sNON}:{sNON+1}]' for k in range(4)] +
                    [f's_or_b64 s[{sPOLL}:{sPOLL+1}], s[{sPOLL}:{sPOLL+1}], s[{sPOLL+2}:{sPOLL+3}]', f's_or_b64 s[{sPOLL+4}:{sPOLL+5}], s[{sPOLL+4}:{sPOLL+5}], s[{sPOLL+6}:{sPOLL+7}]',
                     f's_or_b64 s[{sPOLL}:{sPOLL+1}], s[{sPOLL}:{sPOLL+1}], s[{sPOLL+4}:{sPOLL+5}]', 's_cbranch_scc0 L_p3_ok', f's_sub_u32 s{sBUD}, s{sBUD}, 1', 's_cbranch_scc0 L_p3',
                     f's_mov_b32 s{sBUD}, 0', 's_branch L_p3_ok'])
    else:
        if not OPT['EP3']: a.run(f3a)
        poll('L_p3', sFL, OPT['EP3'] > 0)
    a.stamp(0, 2, 3)
    N4 = 14 - OPT['NQ']
    fills = {2: [('vm', 'res', f'buffer_load_dwordx2 {vr(RES+2*t,2)}, v{vA0}, {srd(sWS)}, s{sRS} offen offset:{1024*t} sc1') for t in range(4)],
             N4 + 2: [('wvm', 'res')] + [f'v_mfma_f32_16x16x16_bf16 {acc34(False,0,t)[1]}, {vr(RES+2*t,2)}, {vr(PMX,2)}, {acc34(False,0,t)[1]}' for t in range(4)],
             3: [f'v_lshlrev_b32 v{vBI}, 16, v{vBI}', f'v_mov_b32 v{vBI+1}, v{vBI}', f's_lshl_b32 s{sT0}, s{sCT4}, 16', f's_lshl_b32 s{sT1}, s{sWAVE}, 14',
                 f's_add_u32 s{sT0}, s{sT0}, s{sT1}', f's_lshl_b32 s{sT1}, s{sDT}, 7', f's_add_u32 s{sT0}, s{sT0}, s{sT1}']}
    if OPT['OPF'] >= 0:
        fills[OPT['OPF']] = fills.get(OPT['OPF'], []) + [('vm', 'opf', f'buffer_load_dword v{vDUM}, v{vA1}, {srd(sOUT)}, s{sT0} offen')]
    first4 = []
    for n in range(nM4, 30):
        st = min(n - 16 - OPT['ML'], n - nM4 + OPT['M2B'] - 1, N4 - 1)
        if st < 0: first4 += evM(n)
        else: fills[st] = fills.get(st, []) + evM(n)
    lowbar = lowbar4
    gemm34(False, 14, fills, first4)
    a.stamp(0, 2)
    reduce_rd()
    for k in range(4): a.run(reduce_sum(k, lambda k, h: vr(vBI, 2)))
    for j in range(8): a(f'v_cvt_pk_bf16_f32 v{PK+j}, v{OWN+2*j}, v{OWN+2*j+1}')
    for e in range(2):
        for h in range(2):
            a(f'v_permlane16_swap_b32 v{PK+4*e+h}, v{PK+4*e+2+h}')
    for e in range(2):
        a(f'buffer_store_dwordx4 {vr(PK+4*e,4)}, v{vA1}, {srd(sOUT)}, s{sT0} offen offset:{64*e}' + ['', ' sc1', ' nt', ' sc0 sc1'][OPT['OSC']])
    a.stamp()
    if PROF:
        a('s_waitcnt lgkmcnt(0)')
        a(f's_cmp_lg_u32 s{sWAVE}, 0')
        a('s_cbranch_scc1 L_end')
        if OPT['AMP'] >= 0:
            a(f's_cmp_lg_u32 s2, {OPT["AWG"]}')
            a('s_cbranch_scc1 L_end')
            a(f's_sub_u32 s{sT2}, s{70+2*OPT["AMP"]}, s70')
            a(f's_lshl_b32 s{sT2}, s{sT2}, 3')
            a(f's_min_u32 s{sT2}, s{sT2}, 100000')
            a(f's_memrealtime s[{sT0}:{sT1}]')
            a('s_waitcnt lgkmcnt(0)')
            a(f's_mov_b32 s{sCNT}, s{sT0}')
            a.label('L_amp')
            a(f's_memrealtime s[{sT0}:{sT1}]')
            a('s_waitcnt lgkmcnt(0)')
            a(f's_sub_u32 s{sT0}, s{sT0}, s{sCNT}')
            a(f's_cmp_lt_u32 s{sT0}, s{sT2}')
            a('s_cbranch_scc1 L_amp')
            a('s_branch L_end')
        a(f's_mul_i32 s{sT0}, s2, {NSTAMP * 8}')
        a(f's_add_u32 s{sT0}, s{sT0}, {128 * MB:#x}')
        a(f's_add_u32 s{sT0}, s{sWS}, s{sT0}')
        a(f's_addc_u32 s{sT1}, s{sWS+1}, 0')
        a(f's_sub_u32 s{sT0}, s{sT0}, {OPT["WSO"] * MB:#x}')
        a(f's_subb_u32 s{sT1}, s{sT1}, 0')
        a(f'v_mov_b32 v{vT0}, 0')
        for i in range(a.nst):
            a(f'v_mov_b32 v{H+2*i}, s{70+2*i}')
            a(f'v_mov_b32 v{H+2*i+1}, s{71+2*i}')
            a(f'global_store_dwordx2 v{vT0}, v[{H+2*i}:{H+2*i+1}], s[{sT0}:{sT1}] offset:{8*i}')
        a(f'v_mov_b32 v{H}, s{sBUD}')
        a(f'v_mov_b32 v{H+1}, 0')
        a(f'global_store_dwordx2 v{vT0}, v[{H}:{H+1}], s[{sT0}:{sT1}] offset:{8*19}')
        a(f'v_mov_b32 v{H+10}, s101')
        a(f'v_mov_b32 v{H+11}, 0')
        a(f'global_store_dwordx2 v{vT0}, v[{H+10}:{H+11}], s[{sT0}:{sT1}] offset:{8*15}')
        for k, r in enumerate((252, 254, 255)):
            a(f'v_mov_b32 v{H+2+2*k}, v{r}')
            a(f'v_mov_b32 v{H+3+2*k}, 0')
            a(f'global_store_dwordx2 v{vT0}, v[{H+2+2*k}:{H+3+2*k}], s[{sT0}:{sT1}] offset:{8*(16+k)}')
    a.label('L_end')
    a('s_endpgm')
    a.items += skipblk
    for blk in tail:
        for ln in blk: a(ln)
    a.raw('.p2align 8, 0')
    a.label('L_last')
    a.raw('.fill 64, 4, 0xbf810000')
    return a, name, LDS

HEADER = open('cdna_kernels/' + NAME + '.s.ref').read().split('; Override launch')[0]

def hops(body):
    import subprocess, re, tempfile, os
    lines = body.split('\n')
    d = tempfile.mkdtemp()
    src = '.amdgcn_target "amdgcn-amd-amdhsa--gfx950"\n.text\n' + body + ''.join(f'L_pg{k}:\n' for k in range(1, 9))
    open(d + '/t.s', 'w').write(src)
    subprocess.run(['clang', '-x', 'assembler', '-target', 'amdgcn-amd-amdhsa', '-mcpu=gfx950', '-c', d + '/t.s', '-o', d + '/t.o'], check=True)
    dis = subprocess.run(['llvm-objdump', '-d', d + '/t.o'], capture_output=True, text=True).stdout
    addr = [int(m.group(1), 16) for m in re.finditer(r'// ([0-9A-F]{12}):', dis)]
    out = []; k = 0; pg = 1; shift = 0; done = False
    for ln in lines:
        if ln.startswith('.p2align 8, 0'): done = True
        if ln.startswith('    ') and not done:
            if pg <= 8 and addr[k] + shift >= 4096 * pg:
                tg = ("L_pgb" if pg % 2 == 0 else f"L_pg{pg+1}") if OPT['HOP'] == 1 else ('L_pgb' if pg <= 4 else 'L_pgc')
                out += [f'L_pg{pg}:', f'    s_cbranch_execz {tg}']
                pg += 1; shift += 4
            k += 1
        if ln.startswith('.p2align 8, 0'):
            while pg <= 8:
                out += [f'L_pg{pg}:']; pg += 1
            out += ['    s_branch ' + ('L_pgb' if OPT['HOP'] == 1 else 'L_pgc')]
        out.append(ln)
    return '\n'.join(out)

def main():
    a, name, lds = gen()
    body = a.finalize()
    if OPT['HOP']: body = hops(body)
    out = HEADER + f'; @launch grid=(256,1,1) block=(256,1,1) lds={lds}\n'
    out += '.amdgcn_target "amdgcn-amd-amdhsa--gfx950"\n.text\n' + body
    out += f""".section .rodata,"a"
.p2align 6
.amdhsa_kernel {name}
  .amdhsa_next_free_vgpr 512
  .amdhsa_next_free_sgpr 102
  .amdhsa_accum_offset 256
  .amdhsa_group_segment_fixed_size 0
  .amdhsa_kernarg_size 88
  .amdhsa_user_sgpr_count 2
  .amdhsa_user_sgpr_kernarg_segment_ptr 1
  .amdhsa_system_sgpr_workgroup_id_x 1
.end_amdhsa_kernel
"""
    open(sys.argv[1], 'w').write(out)
    print('nops inserted', a.nops_inserted, 'lines', out.count('\n'), 'stamps', a.nst)

if __name__ == '__main__':
    main()
```
